```python
import torch

def _softmax(x, axis=-1):
    return torch.softmax(x, dim=axis)
def _gelu(x):
    return torch.nn.functional.gelu(x, approximate="tanh")
def _silu(x):
    return torch.nn.functional.silu(x)
def _sigmoid(x):
    return torch.sigmoid(x)
def _layernorm(x, axis=-1, eps=1e-5):
    m = x.mean(dim=axis, keepdim=True)
    v = x.var(dim=axis, keepdim=True, unbiased=False)
    return (x - m) / torch.sqrt(v + eps)
def _scatter_add(tgt, idx, src, axis=0):
    return tgt.clone().index_add_(axis, idx, src)
def _segment_sum(src, seg, n):
    out = torch.zeros((n,) + src.shape[1:], dtype=src.dtype)
    return out.index_add_(0, seg, src)
def _pad(x, pw):
    flat = tuple(v for pair in reversed(pw) for v in pair)
    return torch.nn.functional.pad(x, flat)

kernel_name = 'sequential_preLN__mha_block__mixer_s_mlp__prompt'

def setup_inputs():

    _w = (lambda a: (lambda t: t.to(torch.bfloat16) if t.is_floating_point() else t)(torch.as_tensor(a)))
    def _A_setup():
        B, S, D, H = 1, 2048, 512, 32
        return {
            "x": _w((lambda *s: torch.randn(*s, dtype=torch.bfloat16) * 0.05)(B, S, D)),
            "wqkv": _w((lambda *s: torch.randn(*s, dtype=torch.bfloat16) * 0.05)(D, 3 * D)),
            "wo": _w((lambda *s: torch.randn(*s, dtype=torch.bfloat16) * 0.05)(D, D)),
        }
    _A_in = _A_setup()

    def _B_setup():
        B, S, D, F = 1, 2048, 512, 1792
        return {
            "x":  _w((lambda *s: torch.randn(*s, dtype=torch.bfloat16) * 0.05)(B, S, D)),
            "w1": _w((lambda *s: torch.randn(*s, dtype=torch.bfloat16) * 3.2)(D, D) * (D ** -0.5)),
            "w2": _w((lambda *s: torch.randn(*s, dtype=torch.bfloat16) * 3.2)(D, D) * (D ** -0.5)),
            "w3": _w((lambda *s: torch.randn(*s, dtype=torch.bfloat16) * 3.2)(D, F) * (D ** -0.5)),
            "w4": _w((lambda *s: torch.randn(*s, dtype=torch.bfloat16) * 3.2)(F, D) * (F ** -0.5)),
        }
    _B_in = _B_setup()

    return {
        "A_x": _A_in["x"],
        "A_wqkv": _A_in["wqkv"],
        "A_wo": _A_in["wo"],
        "B_x": _B_in["x"],
        "B_w1": _B_in["w1"],
        "B_w2": _B_in["w2"],
        "B_w3": _B_in["w3"],
        "B_w4": _B_in["w4"],
    }

def reference(A_x, A_wqkv, A_wo, B_x, B_w1, B_w2, B_w3, B_w4):
    def _A_ref(x, wqkv, wo):
        B, S, D = x.shape
        H = 32
        Dh = D // H
        qkv = (lambda x, *d: x.permute(*d))((x @ wqkv).reshape(B, S, 3, H, Dh), 2, 0, 3, 1, 4)
        q, k, v = qkv[0], qkv[1], qkv[2]
        scores = torch.einsum("bhqd,bhkd->bhqk", q, k) * (Dh ** -0.5)
        p = _softmax(scores, axis=-1)
        o = torch.einsum("bhqk,bhkd->bhqd", p, v)
        return (lambda x, *d: x.permute(*d))(o, 0, 2, 1, 3).reshape(B, S, D) @ wo

    def _B_ref(x, w1, w2, w3, w4):
        B, S, D = x.shape
        h = _gelu(_layernorm(x, axis=-1) @ w1)
        c = D // 4
        g0 = _pad(h[:, :, 0*c:1*c], ((0, 0), (1, 0), (0, 0)))[:, :S, :]
        g1 = _pad(h[:, :, 1*c:2*c], ((0, 0), (0, 1), (0, 0)))[:, 1:, :]
        g2 = _pad(h[:, :, 2*c:3*c], ((0, 0), (2, 0), (0, 0)))[:, :S, :]
        g3 = _pad(h[:, :, 3*c:   ], ((0, 0), (0, 2), (0, 0)))[:, 2:, :]
        hs = torch.concatenate([g0, g1, g2, g3], axis=-1) @ w2
        x1 = x + hs
        h2 = _gelu(_layernorm(x1, axis=-1) @ w3) @ w4
        return x1 + h2

    x = A_x
    h = x + _A_ref(_layernorm(x, axis=-1), A_wqkv, A_wo)
    h2 = h + _B_ref(_layernorm(h, axis=-1), B_w1, B_w2, B_w3, B_w4)
    return h2
```

```python
import re

REG_RE = re.compile(r'^(-?)(?:abs\(|\|)?([vas])(?:(\d+)|\[(\d+):(\d+)\])\)?\|?$')

def regs_of(tok):
    tok = tok.strip()
    if tok in ('vcc',): return {('s', 106), ('s', 107)}
    if tok == 'vcc_lo': return {('s', 106)}
    if tok == 'vcc_hi': return {('s', 107)}
    if tok == 'exec': return {('s', 126), ('s', 127)}
    if tok == 'm0': return {('s', 124)}
    if tok == 'exec_lo': return {('s', 126)}
    if tok == 'exec_hi': return {('s', 127)}
    m = REG_RE.match(tok)
    if not m: return set()
    k = m.group(2)
    if m.group(3) is not None:
        return {(k, int(m.group(3)))}
    return {(k, i) for i in range(int(m.group(4)), int(m.group(5)) + 1)}

TRANS = ('v_exp_f32', 'v_log_f32', 'v_rcp_f32', 'v_rsq_f32', 'v_sqrt_f32', 'v_sin_f32', 'v_cos_f32', 'v_rcp_iflag_f32',
         'v_exp_f16', 'v_rcp_f16')

class Ins:
    __slots__ = ('text', 'op', 'ops', 'mods', 'dst', 'src', 'kind', 'srcA', 'srcB', 'srcC', 'passes', 'ws', 'label', 'target', 'data')
    def __init__(self, text):
        self.text = text
        self.label = None; self.target = None
        t = text.split(';')[0].strip()
        self.dst = set(); self.src = set(); self.kind = 'other'
        self.srcA = self.srcB = self.srcC = set(); self.passes = 0; self.ws = 1; self.data = set()
        if not t or t.startswith('.'):
            self.op = ''; self.ops = []; self.ws = 0; self.kind = 'none'; self.mods = ''
            return
        if t.endswith(':'):
            self.op = ''; self.ops = []; self.ws = 0; self.kind = 'label'; self.label = t[:-1]; self.mods = ''
            return
        parts = t.split(None, 1)
        op = parts[0]; rest = parts[1] if len(parts) > 1 else ''
        self.op = op
        bm = ' '.join(re.findall(r'\b(?:op_sel|op_sel_hi|neg_lo|neg_hi|quad_perm):\[[^\]]*\]', rest))
        rest = re.sub(r'\b(?:op_sel|op_sel_hi|neg_lo|neg_hi|quad_perm):\[[^\]]*\]', '', rest)
        rest = re.sub(r'hwreg\([^)]*\)', 'hwreg', rest)
        ops = [o.strip() for o in rest.split(',')] if rest else []
        mods = ''
        if ops:
            l = ops[-1].split(None, 1)
            ops[-1] = l[0] if l else ''
            mods = l[1] if len(l) > 1 else ''
        mods = (mods + ' ' + bm).strip()
        self.ops = ops; self.mods = mods
        assert not (op.startswith('v_pk_') and re.search(r'op_sel:\[', mods)), 'op_sel on packed f32 is unsafe beside MFMA: ' + text
        R = [regs_of(o) for o in ops]
        base = re.sub(r'_(e32|e64|dpp|sdwa)$', '', op)
        if op == 's_nop':
            self.ws = int(ops[0], 0) + 1; self.kind = 'salu'
        elif op.startswith('v_mfma'):
            self.kind = 'mfma'
            self.dst = R[0]; self.srcA = R[1]; self.srcB = R[2]; self.srcC = R[3]
            self.src = R[1] | R[2] | R[3]
            if '32x32x16' in op: self.passes = 8
            elif '16x16x32' in op: self.passes = 4
            elif '4x4x4' in op: self.passes = 2
            else: raise ValueError('unknown mfma ' + op)
        elif op.startswith('v_'):
            self.kind = 'valu'
            if base.startswith('v_cmp'):
                self.dst = R[0] | (regs_of('exec') if base.startswith('v_cmpx') else set())
                for r in R[1:]: self.src |= r
            elif base in ('v_permlane32_swap_b32', 'v_permlane16_swap_b32', 'v_swap_b32'):
                self.dst = R[0] | R[1]; self.src = R[0] | R[1]
            elif base in ('v_add_co_u32', 'v_sub_co_u32', 'v_subrev_co_u32', 'v_addc_co_u32', 'v_subb_co_u32', 'v_mad_u64_u32', 'v_div_scale_f32'):
                self.dst = R[0] | R[1]
                for r in R[2:]: self.src |= r
            elif base == 'v_nop':
                pass
            else:
                self.dst = R[0]
                for r in R[1:]: self.src |= r
                if base in ('v_fmac_f32', 'v_dot2c_f32_bf16', 'v_dot2c_f32_f16', 'v_pk_fmac_f16', 'v_writelane_b32') or 'UNUSED_PRESERVE' in mods or op.endswith('_dpp'):
                    self.src |= R[0]
        elif op.startswith('ds_'):
            self.kind = 'ds'
            if op.startswith('ds_read') or op.startswith('ds_bpermute') or op.startswith('ds_permute') or op.startswith('ds_swizzle') or '_rtn' in op:
                self.dst = R[0]
                for r in R[1:]: self.src |= r
            else:
                for r in R: self.src |= r
        elif op.startswith('buffer_') or op.startswith('global_'):
            self.kind = 'vmem'
            islds = ' lds' in (' ' + mods) or '_lds_' in op
            if op in ('buffer_inv', 'buffer_wbl2'):
                pass
            elif 'load' in op and not islds:
                self.dst = R[0]
                for r in R[1:]: self.src |= r
            elif 'load' in op and islds:
                for r in R: self.src |= r
                self.src |= regs_of('m0')
            else:
                for r in R: self.src |= r
                if op.startswith('buffer_'): self.data = R[0]
                else: self.data = R[1]
                if 'atomic' in op and 'sc0' in mods:
                    self.dst = R[0]
        elif op.startswith('s_'):
            self.kind = 'salu'
            if op.startswith('s_cbranch') or op == 's_branch':
                self.target = ops[0]
            elif op.startswith('s_cmp') or op in ('s_waitcnt', 's_barrier', 's_endpgm', 's_setprio', 's_sleep', 's_bitcmp0_b32', 's_bitcmp1_b32'):
                for r in R: self.src |= r
            elif op.startswith('s_load') or op.startswith('s_buffer_load') or op in ('s_memtime', 's_memrealtime'):
                self.kind = 'smem'
                self.dst = R[0]
                for r in R[1:]: self.src |= r
            else:
                if R: self.dst = R[0]
                for r in R[1:]: self.src |= r
                if 'saveexec' in op: self.dst = self.dst | regs_of('exec')
        else:
            raise ValueError('unknown instruction: ' + text)

    def is_trans(self):
        return re.sub(r'_(e32|e64|dpp|sdwa)$', '', self.op) in TRANS
    def is_dot(self):
        return self.op.startswith('v_dot')

def vset(s): return {r for r in s if r[0] in 'va'}
def sset(s): return {r for r in s if r[0] == 's'}

def required_ws(p, c):
    need = 0
    XD = {2: 5, 4: 8, 8: 12}; XC = {2: 4, 4: 6, 8: 10}; XW = {2: 1, 4: 3, 8: 7}
    if p.kind == 'mfma':
        D = p.dst
        if c.kind == 'mfma':
            if D & (c.srcA | c.srcB): need = max(need, XD[p.passes])
            if D & c.srcC:
                if c.srcC == D and c.passes == p.passes: need = max(need, 2 if p.passes == 2 else 0)
                else: need = max(need, XC[p.passes])
            elif D & c.dst:
                need = max(need, XC[p.passes])
        elif c.kind in ('valu', 'ds', 'vmem'):
            if D & (c.src | c.dst): need = max(need, XD[p.passes])
        if c.kind == 'valu' and (p.srcC & c.dst): need = max(need, XW[p.passes])
    if p.kind == 'valu':
        vd = vset(p.dst); sd = sset(p.dst)
        if c.kind == 'mfma' and (vd & c.src): need = max(need, 2)
        if c.kind == 'mfma' and (sd & regs_of('exec')): need = max(need, 4)
        if c.kind == 'valu':
            if p.is_trans() and not c.is_trans() and (vd & c.src): need = max(need, 1)
            if p.is_dot():
                if not (c.op == p.op and not (vd & (c.src - c.dst))) and (vd & (c.src | c.dst)): need = max(need, 3)
            if (c.op.endswith('_dpp') or 'row_' in c.mods or 'quad_perm' in c.mods) and (vd & c.src): need = max(need, 2)
            if c.op.startswith('v_permlane') and (vd & c.src): need = max(need, 2)
            if c.op.startswith('v_readlane') or c.op.startswith('v_readfirstlane'):
                if vd & c.src: need = max(need, 1)
                if sd & c.src: need = max(need, 4)
                if sd & regs_of('exec'): need = max(need, 4)
            if sd & c.src: need = max(need, 2)
            if c.op.startswith('v_cndmask') and len(c.ops) == 3 and (sd & regs_of('vcc')): need = max(need, 2)
            if ('sdwa' in p.op or ('op_sel' in p.mods and not p.op.startswith('v_pk_'))) and (vd & (c.src | c.dst)): need = max(need, 1)
            if (sd & regs_of('exec')) and (c.op.endswith('_dpp')): need = max(need, 5)
            if (sd & regs_of('exec')) and c.op.startswith('v_permlane'): need = max(need, 4)
        if p.is_dot() and c.kind in ('ds', 'vmem', 'mfma') and (vd & c.src): need = max(need, 3)
        if p.is_trans() and c.kind in ('ds', 'vmem') and (vd & c.src): need = max(need, 1)
        if c.kind == 'vmem' and (sd & c.src): need = max(need, 5)
        if c.kind in ('salu', 'smem') and (sd & c.src): need = max(need, 1)
    if p.kind == 'salu':
        if (p.dst & regs_of('m0')) and c.kind == 'vmem' and (c.src & regs_of('m0')): need = max(need, 1)
    if p.kind == 'vmem' and p.data and len(p.data) >= 3:
        if c.kind in ('valu', 'mfma') and (p.data & c.dst): need = max(need, 2)
        elif (p.data & c.dst): need = max(need, 1)
    if p.kind == 'ds' and not p.dst:
        if c.kind in ('valu', 'mfma') and len(vset(p.src)) >= 4 and (vset(p.src) & c.dst): need = max(need, 2)
    return need

WINDOW = 24

class Asm:
    def __init__(self):
        self.ins = []
        self.nops_inserted = 0
        self.vm = []
    def __call__(self, text):
        for line in text.split('\n'):
            line = line.strip()
            if not line: continue
            self._emit(Ins(line))
    def _emit(self, c):
        if c.kind not in ('none', 'label'):
            dist = 0; need = 0
            for p in reversed(self.ins[-64:]):
                if p.kind in ('none', 'label'): continue
                if p.op in ('s_branch', 's_endpgm'): break
                r = required_ws(p, c)
                if r > dist: need = max(need, r - dist)
                dist += p.ws
                if dist >= WINDOW: break
            while need > 0:
                n = min(need, 16)
                self.ins.append(Ins(f's_nop {n-1}'))
                self.nops_inserted += n
                need -= n
        self.ins.append(c)
    def label(self, name): self(f'{name}:')
    def comment(self, s): self.ins.append(Ins('; ' + s))
    def vissue(self, text, tag=None):
        self(text); self.vm.append(tag)
    def vwait(self, tag, extra=''):
        idx = max([i for i, t in enumerate(self.vm) if t == tag], default=-1)
        if idx < 0:
            if extra: self(f's_waitcnt {extra}')
            return
        n = len(self.vm) - 1 - idx
        assert n <= 63, f'vmcnt {n} too large'
        self(f's_waitcnt vmcnt({n}) {extra}'.strip())
        self.vm = self.vm[idx + 1:]
    def vwait_all(self, extra=''):
        self(f's_waitcnt vmcnt(0) {extra}'.strip()); self.vm = []
    def check_edges(self):
        labels = {c.label: i for i, c in enumerate(self.ins) if c.kind == 'label'}
        errs = []
        for i, b in enumerate(self.ins):
            if b.target is None or b.target not in labels: continue
            pre = [p for p in self.ins[max(0, i - 48):i + 1] if p.kind not in ('none', 'label')]
            j = labels[b.target]
            post = [c for c in self.ins[j:j + 48] if c.kind not in ('none', 'label')]
            dpost = 0
            for c in post:
                dist = dpost
                for p in reversed(pre):
                    r = required_ws(p, c)
                    if r > dist: errs.append(f'edge hazard via {b.text!r}: {p.text!r} -> {c.text!r} need {r} have {dist}')
                    dist += p.ws
                    if dist >= WINDOW: break
                dpost += c.ws
                if dpost >= WINDOW or c.op in ('s_branch', 's_endpgm'): break
        return errs
    def text(self):
        out = []
        for c in self.ins:
            out.append(c.text if c.kind in ('label',) or c.text.startswith(';') or c.text.startswith('.') else '    ' + c.text)
        return '\n'.join(out)
    def max_regs(self):
        mv = ms = ma = -1
        for c in self.ins:
            for (k, i) in (c.dst | c.src):
                if k == 'v': mv = max(mv, i)
                elif k == 'a': ma = max(ma, i)
                elif k == 's' and i < 106: ms = max(ms, i)
        return mv + 1, ma + 1, ms + 1

def vr(a, n=1): return f'v{a}' if n == 1 else f'v[{a}:{a+n-1}]'
def sr(a, n=1): return f's{a}' if n == 1 else f's[{a}:{a+n-1}]'

def kernel_desc(name, nv, ns, na=0):
    acc = (max(nv, 4) + 3) // 4 * 4
    nfv = acc + na if na else nv
    return f""".p2align 6
.amdhsa_kernel {name}
  .amdhsa_next_free_vgpr {nfv}
  .amdhsa_next_free_sgpr {max(ns, 16)}
  .amdhsa_accum_offset {acc}
  .amdhsa_group_segment_fixed_size 0
  .amdhsa_kernarg_size 88
  .amdhsa_user_sgpr_count 2
  .amdhsa_user_sgpr_kernarg_segment_ptr 1
  .amdhsa_system_sgpr_workgroup_id_x 1
  .amdhsa_float_denorm_mode_32 3
  .amdhsa_float_denorm_mode_16_64 3
.end_amdhsa_kernel"""

class Stamper:
    def __init__(self, a, sbase, enabled, n=24):
        self.a, self.sb, self.en, self.n = a, sbase, enabled, n
        self.names = []
        self.alt = {}
    def stamp(self, name, real=False, slot=None):
        if not self.en: return
        sel = getattr(self, 'sel', None)
        if name not in ('start', 'start_rt', 'end', 'end_rt'):
            grp = name.split('.')[0] if '.' in name else 'main'
            if grp != (sel or 'main'): return
        if slot is None:
            i = len(self.names); self.names.append(name)
        else:
            i = slot; self.alt = getattr(self, 'alt', {}); self.alt[slot] = name
        assert i < self.n
        a = self.a
        t = self.sb + self.n
        t += t & 1
        if getattr(self, 'rt', False) and name not in ('start', 'end'): real = True
        a(f'{"s_memrealtime" if real else "s_memtime"} s[{t}:{t+1}]')
        a('s_waitcnt lgkmcnt(0)')
        a(f's_mov_b32 s{self.sb+i}, s{t}')
    def flush(self, ws_lo, kidx, s_wave, ts_base, vt=0):
        if not self.en: return
        a = self.a
        t = self.sb + self.n; t += t & 1
        a('s_waitcnt vmcnt(0) lgkmcnt(0)')
        a(f's_mov_b32 s8, s{ws_lo}\ns_mov_b32 s9, s{ws_lo+1}\ns_mov_b32 s10, 0x10000000\ns_mov_b32 s11, 0x20000')
        a(f's_lshl_b32 s{t}, s2, 10')
        a(f's_lshl_b32 s{t+1}, s{s_wave}, 7')
        a(f's_add_u32 s{t}, s{t}, s{t+1}')
        a(f's_add_u32 s{t}, s{t}, {ts_base + kidx*262144}')
        a(f'v_mov_b32 v{vt}, 0')
        a('s_mov_b64 exec, 1')
        for i in range(len(self.names)):
            a(f'v_mov_b32 v{vt+1}, s{self.sb+i}')
            a(f'buffer_store_dword v{vt+1}, v{vt}, s[8:11], s{t} offen offset:{4*i}')
        a('s_mov_b64 exec, -1')
```

```python
import sys, os
sys.path.insert(0, os.path.dirname(__file__))
from asmlib import *
HDR = open('sequential_preLN__mha_block__mixer_s_mlp__prompt.s.ref').read().split('; Override launch')[0]
def build(kernels, path):
    out = [HDR.rstrip('\n')]
    for (n, a, g, b, lds) in kernels:
        if n.startswith('sequential_'): out.append(f'; @launch grid=({g},1,1) block=({b},1,1) lds={lds}')
        else: out.append(f'; @launch kernel={n} grid=({g},1,1) block=({b},1,1) lds={lds}')
    out.append('.amdgcn_target "amdgcn-amd-amdhsa--gfx950"')
    out.append('.text')
    seen = set()
    for (n, a, g, b, lds) in kernels:
        if n in seen: continue
        seen.add(n)
        errs = a.check_edges()
        for e in errs: print('HAZARD', n, e)
        out.append(a.text())
    out.append('.section .rodata,"a"')
    seen = set()
    for (n, a, g, b, lds) in kernels:
        if n in seen: continue
        seen.add(n)
        nv, na, ns = a.max_regs()
        print(f'{n}: vgpr={nv} agpr={na} sgpr={ns} nops={a.nops_inserted} instrs={len(a.ins)} lds={lds}')
        out.append(kernel_desc(n, nv, ns, na))
    open(path, 'w').write('\n'.join(out) + '\n')
```

```python
QKVB = 0x000000
QKVG = 0xC0000
GB = 0x600000
G_O = 0x00000
G_H = 0x40000
G_HH = 0x80000
G_X1 = 0xC0000
G_H2 = 0x100000
G_ST1 = 0x1E0000
G_ST2 = 0x1E4000
G_FQ = 0x1E8000
G_FH = 0x1E8400
G_FHH = 0x1E8880
G_FX1 = 0x1E9000
G_FH2 = 0x1E9400
G_FHX = 0x1EC000
WOF = 0x1600000
W1F = 0x1680000
W2F = 0x1700000
W3F = 0x1780000
W4F = 0x1940000
F_O = 0x1B40000
F_PREP = 0x1B08000
F_XCC = 0x1B10000
C3P = 0x1B20000
TS = 0x1B80000
PXB = 0x1C00000
WS_USED = 0x2C00000
QSCALE = 0.25 * 1.4426950408889634
```

```python
from asmlib import *
from layout import *
import struct
def f2u(x): return struct.unpack('<I', struct.pack('<f', x))[0]
def H(x): return hex(f2u(x))

LDS_SIZE = 160 * 1024
XL = 0; WL = 65536; WSLOT = 24576; NSLOT = 3
CSUM = WL + NSLOT * WSLOT
RST = CSUM + 1024
RING = 0; CONST = 32768; WA = 36864; WB = 102400
PREP = 143360
W2L = 0; NW2L = 7; W1X = 28672; CS1 = 32768; C3L = 33024
W3L = WB; PKA = 0; PKB = WB + 24576; NONL = RST + 512
XT = WA
RED = 0

GELU_C0 = -2.0 * 0.7978845608028654 * 1.4426950408889634
GELU_C1 = GELU_C0 * 0.044715

S_WAVE, S_X, S_I, S_RB, S_CT, S_R16 = 20, 21, 22, 23, 24, 25
P_X, P_WQKV, P_WO, P_W1, P_W2, P_W3, P_W4, P_OUT, P_DBG, P_WS = 36, 38, 40, 44, 46, 48, 50, 52, 54, 56
S_NON = 58; S_SPIN = 60; S_MODE = 61; S_C1 = 62; S_ONE = 64
S_QKV, S_HD, S_RHO, S_Q, S_SLAB, S_M2 = 66, 67, 68, 69, 70, 71
S_U = 72
S_GB = 3; S_J = 4; S_W4 = 5; S_A = 6; S_B = 7; S_C0 = 42
W3 = 128; W4 = 144

def gen_mega(name='mega_kernel', diag=False, force_safe=False, force_fallback=False, sel=None, opt=''):
    a = Asm()
    T = Stamper(a, 76, diag); a.T = T; T.sel = sel; T.rt = ('rt' in opt.split(','))
    uid = [0]
    def L(s): uid[0] += 1; return f'L_{s}{uid[0]}'
    def srd(base, p, size):
        a(f's_mov_b32 s{base}, s{p}\ns_mov_b32 s{base+1}, s{p+1}\ns_mov_b32 s{base+2}, {hex(size)}\ns_mov_b32 s{base+3}, 0x20000')
    END = f'{name}_end'
    KVNT = 'nt ' if 'kvnt' in opt else ''

    a(f'.globl {name}\n.p2align 8\n.type {name},@function')
    a.label(name)
    a(f's_cmp_ge_u32 s2, 256\ns_cbranch_scc1 {END}')
    a('s_load_dwordx16 s[36:51], s[0:1], 0')
    a('s_load_dwordx4 s[52:55], s[0:1], 64')
    a('s_load_dwordx2 s[56:57], s[0:1], 80')
    a('v_lshrrev_b32 v1, 6, v0')
    a('v_and_b32 v2, 63, v0')
    a(f'v_readfirstlane_b32 s{S_WAVE}, v1')
    a(f's_and_b32 s{S_X}, s2, 7')
    a(f's_lshr_b32 s{S_I}, s2, 3')
    a(f's_lshr_b32 s{S_RB}, s{S_I}, 3')
    a(f's_and_b32 s{S_CT}, s{S_I}, 7')
    a(f's_and_b32 s{S_Q}, s{S_WAVE}, 3')
    if diag:
        for i in range(24): a(f's_mov_b32 s{76+i}, 0')
        T.stamp('start_rt', True); T.stamp('start')
    CW1 = L('cw1')
    a(f's_cmp_lt_u32 s{S_WAVE}, 4')
    a(f's_cbranch_scc1 {CW1}')

    def common_consts():
        a('v_lshlrev_b32 v3, 4, v2')
        a('v_and_b32 v4, 31, v2')
        a('v_lshrrev_b32 v5, 5, v2')
        a('v_and_b32 v6, 15, v2')
        a('v_lshrrev_b32 v7, 4, v2')
        a('v_bfe_u32 v8, v2, 2, 2')
        a('v_and_b32 v9, 3, v2')
        a('v_lshlrev_b32 v1, 3, v2')
        a(f's_lshl_b32 s{S_R16}, s{S_RB}, 2')
        a(f's_add_u32 s{S_SLAB}, s{S_R16}, s{S_Q}')
        a(f's_lshl_b32 s{S_GB}, s{S_X}, 21')
        a(f's_add_u32 s{S_GB}, s{S_GB}, {GB}')
        a(f's_mul_i32 s{S_QKV}, s{S_X}, {QKVG}')
        a(f's_lshl_b32 s{S_HD}, s{S_RB}, 16')
        a(f's_add_u32 s{S_HD}, s{S_HD}, s{S_QKV}')
        a(f's_cmp_gt_u32 s{S_WAVE}, 3')
        a(f's_subb_u32 s{S_J}, s{S_WAVE}, 0')
        a(f's_mul_i32 s{S_W4}, s{S_CT}, 229376')
        a(f's_mul_i32 s26, s{S_WAVE}, 28672')
        a(f's_add_u32 s{S_W4}, s{S_W4}, s26')
        a(f's_add_u32 s{S_W4}, s{S_W4}, {W4F}')
        a(f's_mov_b32 s{S_C1}, {H(GELU_C1)}\ns_mov_b32 s{S_C1+1}, {H(GELU_C1)}')
        a(f's_mov_b32 s{S_ONE}, 1.0\ns_mov_b32 s{S_ONE+1}, 1.0')

    def get_nonce(sleep=0):
        lp, done = L('non'), L('nond')
        srd(16, P_DBG, 256)
        a(f's_mov_b32 s{S_SPIN}, 0')
        a.label(lp)
        if sleep: a(f's_sleep {sleep}')
        a('buffer_load_dwordx2 v[10:11], off, s[16:19], 0 sc1')
        a(f's_add_u32 s{S_SPIN}, s{S_SPIN}, 1')
        a('s_waitcnt vmcnt(0)')
        a(f'v_readfirstlane_b32 s{S_NON}, v10')
        a(f'v_readfirstlane_b32 s{S_NON+1}, v11')
        a(f's_cmp_gt_u32 s{S_SPIN}, 0x20000')
        a(f's_cbranch_scc1 {done}')
        a(f's_cmp_eq_u32 s{S_NON}, 0')
        a(f's_cbranch_scc1 {lp}')
        a.label(done)
        a.vm = []

    def get_nonce_s(sleep=0):
        lp, done = L('non'), L('nond')
        a(f's_mov_b32 s{S_SPIN}, 0')
        a.label(lp)
        if sleep: a(f's_sleep {sleep}')
        a(f's_load_dwordx2 s[{S_NON}:{S_NON+1}], s[{P_DBG}:{P_DBG+1}], 0 glc')
        a(f's_add_u32 s{S_SPIN}, s{S_SPIN}, 1')
        a(f's_cmp_gt_u32 s{S_SPIN}, 0x20000')
        a('s_waitcnt lgkmcnt(0)')
        a(f's_cbranch_scc1 {done}')
        a(f's_cmp_eq_u32 s{S_NON}, 0')
        a(f's_cbranch_scc1 {lp}')
        a.label(done)

    def poll(voff, soff, execmask=None, sleep=0):
        lp, done = L('poll'), L('polld')
        if execmask: a(f's_mov_b64 exec, {execmask}')
        a(f's_mov_b32 s{S_SPIN}, 0')
        a.label(lp)
        if sleep: a(f's_sleep {sleep}')
        a(f'buffer_load_dwordx2 v[10:11], {voff}, s[8:11], {soff} offen sc1')
        a(f's_add_u32 s{S_SPIN}, s{S_SPIN}, 1')
        a(f's_cmp_gt_u32 s{S_SPIN}, 0x20000')
        a('s_waitcnt vmcnt(0)')
        a(f's_cbranch_scc1 {done}')
        a(f'v_cmp_ne_u64 vcc, {sr(S_NON,2)}, v[10:11]')
        a(f's_cbranch_vccnz {lp}')
        a.label(done)
        if execmask: a('s_mov_b64 exec, -1')
        a.vm = []

    def st2(lines, mode=S_MODE):
        sk, dn = L('sf'), L('sd')
        a(f's_cmp_eq_u32 s{mode}, 0')
        a(f's_cbranch_scc1 {sk}')
        for l in lines: a(l)
        a.label(dn)
        a.cold.append((sk, [l + ' sc1' if l.startswith('buffer_store') else l for l in lines], dn))
        a.vm += ['st'] * sum(l.startswith('buffer_store') for l in lines)
    a.cold = []

    def flag_lines(soff):
        return ['s_mov_b64 exec, 1', f'buffer_store_dwordx2 v[10:11], off, s[8:11], {soff}', 's_mov_b64 exec, -1']
    def flag_prep():
        a(f'v_mov_b32 v10, s{S_NON}\nv_mov_b32 v11, s{S_NON+1}')
    def flag_sc1(soff):
        flag_prep()
        for l in flag_lines(soff): a(l + (' sc1' if l.startswith('buffer') else ''))
        a.vm.append('fl')

    def xcc_load(vreg, vt):
        a(f's_lshl_b32 s26, s{S_X}, 12')
        a(f's_add_u32 s26, s26, {F_XCC}')
        a(f'v_lshlrev_b32 v{vt}, 7, v4')
        a(f'buffer_load_dwordx2 {vr(vreg,2)}, v{vt}, s[8:11], s26 offen sc1')
    def calc_mode(vreg):
        a('s_getreg_b32 s34, hwreg(HW_REG_XCC_ID)')
        a('s_and_b32 s34, s34, 15')
        a(f's_or_b32 s34, s34, s{S_NON}')
        a(f's_mov_b32 s35, s{S_NON+1}')
        a(f'v_cmp_ne_u64 vcc, s[34:35], {vr(vreg,2)}')
        a('s_cmp_eq_u64 vcc, 0')
        a(f's_cselect_b32 s{S_MODE}, 1, 0')
        a(f's_cmp_eq_u32 s{S_NON}, 0')
        a(f's_cselect_b32 s{S_MODE}, 0, s{S_MODE}')
        if force_safe: a(f's_mov_b32 s{S_MODE}, 0')
    def xcc_publish(v0, v1):
        a('s_getreg_b32 s27, hwreg(HW_REG_XCC_ID)')
        a('s_and_b32 s27, s27, 15')
        a(f's_or_b32 s27, s27, s{S_NON}')
        a(f'v_mov_b32 v{v0}, s27\nv_mov_b32 v{v1}, s{S_NON+1}')
        a(f's_lshl_b32 s26, s{S_X}, 12')
        a(f's_lshl_b32 s27, s{S_I}, 7')
        a('s_add_u32 s26, s26, s27')
        a(f's_add_u32 s26, s26, {F_XCC}')
        a('s_mov_b64 exec, 1')
        a(f'buffer_store_dwordx2 v[{v0}:{v1}], off, s[8:11], s26 sc1')
        a('s_mov_b64 exec, -1')

    def unit_decode(su):
        l3, l4, dn = L('u3'), L('u4'), L('ud')
        a('s_mov_b32 s15, 0x20000')
        a(f's_cmp_ge_u32 s{su}, 832\ns_cbranch_scc1 {l4}')
        a(f's_cmp_ge_u32 s{su}, 384\ns_cbranch_scc1 {l3}')
        a(f's_lshr_b32 s32, s{su}, 7')
        a(f's_bfe_u32 s33, s{su}, 0x40003')
        a(f's_and_b32 s34, s{su}, 7')
        a('s_lshl_b32 s27, s33, 15')
        a('s_lshl_b32 s35, s34, 7')
        a('s_add_u32 s27, s27, s35')
        a('s_lshl_b32 s28, s32, 19')
        a('s_lshl_b32 s35, s34, 16')
        a('s_add_u32 s28, s28, s35')
        a('s_lshl_b32 s35, s33, 12')
        a('s_add_u32 s28, s28, s35')
        a(f's_add_u32 s28, s28, {WOF}')
        a('s_min_u32 s26, s32, 1')
        a('s_cmp_eq_u32 s32, 1')
        a(f's_cselect_b64 s[12:13], s[{P_W1}:{P_W1+1}], s[{P_W2}:{P_W2+1}]')
        a('s_cmp_eq_u32 s32, 0')
        a(f's_cselect_b64 s[12:13], s[{P_WO}:{P_WO+1}], s[12:13]')
        a('s_mov_b32 s14, 0x80000')
        a(f's_branch {dn}')
        a.label(l3)
        a(f's_sub_u32 s32, s{su}, 384')
        a('s_mul_hi_u32 s33, s32, 0x0924924a')
        a('s_mul_i32 s34, s33, 28')
        a('s_sub_u32 s34, s32, s34')
        a(f's_mul_i32 s27, s33, {32*3584}')
        a('s_lshl_b32 s35, s34, 7')
        a('s_add_u32 s27, s27, s35')
        a('s_lshl_b32 s28, s34, 16')
        a('s_lshl_b32 s35, s33, 11')
        a('s_add_u32 s28, s28, s35')
        a(f's_add_u32 s28, s28, {W3F}')
        a('s_mov_b32 s26, 2')
        a(f's_mov_b64 s[12:13], s[{P_W3}:{P_W3+1}]')
        a('s_mov_b32 s14, 0x1c0000')
        a(f's_branch {dn}')
        a.label(l4)
        a(f's_sub_u32 s32, s{su}, 832')
        a('s_lshr_b32 s33, s32, 3')
        a('s_and_b32 s34, s32, 7')
        a('s_lshl_b32 s27, s33, 15')
        a('s_lshl_b32 s35, s34, 7')
        a('s_add_u32 s27, s27, s35')
        a('s_mul_i32 s28, s34, 229376')
        a('s_lshl_b32 s35, s33, 12')
        a('s_add_u32 s28, s28, s35')
        a(f's_add_u32 s28, s28, {W4F}')
        a('s_mov_b32 s26, 3')
        a(f's_mov_b64 s[12:13], s[{P_W4}:{P_W4+1}]')
        a('s_mov_b32 s14, 0x1c0000')
        a.label(dn)

    VX, VWQ = 12, 13
    a('s_setprio 3')
    a('v_lshrrev_b32 v3, 3, v2')
    a(f's_lshl_b32 s27, s{S_Q}, 3')
    a('v_add_u32 v6, s27, v3')
    a('v_lshrrev_b32 v4, 4, v2')
    a(f's_and_b32 s27, s{S_Q}, 1')
    a('s_lshl_b32 s27, s27, 2')
    a('v_add_u32 v4, s27, v4')
    a('v_and_b32 v5, 7, v2')
    a('v_xor_b32 v4, v4, v5')
    a('v_lshlrev_b32 v4, 4, v4')
    a(f'v_lshl_add_u32 v{VX}, v6, 10, v4')
    a('v_bfe_u32 v4, v3, 1, 1')
    a('v_lshlrev_b32 v4, 2, v4')
    a('v_bfe_u32 v7, v3, 2, 1')
    a('v_lshl_add_u32 v4, v7, 1, v4')
    a('v_xor_b32 v4, v4, v5')
    a('v_lshlrev_b32 v55, 4, v4')
    a('s_movk_i32 s27, 0xc00')
    a(f'v_mad_u32_u24 v{VWQ}, v6, s27, v55')
    a(f's_lshl_b32 s28, s{S_I}, 16')
    a(f's_lshl_b32 s29, s{S_Q}, 10')
    a(f's_lshl_b32 s31, s{S_X}, 7')
    a('s_mov_b32 s18, 0x200000\ns_mov_b32 s19, 0x20000\ns_mov_b32 s14, 0x180000\ns_mov_b32 s15, 0x20000')
    a('s_waitcnt lgkmcnt(0)')
    a(f's_mov_b64 s[16:17], s[{P_X}:{P_X+1}]')
    a(f's_mov_b64 s[12:13], s[{P_WQKV}:{P_WQKV+1}]')
    T.stamp('p1.h_iss', slot=20)
    def issx(c):
        a(f's_add_u32 s33, s{S_CT}, {c}')
        a('s_and_b32 s33, s33, 7')
        a('s_lshl_b32 s34, s33, 7')
        a('s_add_u32 s34, s34, s28')
        for j in range(2):
            a(f's_add_u32 m0, s29, {XL + c*8192 + j*4096}')
            if j: a('s_add_u32 s34, s34, 32768')
            a.vissue(f'buffer_load_dwordx4 v{VX}, s[16:19], s34 offen lds', ('x', c))
    def issw(c):
        a(f's_add_u32 s33, s{S_CT}, {c}')
        a('s_and_b32 s33, s33, 7')
        a('s_mul_i32 s35, s33, 196608')
        a('s_add_u32 s35, s35, s31')
        for j in range(2):
            for sec in range(3):
                a(f's_add_u32 m0, s29, {WL + (c % NSLOT)*WSLOT + sec*8192 + j*4096}')
                a(f's_add_u32 s34, s35, {j*32*3072 + sec*1024}')
                a.vissue(f'buffer_load_dwordx4 v{VWQ}, s[12:15], s34 offen lds', ('w', c))
    issx(0); issw(0); issx(1); issx(2); issx(3)
    common_consts()
    srd(8, P_WS, WS_USED)
    AWH, AXH, CSA, SXH, SQH, ONES, WFH, XFH = 14, 17, 20, 32, 36, 18, 64, 88
    a('v_and_b32 v10, 1, v7')
    a('v_lshrrev_b32 v11, 1, v8')
    a('v_lshl_add_u32 v11, v11, 1, v10')
    a('v_lshl_add_u32 v10, v7, 2, v8')
    a('v_lshlrev_b32 v10, 7, v10')
    a('v_lshl_add_u32 v10, v9, 3, v10')
    for j in range(3):
        a(f's_mul_i32 s26, s{S_Q}, 3')
        a(f's_add_u32 s26, s26, {j}')
        a('s_and_b32 s27, s26, 3')
        a('s_lshr_b32 s26, s26, 2')
        a('s_lshl_b32 s26, s26, 13')
        a(f's_add_u32 s26, s26, {WL}')
        a('v_xor_b32 v40, s27, v11')
        a('v_lshl_add_u32 v40, v40, 5, v10')
        a(f'v_add_u32 v{AWH+j}, s26, v40')
    a(f's_lshl_b32 s26, s{S_Q}, 11')
    a('v_lshlrev_b32 v10, 7, v6')
    a('v_bfe_u32 v11, v6, 1, 3')
    a('v_xor_b32 v11, v11, v7')
    a('v_lshl_add_u32 v10, v11, 4, v10')
    a(f'v_add_u32 v{AXH}, s26, v10')
    a(f'v_xor_b32 v41, 64, v{AXH}')
    a(f'v_mov_b32 v{ONES}, 0x3f803f80\nv_mov_b32 v{ONES+1}, 0x3f803f80')
    PA16, PA32, PROW, PUN = 44, 52, 54, 55
    a('v_and_b32 v10, 1, v7')
    a('v_lshrrev_b32 v11, 1, v8')
    a('v_lshl_add_u32 v11, v11, 1, v10')
    a('v_lshl_add_u32 v56, v10, 2, v8')
    a('v_lshrrev_b32 v57, 1, v7')
    a('v_lshl_add_u32 v58, v57, 4, v56')
    a('v_lshl_add_u32 v59, v57, 3, v56')
    for ti, kreg in enumerate((58, 59)):
        for nt in range(4):
            a(f'v_xor_b32 v60, {nt}, v11')
            a('v_lshlrev_b32 v60, 5, v60')
            a('v_lshl_add_u32 v60, v9, 3, v60')
            a(f'v_lshl_add_u32 v{PA16+4*ti+nt}, v{kreg}, 7, v60')
    a('v_lshrrev_b32 v11, 1, v8')
    a('v_lshl_add_u32 v11, v11, 1, v5')
    a('v_lshl_add_u32 v56, v5, 2, v8')
    a('v_lshlrev_b32 v56, 7, v56')
    a('v_lshl_add_u32 v56, v9, 3, v56')
    for nt in range(2):
        a(f'v_add_u32 v60, {2*nt}, v10')
        a('v_xor_b32 v60, v60, v11')
        a(f'v_lshl_add_u32 v{PA32+nt}, v60, 5, v56')
    a(f'v_lshrrev_b32 v{PROW}, 3, v2')
    a('v_cmp_eq_u32 s[42:43], 1, v9')
    a('v_cmp_eq_u32 s[6:7], 2, v9')
    def unit_idx(k):
        a(f's_mul_i32 s{S_U}, s2, 5')
        a(f's_add_u32 s{S_U}, s{S_U}, {k}')
        unit_decode(S_U)
    def stride_sel():
        a('s_cmp_eq_u32 s26, 2')
        a('s_movk_i32 s32, 0x400')
        a('s_cselect_b32 s32, 0xe00, s32')
        a(f'v_mad_u32_u24 v60, v{PROW}, s32, v{PUN}')
        a('s_lshl_b32 s32, s32, 3')
    def prep_loads():
        unit_idx(f's{S_Q}')
        stride_sel()
        a(f's_lshl_b32 s35, s{S_Q}, 12')
        for p in range(4):
            a(f's_add_u32 m0, s35, {PREP + p*1024}')
            if p: a('s_add_u32 s27, s27, s32')
            a.vissue('buffer_load_dwordx4 v60, s[12:15], s27 offen lds', 'pl')
        unit_idx(4)
        stride_sel()
        a(f's_mul_i32 s32, s32, s{S_Q}')
        a('s_add_u32 s27, s27, s32')
        a(f's_add_u32 m0, s29, {PREP + 4*4096}')
        a.vissue('buffer_load_dwordx4 v60, s[12:15], s27 offen lds', 'pl')

    issw(1)
    for c in range(4, 8): issx(c)
    for c in range(8):
        a.vwait(('w', c))
        T.stamp(f'p1.h_w{c}', slot=2+2*c)
        a('s_barrier')
        T.stamp(f'p1.h_b{c}', slot=3+2*c)
        for j in range(3):
            for kk in range(4):
                a(f'ds_read_b64_tr_b16 {vr(WFH+8*j+2*kk,2)}, v{AWH+j} offset:{(c % NSLOT)*WSLOT + kk*2048}')
        a(f'ds_read_b128 {vr(XFH,4)}, v{AXH} offset:{XL + c*8192}')
        a(f'ds_read_b128 {vr(XFH+4,4)}, v41 offset:{XL + c*8192}')
        if c + 2 < 8: issw(c + 2)
        if c == 5: prep_loads()
        a('s_waitcnt lgkmcnt(0)')
        for kk in range(4):
            z = (c == 0 and kk == 0)
            for j in range(3):
                a(f'v_mfma_f32_4x4x4_16b_bf16 {vr(CSA+4*j,4)}, {vr(ONES,2)}, {vr(WFH+8*j+2*kk,2)}, {"0" if z else vr(CSA+4*j,4)}')
            a(f'v_mfma_f32_4x4x4_16b_bf16 {vr(SXH,4)}, {vr(ONES,2)}, {vr(XFH+2*kk,2)}, {"0" if z else vr(SXH,4)}')
            a(f'v_mfma_f32_4x4x4_16b_bf16 {vr(SQH,4)}, {vr(XFH+2*kk,2)}, {vr(XFH+2*kk,2)}, {"0" if z else vr(SQH,4)}')
    a('v_cmp_eq_u32 vcc, 3, v9')
    a(f's_mul_i32 s26, s{S_Q}, 192')
    a(f's_add_u32 s26, s26, {CSUM}')
    a('v_lshl_add_u32 v10, v6, 2, s26')
    a(f's_lshl_b32 s26, s{S_Q}, 6')
    a(f's_add_u32 s26, s26, {RST}')
    a('v_lshl_add_u32 v11, v6, 2, s26')
    a(f'v_cndmask_b32 v{SQH}, v{SQH}, v{SQH+1}, s[42:43]')
    a(f'v_cndmask_b32 v{SQH}, v{SQH}, v{SQH+2}, s[6:7]')
    a(f'v_cndmask_b32 v{SQH}, v{SQH}, v{SQH+3}, vcc')
    red = [CSA, CSA+4, CSA+8, SXH, SQH]
    for sw in ('v_permlane16_swap_b32', 'v_permlane32_swap_b32'):
        for r in red: a(f'v_mov_b32 v{r+1}, v{r}')
        for r in red: a(f'{sw} v{r}, v{r+1}')
        for r in red: a(f'v_add_f32 v{r}, v{r}, v{r+1}')
    for j in range(3): a(f'ds_write_b32 v10, v{CSA+4*j} offset:{64*j}')
    a(f'v_mul_f32 v{SXH}, {H(-1/512)}, v{SXH}')
    a(f'v_mul_f32 v{SQH}, {H(1/512)}, v{SQH}')
    a(f'v_fma_f32 v{SQH}, -v{SXH}, v{SXH}, v{SQH}')
    a(f'v_max_f32 v{SQH}, 0, v{SQH}')
    a(f'v_add_f32 v{SQH}, {H(1e-5)}, v{SQH}')
    a(f'v_rsq_f32 v{SQH}, v{SQH}')
    a(f'v_mul_f32 v{SXH}, v{SXH}, v{SQH}')
    a(f'ds_write_b32 v11, v{SQH} offset:256')
    a(f'ds_write_b32 v11, v{SXH}')
    a('s_waitcnt lgkmcnt(0)')
    a('s_barrier')
    a('s_setprio 0')
    T.stamp('h_p1done', slot=2)
    a('v_and_b32 v10, 23, v2')
    a('v_cmp_eq_u32 vcc, 0, v10')
    a('v_mov_b32 v10, 0x3f803f80')
    a('v_cndmask_b32 v20, 0, v10, vcc')
    a('v_mov_b32 v21, v20\nv_mov_b32 v22, v20\nv_mov_b32 v23, v20')
    a('v_add_u32 v16, s29, v3')
    a(f's_add_u32 s{S_A}, s{S_HD}, s29')
    a(f's_add_u32 s{S_A}, s{S_A}, 0x40000')
    a(f's_add_u32 s27, s{S_GB}, {G_FQ}')
    a('s_mov_b32 s30, -1\ns_mov_b32 s31, 0')
    a(f'v_mov_b32 v12, {NONL}')
    a('s_barrier')
    a('ds_read_b64 v[14:15], v12')
    a(f'ds_write_b128 v16, v[20:23] offset:{CONST}')
    a('s_waitcnt lgkmcnt(1)')
    a(f'v_readfirstlane_b32 s{S_NON}, v14')
    a(f'v_readfirstlane_b32 s{S_NON+1}, v15')
    poll('v1', 's27', 's[30:31]')
    T.stamp('h_kvflag', slot=3)
    def kv_issue(c):
        a(f's_add_u32 m0, s29, {RING + (c & 3)*8192}')
        a(f's_add_u32 s30, s{S_A}, {c*4096}')
        a.vissue(f'buffer_load_dwordx4 v3, s[8:11], s30 offen sc1 {KVNT}lds', ('kv', c))
        a(f's_add_u32 m0, s29, {RING + (c & 3)*8192 + 4096}')
        a(f's_add_u32 s30, s{S_A}, {c*4096 + 0x40000}')
        a.vissue(f'buffer_load_dwordx4 v3, s[8:11], s30 offen sc1 {KVNT}lds', ('kv', c))
    kv_issue(0); kv_issue(1)
    def prep_convert(k, record):
        unit_idx(k)
        if isinstance(k, int): a(f's_mov_b32 s32, {PREP + k*4096}')
        else:
            a(f's_lshl_b32 s32, {k}, 12')
            a(f's_add_u32 s32, s32, {PREP}')
        k1, k2, k3, dn = L('k1'), L('k2'), L('k3'), L('kd')
        F = 64
        a(f's_cmp_eq_u32 s26, 1\ns_cbranch_scc1 {k1}')
        a(f's_cmp_eq_u32 s26, 2\ns_cbranch_scc1 {k2}')
        a(f's_cmp_eq_u32 s26, 3\ns_cbranch_scc1 {k3}')
        for kind, lab in ((0, None), (1, k1)):
            if lab: a.label(lab)
            for nt in range(4): a(f'v_add_u32 v{60+nt}, s32, v{PA16+4*kind+nt}')
            for nt in range(4):
                for sec in range(2):
                    a(f'ds_read_b64_tr_b16 {vr(F+4*nt+2*sec,2)}, v{60+nt} offset:{sec*(1024 if kind==0 else 2048)}')
            a('s_add_u32 s35, s28, 2048')
            a(f's_branch {dn}')
        a.label(k2)
        for nt in range(2): a(f'v_add_u32 v{60+nt}, s32, v{PA32+nt}')
        for nt in range(2):
            for kk in range(2):
                for sec in range(2):
                    a(f'ds_read_b64_tr_b16 {vr(F+8*nt+4*kk+2*sec,2)}, v{60+nt} offset:{(8*kk+16*sec)*128}')
        a('s_add_u32 s35, s28, 32768')
        a('s_mul_i32 s33, s33, 7168')
        a('s_lshl_b32 s34, s34, 8')
        a('s_add_u32 s33, s33, s34')
        a(f's_add_u32 s33, s33, {C3P}')
        a('v_lshlrev_b32 v62, 2, v2')
        a('s_waitcnt lgkmcnt(0)')
        for i in range(4):
            for nt in range(2):
                c_ = '0' if i == 0 else vr(80+4*nt,4)
                a(f'v_mfma_f32_4x4x4_16b_bf16 {vr(80+4*nt,4)}, {vr(ONES,2)}, {vr(F+8*nt+2*i,2)}, {c_}')
        a('v_permlane32_swap_b32 v80, v84')
        a('v_add_f32 v80, v80, v84')
        a('buffer_store_dword v80, v62, s[8:11], s33 offen sc1')
        a(f's_branch {dn}')
        a.label(k3)
        for nt in range(2): a(f'v_add_u32 v{60+nt}, s32, v{PA32+nt}')
        for kk in range(2):
            for nt in range(2):
                for sec in range(2):
                    a(f'ds_read_b64_tr_b16 {vr(F+8*kk+4*nt+2*sec,2)}, v{60+nt} offset:{(16*kk+8*sec)*128}')
        a('s_add_u32 s35, s28, 2048')
        a.label(dn)
        a('s_waitcnt lgkmcnt(0)')
        iss = (lambda t: a.vissue(t, 'pp')) if record else a
        iss(f'buffer_store_dwordx4 {vr(F,4)}, v3, s[8:11], s28 offen sc1')
        iss(f'buffer_store_dwordx4 {vr(F+4,4)}, v3, s[8:11], s28 offen offset:1024 sc1')
        iss(f'buffer_store_dwordx4 {vr(F+8,4)}, v3, s[8:11], s35 offen sc1')
        iss(f'buffer_store_dwordx4 {vr(F+12,4)}, v3, s[8:11], s35 offen offset:1024 sc1')

    HW2, HW1, HW3 = 24, 88, 92
    C3R = [116, 120, 124, 20]
    w3g = lambda g: [('w3', i) for i in range(8*g, 8*g+8)]
    flat = w3g(1) + [('c3', k) for k in range(4)] + [('wo', i) for i in range(16)] + w3g(2) + \
           [('w1', i) for i in range(15)] + [('r', HW1, W1F + 15*4096)] + w3g(3) + \
           [('r', HW2 + 4*i, W2F + i*4096) for i in range(16)] + w3g(0) + [('l3', t, f) for t in range(3) for f in range(2)]
    groups = [flat[12*i:12*i+12] for i in range(8)]
    strips = [(75, 8192), (74, WOF), (75, 2*8192), (74, W1F), (75, 3*8192), (74, W2F), (75, 0)]
    def job_setup():
        a(f's_lshl_b32 s31, s{S_CT}, 16')
        a('s_add_u32 s31, s31, s29')
        a(f's_mul_i32 s33, s{S_CT}, {7*32768}')
        a(f's_lshl_b32 s{S_B}, s{S_J}, 15')
        a(f's_add_u32 s{S_B}, s{S_B}, s33')
        a(f's_add_u32 s{S_B}, s{S_B}, {W3F}')
        a('s_add_u32 s33, s33, s29')
        a(f's_mul_i32 s32, s{S_CT}, 896')
        a(f's_mul_i32 s30, s{S_Q}, {4*7168}')
        a('s_add_u32 s32, s32, s30')
        a(f's_and_b32 s26, s{S_Q}, 1')
        a('s_lshl_b32 s26, s26, 2')
        a(f's_add_u32 s26, s26, s{S_RB}')
        a('s_lshl_b32 s74, s26, 13')
        a(f's_lshl_b32 s27, s{S_CT}, 16')
        a('s_add_u32 s74, s74, s27')
        a(f's_mul_i32 s75, s{S_CT}, 7')
        a('s_add_u32 s75, s75, s26')
        a('s_lshl_b32 s75, s75, 15')
        a(f's_add_u32 s75, s75, {W3F}')
        a(f's_mul_i32 s27, s{S_CT}, 229376')
        a(f's_add_u32 s27, s27, {W4F + 3*28672 - 4096}')
        a('s_cmp_eq_u32 s26, 7')
        a('s_cselect_b32 s75, s27, s75')
    def dma(lds, src):
        a(f's_add_u32 m0, s29, {lds}')
        a(f's_add_u32 s30, s31, {src}')
        a.vissue('buffer_load_dwordx4 v3, s[8:11], s30 offen sc1 lds', 'pf')
    def ldr(reg, sbase, off, imm=0):
        a(f's_add_u32 s30, s{sbase}, {off}')
        a.vissue(f'buffer_load_dwordx4 {vr(reg,4)}, v3, s[8:11], s30 offen offset:{imm} sc1', 'pf')
    def job(j):
        kind = j[0]
        if kind == 'w3': ldr(W3+4*j[1], S_B, (j[1] >> 2)*4096, (j[1] & 3)*1024)
        elif kind == 'wo': dma(WA + j[1]*4096, WOF + j[1]*4096)
        elif kind == 'w1': dma(WB + j[1]*4096, W1F + j[1]*4096)
        elif kind == 'r': ldr(j[1], 31, j[2])
        elif kind == 'l3': ldr(HW3 + 8*j[1] + 4*j[2], 33, W3F + j[1]*32768 + j[2]*4096)
        elif kind == 'c3': ldr(C3R[j[1]], 32, C3P + j[1]*7168)
    NJ = 9
    for c in range(16):
        if c == 3: a.vwait_all()
        else: a.vwait(('kv', c), 'lgkmcnt(0)' if c == 0 else '')
        a('s_barrier')
        if c >= 2 and c + 2 < 16: kv_issue(c + 2)
        if c == 0:
            kv_issue(2); kv_issue(3)
            prep_convert(f's{S_Q}', True)
        if c == 1:
            sk = L('u4')
            a(f's_cmp_lg_u32 s{S_Q}, 3\ns_cbranch_scc1 {sk}')
            prep_convert(4, False)
            a.label(sk)
        if c == 3:
            sk = L('pf')
            a(f's_cmp_lg_u32 s{S_Q}, 1\ns_cbranch_scc1 {sk}')
            a('s_lshl_b32 s26, s2, 7')
            a(f's_add_u32 s26, s26, {F_PREP}')
            keep = list(a.vm); flag_sc1('s26'); a.vm = keep
            srd(16, P_OUT, 0x200000)
            a('v_lshlrev_b32 v12, 21, v2')
            a(f's_mov_b32 s26, {GB + G_FHX}')
            a('s_mov_b64 exec, 0xff')
            a('buffer_load_dword v13, v12, s[8:11], s26 offen')
            a('buffer_load_dword v13, off, s[16:19], 0')
            a('s_mov_b64 exec, -1')
            a.label(sk)
            xcc_load(14, 12); a.vm.append('xc')
            job_setup()
            a('v_lshlrev_b32 v12, 7, v2')
            a(f's_lshl_b32 s28, s{S_R16}, 14')
            a(f's_lshl_b32 s27, s{S_CT}, 11')
            a('s_add_u32 s28, s28, s27')
            a(f's_lshl_b32 s27, s{S_Q}, 18')
            a('s_add_u32 s28, s28, s27')
            a(f's_add_u32 s28, s28, {G_H}')
            a(f's_mul_i32 s27, s{S_I}, 1408')
            a(f's_add_u32 s27, s27, {G_ST1}')
            a(f's_cmp_eq_u32 s{S_Q}, 3')
            a('s_cselect_b32 s28, s27, s28')
            a('s_cselect_b32 s27, 0, 0x4000')
            a(f's_add_u32 s28, s28, s{S_GB}')
            a('v_lshlrev_b32 v17, 7, v6')
            a('v_mad_u32_u24 v17, v7, s27, v17')
        if c == 5:
            a(f's_lshl_b32 s26, s{S_Q}, 13')
            a(f's_add_u32 s26, s26, {F_PREP}')
            poll('v12', 's26', None, sleep=2)
            calc_mode(14)
        if 6 <= c < 13 and 'nojobs' not in opt and 'nostrip' not in opt:
            sk = L('st')
            a(f's_bitcmp{1 if (c & 1) == 0 else 0}_b32 s{S_Q}, 1\ns_cbranch_scc1 {sk}')
            a(f's_add_u32 s26, s{strips[c-6][0]}, {strips[c-6][1]}')
            a('buffer_load_dword v13, v12, s[8:11], s26 offen sc1')
            a.label(sk)
        if 8 <= c < 16 and 'nojobs' not in opt and 'nohj' not in opt:
            for j in groups[c-8]:
                if 'nodma' in opt and j[0] in ('wo', 'w1'): continue
                if 'onlydma' in opt and j[0] not in ('wo', 'w1'): continue
                job(j)
                if 'pace' in opt: a('s_sleep 1')
        if c == 13 and 'nowarm2' not in opt:
            a.vissue('buffer_load_dword v13, v17, s[8:11], s28 offen sc1', 'pf')
    a.vwait_all()
    a('v_add_u32 v12, s29, v3')
    a(f'v_add_u32 v13, {WB}, v12')
    a(f'v_add_u32 v14, {WA}, v12')
    a(f's_mul_i32 s26, s{S_Q}, 896')
    a('v_add_u32 v15, s26, v3')
    a('s_barrier')
    T.stamp('h_attn_end', slot=4)
    a(f'ds_write_b128 v12, {vr(HW1,4)} offset:{W1X}')
    for i in range(NW2L): a(f'ds_write_b128 v12, {vr(HW2+4*i,4)} offset:{W2L + i*4096}')
    for k in range(1, 4):
        for i in range(2): a(f'v_pk_add_f32 {vr(C3R[0]+2*i,2)}, {vr(C3R[0]+2*i,2)}, {vr(C3R[k]+2*i,2)}')
    a('s_mov_b32 exec_hi, 0xffffff')
    a(f'ds_write_b128 v15, {vr(C3R[0],4)} offset:{C3L}')
    a('s_mov_b32 exec_hi, -1')
    for i in range(4): a(f'v_mov_b32 v{20+i}, 0x3f803f80')
    a(f'v_mfma_f32_16x16x32_bf16 v[16:19], {vr(HW1,4)}, v[20:23], 0')
    a('s_waitcnt lgkmcnt(0)')
    for bt in range(3):
        for k in range(5): a(f'ds_read_b128 {vr(HW2+4*k,4)}, v13 offset:{(5*bt+k)*4096}')
        for k in range(5):
            a(f's_waitcnt lgkmcnt({4-k})')
            a(f'v_mfma_f32_16x16x32_bf16 v[16:19], {vr(HW2+4*k,4)}, v[20:23], v[16:19]')
    a(f's_lshl_b32 s26, s{S_Q}, 6')
    a(f's_add_u32 s26, s26, {CS1}')
    a('v_lshl_add_u32 v10, v7, 4, s26')
    a('ds_write_b128 v10, v[16:19]')
    a('s_waitcnt lgkmcnt(0)')
    a('s_barrier')
    sk = L('c3w')
    a(f's_cmp_lg_u32 s{S_Q}, 3\ns_cbranch_scc1 {sk}')
    for k in range(4): a(f'ds_read_b128 {vr(HW2+4*k,4)}, v3 offset:{C3L + 896*k}')
    a('s_waitcnt lgkmcnt(0)')
    for k in range(1, 4):
        for i in range(2): a(f'v_pk_add_f32 {vr(HW2+2*i,2)}, {vr(HW2+2*i,2)}, {vr(HW2+4*k+2*i,2)}')
    a(f'ds_write_b128 v3, {vr(HW2,4)} offset:{C3L}')
    a.label(sk)
    a('s_barrier')
    for i in range(NW2L, 16): a(f'ds_write_b128 v14, {vr(HW2+4*i,4)} offset:{i*4096}')
    a('s_waitcnt lgkmcnt(0)')
    a('s_barrier')
    for t in range(3):
        for f in range(2): a(f'ds_write_b128 v13, {vr(HW3+8*t+4*f,4)} offset:{t*8192 + f*4096}')
    a('s_waitcnt lgkmcnt(0)')
    a('s_barrier')
    a(f's_lshl_b32 s28, s{S_R16}, 6')
    a(f's_lshl_b32 s27, s{S_Q}, 5')
    a('s_add_u32 s28, s28, s27')
    a(f's_add_u32 s28, s28, s{S_GB}')
    a(f's_add_u32 s28, s28, {G_FX1}')
    a(f's_lshl_b32 s26, s{S_R16}, 14')
    a(f's_lshl_b32 s27, s{S_Q}, 13')
    a('s_add_u32 s26, s26, s27')
    a(f's_add_u32 s26, s26, s{S_GB}')
    a(f's_add_u32 s26, s26, {G_X1}')
    a('s_mov_b32 s30, 0xf000f\ns_mov_b32 s31, 0')
    poll('v1', 's28', 's[30:31]')
    for mt in range(2):
        for hf in range(2):
            a(f's_add_u32 m0, s27, {XT + mt*32768 + hf*4096}')
            a(f's_add_u32 s30, s26, {mt*32768 + hf*4096}')
            for i in range(4):
                a(f'buffer_load_dwordx4 v3, s[8:11], s30 offen offset:{i*1024} sc1 lds')
    HJOIN = L('hjoin')
    a(f's_branch {HJOIN}')

    a.label(CW1)
    a.vm = []
    sk = L('cp')
    a(f's_cmp_lg_u32 s{S_WAVE}, 1\ns_cbranch_scc1 {sk}')
    a('s_getpc_b64 s[26:27]')
    a.label(f'{name}_pc')
    a(f's_sub_u32 s26, s26, {name}_pc-{name}')
    a('s_subb_u32 s27, s27, 0')
    a(f's_lshl_b32 s28, s{S_I}, 11')
    a('v_lshl_add_u32 v10, v2, 7, s28')
    a(f'v_min_u32 v10, {name}_end-{name}, v10')
    a('s_mov_b64 exec, 0xffff')
    a('global_load_dword v255, v10, s[26:27]')
    a('s_mov_b64 exec, -1')
    a.label(sk)
    common_consts()
    ACC = 16; FR = [64, 80, 96]; AX = 112; AW = 116
    a(f's_lshr_b32 s30, s{S_Q}, 1')
    a(f's_and_b32 s31, s{S_Q}, 1')
    a('s_lshl_b32 s27, s30, 5')
    a('v_add_u32 v10, s27, v4')
    a('v_lshlrev_b32 v10, 7, v10')
    a('v_bfe_u32 v11, v4, 1, 3')
    for ks in range(4):
        a(f'v_add_u32 v12, {2*ks}, v5')
        a('v_xor_b32 v12, v12, v11')
        a(f'v_lshl_add_u32 v{AX+ks}, v12, 4, v10')
    a('v_lshl_add_u32 v10, v5, 3, v8')
    a('v_lshlrev_b32 v10, 7, v10')
    a('v_lshl_add_u32 v10, v9, 3, v10')
    a('v_and_b32 v11, 1, v7')
    a('s_lshl_b32 s27, s31, 1')
    a('v_add_u32 v11, s27, v11')
    a('v_and_b32 v12, 2, v8')
    a('v_xor_b32 v11, v11, v12')
    a(f'v_lshl_add_u32 v{AW}, v11, 5, v10')
    a(f'v_add_u32 v{AW}, {WL}, v{AW}')
    a(f'v_xor_b32 v{AW+1}, 32, v{AW}')
    a(f'v_add_u32 v{AW+1}, 512, v{AW+1}')
    a(f'v_add_u32 v{AW+2}, {2*WSLOT}, v{AW}')
    a(f'v_add_u32 v{AW+3}, {2*WSLOT}, v{AW+1}')
    a('s_waitcnt lgkmcnt(0)')
    srd(16, P_DBG, 256)
    srd(8, P_WS, WS_USED)
    sk = L('nc')
    a(f's_or_b32 s27, s2, s{S_WAVE}')
    a(f's_cmp_lg_u32 s27, 0\ns_cbranch_scc1 {sk}')
    a('s_memrealtime s[26:27]')
    a('s_waitcnt lgkmcnt(0)')
    a('s_lshl_b64 s[26:27], s[26:27], 5')
    a('s_or_b32 s26, s26, 16')
    a('v_mov_b32 v12, s26\nv_mov_b32 v13, s27')
    a('s_mov_b64 exec, 1')
    a('buffer_store_dwordx2 v[12:13], off, s[16:19], 0 sc1')
    a('s_mov_b64 exec, -1')
    a.label(sk)
    EA = 120
    a('s_lshl_b32 s27, s31, 7')
    a(f's_add_u32 s27, s27, {CSUM}')
    a(f'v_lshl_add_u32 v{EA}, v5, 4, s27')
    a(f'v_lshl_add_u32 v{EA+1}, v4, 2, s27')
    a('s_lshl_b32 s27, s30, 7')
    a(f's_add_u32 s27, s27, {RST}')
    a(f'v_lshl_add_u32 v{EA+2}, v4, 2, s27')
    a(f'v_lshl_add_u32 v{EA+3}, v5, 4, s27')
    a('v_lshrrev_b32 v10, 4, v4')
    a('v_lshlrev_b32 v10, 16, v10')
    a('v_lshl_add_u32 v10, v5, 8, v10')
    a(f'v_lshl_add_u32 v{EA+4}, v6, 4, v10')
    a(f's_lshl_b32 s26, s{S_I}, 1')
    a('s_add_u32 s26, s26, s30')
    a('s_lshl_b32 s26, s26, 10')
    a('s_lshl_b32 s27, s31, 17')
    a('s_add_u32 s26, s26, s27')
    a(f's_add_u32 s{S_A}, s26, s{S_QKV}')
    a(f'v_lshlrev_b32 v{EA+5}, 18, v7')
    a('v_bfe_u32 v10, v2, 3, 1')
    a(f'v_lshl_add_u32 v{EA+5}, v10, 16, v{EA+5}')
    a('v_and_b32 v10, 7, v2')
    a(f'v_lshl_add_u32 v{EA+5}, v10, 7, v{EA+5}')
    sk = L('xc')
    a(f's_cmp_lg_u32 s{S_WAVE}, 0\ns_cbranch_scc1 {sk}')
    a(f's_add_u32 s26, s{S_GB}, {G_FQ}')
    a('buffer_load_dword v254, v1, s[8:11], s26 offen sc1')
    a.label(sk)
    def rd_list(n):
        c, ks = n >> 2, n & 3; b = FR[n % 3]
        slot = c % NSLOT
        l = [f'ds_read_b128 {vr(b,4)}, v{AX+ks} offset:{XL + c*8192}']
        for j in range(3):
            for sec in range(2):
                l.append(f'ds_read_b64_tr_b16 {vr(b+4+4*j+2*sec,2)}, v{AW+sec+(2 if slot == 2 else 0)} offset:{(slot&1)*WSLOT + j*8192 + ks*2048}')
        return l
    T.stamp('p1.c_pre')
    a('s_barrier')
    T.stamp('c_b0'); T.stamp('p1.c_b0')
    for l in rd_list(0): a(l)
    for l in rd_list(1): a(l)
    CV = 128; RV = 160; SC = 192
    for n in range(32):
        c, ks = n >> 2, n & 3
        b = FR[n % 3]
        z = lambda r, k: '0' if n == 0 else vr(r, k)
        if ks == 2:
            a('s_waitcnt lgkmcnt(0)')
            T.stamp(f'p1.c_w{c+1}')
            a('s_barrier')
            T.stamp(f'p1.c_b{c+1}')
        elif n < 31:
            a('s_waitcnt lgkmcnt(7)')
        rl = rd_list(n + 2) if n + 2 < 32 else []
        if n == 30:
            rl = [f'ds_read_b32 v{SC}, v{EA+2}', f'ds_read_b32 v{SC+1}, v{EA+2} offset:256', f'ds_read_b32 v{SC+2}, v{EA+1} offset:512'] + \
                 [f'ds_read_b128 {vr(CV+16*j+4*q,4)}, v{EA} offset:{256*j+32*q}' for j in range(2) for q in range(4)]
        if n == 31:
            rl = [f'ds_read_b128 {vr(RV+16*j+4*q,4)}, v{EA+3} offset:{256*j+32*q}' for j in range(2) for q in range(4)]
        if n == 13:
            a('s_mov_b64 exec, 0xffffffffffff' if False else 's_mov_b32 exec_hi, 0xffff')
            a(f'buffer_load_dword v253, v{EA+5}, s[8:11], s{S_A} offen sc1')
            a('s_mov_b32 exec_hi, -1')
        if n == 8: a('buffer_load_dwordx2 v[14:15], off, s[16:19], 0 sc1')
        if n == 12:
            a('s_waitcnt vmcnt(0)')
            a(f'v_readfirstlane_b32 s{S_NON}, v14')
            a(f'v_readfirstlane_b32 s{S_NON+1}, v15')
            sk = L('xp')
            a(f's_cmp_lg_u32 s{S_WAVE}, 0\ns_cbranch_scc1 {sk}')
            xcc_publish(14, 15)
            a.label(sk)
        if n == 28: xcc_load(12, 10)
        k = (len(rl) + 2) // 3
        a(f'v_mfma_f32_32x32x16_bf16 {vr(ACC,16)}, {vr(b+4,4)}, {vr(b,4)}, {z(ACC,16)}')
        for l in rl[0:k]: a(l)
        a(f'v_mfma_f32_32x32x16_bf16 {vr(ACC+16,16)}, {vr(b+8,4)}, {vr(b,4)}, {z(ACC+16,16)}')
        for l in rl[k:2*k]: a(l)
        a(f'v_mfma_f32_32x32x16_bf16 {vr(ACC+32,16)}, {vr(b,4)}, {vr(b+12,4)}, {z(ACC+32,16)}')
        for l in rl[2*k:]: a(l)
    T.stamp('c_gemm')
    a('s_waitcnt vmcnt(0) lgkmcnt(8)')
    a(f'v_mul_f32 v{SC+4}, {H(QSCALE)}, v{SC}')
    a(f'v_mul_f32 v{SC+5}, {H(QSCALE)}, v{SC+1}')
    calc_mode(12)
    PK = 200
    lines = []
    for j in range(2):
        sc = SC + 4 if j == 0 else SC
        for p in range(8):
            lines.append(f'v_pk_mul_f32 {vr(CV+16*j+2*p,2)}, {vr(CV+16*j+2*p,2)}, {vr(sc,2)} op_sel_hi:[1,0]')
        for o in range(2):
            for p in range(4*o, 4*o+4):
                A_ = ACC+16*j+2*p
                lines.append(f'v_pk_fma_f32 {vr(A_,2)}, {vr(A_,2)}, {vr(sc,2)}, {vr(CV+16*j+2*p,2)} op_sel:[0,1,0]')
            for p in range(4*o, 4*o+4):
                A_ = ACC+16*j+2*p
                lines.append(f'v_cvt_pk_bf16_f32 v{PK+8*j+p}, v{A_}, v{A_+1}')
            lines.append(f's_add_u32 s26, s{S_A}, {j*0x40000 + o*0x10000}')
            lines.append(f'buffer_store_dwordx4 {vr(PK+8*j+4*o,4)}, v3, s[8:11], s26 offen')
    lines.append('s_waitcnt lgkmcnt(0)')
    lines.append(f's_add_u32 s26, s{S_A}, 0x80000')
    for p in range(8):
        lines.append(f'v_pk_mul_f32 {vr(RV+2*p,2)}, {vr(RV+2*p,2)}, {vr(SC+2,2)} op_sel_hi:[1,0]')
    for o in range(2):
        for p in range(4*o, 4*o+4):
            A_ = ACC+32+2*p
            lines.append(f'v_pk_fma_f32 {vr(A_,2)}, {vr(A_,2)}, {vr(RV+16+2*p,2)}, {vr(RV+2*p,2)}')
        for p in range(4*o, 4*o+4):
            A_ = ACC+32+2*p
            lines.append(f'v_cvt_pk_bf16_f32 v{PK+16+p}, v{A_}, v{A_+1}')
        lines.append(f'buffer_store_dwordx4 {vr(PK+16+4*o,4)}, v{EA+4}, s[8:11], s26 offen offset:{512*o}')
    st2(lines)
    T.stamp('p1.c_st')

    Q, SA, SB, O, P, KB, VB, AV = 12, 20, 36, 52, 84, 92, 100, 116
    XR = 120
    a('v_lshlrev_b32 v10, 8, v5')
    a('v_lshl_add_u32 v10, v6, 4, v10')
    a('v_and_b32 v11, 11, v6')
    a('v_cmp_eq_u32 vcc, 0, v11')
    a(f'v_mov_b32 v11, {CONST + 16}')
    a(f'v_mov_b32 v{SA}, {CONST}')
    a(f'v_cndmask_b32 v11, v11, v{SA}, vcc')
    a(f'v_add_u32 v{SA}, 4, v6')
    a(f'v_and_b32 v{SA}, 8, v{SA}')
    a(f'v_lshl_add_u32 v11, v{SA}, 4, v11')
    a('v_cmp_gt_u32 vcc, 16, v4')
    for s in range(4):
        a(f'v_add_u32 v{SA}, {RING + s*8192 + 4096}, v10')
        a(f'v_cndmask_b32 v{AV+s}, v11, v{SA}, vcc')
    a(f's_lshl_b32 s28, s{S_CT}, 13')
    a(f's_lshl_b32 s27, s{S_Q}, 11')
    a('s_add_u32 s28, s28, s27')
    a(f's_add_u32 s{S_U}, s28, s{S_HD}')
    a(f's_mul_i32 s{S_B}, s{S_CT}, 7')
    a(f's_add_u32 s{S_B}, s{S_B}, s{S_Q}')
    a(f's_lshl_b32 s{S_B}, s{S_B}, 15')
    a(f's_add_u32 s{S_B}, s{S_B}, {W3F}')
    a(f's_sub_u32 s33, s{S_W4}, 4096')
    a(f's_cmp_eq_u32 s{S_Q}, 3')
    a(f's_cselect_b32 s{S_B}, s33, s{S_B}')
    sk = L('gn')
    a(f's_cmp_lg_u32 s{S_NON}, 0\ns_cbranch_scc1 {sk}')
    get_nonce()
    xcc_publish(10, 11)
    a.label(sk)
    flag_prep()
    a(f'v_mov_b32 v{SA}, {NONL}')
    a(f'ds_write_b64 v{SA}, v[10:11]')
    a(f's_lshl_b32 s26, s{S_I}, 3')
    a(f's_add_u32 s26, s26, s{S_GB}')
    a(f's_add_u32 s26, s26, {G_FQ}')
    a('s_waitcnt vmcnt(0) lgkmcnt(0)')
    a('s_barrier')
    sk = L('qf')
    a(f's_cmp_lg_u32 s{S_WAVE}, 0\ns_cbranch_scc1 {sk}')
    st2(flag_lines('s26'))
    a.label(sk)
    T.stamp('c_pub')
    srd(16, P_X, 0x200000)
    a(f's_lshl_b32 s33, s{S_X}, 4')
    a(f's_add_u32 s33, s33, s{S_SLAB}')
    a('s_lshl_b32 s33, s33, 14')
    a(f's_lshl_b32 s27, s{S_CT}, 7')
    a('s_add_u32 s33, s33, s27')
    a('v_lshlrev_b32 v128, 10, v6')
    a('v_lshl_add_u32 v128, v7, 3, v128')
    def rdK(t): a(f'ds_read_b128 {vr(KB+4*(t&1),4)}, v3 offset:{RING + ((t>>2)&3)*8192 + (t&3)*1024}')
    def rdV(t, f): a(f'ds_read_b128 {vr(VB+8*(t&1)+4*f,4)}, v{AV+((t>>2)&3)} offset:{(t&3)*1024+f*512}')
    def mfS(n):
        S = SA if (n & 1) == 0 else SB
        if 'noqk' in opt and n > 1: return
        a(f'v_mfma_f32_32x32x16_bf16 {vr(S,16)}, {vr(KB+4*((n>>1)&1),4)}, {vr(Q+4*(n&1),4)}, 0')
    def mfO(n, f):
        Ou = O + 16*(n & 1)
        if 'nopv' in opt and n > 1: return
        if 'pv16' in opt:
            a(f'v_mfma_f32_16x16x32_bf16 {vr(Ou+8,4)}, {vr(VB+8*((n>>1)&1)+4*f,4)}, {vr(P+4*f,4)}, {"0" if n < 2 and f == 0 else vr(Ou+8,4)}')
            return
        c_ = '0' if (n < 2 and f == 0) else vr(Ou,16)
        a(f'v_mfma_f32_32x32x16_bf16 {vr(Ou,16)}, {vr(VB+8*((n>>1)&1)+4*f,4)}, {vr(P+4*f,4)}, {c_}')
    a(f's_lshl_b32 s26, s{S_CT}, 5')
    a(f's_lshl_b32 s27, s{S_Q}, 3')
    a('s_add_u32 s26, s26, s27')
    a(f's_add_u32 s26, s26, s{S_GB}')
    a(f's_add_u32 s26, s26, {G_FQ}')
    poll('v1', 's26', '1')
    a(f'buffer_load_dwordx4 {vr(Q,4)}, v3, s[8:11], s{S_U} offen sc1')
    a(f'buffer_load_dwordx4 {vr(Q+4,4)}, v3, s[8:11], s{S_U} offen offset:1024 sc1')
    a('s_waitcnt vmcnt(0)')
    a('s_barrier')
    T.stamp('c_kv0'); T.stamp('att.c0'); T.stamp('att.r0', True)
    rdK(0); rdK(1); rdV(0, 0); rdV(0, 1)
    a('s_waitcnt lgkmcnt(3)')
    mfS(0)
    NS = 128
    cjobs = list(range(8, 32))
    for n in range(NS):
        t = n >> 1
        S = SA if (n & 1) == 0 else SB
        ex = lambda i: a(f'v_exp_f32 v{(132+i) if "noqk" in opt else (S+i)}, v{S+i}')
        cv = lambda j: a(f'v_cvt_pk_bf16_f32 v{P+j}, v{S+2*j}, v{S+2*j+1}')
        even = (n & 1) == 0
        if even:
            a('s_waitcnt lgkmcnt(0)')
            if (t + 2) % 4 == 0 and (t + 2) // 4 < 16: a('s_barrier')
        if n + 1 < NS: mfS(n + 1)
        ex(0); ex(1)
        if even and t + 2 < 64: rdK(t + 2)
        if n in (33, 34, 41, 42):
            k = (33, 34, 41, 42).index(n)
            a(f'buffer_load_dwordx2 {vr(XR+2*k,2)}, v128, s[16:19], s33 offen offset:{32*k}')
        if n == 50: xcc_load(130, 129)
        if n >= 60 and ((n + 4) % 8) >= 5 and cjobs:
            i = cjobs.pop(0)
            if 'nojobs' in opt: pass
            if i % 4 == 0: a(f's_add_u32 s30, s{S_B}, {(i >> 2)*4096}')
            if 'nojobs' not in opt and 'nocj' not in opt: a(f'buffer_load_dwordx4 {vr(W3+4*i,4)}, v3, s[8:11], s30 offen offset:{(i&3)*1024} sc1')
        ex(2); cv(0); ex(3); ex(4); ex(5); cv(1)
        if n > 0: mfO(n - 1, 1)
        ex(6); ex(7)
        if even and t + 1 < 64: rdV(t + 1, 0)
        cv(2); ex(8); cv(3); ex(9)
        if even and t + 1 < 64: rdV(t + 1, 1)
        ex(10)
        mfO(n, 0)
        ex(11); cv(4); ex(12); ex(13); cv(5); ex(14); ex(15); cv(6); cv(7)
    assert not cjobs
    mfO(NS - 1, 1)
    T.stamp('c_attn_end'); T.stamp('att.c1'); T.stamp('att.r1', True)
    a('s_waitcnt vmcnt(0)')
    calc_mode(130)
    a(f's_lshl_b32 s29, s{S_X}, 2')
    a(f's_add_u32 s29, s29, s{S_RB}')
    a(f's_lshl_b32 s26, s{S_CT}, 21')
    a(f's_lshl_b32 s27, s{S_Q}, 16')
    a('s_add_u32 s26, s26, s27')
    a('s_lshl_b32 s27, s29, 9')
    a('s_add_u32 s26, s26, s27')
    a(f's_add_u32 s26, s26, {GB + G_O}')
    a('s_add_u32 s27, s26, 32768')
    a(f's_lshl_b32 s28, s{S_CT}, 14')
    a(f's_lshl_b32 s30, s{S_Q}, 12')
    a('s_add_u32 s28, s28, s30')
    a('s_lshl_b32 s30, s29, 7')
    a('s_add_u32 s28, s28, s30')
    a(f's_add_u32 s28, s28, {F_O}')
    a(f'v_lshrrev_b32 v{KB}, 4, v4')
    a(f'v_lshlrev_b32 v{KB}, 14, v{KB}')
    a(f'v_lshl_add_u32 v{KB}, v5, 8, v{KB}')
    a(f'v_lshl_add_u32 v{KB}, v6, 4, v{KB}')
    FB, FBR = L('fb'), L('fbr')
    for u in range(2):
        Ou = O + 16*u
        a(f'v_max3_f32 v{SA+u}, |v{Ou}|, |v{Ou+1}|, |v{Ou+2}|')
        a(f'v_max3_f32 v{SA+u}, |v{Ou+3}|, |v{Ou+4}|, v{SA+u}')
        a(f'v_max3_f32 v{SA+u}, |v{Ou+5}|, |v{Ou+6}|, v{SA+u}')
    a(f'v_max3_f32 v{SA}, |v{O+7}|, |v{O+23}|, v{SA}')
    a(f'v_max_f32 v{SA}, v{SA}, v{SA+1}')
    a(f'v_mul_f32 v{SA}, {H(2.0**-60)}, v{SA}')
    a(f'v_max3_f32 v{SA}, v{O+8}, v{O+24}, v{SA}')
    a(f'v_min_f32 v{SA+1}, v{O+8}, v{O+24}')
    a(f'v_cmp_nle_f32 vcc, v{SA}, v{SA+2}' if False else f'v_mov_b32 v{SA+2}, {H(2.0**60)}')
    a(f'v_cmp_nle_f32 vcc, v{SA}, v{SA+2}')
    a(f'v_cmp_u_f32 s[30:31], v{O+8}, v{O+24}')
    a(f'v_cmp_ngt_f32 s[32:33], v{SA+1}, v{SA+3}' if False else f'v_mov_b32 v{SA+3}, {H(2.0**-60)}')
    a(f'v_cmp_ngt_f32 s[32:33], v{SA+1}, v{SA+3}')
    a('s_or_b64 vcc, vcc, s[30:31]')
    a('s_or_b64 vcc, vcc, s[32:33]')
    if force_fallback: a('s_mov_b64 vcc, -1')
    if 'nofb' in opt: a('s_mov_b64 vcc, 0')
    a(f's_cbranch_vccnz {FB}')
    a.label(FBR)
    for u in range(2):
        Ou = O + 16*u
        a(f'v_rcp_f32 v{SA+u}, v{Ou+8}')
    flag_prep()
    for u in range(2):
        Ou = O + 16*u
        for p in range(4): a(f'v_pk_mul_f32 {vr(Ou+2*p,2)}, {vr(Ou+2*p,2)}, {vr(SA,2)} ' + ('op_sel_hi:[1,0]' if u == 0 else 'op_sel:[0,1]'))
        for j in range(4): a(f'v_cvt_pk_bf16_f32 v{P+4*u+j}, v{Ou+2*j}, v{Ou+2*j+1}')
    for l in [f'buffer_store_dwordx4 {vr(P,4)}, v{KB}, s[8:11], s26 offen', f'buffer_store_dwordx4 {vr(P+4,4)}, v{KB}, s[8:11], s27 offen',
         's_waitcnt vmcnt(0)'] + flag_lines('s28'): a(l + (' sc1' if l.startswith('buffer') else ''))
    a('s_barrier')
    T.stamp('c_pub0')

    GC0 = 12; AWA, AWB = 14, 15; HB = 16; MU, R1 = 24, 25; TMP = 26
    ACC = 32; ACT = 48; WF = 128; NWS = 2; CV = 112; LEAD = 6
    S_TA, S_SA, S_FA = 33, 34, 35
    a(f'v_add_u32 v{AWA}, {WA}, v3')
    a(f'v_add_u32 v{AWB}, {WB}, v3')
    def wread(ph, s, nt):
        b = WF + 16*(s % NWS) + 4*nt
        if ph == 2 and s == 15: return f'ds_read_b128 {vr(b,4)}, v3 offset:{W1X + nt*1024}'
        if ph == 3 and s < NW2L: return f'ds_read_b128 {vr(b,4)}, v3 offset:{W2L + s*4096 + nt*1024}'
        return f'ds_read_b128 {vr(b,4)}, v{AWB if ph == 2 else AWA} offset:{s*4096 + nt*1024}'
    def wpre(ph):
        for s in range(NWS):
            for nt in range(4): a(wread(ph, s, nt))
    def gemm64(ph, ld, fill=None, zero=False):
        T.stamp(f'g.p{ph}_go')
        for s in range(LEAD): ld(s)
        fill = list(fill or [])
        for s in range(16):
            b = WF + 16*(s % NWS)
            for nt in range(4):
                out = min(4*NWS - 1, 4*(16 - s) - nt - 1)
                if nt == 0:
                    a.vwait(('a', s), f'lgkmcnt({out})')
                    if s in (0, 8, 15): T.stamp(f'g.p{ph}_s{s}')
                else: a(f's_waitcnt lgkmcnt({out})')
                c_ = '0' if (s == 0 and zero) else vr(ACC+4*nt,4)
                a(f'v_mfma_f32_16x16x32_bf16 {vr(ACC+4*nt,4)}, {vr(b+4*nt,4)}, {vr(ACT+4*s,4)}, {c_}')
                if s + NWS < 16: a(wread(ph, s + NWS, nt))
                if nt == 1 and s + LEAD < 16: ld(s + LEAD)
                if s >= 4 and fill: a(fill.pop(0))
        assert not fill
    def ld_plain(s):
        if s and s % 4 == 0: a('s_add_u32 s29, s29, 4096')
        a.vissue(f'buffer_load_dwordx4 {vr(ACT+4*s,4)}, v3, s[8:11], s29 offen offset:{(s&3)*1024} sc1', ('a', s))
    def xsum_lines(r0, r1, t0, t1):
        l = []
        for sw in ('v_permlane16_swap_b32', 'v_permlane32_swap_b32'):
            l += [f'v_mov_b32 v{t0}, v{r0}', f'v_mov_b32 v{t1}, v{r1}', f'{sw} v{r0}, v{t0}', f'{sw} v{r1}, v{t1}',
                  f'v_add_f32 v{r0}, v{r0}, v{t0}', f'v_add_f32 v{r1}, v{r1}, v{t1}']
        return l
    def addrs(act, tile, stats, flag):
        a(f's_lshl_b32 s26, s{S_SLAB}, 14')
        a(f's_add_u32 s26, s26, s{S_GB}')
        if act is not None: a(f's_add_u32 s29, s26, {act}')
        a(f's_lshl_b32 s27, s{S_CT}, 11')
        a(f's_add_u32 s{S_TA}, s26, s27')
        a(f's_add_u32 s{S_TA}, s{S_TA}, {tile}')
        a(f's_lshl_b32 s27, s{S_CT}, 3')
        a(f's_add_u32 s27, s27, s{S_GB}')
        if stats is not None:
            a(f's_lshl_b32 s{S_SA}, s{S_SLAB}, 10')
            a(f's_add_u32 s{S_SA}, s{S_SA}, s27')
            a(f's_add_u32 s{S_SA}, s{S_SA}, {stats}')
        a(f's_lshl_b32 s{S_FA}, s{S_SLAB}, 6')
        a(f's_add_u32 s{S_FA}, s{S_FA}, s27')
        a(f's_add_u32 s{S_FA}, s{S_FA}, {flag}')
    def pack16(dst):
        for nt in range(4):
            a(f'v_cvt_pk_bf16_f32 v{dst+2*nt}, v{ACC+4*nt}, v{ACC+4*nt+1}')
            a(f'v_cvt_pk_bf16_f32 v{dst+2*nt+1}, v{ACC+4*nt+2}, v{ACC+4*nt+3}')
    def tile_st(src):
        return [f'buffer_store_dwordx4 {vr(src,4)}, v3, s[8:11], s{S_TA} offen', f'buffer_store_dwordx4 {vr(src+4,4)}, v3, s[8:11], s{S_TA} offen offset:1024']
    def stats_lines(t):
        l = [f'v_pk_add_f32 {vr(t,2)}, {vr(ACC,2)}, {vr(ACC+2,2)}', f'v_pk_mul_f32 {vr(t+2,2)}, {vr(ACC,2)}, {vr(ACC,2)}',
             f'v_pk_fma_f32 {vr(t+2,2)}, {vr(ACC+2,2)}, {vr(ACC+2,2)}, {vr(t+2,2)}']
        for p in range(2, 8):
            l += [f'v_pk_add_f32 {vr(t,2)}, {vr(t,2)}, {vr(ACC+2*p,2)}', f'v_pk_fma_f32 {vr(t+2,2)}, {vr(ACC+2*p,2)}, {vr(ACC+2*p,2)}, {vr(t+2,2)}']
        l += [f'v_add_f32 v{t}, v{t}, v{t+1}', f'v_add_f32 v{t+1}, v{t+2}, v{t+3}']
        l += xsum_lines(t, t+1, t+2, t+3)
        l += ['s_mov_b64 exec, 0xffff', f'buffer_store_dwordx2 {vr(t,2)}, v{TMP+5}, s[8:11], s{S_SA} offen']
        return l
    def gelu_pk(regs, tmp):
        n = len(regs)
        for i, r in enumerate(regs): a(f'v_pk_mul_f32 {vr(tmp+2*i,2)}, {vr(r,2)}, {vr(r,2)}')
        for i, r in enumerate(regs): a(f'v_pk_fma_f32 {vr(tmp+2*i,2)}, {vr(tmp+2*i,2)}, {sr(S_C1,2)}, {vr(GC0,2)}')
        for i, r in enumerate(regs): a(f'v_pk_mul_f32 {vr(tmp+2*i,2)}, {vr(tmp+2*i,2)}, {vr(r,2)}')
        for i in range(2*n): a(f'v_exp_f32 v{tmp+i}, v{tmp+i}')
        for i, r in enumerate(regs): a(f'v_pk_add_f32 {vr(tmp+2*i,2)}, {vr(tmp+2*i,2)}, {sr(S_ONE,2)}')
        for i in range(2*n): a(f'v_rcp_f32 v{tmp+i}, v{tmp+i}')
        for i, r in enumerate(regs): a(f'v_pk_mul_f32 {vr(r,2)}, {vr(r,2)}, {vr(tmp+2*i,2)}')

    wpre(1)
    for nt in range(4):
        for p in range(2):
            a(f'v_lshlrev_b32 v{ACC+4*nt+2*p}, 16, v{XR+2*nt+p}')
            a(f'v_and_b32 v{ACC+4*nt+2*p+1}, 0xffff0000, v{XR+2*nt+p}')
    addrs(G_O, G_H, G_ST1, G_FH)
    a(f'v_lshlrev_b32 v{TMP+5}, 6, v6')
    sk = L('of')
    a(f's_cmp_lg_u32 s{S_WAVE}, 0\ns_cbranch_scc1 {sk}')
    a(f's_lshl_b32 s28, s{S_X}, 14')
    a(f's_lshl_b32 s27, s{S_RB}, 12')
    a('s_add_u32 s28, s28, s27')
    a(f's_add_u32 s28, s28, {F_O}')
    a('s_mov_b32 s30, -1\ns_mov_b32 s31, 0')
    a(f'v_lshlrev_b32 v{TMP}, 7, v2')
    poll(f'v{TMP}', 's28', 's[30:31]', sleep=1)
    a.label(sk)
    a('s_barrier')
    a.vm = ['fl']
    T.stamp('p1_poll')
    gemm64(1, ld_plain)
    T.stamp('p1_gemm')
    flag_prep()
    pack16(HB)
    st2(tile_st(HB) + stats_lines(ACT) + ['s_waitcnt vmcnt(0)'] + flag_lines(f's{S_FA}'))
    a('s_barrier')
    T.stamp('pub1')
    wpre(2)
    a('v_lshlrev_b32 v10, 4, v7')
    for nt in range(4): a(f'ds_read_b128 {vr(CV+4*nt,4)}, v10 offset:{CS1 + 64*nt}')
    a(f'v_mov_b32 v{GC0}, {H(GELU_C0)}\nv_mov_b32 v{GC0+1}, {H(GELU_C0)}')
    addrs(G_H, G_HH, None, G_FHH)
    a(f's_lshl_b32 s28, s{S_SLAB}, 6')
    a(f's_add_u32 s28, s28, s{S_GB}')
    a(f's_add_u32 s28, s28, {G_FH}')
    a(f's_add_u32 s27, s{S_SLAB}, 1')
    a('s_and_b32 s27, s27, 14')
    a('s_cmp_eq_u32 s27, 0')
    a(f's_cselect_b32 s{S_M2}, 0, s{S_MODE}')
    a(f's_cselect_b32 s{S_U+1}, 1, 0')
    a(f's_cmp_eq_u32 s{S_SLAB}, 0')
    a(f's_mov_b32 s{S_U+2}, {0x200000 + G_FHX}')
    a(f's_cselect_b32 s{S_U+2}, {(G_FHX + 1024 - 0x200000) & 0xffffffff}, s{S_U+2}')
    a(f's_add_u32 s{S_U+2}, s{S_U+2}, s{S_GB}')
    a(f's_lshl_b32 s27, s{S_CT}, 7')
    a(f's_add_u32 s{S_U+2}, s{S_U+2}, s27')
    a(f's_lshl_b32 s27, s{S_X}, 4')
    a(f's_add_u32 s27, s27, s{S_SLAB}')
    a('s_add_u32 s27, s27, 1')
    a('s_and_b32 s27, s27, 126')
    a('s_cmp_eq_u32 s27, 0')
    a(f's_cselect_b32 s{S_U+1}, 0, s{S_U+1}')
    a(f'v_lshl_add_u32 v{TMP+4}, v7, 4, v{TMP+5}')
    a(f's_lshl_b32 s{S_SA}, s{S_SLAB}, 10')
    a(f's_add_u32 s{S_SA}, s{S_SA}, s{S_GB}')
    a(f's_add_u32 s{S_SA}, s{S_SA}, {G_ST1}')
    a('s_waitcnt lgkmcnt(0)')
    poll('v1', 's28', '0xff')
    T.stamp('p2_poll')
    a.vissue(f'buffer_load_dwordx4 {vr(TMP,4)}, v{TMP+4}, s[8:11], s{S_SA} offen sc1', 'st')
    fill = [f'v_add_f32 v{TMP}, v{TMP}, v{TMP+2}', f'v_add_f32 v{TMP+1}, v{TMP+1}, v{TMP+3}'] + xsum_lines(TMP, TMP+1, TMP+2, TMP+3) + [
        f'v_mul_f32 v{MU}, {H(-1/512)}, v{TMP}', f'v_mul_f32 v{TMP+1}, {H(1/512)}, v{TMP+1}',
        f'v_fma_f32 v{TMP+1}, -v{MU}, v{MU}, v{TMP+1}', f'v_max_f32 v{TMP+1}, 0, v{TMP+1}',
        f'v_add_f32 v{TMP+2}, {H(1e-5)}, v{TMP+1}', f'v_rsq_f32 v{R1}, v{TMP+2}', f'v_mul_f32 v{TMP+2}, v{R1}, v{R1}',
        f'v_fmaak_f32 v{TMP+2}, v{TMP+2}, v{TMP+1}, {H(1e-5)}', f'v_rsq_f32 v{TMP+2}, v{TMP+2}', f'v_mul_f32 v{TMP+2}, v{TMP+2}, v{R1}',
        f'v_mul_f32 v{TMP+3}, v{TMP+2}, v{MU}'] + [f'v_mul_f32 v{CV+i}, v{TMP+3}, v{CV+i}' for i in range(16)]
    gemm64(2, ld_plain, fill, zero=True)
    T.stamp('p2_gemm')
    flag_prep()
    for p in range(8): a(f'v_pk_fma_f32 {vr(ACC+2*p,2)}, {vr(ACC+2*p,2)}, {vr(TMP+2,2)}, {vr(CV+2*p,2)} op_sel_hi:[1,0,1]')
    gelu_pk([ACC+2*p for p in range(8)], ACT)
    pack16(ACT+16)
    st2(tile_st(ACT+16) + ['s_waitcnt vmcnt(0)'], S_M2)
    st2(flag_lines(f's{S_FA}'))
    sk = L('hx')
    a(f's_cmp_eq_u32 s{S_U+1}, 0\ns_cbranch_scc1 {sk}')
    for l in flag_lines(f's{S_U+2}'): a(l + (' sc1' if l.startswith('buffer') else ''))
    a.label(sk)
    a('s_barrier')
    T.stamp('pub2')
    wpre(3)
    for nt in range(4):
        for p in range(2):
            a(f'v_lshlrev_b32 v{ACC+4*nt+2*p}, 16, v{HB+2*nt+p}')
            a(f'v_and_b32 v{ACC+4*nt+2*p+1}, 0xffff0000, v{HB+2*nt+p}')
    for p in range(8): a(f'v_pk_add_f32 {vr(ACC+2*p,2)}, {vr(ACC+2*p,2)}, {vr(MU,2)} op_sel_hi:[1,0]')
    for p in range(8): a(f'v_pk_mul_f32 {vr(ACC+2*p,2)}, {vr(ACC+2*p,2)}, {vr(MU,2)} op_sel:[0,1]')
    addrs(None, G_X1, G_ST2, G_FX1)
    a(f's_lshl_b32 s27, s{S_X}, 4')
    a(f's_add_u32 s27, s27, s{S_SLAB}')
    a('s_mov_b32 s30, 0xccff33')
    a('s_cmp_eq_u32 s27, 0')
    a('s_cselect_b32 s30, 0xccff00, s30')
    a('s_cmp_eq_u32 s27, 127')
    a('s_cselect_b32 s30, 0x00ff33, s30')
    a('s_mov_b32 s31, 0')
    a('s_lshl_b32 s26, s27, 4')
    a(f's_lshl_b32 s28, s{S_SLAB}, 6')
    a(f's_add_u32 s28, s28, {G_FHH - 64}')
    a(f'v_add_u32 v{TMP+4}, s28, v1')
    a('v_lshrrev_b32 v10, 3, v2')
    a(f's_sub_u32 s27, s{S_SLAB}, 1')
    a('v_add_u32 v10, s27, v10')
    a('v_cmp_lt_u32 vcc, 15, v10')
    a('v_and_b32 v10, 7, v2')
    a('v_lshl_add_u32 v10, v7, 3, v10')
    a('v_lshlrev_b32 v10, 7, v10')
    a(f'v_add_u32 v10, {G_FHX}, v10')
    a(f'v_cndmask_b32 v{TMP+4}, v{TMP+4}, v10, vcc')
    for gi, d in enumerate((-1, 1, -2, 2)):
        a('v_add_u32 v10, s26, v6')
        a(f'v_add_u32 v10, {d}, v10')
        a('v_bfe_u32 v11, v10, 4, 4')
        a('v_lshlrev_b32 v11, 14, v11')
        a(f'v_lshrrev_b32 v{TMP}, 8, v10')
        a(f'v_lshl_add_u32 v11, v{TMP}, 21, v11')
        a(f'v_and_b32 v{TMP}, 15, v10')
        a(f'v_lshl_add_u32 v11, v{TMP}, 4, v11')
        a('v_lshl_add_u32 v11, v7, 8, v11')
        a('v_cmp_gt_u32 vcc, 0x800, v10')
        a(f'v_mov_b32 v{TMP}, 0x70000000')
        a(f'v_cndmask_b32 v{CV+gi}, v{TMP}, v11, vcc')
    poll(f'v{TMP+4}', f's{S_GB}', 's[30:31]')
    T.stamp('p3_poll')
    def ld_shift(s):
        if s % 4 == 0: a(f's_mov_b32 s29, {GB + G_HH + (s>>2)*4096}')
        a.vissue(f'buffer_load_dwordx4 {vr(ACT+4*s,4)}, v{CV+(s>>2)}, s[8:11], s29 offen offset:{(s&3)*1024} sc1', ('a', s))
    gemm64(3, ld_shift)
    a('s_barrier')
    T.stamp('p3_gemm')
    flag_prep()
    pack16(ACT+16)
    st2(tile_st(ACT+16) + stats_lines(ACT) + ['s_waitcnt vmcnt(0)'] + flag_lines(f's{S_FA}'))
    a(f's_lshl_b32 s26, s{S_Q}, 13')
    a(f'v_add_u32 v{AWB}, s26, v{AWB}')
    for i in range(8): a(f'ds_read_b128 {vr(W3+4*i,4)}, v{AWB} offset:{i*1024}')
    T.stamp('pub3')

    a.label(HJOIN)
    a.vm = []
    A4 = 24; C3 = 56; XF = 72; T4 = 88; PKO = 120
    korder = list(range(8, 32)) + list(range(8))
    a(f'v_mov_b32 v{GC0}, {H(GELU_C0)}\nv_mov_b32 v{GC0+1}, {H(GELU_C0)}')
    a('v_lshrrev_b32 v15, 4, v4')
    a('v_lshlrev_b32 v14, 14, v15')
    a('v_lshl_add_u32 v14, v5, 8, v14')
    a('v_lshl_add_u32 v14, v6, 4, v14')
    a(f'v_add_u32 v14, {XT}, v14')
    a('v_mul_u32_u24 v15, 0xe000, v15')
    a('v_lshl_add_u32 v15, v5, 8, v15')
    a('v_lshl_add_u32 v15, v6, 4, v15')
    a('v_lshlrev_b32 v16, 6, v4')
    a('v_lshl_add_u32 v16, v5, 5, v16')
    a(f's_lshl_b32 s26, s{S_J}, 7')
    a(f's_add_u32 s26, s26, {C3L}')
    a('v_lshl_add_u32 v17, v5, 4, s26')
    a(f's_lshl_b32 s26, s{S_J}, 12')
    a('v_add_u32 v18, s26, v3')
    a(f'v_add_u32 v19, {PKB}, v18')
    a(f's_lshl_b32 s28, s{S_R16}, 10')
    a(f's_add_u32 s28, s28, s{S_GB}')
    a(f's_add_u32 s28, s28, {G_ST2}')
    a(f's_mul_i32 s33, s{S_R16}, 57344')
    a(f's_add_u32 s33, s33, s{S_GB}')
    a(f's_add_u32 s33, s33, {G_H2}')
    a(f's_mul_i32 s26, s{S_CT}, 7168')
    a('s_add_u32 s26, s26, s33')
    a(f's_lshl_b32 s27, s{S_J}, 10')
    a('s_add_u32 s26, s26, s27')
    a(f's_add_u32 s27, s26, {2*57344}')
    a(f's_lshl_b32 s34, s{S_RB}, 9')
    a(f's_add_u32 s34, s34, s{S_GB}')
    a(f's_add_u32 s34, s34, {G_FH2}')
    a(f's_lshl_b32 s35, s{S_CT}, 6')
    a('s_add_u32 s35, s35, s34')
    a(f's_lshl_b32 s29, s{S_J}, 3')
    a('s_add_u32 s35, s35, s29')
    for q in range(4): a(f'ds_read_b128 {vr(C3+4*q,4)}, v17 offset:{32*q}')
    a('s_waitcnt vmcnt(8)')
    a('s_barrier')
    T.stamp('p4_go')
    h4, j4 = L('help'), L('join')
    a(f's_cmp_eq_u32 s{S_WAVE}, 3')
    a(f's_cbranch_scc1 {h4}')
    seq = [(mt, ks) for mt in range(2) for ks in korder]
    def rdX(i):
        mt, ks = seq[i]
        a(f'ds_read_b128 {vr(XF+4*(i&3),4)}, v14 offset:{mt*32768 + ks*512}')
    for i in range(3): rdX(i)
    for mt in range(2):
        a(f'buffer_load_dwordx4 {vr(T4+8*mt,4)}, v16, s[8:11], s28 offen offset:{2048*mt} sc1')
        a(f'buffer_load_dwordx4 {vr(T4+8*mt+4,4)}, v16, s[8:11], s28 offen offset:{2048*mt+16} sc1')
    def ldW4(f):
        a(f's_add_u32 s30, s{S_W4}, {(f >> 2)*4096}')
        a(f'buffer_load_dwordx4 {vr(W4+4*f,4)}, v3, s[8:11], s30 offen offset:{(f&3)*1024} sc1')
    def stat4(mt):
        b = T4 + 8*mt
        return [f'v_add_f32 v{b}, v{b}, v{b+2}', f'v_add_f32 v{b+1}, v{b+1}, v{b+3}', f'v_add_f32 v{b+4}, v{b+4}, v{b+6}', f'v_add_f32 v{b+5}, v{b+5}, v{b+7}',
                f'v_add_f32 v{b}, v{b}, v{b+4}', f'v_add_f32 v{b+1}, v{b+1}, v{b+5}', f'v_mov_b32 v{b+2}, v{b}', f'v_mov_b32 v{b+3}, v{b+1}',
                f'v_permlane32_swap_b32 v{b}, v{b+2}', f'v_permlane32_swap_b32 v{b+1}, v{b+3}',
                f'v_add_f32 v{b}, v{b}, v{b+2}', f'v_add_f32 v{b+1}, v{b+1}, v{b+3}',
                f'v_mul_f32 v{b}, {H(-1/512)}, v{b}', f'v_mul_f32 v{b+1}, {H(1/512)}, v{b+1}', f'v_fma_f32 v{b+1}, -v{b}, v{b}, v{b+1}',
                f'v_max_f32 v{b+1}, 0, v{b+1}', f'v_add_f32 v{b+1}, {H(1e-5)}, v{b+1}', f'v_rsq_f32 v{b+1}, v{b+1}']
    def epi_scalar(mt):
        b = T4 + 8*mt; A = A4 + 16*mt; t = T4 + 16
        l = []
        for g in range(4):
            R = [A+4*g+i for i in range(4)]; Tt = [t+4*(g&1)+i for i in range(4)]
            l += [f'v_fmac_f32 v{r}, v{b}, v{C3+4*g+i}' for i, r in enumerate(R)]
            l += [f'v_mul_f32 v{r}, v{b+1}, v{r}' for r in R]
            l += [f'v_mul_f32 v{x}, v{r}, v{r}' for x, r in zip(Tt, R)]
            l += [f'v_fma_f32 v{x}, v{x}, s{S_C1}, v{GC0}' for x in Tt]
            l += [f'v_mul_f32 v{x}, v{x}, v{r}' for x, r in zip(Tt, R)]
            l += [f'v_exp_f32 v{x}, v{x}' for x in Tt]
            l += [f'v_add_f32 v{x}, 1.0, v{x}' for x in Tt]
            l += [f'v_rcp_f32 v{x}, v{x}' for x in Tt]
            l += [f'v_mul_f32 v{r}, v{r}, v{x}' for x, r in zip(Tt, R)]
            l += [f'v_cvt_pk_bf16_f32 v{PKO+2*g}, v{R[0]}, v{R[1]}', f'v_cvt_pk_bf16_f32 v{PKO+2*g+1}, v{R[2]}, v{R[3]}']
        return l
    fill1 = stat4(0) + stat4(1)
    fill2 = epi_scalar(0)
    for i, (mt, ks) in enumerate(seq):
        if i == 20:
            a('s_waitcnt vmcnt(0)')
            a('s_barrier')
        if i + 3 < 64: rdX(i + 3)
        a(f's_waitcnt lgkmcnt({min(3, 63 - i)})')
        c_ = '0' if i % 32 == 0 else vr(A4+16*mt,16)
        a(f'v_mfma_f32_32x32x16_bf16 {vr(A4+16*mt,16)}, {vr(W3+4*ks,4)}, {vr(XF+4*(i&3),4)}, {c_}')
        if mt == 1 and 8 <= ks < 28: ldW4(ks - 4)
        if 20 <= i < 32:
            for l in fill1[:3]: a(l)
            fill1 = fill1[3:]
        if i >= 33:
            for l in fill2[:5]: a(l)
            fill2 = fill2[5:]
    assert not fill1 and not fill2
    T.stamp('p4_gemm')
    st2([f'buffer_store_dwordx4 {vr(PKO,4)}, v15, s[8:11], s26 offen', f'buffer_store_dwordx4 {vr(PKO+4,4)}, v15, s[8:11], s26 offen offset:512'])
    flag_prep()
    b = T4 + 8; A = A4 + 16
    for p in range(8): a(f'v_pk_fma_f32 {vr(A+2*p,2)}, {vr(C3+2*p,2)}, {vr(b,2)}, {vr(A+2*p,2)} op_sel_hi:[1,0,1]')
    for p in range(8): a(f'v_pk_mul_f32 {vr(A+2*p,2)}, {vr(A+2*p,2)}, {vr(b,2)} op_sel:[0,1]')
    gelu_pk([A+2*p for p in range(8)], T4+16)
    for p in range(8): a(f'v_cvt_pk_bf16_f32 v{XF+p}, v{A+2*p}, v{A+2*p+1}')
    st2([f'buffer_store_dwordx4 {vr(XF,4)}, v15, s[8:11], s27 offen', f'buffer_store_dwordx4 {vr(XF+4,4)}, v15, s[8:11], s27 offen offset:512',
         's_waitcnt vmcnt(0)'] + flag_lines('s35'))
    a(f's_branch {j4}')
    a.label(h4)
    a('s_waitcnt lgkmcnt(0)')
    a('s_barrier')
    a(f's_mul_i32 s30, s{S_CT}, 7168')
    a('s_add_u32 s30, s30, s33')
    a('v_lshlrev_b32 v10, 7, v2')
    a('s_mov_b32 exec_hi, 0xffffff')
    for sl in range(4):
        a('buffer_load_dword v11, v10, s[8:11], s30 offen sc1')
        a('s_add_u32 s30, s30, 57344')
    a('s_mov_b32 exec_hi, -1')
    for f in range(4): ldW4(f)
    a(f's_mul_i32 s31, s{S_CT}, 229376')
    for j in range(7):
        v = j if j < 3 else j + 1
        for (lds, f0) in ((PKA, 24), (PKB, 0)):
            a(f's_mov_b32 m0, {lds + j*4096}')
            a(f's_add_u32 s30, s31, {W4F + v*28672 + f0*1024}')
            for i in range(4): a(f'buffer_load_dwordx4 v3, s[8:11], s30 offen offset:{i*1024} sc1 lds')
    a('s_waitcnt vmcnt(0)')
    a.label(j4)
    T.stamp('pub4')

    A5 = 24; HA = 88; RS_ = 128
    a(f's_lshl_b32 s27, s{S_Q}, 2')
    a('v_add_u32 v10, s27, v7')
    a('v_lshlrev_b32 v12, 4, v10')
    a('v_bfe_u32 v11, v2, 3, 1')
    a('v_lshl_add_u32 v12, v11, 10, v12')
    a('v_lshl_add_u32 v12, v9, 8, v12')
    a('v_bfe_u32 v11, v2, 2, 1')
    a('v_lshl_add_u32 v12, v11, 3, v12')
    a(f's_lshr_b32 s26, s{S_WAVE}, 2')
    a(f's_add_u32 s26, s26, s{S_R16}')
    a('s_lshl_b32 s26, s26, 14')
    a(f's_lshl_b32 s27, s{S_CT}, 11')
    a('s_add_u32 s26, s26, s27')
    a(f's_add_u32 s26, s26, s{S_GB}')
    for mt in range(2):
        for bi, base in enumerate((G_H, G_X1)):
            a(f's_add_u32 s27, s26, {base + mt*32768}')
            a(f'buffer_load_dwordx2 {vr(RS_+4*mt+2*bi,2)}, v12, s[8:11], s27 offen sc1')
    a(f's_lshl_b32 s28, s{S_WAVE}, 6')
    a('s_add_u32 s28, s28, s34')
    a(f's_mul_i32 s26, s{S_WAVE}, 7168')
    a('s_add_u32 s26, s26, s33')
    a(f's_lshl_b32 s27, s{S_WAVE}, 13')
    a('v_lshlrev_b32 v13, 4, v5')
    a('v_xor_b32 v13, v13, v3')
    a('v_add_u32 v13, s27, v13')
    a(f's_lshl_b32 s27, s{S_WAVE}, 2')
    a('v_add_u32 v10, s27, v7')
    a('v_xor_b32 v10, v10, v6')
    a('v_lshlrev_b32 v10, 4, v10')
    a('v_and_b32 v11, 1, v2')
    a('v_lshl_add_u32 v10, v11, 9, v10')
    a('v_lshrrev_b32 v11, 1, v6')
    a('v_lshl_add_u32 v14, v11, 10, v10')
    poll('v1', 's28', '0x7f')
    T.stamp('p5_poll')
    def ldA(mt, ks):
        a(f's_add_u32 s27, s26, {mt*2*57344 + (ks//8)*4096}')
        a.vissue(f'buffer_load_dwordx4 {vr(HA+4*((14*mt+ks_pos[ks])%10),4)}, v15, s[8:11], s27 offen offset:{(ks%8)*512} sc1', ('h', mt, ks))
    korder5 = list(range(2, 12)) + [12, 13, 0, 1]
    ks_pos = {k: i for i, k in enumerate(korder5)}
    order = [(mt, ks) for mt in range(2) for ks in korder5]
    LEAD5 = 8
    for (mt, ks) in order[:LEAD5]: ldA(mt, ks)
    a('s_barrier')
    sk = L('pk')
    a(f's_cmp_eq_u32 s{S_WAVE}, 3\ns_cbranch_scc1 {sk}')
    for i in range(4): a(f'ds_read_b128 {vr(W4+4*(24+i),4)}, v18 offset:{PKA + i*1024}')
    for i in range(4): a(f'ds_read_b128 {vr(W4+4*i,4)}, v19 offset:{i*1024}')
    a.label(sk)
    def wr_list(mt):
        l = []
        for nt in range(2):
            for q in range(4):
                oct_ = 4*nt + q
                l.append([f'v_xor_b32 v{10+(q&1)}, {oct_*32 + mt*65536}, v13',
                          f'ds_write_b128 v{10+(q&1)}, {vr(A5+32*nt+16*mt+4*q,4)} offset:{RED + oct_*1024}'])
        return l
    wl = wr_list(0)
    for i, (mt, ks) in enumerate(order):
        a.vwait(('h', mt, ks), 'lgkmcnt(0)' if i == 6 else '')
        if i == 6: a('s_barrier')
        for nt in range(2):
            A = A5 + 32*nt + 16*mt
            c_ = '0' if ks_pos[ks] == 0 else vr(A,16)
            a(f'v_mfma_f32_32x32x16_bf16 {vr(A,16)}, {vr(W4+8*ks+4*nt,4)}, {vr(HA+4*((14*mt+ks_pos[ks])%10),4)}, {c_}')
        if i + LEAD5 < 28: ldA(*order[i + LEAD5])
        if i >= 16 and wl:
            for l in wl.pop(0): a(l)
    T.stamp('p5_gemm')
    for g in wr_list(1):
        for l in g: a(l)
    srd(16, P_OUT, 0x200000)
    a(f's_lshl_b32 s26, s{S_X}, 4')
    a(f's_add_u32 s26, s26, s{S_R16}')
    a('s_lshl_b32 s26, s26, 14')
    a(f's_lshl_b32 s27, s{S_WAVE}, 12')
    a('s_add_u32 s26, s26, s27')
    a(f's_lshl_b32 s27, s{S_CT}, 7')
    a('s_add_u32 s26, s26, s27')
    a('s_add_u32 s27, s26, 32768')
    a('v_lshlrev_b32 v12, 10, v7')
    a('v_lshl_add_u32 v12, v6, 3, v12')
    a('v_add_u32 v13, 0x10000, v14')
    RD = 144; SUM = 88
    for mt in range(2):
        for p in range(2):
            a(f'v_lshlrev_b32 v{RD+8*mt+2*p}, 16, v{RS_+4*mt+p}')
            a(f'v_and_b32 v{RD+8*mt+2*p+1}, 0xffff0000, v{RS_+4*mt+p}')
            a(f'v_lshlrev_b32 v{RD+8*mt+4+2*p}, 16, v{RS_+4*mt+2+p}')
            a(f'v_and_b32 v{RD+8*mt+4+2*p+1}, 0xffff0000, v{RS_+4*mt+2+p}')
        for p in range(2): a(f'v_pk_add_f32 {vr(SUM+4*mt+2*p,2)}, {vr(RD+8*mt+2*p,2)}, {vr(RD+8*mt+4+2*p,2)}')
    a('s_waitcnt lgkmcnt(0)')
    a('s_barrier')
    for mt in range(2):
        for src in range(8):
            a(f'ds_read_b128 {vr(RD+32*mt+4*src,4)}, v{14 if mt == 0 else 13} offset:{RED + src*8192}')
    for mt in range(2):
        for src in range(8):
            if src % 2 == 0: a(f's_waitcnt lgkmcnt({14-8*mt-src})')
            for p in range(2): a(f'v_pk_add_f32 {vr(SUM+4*mt+2*p,2)}, {vr(SUM+4*mt+2*p,2)}, {vr(RD+32*mt+4*src+2*p,2)}')
        for p in range(2): a(f'v_cvt_pk_bf16_f32 v{24+2*mt+p}, v{SUM+4*mt+2*p}, v{SUM+4*mt+2*p+1}')
        a(f'buffer_store_dwordx2 {vr(24+2*mt,2)}, v12, s[16:19], s{26+mt} offen')
    if diag: a('s_waitcnt vmcnt(0)')
    T.stamp('end'); T.stamp('end_rt', True)
    T.flush(P_WS, 0, S_WAVE, TS)
    a('s_endpgm')

    for (lab, lines, back) in a.cold:
        a.label(lab)
        a('s_nop 7')
        for l in lines: a(l)
        a('s_nop 7')
        a(f's_branch {back}')
    NM = 128
    a.label(FB)
    a('s_nop 15')
    a(f's_add_u32 s30, s{S_HD}, 0x40000')
    a(f's_add_u32 s31, s{S_HD}, 0x80000')
    a(f'v_mov_b32 v{NM}, 0xff800000\nv_mov_b32 v{NM+16}, 0xff800000')
    a('s_mov_b32 s32, 0')
    l1 = L('fb1')
    a.label(l1)
    a('s_add_u32 s33, s30, s32')
    a(f'buffer_load_dwordx4 {vr(KB+4,4)}, v3, s[8:11], s33 offen sc1')
    a('s_waitcnt vmcnt(0)')
    for u, S in ((0, SA), (1, SB)):
        a(f'v_mfma_f32_32x32x16_bf16 {vr(S,16)}, {vr(KB+4,4)}, {vr(Q+4*u,4)}, 0')
    for u, S in ((0, SA), (1, SB)):
        for i in range(8): a(f'v_max3_f32 v{NM+16*u}, v{S+2*i}, v{S+2*i+1}, v{NM+16*u}')
    a('s_add_u32 s32, s32, 1024')
    a('s_cmp_lt_u32 s32, 0x10000')
    a(f's_cbranch_scc1 {l1}')
    for u in range(2):
        m = NM + 16*u
        a(f'v_mov_b32 v{m+1}, v{m}')
        a(f'v_permlane32_swap_b32 v{m}, v{m+1}')
        a(f'v_max_f32 v{m}, v{m}, v{m+1}')
        a(f'v_sub_f32 v{m}, 0, v{m}')
        for i in range(1, 16): a(f'v_mov_b32 v{m+i}, v{m}')
    for i in range(32): a(f'v_mov_b32 v{O+i}, 0')
    a('v_and_b32 v10, 27, v4')
    a('v_cmp_eq_u32 vcc, 16, v10')
    a('v_mov_b32 v10, 0x3f803f80')
    for i in range(8): a(f'v_cndmask_b32 v{VB+i}, 0, v10, vcc')
    a('v_lshlrev_b32 v10, 8, v5')
    a('v_lshl_add_u32 v10, v6, 4, v10')
    a('s_mov_b32 s32, 0')
    a('s_mov_b32 s34, 0xffff\ns_mov_b32 s35, 0xffff')
    l2 = L('fb2')
    a.label(l2)
    a('s_add_u32 s33, s30, s32')
    a(f'buffer_load_dwordx4 {vr(KB+4,4)}, v3, s[8:11], s33 offen sc1')
    a('s_add_u32 s33, s31, s32')
    a('s_mov_b64 exec, s[34:35]')
    a(f'buffer_load_dwordx4 {vr(VB,4)}, v10, s[8:11], s33 offen sc1')
    a(f'buffer_load_dwordx4 {vr(VB+4,4)}, v10, s[8:11], s33 offen offset:512 sc1')
    a('s_mov_b64 exec, -1')
    a('s_waitcnt vmcnt(0)')
    for u, S in ((0, SA), (1, SB)):
        a(f'v_mfma_f32_32x32x16_bf16 {vr(S,16)}, {vr(KB+4,4)}, {vr(Q+4*u,4)}, {vr(NM+16*u,16)}')
    for u, S in ((0, SA), (1, SB)):
        for i in range(16): a(f'v_exp_f32 v{S+i}, v{S+i}')
        for j in range(8): a(f'v_cvt_pk_bf16_f32 v{P+j}, v{S+2*j}, v{S+2*j+1}')
        for f in range(2):
            a(f'v_mfma_f32_32x32x16_bf16 {vr(O+16*u,16)}, {vr(VB+4*f,4)}, {vr(P+4*f,4)}, {vr(O+16*u,16)}')
        a('s_nop 15')
    a('s_add_u32 s32, s32, 1024')
    a('s_cmp_lt_u32 s32, 0x10000')
    a(f's_cbranch_scc1 {l2}')
    a('s_nop 15')
    a(f's_branch {FBR}')
    a.label(END)
    a('s_endpgm')
    return a, LDS_SIZE
```

```python
import sys
from build import *
from mega import gen_mega
N = 'sequential_preLN__mha_block__mixer_s_mlp__prompt'
kw = eval('dict(%s)' % (sys.argv[2] if len(sys.argv) > 2 else ''))
out = sys.argv[1] if len(sys.argv) > 1 else f'cdna_kernels/{N}.s'
a, lds = gen_mega(name=N + '_kernel', **kw)
build([(N + '_kernel', a, 256, 512, lds)], out)
```

```python
from asmlib import *
from layout import *
import struct
def f2u(x): return struct.unpack('<I', struct.pack('<f', x))[0]
def H(x): return hex(f2u(x))

LDS_SIZE = 160 * 1024
XL = 0; WL = 65536; WSLOT = 24576; NSLOT = 3
CSUM = WL + NSLOT * WSLOT
RST = CSUM + 1024
RING = 0; CONST = 32768; WA = 36864; WB = 102400
PREP = 143360
W2L = 0; NW2L = 7; W1X = 28672; CS1 = 32768; C3L = 33024
W3L = WB; PKA = 0; PKB = WB + 24576; NONL = RST + 512
XT = WA
RED = 0

GELU_C0 = -2.0 * 0.7978845608028654 * 1.4426950408889634
GELU_C1 = GELU_C0 * 0.044715

S_WAVE, S_X, S_I, S_RB, S_CT, S_R16 = 20, 21, 22, 23, 24, 25
P_X, P_WQKV, P_WO, P_W1, P_W2, P_W3, P_W4, P_OUT, P_DBG, P_WS = 36, 38, 40, 44, 46, 48, 50, 52, 54, 56
S_NON = 58; S_SPIN = 60; S_MODE = 61; S_C1 = 62; S_ONE = 64
S_QKV, S_HD, S_RHO, S_Q, S_SLAB, S_M2 = 66, 67, 68, 69, 70, 71
S_U = 72
S_GB = 3; S_J = 4; S_W4 = 5; S_A = 6; S_B = 7; S_C0 = 42
W3 = 128; W4 = 144

def gen_mega(name='mega_kernel', diag=False, force_safe=False, force_fallback=False, sel=None, opt=''):
    a = Asm()
    T = Stamper(a, 76, diag); a.T = T; T.sel = sel; T.rt = ('rt' in opt.split(','))
    uid = [0]
    def L(s): uid[0] += 1; return f'L_{s}{uid[0]}'
    def srd(base, p, size):
        a(f's_mov_b32 s{base}, s{p}\ns_mov_b32 s{base+1}, s{p+1}\ns_mov_b32 s{base+2}, {hex(size)}\ns_mov_b32 s{base+3}, 0x20000')
    END = f'{name}_end'
    KVNT = 'nt ' if 'kvnt' in opt else ''

    a(f'.globl {name}\n.p2align 8\n.type {name},@function')
    a.label(name)
    a(f's_cmp_ge_u32 s2, 256\ns_cbranch_scc1 {END}')
    a('s_load_dwordx16 s[36:51], s[0:1], 0')
    a('s_load_dwordx4 s[52:55], s[0:1], 64')
    a('s_load_dwordx2 s[56:57], s[0:1], 80')
    a('v_lshrrev_b32 v1, 6, v0')
    a('v_and_b32 v2, 63, v0')
    a(f'v_readfirstlane_b32 s{S_WAVE}, v1')
    a(f's_and_b32 s{S_X}, s2, 7')
    a(f's_lshr_b32 s{S_I}, s2, 3')
    a(f's_lshr_b32 s{S_RB}, s{S_I}, 3')
    a(f's_and_b32 s{S_CT}, s{S_I}, 7')
    a(f's_and_b32 s{S_Q}, s{S_WAVE}, 3')
    if diag:
        for i in range(24): a(f's_mov_b32 s{76+i}, 0')
        T.stamp('start_rt', True); T.stamp('start')
    CW1 = L('cw1')
    a(f's_cmp_lt_u32 s{S_WAVE}, 4')
    a(f's_cbranch_scc1 {CW1}')

    def common_consts():
        a('v_lshlrev_b32 v3, 4, v2')
        a('v_and_b32 v4, 31, v2')
        a('v_lshrrev_b32 v5, 5, v2')
        a('v_and_b32 v6, 15, v2')
        a('v_lshrrev_b32 v7, 4, v2')
        a('v_bfe_u32 v8, v2, 2, 2')
        a('v_and_b32 v9, 3, v2')
        a('v_lshlrev_b32 v1, 3, v2')
        a(f's_lshl_b32 s{S_R16}, s{S_RB}, 2')
        a(f's_add_u32 s{S_SLAB}, s{S_R16}, s{S_Q}')
        a(f's_lshl_b32 s{S_GB}, s{S_X}, 21')
        a(f's_add_u32 s{S_GB}, s{S_GB}, {GB}')
        a(f's_mul_i32 s{S_QKV}, s{S_X}, {QKVG}')
        a(f's_lshl_b32 s{S_HD}, s{S_RB}, 16')
        a(f's_add_u32 s{S_HD}, s{S_HD}, s{S_QKV}')
        a(f's_cmp_gt_u32 s{S_WAVE}, 3')
        a(f's_subb_u32 s{S_J}, s{S_WAVE}, 0')
        a(f's_mul_i32 s{S_W4}, s{S_CT}, 229376')
        a(f's_mul_i32 s26, s{S_WAVE}, 28672')
        a(f's_add_u32 s{S_W4}, s{S_W4}, s26')
        a(f's_add_u32 s{S_W4}, s{S_W4}, {W4F}')
        a(f's_mov_b32 s{S_C1}, {H(GELU_C1)}\ns_mov_b32 s{S_C1+1}, {H(GELU_C1)}')
        a(f's_mov_b32 s{S_ONE}, 1.0\ns_mov_b32 s{S_ONE+1}, 1.0')

    def get_nonce(sleep=0):
        lp, done = L('non'), L('nond')
        srd(16, P_DBG, 256)
        a(f's_mov_b32 s{S_SPIN}, 0')
        a.label(lp)
        if sleep: a(f's_sleep {sleep}')
        a('buffer_load_dwordx2 v[10:11], off, s[16:19], 0 sc1')
        a(f's_add_u32 s{S_SPIN}, s{S_SPIN}, 1')
        a('s_waitcnt vmcnt(0)')
        a(f'v_readfirstlane_b32 s{S_NON}, v10')
        a(f'v_readfirstlane_b32 s{S_NON+1}, v11')
        a(f's_cmp_gt_u32 s{S_SPIN}, 0x20000')
        a(f's_cbranch_scc1 {done}')
        a(f's_cmp_eq_u32 s{S_NON}, 0')
        a(f's_cbranch_scc1 {lp}')
        a.label(done)
        a.vm = []

    def get_nonce_s(sleep=0):
        lp, done = L('non'), L('nond')
        a(f's_mov_b32 s{S_SPIN}, 0')
        a.label(lp)
        if sleep: a(f's_sleep {sleep}')
        a(f's_load_dwordx2 s[{S_NON}:{S_NON+1}], s[{P_DBG}:{P_DBG+1}], 0 glc')
        a(f's_add_u32 s{S_SPIN}, s{S_SPIN}, 1')
        a(f's_cmp_gt_u32 s{S_SPIN}, 0x20000')
        a('s_waitcnt lgkmcnt(0)')
        a(f's_cbranch_scc1 {done}')
        a(f's_cmp_eq_u32 s{S_NON}, 0')
        a(f's_cbranch_scc1 {lp}')
        a.label(done)

    def poll(voff, soff, execmask=None, sleep=0):
        lp, done = L('poll'), L('polld')
        if execmask: a(f's_mov_b64 exec, {execmask}')
        a(f's_mov_b32 s{S_SPIN}, 0')
        a.label(lp)
        if sleep: a(f's_sleep {sleep}')
        a(f'buffer_load_dwordx2 v[10:11], {voff}, s[8:11], {soff} offen sc1')
        a(f's_add_u32 s{S_SPIN}, s{S_SPIN}, 1')
        a(f's_cmp_gt_u32 s{S_SPIN}, 0x20000')
        a('s_waitcnt vmcnt(0)')
        a(f's_cbranch_scc1 {done}')
        a(f'v_cmp_ne_u64 vcc, {sr(S_NON,2)}, v[10:11]')
        a(f's_cbranch_vccnz {lp}')
        a.label(done)
        if execmask: a('s_mov_b64 exec, -1')
        a.vm = []

    def st2(lines, mode=S_MODE):
        sk, dn = L('sf'), L('sd')
        a(f's_cmp_eq_u32 s{mode}, 0')
        a(f's_cbranch_scc1 {sk}')
        for l in lines: a(l)
        a.label(dn)
        a.cold.append((sk, [l + ' sc1' if l.startswith('buffer_store') else l for l in lines], dn))
        a.vm += ['st'] * sum(l.startswith('buffer_store') for l in lines)
    a.cold = []

    def flag_lines(soff):
        return ['s_mov_b64 exec, 1', f'buffer_store_dwordx2 v[10:11], off, s[8:11], {soff}', 's_mov_b64 exec, -1']
    def flag_prep():
        a(f'v_mov_b32 v10, s{S_NON}\nv_mov_b32 v11, s{S_NON+1}')
    def flag_sc1(soff):
        flag_prep()
        for l in flag_lines(soff): a(l + (' sc1' if l.startswith('buffer') else ''))
        a.vm.append('fl')

    def xcc_load(vreg, vt):
        a(f's_lshl_b32 s26, s{S_X}, 12')
        a(f's_add_u32 s26, s26, {F_XCC}')
        a(f'v_lshlrev_b32 v{vt}, 7, v4')
        a(f'buffer_load_dwordx2 {vr(vreg,2)}, v{vt}, s[8:11], s26 offen sc1')
    def calc_mode(vreg):
        a('s_getreg_b32 s34, hwreg(HW_REG_XCC_ID)')
        a('s_and_b32 s34, s34, 15')
        a(f's_or_b32 s34, s34, s{S_NON}')
        a(f's_mov_b32 s35, s{S_NON+1}')
        a(f'v_cmp_ne_u64 vcc, s[34:35], {vr(vreg,2)}')
        a('s_cmp_eq_u64 vcc, 0')
        a(f's_cselect_b32 s{S_MODE}, 1, 0')
        a(f's_cmp_eq_u32 s{S_NON}, 0')
        a(f's_cselect_b32 s{S_MODE}, 0, s{S_MODE}')
        if force_safe: a(f's_mov_b32 s{S_MODE}, 0')
    def xcc_publish(v0, v1):
        a('s_getreg_b32 s27, hwreg(HW_REG_XCC_ID)')
        a('s_and_b32 s27, s27, 15')
        a(f's_or_b32 s27, s27, s{S_NON}')
        a(f'v_mov_b32 v{v0}, s27\nv_mov_b32 v{v1}, s{S_NON+1}')
        a(f's_lshl_b32 s26, s{S_X}, 12')
        a(f's_lshl_b32 s27, s{S_I}, 7')
        a('s_add_u32 s26, s26, s27')
        a(f's_add_u32 s26, s26, {F_XCC}')
        a('s_mov_b64 exec, 1')
        a(f'buffer_store_dwordx2 v[{v0}:{v1}], off, s[8:11], s26 sc1')
        a('s_mov_b64 exec, -1')

    def unit_decode(su):
        l3, l4, dn = L('u3'), L('u4'), L('ud')
        a('s_mov_b32 s15, 0x20000')
        a(f's_cmp_ge_u32 s{su}, 832\ns_cbranch_scc1 {l4}')
        a(f's_cmp_ge_u32 s{su}, 384\ns_cbranch_scc1 {l3}')
        a(f's_lshr_b32 s32, s{su}, 7')
        a(f's_bfe_u32 s33, s{su}, 0x40003')
        a(f's_and_b32 s34, s{su}, 7')
        a('s_lshl_b32 s27, s33, 15')
        a('s_lshl_b32 s35, s34, 7')
        a('s_add_u32 s27, s27, s35')
        a('s_lshl_b32 s28, s32, 19')
        a('s_lshl_b32 s35, s34, 16')
        a('s_add_u32 s28, s28, s35')
        a('s_lshl_b32 s35, s33, 12')
        a('s_add_u32 s28, s28, s35')
        a(f's_add_u32 s28, s28, {WOF}')
        a('s_min_u32 s26, s32, 1')
        a('s_cmp_eq_u32 s32, 1')
        a(f's_cselect_b64 s[12:13], s[{P_W1}:{P_W1+1}], s[{P_W2}:{P_W2+1}]')
        a('s_cmp_eq_u32 s32, 0')
        a(f's_cselect_b64 s[12:13], s[{P_WO}:{P_WO+1}], s[12:13]')
        a('s_mov_b32 s14, 0x80000')
        a(f's_branch {dn}')
        a.label(l3)
        a(f's_sub_u32 s32, s{su}, 384')
        a('s_mul_hi_u32 s33, s32, 0x0924924a')
        a('s_mul_i32 s34, s33, 28')
        a('s_sub_u32 s34, s32, s34')
        a(f's_mul_i32 s27, s33, {32*3584}')
        a('s_lshl_b32 s35, s34, 7')
        a('s_add_u32 s27, s27, s35')
        a('s_lshl_b32 s28, s34, 16')
        a('s_lshl_b32 s35, s33, 11')
        a('s_add_u32 s28, s28, s35')
        a(f's_add_u32 s28, s28, {W3F}')
        a('s_mov_b32 s26, 2')
        a(f's_mov_b64 s[12:13], s[{P_W3}:{P_W3+1}]')
        a('s_mov_b32 s14, 0x1c0000')
        a(f's_branch {dn}')
        a.label(l4)
        a(f's_sub_u32 s32, s{su}, 832')
        a('s_lshr_b32 s33, s32, 3')
        a('s_and_b32 s34, s32, 7')
        a('s_lshl_b32 s27, s33, 15')
        a('s_lshl_b32 s35, s34, 7')
        a('s_add_u32 s27, s27, s35')
        a('s_mul_i32 s28, s34, 229376')
        a('s_lshl_b32 s35, s33, 12')
        a('s_add_u32 s28, s28, s35')
        a(f's_add_u32 s28, s28, {W4F}')
        a('s_mov_b32 s26, 3')
        a(f's_mov_b64 s[12:13], s[{P_W4}:{P_W4+1}]')
        a('s_mov_b32 s14, 0x1c0000')
        a.label(dn)

    VX, VWQ = 12, 13
    a('s_setprio 3')
    a('v_lshrrev_b32 v3, 3, v2')
    a(f's_lshl_b32 s27, s{S_Q}, 3')
    a('v_add_u32 v6, s27, v3')
    a('v_lshrrev_b32 v4, 4, v2')
    a(f's_and_b32 s27, s{S_Q}, 1')
    a('s_lshl_b32 s27, s27, 2')
    a('v_add_u32 v4, s27, v4')
    a('v_and_b32 v5, 7, v2')
    a('v_xor_b32 v4, v4, v5')
    a('v_lshlrev_b32 v4, 4, v4')
    a(f'v_lshl_add_u32 v{VX}, v6, 10, v4')
    a('v_bfe_u32 v4, v3, 1, 1')
    a('v_lshlrev_b32 v4, 2, v4')
    a('v_bfe_u32 v7, v3, 2, 1')
    a('v_lshl_add_u32 v4, v7, 1, v4')
    a('v_xor_b32 v4, v4, v5')
    a('v_lshlrev_b32 v55, 4, v4')
    a('s_movk_i32 s27, 0xc00')
    a(f'v_mad_u32_u24 v{VWQ}, v6, s27, v55')
    a(f's_lshl_b32 s28, s{S_I}, 16')
    a(f's_lshl_b32 s29, s{S_Q}, 10')
    a(f's_lshl_b32 s31, s{S_X}, 7')
    a('s_mov_b32 s18, 0x200000\ns_mov_b32 s19, 0x20000\ns_mov_b32 s14, 0x180000\ns_mov_b32 s15, 0x20000')
    a('s_waitcnt lgkmcnt(0)')
    a(f's_mov_b64 s[16:17], s[{P_X}:{P_X+1}]')
    a(f's_mov_b64 s[12:13], s[{P_WQKV}:{P_WQKV+1}]')
    T.stamp('p1.h_iss', slot=20)
    def issx(c):
        a(f's_add_u32 s33, s{S_CT}, {c}')
        a('s_and_b32 s33, s33, 7')
        a('s_lshl_b32 s34, s33, 7')
        a('s_add_u32 s34, s34, s28')
        for j in range(2):
            a(f's_add_u32 m0, s29, {XL + c*8192 + j*4096}')
            if j: a('s_add_u32 s34, s34, 32768')
            a.vissue(f'buffer_load_dwordx4 v{VX}, s[16:19], s34 offen lds', ('x', c))
    def issw(c):
        a(f's_add_u32 s33, s{S_CT}, {c}')
        a('s_and_b32 s33, s33, 7')
        a('s_mul_i32 s35, s33, 196608')
        a('s_add_u32 s35, s35, s31')
        for j in range(2):
            for sec in range(3):
                a(f's_add_u32 m0, s29, {WL + (c % NSLOT)*WSLOT + sec*8192 + j*4096}')
                a(f's_add_u32 s34, s35, {j*32*3072 + sec*1024}')
                a.vissue(f'buffer_load_dwordx4 v{VWQ}, s[12:15], s34 offen lds', ('w', c))
    issx(0); issw(0); issx(1); issx(2); issx(3)
    common_consts()
    srd(8, P_WS, WS_USED)
    AWH, AXH, CSA, SXH, SQH, ONES, WFH, XFH = 14, 17, 20, 32, 36, 18, 64, 88
    a('v_and_b32 v10, 1, v7')
    a('v_lshrrev_b32 v11, 1, v8')
    a('v_lshl_add_u32 v11, v11, 1, v10')
    a('v_lshl_add_u32 v10, v7, 2, v8')
    a('v_lshlrev_b32 v10, 7, v10')
    a('v_lshl_add_u32 v10, v9, 3, v10')
    for j in range(3):
        a(f's_mul_i32 s26, s{S_Q}, 3')
        a(f's_add_u32 s26, s26, {j}')
        a('s_and_b32 s27, s26, 3')
        a('s_lshr_b32 s26, s26, 2')
        a('s_lshl_b32 s26, s26, 13')
        a(f's_add_u32 s26, s26, {WL}')
        a('v_xor_b32 v40, s27, v11')
        a('v_lshl_add_u32 v40, v40, 5, v10')
        a(f'v_add_u32 v{AWH+j}, s26, v40')
    a(f's_lshl_b32 s26, s{S_Q}, 11')
    a('v_lshlrev_b32 v10, 7, v6')
    a('v_bfe_u32 v11, v6, 1, 3')
    a('v_xor_b32 v11, v11, v7')
    a('v_lshl_add_u32 v10, v11, 4, v10')
    a(f'v_add_u32 v{AXH}, s26, v10')
    a(f'v_xor_b32 v41, 64, v{AXH}')
    a(f'v_mov_b32 v{ONES}, 0x3f803f80\nv_mov_b32 v{ONES+1}, 0x3f803f80')
    PA16, PA32, PROW, PUN = 44, 52, 54, 55
    a('v_and_b32 v10, 1, v7')
    a('v_lshrrev_b32 v11, 1, v8')
    a('v_lshl_add_u32 v11, v11, 1, v10')
    a('v_lshl_add_u32 v56, v10, 2, v8')
    a('v_lshrrev_b32 v57, 1, v7')
    a('v_lshl_add_u32 v58, v57, 4, v56')
    a('v_lshl_add_u32 v59, v57, 3, v56')
    for ti, kreg in enumerate((58, 59)):
        for nt in range(4):
            a(f'v_xor_b32 v60, {nt}, v11')
            a('v_lshlrev_b32 v60, 5, v60')
            a('v_lshl_add_u32 v60, v9, 3, v60')
            a(f'v_lshl_add_u32 v{PA16+4*ti+nt}, v{kreg}, 7, v60')
    a('v_lshrrev_b32 v11, 1, v8')
    a('v_lshl_add_u32 v11, v11, 1, v5')
    a('v_lshl_add_u32 v56, v5, 2, v8')
    a('v_lshlrev_b32 v56, 7, v56')
    a('v_lshl_add_u32 v56, v9, 3, v56')
    for nt in range(2):
        a(f'v_add_u32 v60, {2*nt}, v10')
        a('v_xor_b32 v60, v60, v11')
        a(f'v_lshl_add_u32 v{PA32+nt}, v60, 5, v56')
    a(f'v_lshrrev_b32 v{PROW}, 3, v2')
    a('v_cmp_eq_u32 s[42:43], 1, v9')
    a('v_cmp_eq_u32 s[6:7], 2, v9')
    def unit_idx(k):
        a(f's_mul_i32 s{S_U}, s2, 5')
        a(f's_add_u32 s{S_U}, s{S_U}, {k}')
        unit_decode(S_U)
    def stride_sel():
        a('s_cmp_eq_u32 s26, 2')
        a('s_movk_i32 s32, 0x400')
        a('s_cselect_b32 s32, 0xe00, s32')
        a(f'v_mad_u32_u24 v60, v{PROW}, s32, v{PUN}')
        a('s_lshl_b32 s32, s32, 3')
    def prep_loads():
        unit_idx(f's{S_Q}')
        stride_sel()
        a(f's_lshl_b32 s35, s{S_Q}, 12')
        for p in range(4):
            a(f's_add_u32 m0, s35, {PREP + p*1024}')
            if p: a('s_add_u32 s27, s27, s32')
            a.vissue('buffer_load_dwordx4 v60, s[12:15], s27 offen lds', 'pl')
        unit_idx(4)
        stride_sel()
        a(f's_mul_i32 s32, s32, s{S_Q}')
        a('s_add_u32 s27, s27, s32')
        a(f's_add_u32 m0, s29, {PREP + 4*4096}')
        a.vissue('buffer_load_dwordx4 v60, s[12:15], s27 offen lds', 'pl')

    issw(1)
    for c in range(4, 8): issx(c)
    for c in range(8):
        a.vwait(('w', c))
        T.stamp(f'p1.h_w{c}', slot=2+2*c)
        a('s_barrier')
        T.stamp(f'p1.h_b{c}', slot=3+2*c)
        for j in range(3):
            for kk in range(4):
                a(f'ds_read_b64_tr_b16 {vr(WFH+8*j+2*kk,2)}, v{AWH+j} offset:{(c % NSLOT)*WSLOT + kk*2048}')
        a(f'ds_read_b128 {vr(XFH,4)}, v{AXH} offset:{XL + c*8192}')
        a(f'ds_read_b128 {vr(XFH+4,4)}, v41 offset:{XL + c*8192}')
        if c + 2 < 8: issw(c + 2)
        if c == 5: prep_loads()
        a('s_waitcnt lgkmcnt(0)')
        for kk in range(4):
            z = (c == 0 and kk == 0)
            for j in range(3):
                a(f'v_mfma_f32_4x4x4_16b_bf16 {vr(CSA+4*j,4)}, {vr(ONES,2)}, {vr(WFH+8*j+2*kk,2)}, {"0" if z else vr(CSA+4*j,4)}')
            a(f'v_mfma_f32_4x4x4_16b_bf16 {vr(SXH,4)}, {vr(ONES,2)}, {vr(XFH+2*kk,2)}, {"0" if z else vr(SXH,4)}')
            a(f'v_mfma_f32_4x4x4_16b_bf16 {vr(SQH,4)}, {vr(XFH+2*kk,2)}, {vr(XFH+2*kk,2)}, {"0" if z else vr(SQH,4)}')
    a('v_cmp_eq_u32 vcc, 3, v9')
    a(f's_mul_i32 s26, s{S_Q}, 192')
    a(f's_add_u32 s26, s26, {CSUM}')
    a('v_lshl_add_u32 v10, v6, 2, s26')
    a(f's_lshl_b32 s26, s{S_Q}, 6')
    a(f's_add_u32 s26, s26, {RST}')
    a('v_lshl_add_u32 v11, v6, 2, s26')
    a(f'v_cndmask_b32 v{SQH}, v{SQH}, v{SQH+1}, s[42:43]')
    a(f'v_cndmask_b32 v{SQH}, v{SQH}, v{SQH+2}, s[6:7]')
    a(f'v_cndmask_b32 v{SQH}, v{SQH}, v{SQH+3}, vcc')
    red = [CSA, CSA+4, CSA+8, SXH, SQH]
    for sw in ('v_permlane16_swap_b32', 'v_permlane32_swap_b32'):
        for r in red: a(f'v_mov_b32 v{r+1}, v{r}')
        for r in red: a(f'{sw} v{r}, v{r+1}')
        for r in red: a(f'v_add_f32 v{r}, v{r}, v{r+1}')
    for j in range(3): a(f'ds_write_b32 v10, v{CSA+4*j} offset:{64*j}')
    a(f'v_mul_f32 v{SXH}, {H(-1/512)}, v{SXH}')
    a(f'v_mul_f32 v{SQH}, {H(1/512)}, v{SQH}')
    a(f'v_fma_f32 v{SQH}, -v{SXH}, v{SXH}, v{SQH}')
    a(f'v_max_f32 v{SQH}, 0, v{SQH}')
    a(f'v_add_f32 v{SQH}, {H(1e-5)}, v{SQH}')
    a(f'v_rsq_f32 v{SQH}, v{SQH}')
    a(f'v_mul_f32 v{SXH}, v{SXH}, v{SQH}')
    a(f'ds_write_b32 v11, v{SQH} offset:256')
    a(f'ds_write_b32 v11, v{SXH}')
    a('s_waitcnt lgkmcnt(0)')
    a('s_barrier')
    a('s_setprio 0')
    T.stamp('h_p1done', slot=2)
    a('v_and_b32 v10, 23, v2')
    a('v_cmp_eq_u32 vcc, 0, v10')
    a('v_mov_b32 v10, 0x3f803f80')
    a('v_cndmask_b32 v20, 0, v10, vcc')
    a('v_mov_b32 v21, v20\nv_mov_b32 v22, v20\nv_mov_b32 v23, v20')
    a('v_add_u32 v16, s29, v3')
    a(f's_add_u32 s{S_A}, s{S_HD}, s29')
    a(f's_add_u32 s{S_A}, s{S_A}, 0x40000')
    a(f's_add_u32 s27, s{S_GB}, {G_FQ}')
    a('s_mov_b32 s30, -1\ns_mov_b32 s31, 0')
    a(f'v_mov_b32 v12, {NONL}')
    a('s_barrier')
    a('ds_read_b64 v[14:15], v12')
    a(f'ds_write_b128 v16, v[20:23] offset:{CONST}')
    a('s_waitcnt lgkmcnt(1)')
    a(f'v_readfirstlane_b32 s{S_NON}, v14')
    a(f'v_readfirstlane_b32 s{S_NON+1}, v15')
    poll('v1', 's27', 's[30:31]')
    T.stamp('h_kvflag', slot=3)
    def kv_issue(c):
        a(f's_add_u32 m0, s29, {RING + (c & 3)*8192}')
        a(f's_add_u32 s30, s{S_A}, {c*4096}')
        a.vissue(f'buffer_load_dwordx4 v3, s[8:11], s30 offen sc1 {KVNT}lds', ('kv', c))
        a(f's_add_u32 m0, s29, {RING + (c & 3)*8192 + 4096}')
        a(f's_add_u32 s30, s{S_A}, {c*4096 + 0x40000}')
        a.vissue(f'buffer_load_dwordx4 v3, s[8:11], s30 offen sc1 {KVNT}lds', ('kv', c))
    kv_issue(0); kv_issue(1)
    def prep_convert(k, record):
        unit_idx(k)
        if isinstance(k, int): a(f's_mov_b32 s32, {PREP + k*4096}')
        else:
            a(f's_lshl_b32 s32, {k}, 12')
            a(f's_add_u32 s32, s32, {PREP}')
        k1, k2, k3, dn = L('k1'), L('k2'), L('k3'), L('kd')
        F = 64
        a(f's_cmp_eq_u32 s26, 1\ns_cbranch_scc1 {k1}')
        a(f's_cmp_eq_u32 s26, 2\ns_cbranch_scc1 {k2}')
        a(f's_cmp_eq_u32 s26, 3\ns_cbranch_scc1 {k3}')
        for kind, lab in ((0, None), (1, k1)):
            if lab: a.label(lab)
            for nt in range(4): a(f'v_add_u32 v{60+nt}, s32, v{PA16+4*kind+nt}')
            for nt in range(4):
                for sec in range(2):
                    a(f'ds_read_b64_tr_b16 {vr(F+4*nt+2*sec,2)}, v{60+nt} offset:{sec*(1024 if kind==0 else 2048)}')
            a('s_add_u32 s35, s28, 2048')
            a(f's_branch {dn}')
        a.label(k2)
        for nt in range(2): a(f'v_add_u32 v{60+nt}, s32, v{PA32+nt}')
        for nt in range(2):
            for kk in range(2):
                for sec in range(2):
                    a(f'ds_read_b64_tr_b16 {vr(F+8*nt+4*kk+2*sec,2)}, v{60+nt} offset:{(8*kk+16*sec)*128}')
        a('s_add_u32 s35, s28, 32768')
        a('s_mul_i32 s33, s33, 7168')
        a('s_lshl_b32 s34, s34, 8')
        a('s_add_u32 s33, s33, s34')
        a(f's_add_u32 s33, s33, {C3P}')
        a('v_lshlrev_b32 v62, 2, v2')
        a('s_waitcnt lgkmcnt(0)')
        for i in range(4):
            for nt in range(2):
                c_ = '0' if i == 0 else vr(80+4*nt,4)
                a(f'v_mfma_f32_4x4x4_16b_bf16 {vr(80+4*nt,4)}, {vr(ONES,2)}, {vr(F+8*nt+2*i,2)}, {c_}')
        a('v_permlane32_swap_b32 v80, v84')
        a('v_add_f32 v80, v80, v84')
        a('buffer_store_dword v80, v62, s[8:11], s33 offen sc1')
        a(f's_branch {dn}')
        a.label(k3)
        for nt in range(2): a(f'v_add_u32 v{60+nt}, s32, v{PA32+nt}')
        for kk in range(2):
            for nt in range(2):
                for sec in range(2):
                    a(f'ds_read_b64_tr_b16 {vr(F+8*kk+4*nt+2*sec,2)}, v{60+nt} offset:{(16*kk+8*sec)*128}')
        a('s_add_u32 s35, s28, 2048')
        a.label(dn)
        a('s_waitcnt lgkmcnt(0)')
        iss = (lambda t: a.vissue(t, 'pp')) if record else a
        iss(f'buffer_store_dwordx4 {vr(F,4)}, v3, s[8:11], s28 offen sc1')
        iss(f'buffer_store_dwordx4 {vr(F+4,4)}, v3, s[8:11], s28 offen offset:1024 sc1')
        iss(f'buffer_store_dwordx4 {vr(F+8,4)}, v3, s[8:11], s35 offen sc1')
        iss(f'buffer_store_dwordx4 {vr(F+12,4)}, v3, s[8:11], s35 offen offset:1024 sc1')

    HW2, HW1, HW3 = 24, 88, 92
    C3R = [116, 120, 124, 20]
    w3g = lambda g: [('w3', i) for i in range(8*g, 8*g+8)]
    flat = w3g(1) + [('c3', k) for k in range(4)] + [('wo', i) for i in range(16)] + w3g(2) + \
           [('w1', i) for i in range(15)] + [('r', HW1, W1F + 15*4096)] + w3g(3) + \
           [('r', HW2 + 4*i, W2F + i*4096) for i in range(16)] + w3g(0) + [('l3', t, f) for t in range(3) for f in range(2)]
    groups = [flat[12*i:12*i+12] for i in range(8)]
    strips = [(75, 8192), (74, WOF), (75, 2*8192), (74, W1F), (75, 3*8192), (74, W2F), (75, 0)]
    def job_setup():
        a(f's_lshl_b32 s31, s{S_CT}, 16')
        a('s_add_u32 s31, s31, s29')
        a(f's_mul_i32 s33, s{S_CT}, {7*32768}')
        a(f's_lshl_b32 s{S_B}, s{S_J}, 15')
        a(f's_add_u32 s{S_B}, s{S_B}, s33')
        a(f's_add_u32 s{S_B}, s{S_B}, {W3F}')
        a('s_add_u32 s33, s33, s29')
        a(f's_mul_i32 s32, s{S_CT}, 896')
        a(f's_mul_i32 s30, s{S_Q}, {4*7168}')
        a('s_add_u32 s32, s32, s30')
        a(f's_and_b32 s26, s{S_Q}, 1')
        a('s_lshl_b32 s26, s26, 2')
        a(f's_add_u32 s26, s26, s{S_RB}')
        a('s_lshl_b32 s74, s26, 13')
        a(f's_lshl_b32 s27, s{S_CT}, 16')
        a('s_add_u32 s74, s74, s27')
        a(f's_mul_i32 s75, s{S_CT}, 7')
        a('s_add_u32 s75, s75, s26')
        a('s_lshl_b32 s75, s75, 15')
        a(f's_add_u32 s75, s75, {W3F}')
        a(f's_mul_i32 s27, s{S_CT}, 229376')
        a(f's_add_u32 s27, s27, {W4F + 3*28672 - 4096}')
        a('s_cmp_eq_u32 s26, 7')
        a('s_cselect_b32 s75, s27, s75')
    def dma(lds, src):
        a(f's_add_u32 m0, s29, {lds}')
        a(f's_add_u32 s30, s31, {src}')
        a.vissue('buffer_load_dwordx4 v3, s[8:11], s30 offen sc1 lds', 'pf')
    def ldr(reg, sbase, off, imm=0):
        a(f's_add_u32 s30, s{sbase}, {off}')
        a.vissue(f'buffer_load_dwordx4 {vr(reg,4)}, v3, s[8:11], s30 offen offset:{imm} sc1', 'pf')
    def job(j):
        kind = j[0]
        if kind == 'w3': ldr(W3+4*j[1], S_B, (j[1] >> 2)*4096, (j[1] & 3)*1024)
        elif kind == 'wo': dma(WA + j[1]*4096, WOF + j[1]*4096)
        elif kind == 'w1': dma(WB + j[1]*4096, W1F + j[1]*4096)
        elif kind == 'r': ldr(j[1], 31, j[2])
        elif kind == 'l3': ldr(HW3 + 8*j[1] + 4*j[2], 33, W3F + j[1]*32768 + j[2]*4096)
        elif kind == 'c3': ldr(C3R[j[1]], 32, C3P + j[1]*7168)
    NJ = 9
    for c in range(16):
        if c == 3: a.vwait_all()
        else: a.vwait(('kv', c), 'lgkmcnt(0)' if c == 0 else '')
        a('s_barrier')
        if c >= 2 and c + 2 < 16: kv_issue(c + 2)
        if c == 0:
            kv_issue(2); kv_issue(3)
            prep_convert(f's{S_Q}', True)
        if c == 1:
            sk = L('u4')
            a(f's_cmp_lg_u32 s{S_Q}, 3\ns_cbranch_scc1 {sk}')
            prep_convert(4, False)
            a.label(sk)
        if c == 3:
            sk = L('pf')
            a(f's_cmp_lg_u32 s{S_Q}, 1\ns_cbranch_scc1 {sk}')
            a('s_lshl_b32 s26, s2, 7')
            a(f's_add_u32 s26, s26, {F_PREP}')
            keep = list(a.vm); flag_sc1('s26'); a.vm = keep
            srd(16, P_OUT, 0x200000)
            a('v_lshlrev_b32 v12, 21, v2')
            a(f's_mov_b32 s26, {GB + G_FHX}')
            a('s_mov_b64 exec, 0xff')
            a('buffer_load_dword v13, v12, s[8:11], s26 offen')
            a('buffer_load_dword v13, off, s[16:19], 0')
            a('s_mov_b64 exec, -1')
            a.label(sk)
            xcc_load(14, 12); a.vm.append('xc')
            job_setup()
            a('v_lshlrev_b32 v12, 7, v2')
            a(f's_lshl_b32 s28, s{S_R16}, 14')
            a(f's_lshl_b32 s27, s{S_CT}, 11')
            a('s_add_u32 s28, s28, s27')
            a(f's_lshl_b32 s27, s{S_Q}, 18')
            a('s_add_u32 s28, s28, s27')
            a(f's_add_u32 s28, s28, {G_H}')
            a(f's_mul_i32 s27, s{S_I}, 1408')
            a(f's_add_u32 s27, s27, {G_ST1}')
            a(f's_cmp_eq_u32 s{S_Q}, 3')
            a('s_cselect_b32 s28, s27, s28')
            a('s_cselect_b32 s27, 0, 0x4000')
            a(f's_add_u32 s28, s28, s{S_GB}')
            a('v_lshlrev_b32 v17, 7, v6')
            a('v_mad_u32_u24 v17, v7, s27, v17')
        if c == 5:
            a(f's_lshl_b32 s26, s{S_Q}, 13')
            a(f's_add_u32 s26, s26, {F_PREP}')
            poll('v12', 's26', None, sleep=2)
            calc_mode(14)
        if 6 <= c < 13 and 'nojobs' not in opt and 'nostrip' not in opt:
            sk = L('st')
            a(f's_bitcmp{1 if (c & 1) == 0 else 0}_b32 s{S_Q}, 1\ns_cbranch_scc1 {sk}')
            a(f's_add_u32 s26, s{strips[c-6][0]}, {strips[c-6][1]}')
            a('buffer_load_dword v13, v12, s[8:11], s26 offen sc1')
            a.label(sk)
        if 8 <= c < 16 and 'nojobs' not in opt and 'nohj' not in opt:
            for j in groups[c-8]:
                if 'nodma' in opt and j[0] in ('wo', 'w1'): continue
                if 'onlydma' in opt and j[0] not in ('wo', 'w1'): continue
                job(j)
                if 'pace' in opt: a('s_sleep 1')
        if c == 13 and 'nowarm2' not in opt:
            a.vissue('buffer_load_dword v13, v17, s[8:11], s28 offen sc1', 'pf')
    a.vwait_all()
    a('v_add_u32 v12, s29, v3')
    a(f'v_add_u32 v13, {WB}, v12')
    a(f'v_add_u32 v14, {WA}, v12')
    a(f's_mul_i32 s26, s{S_Q}, 896')
    a('v_add_u32 v15, s26, v3')
    a('s_barrier')
    T.stamp('h_attn_end', slot=4)
    a(f'ds_write_b128 v12, {vr(HW1,4)} offset:{W1X}')
    for i in range(NW2L): a(f'ds_write_b128 v12, {vr(HW2+4*i,4)} offset:{W2L + i*4096}')
    for k in range(1, 4):
        for i in range(2): a(f'v_pk_add_f32 {vr(C3R[0]+2*i,2)}, {vr(C3R[0]+2*i,2)}, {vr(C3R[k]+2*i,2)}')
    a('s_mov_b32 exec_hi, 0xffffff')
    a(f'ds_write_b128 v15, {vr(C3R[0],4)} offset:{C3L}')
    a('s_mov_b32 exec_hi, -1')
    for i in range(4): a(f'v_mov_b32 v{20+i}, 0x3f803f80')
    a(f'v_mfma_f32_16x16x32_bf16 v[16:19], {vr(HW1,4)}, v[20:23], 0')
    a('s_waitcnt lgkmcnt(0)')
    for bt in range(3):
        for k in range(5): a(f'ds_read_b128 {vr(HW2+4*k,4)}, v13 offset:{(5*bt+k)*4096}')
        for k in range(5):
            a(f's_waitcnt lgkmcnt({4-k})')
            a(f'v_mfma_f32_16x16x32_bf16 v[16:19], {vr(HW2+4*k,4)}, v[20:23], v[16:19]')
    a(f's_lshl_b32 s26, s{S_Q}, 6')
    a(f's_add_u32 s26, s26, {CS1}')
    a('v_lshl_add_u32 v10, v7, 4, s26')
    a('ds_write_b128 v10, v[16:19]')
    a('s_waitcnt lgkmcnt(0)')
    a('s_barrier')
    sk = L('c3w')
    a(f's_cmp_lg_u32 s{S_Q}, 3\ns_cbranch_scc1 {sk}')
    for k in range(4): a(f'ds_read_b128 {vr(HW2+4*k,4)}, v3 offset:{C3L + 896*k}')
    a('s_waitcnt lgkmcnt(0)')
    for k in range(1, 4):
        for i in range(2): a(f'v_pk_add_f32 {vr(HW2+2*i,2)}, {vr(HW2+2*i,2)}, {vr(HW2+4*k+2*i,2)}')
    a(f'ds_write_b128 v3, {vr(HW2,4)} offset:{C3L}')
    a.label(sk)
    a('s_barrier')
    for i in range(NW2L, 16): a(f'ds_write_b128 v14, {vr(HW2+4*i,4)} offset:{i*4096}')
    a('s_waitcnt lgkmcnt(0)')
    a('s_barrier')
    for t in range(3):
        for f in range(2): a(f'ds_write_b128 v13, {vr(HW3+8*t+4*f,4)} offset:{t*8192 + f*4096}')
    a('s_waitcnt lgkmcnt(0)')
    a('s_barrier')
    a(f's_lshl_b32 s28, s{S_R16}, 6')
    a(f's_lshl_b32 s27, s{S_Q}, 5')
    a('s_add_u32 s28, s28, s27')
    a(f's_add_u32 s28, s28, s{S_GB}')
    a(f's_add_u32 s28, s28, {G_FX1}')
    a(f's_lshl_b32 s26, s{S_R16}, 14')
    a(f's_lshl_b32 s27, s{S_Q}, 13')
    a('s_add_u32 s26, s26, s27')
    a(f's_add_u32 s26, s26, s{S_GB}')
    a(f's_add_u32 s26, s26, {G_X1}')
    a('s_mov_b32 s30, 0xf000f\ns_mov_b32 s31, 0')
    poll('v1', 's28', 's[30:31]')
    for mt in range(2):
        for hf in range(2):
            a(f's_add_u32 m0, s27, {XT + mt*32768 + hf*4096}')
            a(f's_add_u32 s30, s26, {mt*32768 + hf*4096}')
            for i in range(4):
                a(f'buffer_load_dwordx4 v3, s[8:11], s30 offen offset:{i*1024} sc1 lds')
    HJOIN = L('hjoin')
    a(f's_branch {HJOIN}')

    a.label(CW1)
    a.vm = []
    sk = L('cp')
    a(f's_cmp_lg_u32 s{S_WAVE}, 1\ns_cbranch_scc1 {sk}')
    a('s_getpc_b64 s[26:27]')
    a.label(f'{name}_pc')
    a(f's_sub_u32 s26, s26, {name}_pc-{name}')
    a('s_subb_u32 s27, s27, 0')
    a(f's_lshl_b32 s28, s{S_I}, 11')
    a('v_lshl_add_u32 v10, v2, 7, s28')
    a(f'v_min_u32 v10, {name}_end-{name}, v10')
    a('s_mov_b64 exec, 0xffff')
    a('global_load_dword v255, v10, s[26:27]')
    a('s_mov_b64 exec, -1')
    a.label(sk)
    common_consts()
    ACC = 16; FR = [64, 80, 96]; AX = 112; AW = 116
    a(f's_lshr_b32 s30, s{S_Q}, 1')
    a(f's_and_b32 s31, s{S_Q}, 1')
    a('s_lshl_b32 s27, s30, 5')
    a('v_add_u32 v10, s27, v4')
    a('v_lshlrev_b32 v10, 7, v10')
    a('v_bfe_u32 v11, v4, 1, 3')
    for ks in range(4):
        a(f'v_add_u32 v12, {2*ks}, v5')
        a('v_xor_b32 v12, v12, v11')
        a(f'v_lshl_add_u32 v{AX+ks}, v12, 4, v10')
    a('v_lshl_add_u32 v10, v5, 3, v8')
    a('v_lshlrev_b32 v10, 7, v10')
    a('v_lshl_add_u32 v10, v9, 3, v10')
    a('v_and_b32 v11, 1, v7')
    a('s_lshl_b32 s27, s31, 1')
    a('v_add_u32 v11, s27, v11')
    a('v_and_b32 v12, 2, v8')
    a('v_xor_b32 v11, v11, v12')
    a(f'v_lshl_add_u32 v{AW}, v11, 5, v10')
    a(f'v_add_u32 v{AW}, {WL}, v{AW}')
    a(f'v_xor_b32 v{AW+1}, 32, v{AW}')
    a(f'v_add_u32 v{AW+1}, 512, v{AW+1}')
    a(f'v_add_u32 v{AW+2}, {2*WSLOT}, v{AW}')
    a(f'v_add_u32 v{AW+3}, {2*WSLOT}, v{AW+1}')
    a('s_waitcnt lgkmcnt(0)')
    srd(16, P_DBG, 256)
    srd(8, P_WS, WS_USED)
    sk = L('nc')
    a(f's_or_b32 s27, s2, s{S_WAVE}')
    a(f's_cmp_lg_u32 s27, 0\ns_cbranch_scc1 {sk}')
    a('s_memrealtime s[26:27]')
    a('s_waitcnt lgkmcnt(0)')
    a('s_lshl_b64 s[26:27], s[26:27], 5')
    a('s_or_b32 s26, s26, 16')
    a('v_mov_b32 v12, s26\nv_mov_b32 v13, s27')
    a('s_mov_b64 exec, 1')
    a('buffer_store_dwordx2 v[12:13], off, s[16:19], 0 sc1')
    a('s_mov_b64 exec, -1')
    a.label(sk)
    EA = 120
    a('s_lshl_b32 s27, s31, 7')
    a(f's_add_u32 s27, s27, {CSUM}')
    a(f'v_lshl_add_u32 v{EA}, v5, 4, s27')
    a(f'v_lshl_add_u32 v{EA+1}, v4, 2, s27')
    a('s_lshl_b32 s27, s30, 7')
    a(f's_add_u32 s27, s27, {RST}')
    a(f'v_lshl_add_u32 v{EA+2}, v4, 2, s27')
    a(f'v_lshl_add_u32 v{EA+3}, v5, 4, s27')
    a('v_lshrrev_b32 v10, 4, v4')
    a('v_lshlrev_b32 v10, 16, v10')
    a('v_lshl_add_u32 v10, v5, 8, v10')
    a(f'v_lshl_add_u32 v{EA+4}, v6, 4, v10')
    a(f's_lshl_b32 s26, s{S_I}, 1')
    a('s_add_u32 s26, s26, s30')
    a('s_lshl_b32 s26, s26, 10')
    a('s_lshl_b32 s27, s31, 17')
    a('s_add_u32 s26, s26, s27')
    a(f's_add_u32 s{S_A}, s26, s{S_QKV}')
    a(f'v_lshlrev_b32 v{EA+5}, 18, v7')
    a('v_bfe_u32 v10, v2, 3, 1')
    a(f'v_lshl_add_u32 v{EA+5}, v10, 16, v{EA+5}')
    a('v_and_b32 v10, 7, v2')
    a(f'v_lshl_add_u32 v{EA+5}, v10, 7, v{EA+5}')
    sk = L('xc')
    a(f's_cmp_lg_u32 s{S_WAVE}, 0\ns_cbranch_scc1 {sk}')
    a(f's_add_u32 s26, s{S_GB}, {G_FQ}')
    a('buffer_load_dword v254, v1, s[8:11], s26 offen sc1')
    a.label(sk)
    def rd_list(n):
        c, ks = n >> 2, n & 3; b = FR[n % 3]
        slot = c % NSLOT
        l = [f'ds_read_b128 {vr(b,4)}, v{AX+ks} offset:{XL + c*8192}']
        for j in range(3):
            for sec in range(2):
                l.append(f'ds_read_b64_tr_b16 {vr(b+4+4*j+2*sec,2)}, v{AW+sec+(2 if slot == 2 else 0)} offset:{(slot&1)*WSLOT + j*8192 + ks*2048}')
        return l
    T.stamp('p1.c_pre')
    a('s_barrier')
    T.stamp('c_b0'); T.stamp('p1.c_b0')
    for l in rd_list(0): a(l)
    for l in rd_list(1): a(l)
    CV = 128; RV = 160; SC = 192
    for n in range(32):
        c, ks = n >> 2, n & 3
        b = FR[n % 3]
        z = lambda r, k: '0' if n == 0 else vr(r, k)
        if ks == 2:
            a('s_waitcnt lgkmcnt(0)')
            T.stamp(f'p1.c_w{c+1}')
            a('s_barrier')
            T.stamp(f'p1.c_b{c+1}')
        elif n < 31:
            a('s_waitcnt lgkmcnt(7)')
        rl = rd_list(n + 2) if n + 2 < 32 else []
        if n == 30:
            rl = [f'ds_read_b32 v{SC}, v{EA+2}', f'ds_read_b32 v{SC+1}, v{EA+2} offset:256', f'ds_read_b32 v{SC+2}, v{EA+1} offset:512'] + \
                 [f'ds_read_b128 {vr(CV+16*j+4*q,4)}, v{EA} offset:{256*j+32*q}' for j in range(2) for q in range(4)]
        if n == 31:
            rl = [f'ds_read_b128 {vr(RV+16*j+4*q,4)}, v{EA+3} offset:{256*j+32*q}' for j in range(2) for q in range(4)]
        if n == 13:
            a('s_mov_b64 exec, 0xffffffffffff' if False else 's_mov_b32 exec_hi, 0xffff')
            a(f'buffer_load_dword v253, v{EA+5}, s[8:11], s{S_A} offen sc1')
            a('s_mov_b32 exec_hi, -1')
        if n == 8: a('buffer_load_dwordx2 v[14:15], off, s[16:19], 0 sc1')
        if n == 12:
            a('s_waitcnt vmcnt(0)')
            a(f'v_readfirstlane_b32 s{S_NON}, v14')
            a(f'v_readfirstlane_b32 s{S_NON+1}, v15')
            sk = L('xp')
            a(f's_cmp_lg_u32 s{S_WAVE}, 0\ns_cbranch_scc1 {sk}')
            xcc_publish(14, 15)
            a.label(sk)
        if n == 28: xcc_load(12, 10)
        k = (len(rl) + 2) // 3
        a(f'v_mfma_f32_32x32x16_bf16 {vr(ACC,16)}, {vr(b+4,4)}, {vr(b,4)}, {z(ACC,16)}')
        for l in rl[0:k]: a(l)
        a(f'v_mfma_f32_32x32x16_bf16 {vr(ACC+16,16)}, {vr(b+8,4)}, {vr(b,4)}, {z(ACC+16,16)}')
        for l in rl[k:2*k]: a(l)
        a(f'v_mfma_f32_32x32x16_bf16 {vr(ACC+32,16)}, {vr(b,4)}, {vr(b+12,4)}, {z(ACC+32,16)}')
        for l in rl[2*k:]: a(l)
    T.stamp('c_gemm')
    a('s_waitcnt vmcnt(0) lgkmcnt(8)')
    a(f'v_mul_f32 v{SC+4}, {H(QSCALE)}, v{SC}')
    a(f'v_mul_f32 v{SC+5}, {H(QSCALE)}, v{SC+1}')
    calc_mode(12)
    PK = 200
    lines = []
    for j in range(2):
        sc = SC + 4 if j == 0 else SC
        for p in range(8):
            lines.append(f'v_pk_mul_f32 {vr(CV+16*j+2*p,2)}, {vr(CV+16*j+2*p,2)}, {vr(sc,2)} op_sel_hi:[1,0]')
        for o in range(2):
            for p in range(4*o, 4*o+4):
                A_ = ACC+16*j+2*p
                lines.append(f'v_pk_fma_f32 {vr(A_,2)}, {vr(A_,2)}, {vr(sc,2)}, {vr(CV+16*j+2*p,2)} op_sel:[0,1,0]')
            for p in range(4*o, 4*o+4):
                A_ = ACC+16*j+2*p
                lines.append(f'v_cvt_pk_bf16_f32 v{PK+8*j+p}, v{A_}, v{A_+1}')
            lines.append(f's_add_u32 s26, s{S_A}, {j*0x40000 + o*0x10000}')
            lines.append(f'buffer_store_dwordx4 {vr(PK+8*j+4*o,4)}, v3, s[8:11], s26 offen')
    lines.append('s_waitcnt lgkmcnt(0)')
    lines.append(f's_add_u32 s26, s{S_A}, 0x80000')
    for p in range(8):
        lines.append(f'v_pk_mul_f32 {vr(RV+2*p,2)}, {vr(RV+2*p,2)}, {vr(SC+2,2)} op_sel_hi:[1,0]')
    for o in range(2):
        for p in range(4*o, 4*o+4):
            A_ = ACC+32+2*p
            lines.append(f'v_pk_fma_f32 {vr(A_,2)}, {vr(A_,2)}, {vr(RV+16+2*p,2)}, {vr(RV+2*p,2)}')
        for p in range(4*o, 4*o+4):
            A_ = ACC+32+2*p
            lines.append(f'v_cvt_pk_bf16_f32 v{PK+16+p}, v{A_}, v{A_+1}')
        lines.append(f'buffer_store_dwordx4 {vr(PK+16+4*o,4)}, v{EA+4}, s[8:11], s26 offen offset:{512*o}')
    st2(lines)
    T.stamp('p1.c_st')

    Q, SA, SB, O, P, KB, VB, AV = 12, 20, 36, 52, 84, 92, 100, 116
    XR = 120
    a('v_lshlrev_b32 v10, 8, v5')
    a('v_lshl_add_u32 v10, v6, 4, v10')
    a('v_and_b32 v11, 11, v6')
    a('v_cmp_eq_u32 vcc, 0, v11')
    a(f'v_mov_b32 v11, {CONST + 16}')
    a(f'v_mov_b32 v{SA}, {CONST}')
    a(f'v_cndmask_b32 v11, v11, v{SA}, vcc')
    a(f'v_add_u32 v{SA}, 4, v6')
    a(f'v_and_b32 v{SA}, 8, v{SA}')
    a(f'v_lshl_add_u32 v11, v{SA}, 4, v11')
    a('v_cmp_gt_u32 vcc, 16, v4')
    for s in range(4):
        a(f'v_add_u32 v{SA}, {RING + s*8192 + 4096}, v10')
        a(f'v_cndmask_b32 v{AV+s}, v11, v{SA}, vcc')
    a(f's_lshl_b32 s28, s{S_CT}, 13')
    a(f's_lshl_b32 s27, s{S_Q}, 11')
    a('s_add_u32 s28, s28, s27')
    a(f's_add_u32 s{S_U}, s28, s{S_HD}')
    a(f's_mul_i32 s{S_B}, s{S_CT}, 7')
    a(f's_add_u32 s{S_B}, s{S_B}, s{S_Q}')
    a(f's_lshl_b32 s{S_B}, s{S_B}, 15')
    a(f's_add_u32 s{S_B}, s{S_B}, {W3F}')
    a(f's_sub_u32 s33, s{S_W4}, 4096')
    a(f's_cmp_eq_u32 s{S_Q}, 3')
    a(f's_cselect_b32 s{S_B}, s33, s{S_B}')
    sk = L('gn')
    a(f's_cmp_lg_u32 s{S_NON}, 0\ns_cbranch_scc1 {sk}')
    get_nonce()
    xcc_publish(10, 11)
    a.label(sk)
    flag_prep()
    a(f'v_mov_b32 v{SA}, {NONL}')
    a(f'ds_write_b64 v{SA}, v[10:11]')
    a(f's_lshl_b32 s26, s{S_I}, 3')
    a(f's_add_u32 s26, s26, s{S_GB}')
    a(f's_add_u32 s26, s26, {G_FQ}')
    a('s_waitcnt vmcnt(0) lgkmcnt(0)')
    a('s_barrier')
    sk = L('qf')
    a(f's_cmp_lg_u32 s{S_WAVE}, 0\ns_cbranch_scc1 {sk}')
    st2(flag_lines('s26'))
    a.label(sk)
    T.stamp('c_pub')
    srd(16, P_X, 0x200000)
    a(f's_lshl_b32 s33, s{S_X}, 4')
    a(f's_add_u32 s33, s33, s{S_SLAB}')
    a('s_lshl_b32 s33, s33, 14')
    a(f's_lshl_b32 s27, s{S_CT}, 7')
    a('s_add_u32 s33, s33, s27')
    a('v_lshlrev_b32 v128, 10, v6')
    a('v_lshl_add_u32 v128, v7, 3, v128')
    def rdK(t): a(f'ds_read_b128 {vr(KB+4*(t&1),4)}, v3 offset:{RING + ((t>>2)&3)*8192 + (t&3)*1024}')
    def rdV(t, f): a(f'ds_read_b128 {vr(VB+8*(t&1)+4*f,4)}, v{AV+((t>>2)&3)} offset:{(t&3)*1024+f*512}')
    def mfS(n):
        S = SA if (n & 1) == 0 else SB
        if 'noqk' in opt and n > 1: return
        a(f'v_mfma_f32_32x32x16_bf16 {vr(S,16)}, {vr(KB+4*((n>>1)&1),4)}, {vr(Q+4*(n&1),4)}, 0')
    def mfO(n, f):
        Ou = O + 16*(n & 1)
        if 'nopv' in opt and n > 1: return
        if 'pv16' in opt:
            a(f'v_mfma_f32_16x16x32_bf16 {vr(Ou+8,4)}, {vr(VB+8*((n>>1)&1)+4*f,4)}, {vr(P+4*f,4)}, {"0" if n < 2 and f == 0 else vr(Ou+8,4)}')
            return
        c_ = '0' if (n < 2 and f == 0) else vr(Ou,16)
        a(f'v_mfma_f32_32x32x16_bf16 {vr(Ou,16)}, {vr(VB+8*((n>>1)&1)+4*f,4)}, {vr(P+4*f,4)}, {c_}')
    a(f's_lshl_b32 s26, s{S_CT}, 5')
    a(f's_lshl_b32 s27, s{S_Q}, 3')
    a('s_add_u32 s26, s26, s27')
    a(f's_add_u32 s26, s26, s{S_GB}')
    a(f's_add_u32 s26, s26, {G_FQ}')
    poll('v1', 's26', '1')
    a(f'buffer_load_dwordx4 {vr(Q,4)}, v3, s[8:11], s{S_U} offen sc1')
    a(f'buffer_load_dwordx4 {vr(Q+4,4)}, v3, s[8:11], s{S_U} offen offset:1024 sc1')
    a('s_waitcnt vmcnt(0)')
    a('s_barrier')
    T.stamp('c_kv0'); T.stamp('att.c0'); T.stamp('att.r0', True)
    rdK(0); rdK(1); rdV(0, 0); rdV(0, 1)
    a('s_waitcnt lgkmcnt(3)')
    mfS(0)
    NS = 128
    cjobs = list(range(8, 32))
    for n in range(NS):
        t = n >> 1
        S = SA if (n & 1) == 0 else SB
        ex = lambda i: a(f'v_exp_f32 v{(132+i) if "noqk" in opt else (S+i)}, v{S+i}')
        cv = lambda j: a(f'v_cvt_pk_bf16_f32 v{P+j}, v{S+2*j}, v{S+2*j+1}')
        even = (n & 1) == 0
        if even:
            a('s_waitcnt lgkmcnt(0)')
            if (t + 2) % 4 == 0 and (t + 2) // 4 < 16: a('s_barrier')
        if n + 1 < NS: mfS(n + 1)
        ex(0); ex(1)
        if even and t + 2 < 64: rdK(t + 2)
        if n in (33, 34, 41, 42):
            k = (33, 34, 41, 42).index(n)
            a(f'buffer_load_dwordx2 {vr(XR+2*k,2)}, v128, s[16:19], s33 offen offset:{32*k}')
        if n == 50: xcc_load(130, 129)
        if n >= 60 and ((n + 4) % 8) >= 5 and cjobs:
            i = cjobs.pop(0)
            if 'nojobs' in opt: pass
            if i % 4 == 0: a(f's_add_u32 s30, s{S_B}, {(i >> 2)*4096}')
            if 'nojobs' not in opt and 'nocj' not in opt: a(f'buffer_load_dwordx4 {vr(W3+4*i,4)}, v3, s[8:11], s30 offen offset:{(i&3)*1024} sc1')
        ex(2); cv(0); ex(3); ex(4); ex(5); cv(1)
        if n > 0: mfO(n - 1, 1)
        ex(6); ex(7)
        if even and t + 1 < 64: rdV(t + 1, 0)
        cv(2); ex(8); cv(3); ex(9)
        if even and t + 1 < 64: rdV(t + 1, 1)
        ex(10)
        mfO(n, 0)
        ex(11); cv(4); ex(12); ex(13); cv(5); ex(14); ex(15); cv(6); cv(7)
    assert not cjobs
    mfO(NS - 1, 1)
    T.stamp('c_attn_end'); T.stamp('att.c1'); T.stamp('att.r1', True)
    a('s_waitcnt vmcnt(0)')
    calc_mode(130)
    a(f's_lshl_b32 s29, s{S_X}, 2')
    a(f's_add_u32 s29, s29, s{S_RB}')
    a(f's_lshl_b32 s26, s{S_CT}, 21')
    a(f's_lshl_b32 s27, s{S_Q}, 16')
    a('s_add_u32 s26, s26, s27')
    a('s_lshl_b32 s27, s29, 9')
    a('s_add_u32 s26, s26, s27')
    a(f's_add_u32 s26, s26, {GB + G_O}')
    a('s_add_u32 s27, s26, 32768')
    a(f's_lshl_b32 s28, s{S_CT}, 14')
    a(f's_lshl_b32 s30, s{S_Q}, 12')
    a('s_add_u32 s28, s28, s30')
    a('s_lshl_b32 s30, s29, 7')
    a('s_add_u32 s28, s28, s30')
    a(f's_add_u32 s28, s28, {F_O}')
    a(f'v_lshrrev_b32 v{KB}, 4, v4')
    a(f'v_lshlrev_b32 v{KB}, 14, v{KB}')
    a(f'v_lshl_add_u32 v{KB}, v5, 8, v{KB}')
    a(f'v_lshl_add_u32 v{KB}, v6, 4, v{KB}')
    FB, FBR = L('fb'), L('fbr')
    for u in range(2):
        Ou = O + 16*u
        a(f'v_max3_f32 v{SA+u}, |v{Ou}|, |v{Ou+1}|, |v{Ou+2}|')
        a(f'v_max3_f32 v{SA+u}, |v{Ou+3}|, |v{Ou+4}|, v{SA+u}')
        a(f'v_max3_f32 v{SA+u}, |v{Ou+5}|, |v{Ou+6}|, v{SA+u}')
    a(f'v_max3_f32 v{SA}, |v{O+7}|, |v{O+23}|, v{SA}')
    a(f'v_max_f32 v{SA}, v{SA}, v{SA+1}')
    a(f'v_mul_f32 v{SA}, {H(2.0**-60)}, v{SA}')
    a(f'v_max3_f32 v{SA}, v{O+8}, v{O+24}, v{SA}')
    a(f'v_min_f32 v{SA+1}, v{O+8}, v{O+24}')
    a(f'v_cmp_nle_f32 vcc, v{SA}, v{SA+2}' if False else f'v_mov_b32 v{SA+2}, {H(2.0**60)}')
    a(f'v_cmp_nle_f32 vcc, v{SA}, v{SA+2}')
    a(f'v_cmp_u_f32 s[30:31], v{O+8}, v{O+24}')
    a(f'v_cmp_ngt_f32 s[32:33], v{SA+1}, v{SA+3}' if False else f'v_mov_b32 v{SA+3}, {H(2.0**-60)}')
    a(f'v_cmp_ngt_f32 s[32:33], v{SA+1}, v{SA+3}')
    a('s_or_b64 vcc, vcc, s[30:31]')
    a('s_or_b64 vcc, vcc, s[32:33]')
    if force_fallback: a('s_mov_b64 vcc, -1')
    if 'nofb' in opt: a('s_mov_b64 vcc, 0')
    a(f's_cbranch_vccnz {FB}')
    a.label(FBR)
    for u in range(2):
        Ou = O + 16*u
        a(f'v_rcp_f32 v{SA+u}, v{Ou+8}')
    flag_prep()
    for u in range(2):
        Ou = O + 16*u
        for p in range(4): a(f'v_pk_mul_f32 {vr(Ou+2*p,2)}, {vr(Ou+2*p,2)}, {vr(SA,2)} ' + ('op_sel_hi:[1,0]' if u == 0 else 'op_sel:[0,1]'))
        for j in range(4): a(f'v_cvt_pk_bf16_f32 v{P+4*u+j}, v{Ou+2*j}, v{Ou+2*j+1}')
    for l in [f'buffer_store_dwordx4 {vr(P,4)}, v{KB}, s[8:11], s26 offen', f'buffer_store_dwordx4 {vr(P+4,4)}, v{KB}, s[8:11], s27 offen',
         's_waitcnt vmcnt(0)'] + flag_lines('s28'): a(l + (' sc1' if l.startswith('buffer') else ''))
    a('s_barrier')
    T.stamp('c_pub0')

    GC0 = 12; AWA, AWB = 14, 15; HB = 16; MU, R1 = 24, 25; TMP = 26
    ACC = 32; ACT = 48; WF = 128; NWS = 2; CV = 112; LEAD = 6
    S_TA, S_SA, S_FA = 33, 34, 35
    a(f'v_add_u32 v{AWA}, {WA}, v3')
    a(f'v_add_u32 v{AWB}, {WB}, v3')
    def wread(ph, s, nt):
        b = WF + 16*(s % NWS) + 4*nt
        if ph == 2 and s == 15: return f'ds_read_b128 {vr(b,4)}, v3 offset:{W1X + nt*1024}'
        if ph == 3 and s < NW2L: return f'ds_read_b128 {vr(b,4)}, v3 offset:{W2L + s*4096 + nt*1024}'
        return f'ds_read_b128 {vr(b,4)}, v{AWB if ph == 2 else AWA} offset:{s*4096 + nt*1024}'
    def wpre(ph):
        for s in range(NWS):
            for nt in range(4): a(wread(ph, s, nt))
    def gemm64(ph, ld, fill=None, zero=False):
        T.stamp(f'g.p{ph}_go')
        for s in range(LEAD): ld(s)
        fill = list(fill or [])
        for s in range(16):
            b = WF + 16*(s % NWS)
            for nt in range(4):
                out = min(4*NWS - 1, 4*(16 - s) - nt - 1)
                if nt == 0:
                    a.vwait(('a', s), f'lgkmcnt({out})')
                    if s in (0, 8, 15): T.stamp(f'g.p{ph}_s{s}')
                else: a(f's_waitcnt lgkmcnt({out})')
                c_ = '0' if (s == 0 and zero) else vr(ACC+4*nt,4)
                a(f'v_mfma_f32_16x16x32_bf16 {vr(ACC+4*nt,4)}, {vr(b+4*nt,4)}, {vr(ACT+4*s,4)}, {c_}')
                if s + NWS < 16: a(wread(ph, s + NWS, nt))
                if nt == 1 and s + LEAD < 16: ld(s + LEAD)
                if s >= 4 and fill: a(fill.pop(0))
        assert not fill
    def ld_plain(s):
        if s and s % 4 == 0: a('s_add_u32 s29, s29, 4096')
        a.vissue(f'buffer_load_dwordx4 {vr(ACT+4*s,4)}, v3, s[8:11], s29 offen offset:{(s&3)*1024} sc1', ('a', s))
    def xsum_lines(r0, r1, t0, t1):
        l = []
        for sw in ('v_permlane16_swap_b32', 'v_permlane32_swap_b32'):
            l += [f'v_mov_b32 v{t0}, v{r0}', f'v_mov_b32 v{t1}, v{r1}', f'{sw} v{r0}, v{t0}', f'{sw} v{r1}, v{t1}',
                  f'v_add_f32 v{r0}, v{r0}, v{t0}', f'v_add_f32 v{r1}, v{r1}, v{t1}']
        return l
    def addrs(act, tile, stats, flag):
        a(f's_lshl_b32 s26, s{S_SLAB}, 14')
        a(f's_add_u32 s26, s26, s{S_GB}')
        if act is not None: a(f's_add_u32 s29, s26, {act}')
        a(f's_lshl_b32 s27, s{S_CT}, 11')
        a(f's_add_u32 s{S_TA}, s26, s27')
        a(f's_add_u32 s{S_TA}, s{S_TA}, {tile}')
        a(f's_lshl_b32 s27, s{S_CT}, 3')
        a(f's_add_u32 s27, s27, s{S_GB}')
        if stats is not None:
            a(f's_lshl_b32 s{S_SA}, s{S_SLAB}, 10')
            a(f's_add_u32 s{S_SA}, s{S_SA}, s27')
            a(f's_add_u32 s{S_SA}, s{S_SA}, {stats}')
        a(f's_lshl_b32 s{S_FA}, s{S_SLAB}, 6')
        a(f's_add_u32 s{S_FA}, s{S_FA}, s27')
        a(f's_add_u32 s{S_FA}, s{S_FA}, {flag}')
    def pack16(dst):
        for nt in range(4):
            a(f'v_cvt_pk_bf16_f32 v{dst+2*nt}, v{ACC+4*nt}, v{ACC+4*nt+1}')
            a(f'v_cvt_pk_bf16_f32 v{dst+2*nt+1}, v{ACC+4*nt+2}, v{ACC+4*nt+3}')
    def tile_st(src):
        return [f'buffer_store_dwordx4 {vr(src,4)}, v3, s[8:11], s{S_TA} offen', f'buffer_store_dwordx4 {vr(src+4,4)}, v3, s[8:11], s{S_TA} offen offset:1024']
    def stats_lines(t):
        l = [f'v_pk_add_f32 {vr(t,2)}, {vr(ACC,2)}, {vr(ACC+2,2)}', f'v_pk_mul_f32 {vr(t+2,2)}, {vr(ACC,2)}, {vr(ACC,2)}',
             f'v_pk_fma_f32 {vr(t+2,2)}, {vr(ACC+2,2)}, {vr(ACC+2,2)}, {vr(t+2,2)}']
        for p in range(2, 8):
            l += [f'v_pk_add_f32 {vr(t,2)}, {vr(t,2)}, {vr(ACC+2*p,2)}', f'v_pk_fma_f32 {vr(t+2,2)}, {vr(ACC+2*p,2)}, {vr(ACC+2*p,2)}, {vr(t+2,2)}']
        l += [f'v_add_f32 v{t}, v{t}, v{t+1}', f'v_add_f32 v{t+1}, v{t+2}, v{t+3}']
        l += xsum_lines(t, t+1, t+2, t+3)
        l += ['s_mov_b64 exec, 0xffff', f'buffer_store_dwordx2 {vr(t,2)}, v{TMP+5}, s[8:11], s{S_SA} offen']
        return l
    def gelu_pk(regs, tmp):
        n = len(regs)
        for i, r in enumerate(regs): a(f'v_pk_mul_f32 {vr(tmp+2*i,2)}, {vr(r,2)}, {vr(r,2)}')
        for i, r in enumerate(regs): a(f'v_pk_fma_f32 {vr(tmp+2*i,2)}, {vr(tmp+2*i,2)}, {sr(S_C1,2)}, {vr(GC0,2)}')
        for i, r in enumerate(regs): a(f'v_pk_mul_f32 {vr(tmp+2*i,2)}, {vr(tmp+2*i,2)}, {vr(r,2)}')
        for i in range(2*n): a(f'v_exp_f32 v{tmp+i}, v{tmp+i}')
        for i, r in enumerate(regs): a(f'v_pk_add_f32 {vr(tmp+2*i,2)}, {vr(tmp+2*i,2)}, {sr(S_ONE,2)}')
        for i in range(2*n): a(f'v_rcp_f32 v{tmp+i}, v{tmp+i}')
        for i, r in enumerate(regs): a(f'v_pk_mul_f32 {vr(r,2)}, {vr(r,2)}, {vr(tmp+2*i,2)}')

    wpre(1)
    for nt in range(4):
        for p in range(2):
            a(f'v_lshlrev_b32 v{ACC+4*nt+2*p}, 16, v{XR+2*nt+p}')
            a(f'v_and_b32 v{ACC+4*nt+2*p+1}, 0xffff0000, v{XR+2*nt+p}')
    addrs(G_O, G_H, G_ST1, G_FH)
    a(f'v_lshlrev_b32 v{TMP+5}, 6, v6')
    sk = L('of')
    a(f's_cmp_lg_u32 s{S_WAVE}, 0\ns_cbranch_scc1 {sk}')
    a(f's_lshl_b32 s28, s{S_X}, 14')
    a(f's_lshl_b32 s27, s{S_RB}, 12')
    a('s_add_u32 s28, s28, s27')
    a(f's_add_u32 s28, s28, {F_O}')
    a('s_mov_b32 s30, -1\ns_mov_b32 s31, 0')
    a(f'v_lshlrev_b32 v{TMP}, 7, v2')
    poll(f'v{TMP}', 's28', 's[30:31]', sleep=1)
    a.label(sk)
    a('s_barrier')
    a.vm = ['fl']
    T.stamp('p1_poll')
    gemm64(1, ld_plain)
    T.stamp('p1_gemm')
    flag_prep()
    pack16(HB)
    st2(tile_st(HB) + stats_lines(ACT) + ['s_waitcnt vmcnt(0)'] + flag_lines(f's{S_FA}'))
    a('s_barrier')
    T.stamp('pub1')
    wpre(2)
    a('v_lshlrev_b32 v10, 4, v7')
    for nt in range(4): a(f'ds_read_b128 {vr(CV+4*nt,4)}, v10 offset:{CS1 + 64*nt}')
    a(f'v_mov_b32 v{GC0}, {H(GELU_C0)}\nv_mov_b32 v{GC0+1}, {H(GELU_C0)}')
    addrs(G_H, G_HH, None, G_FHH)
    a(f's_lshl_b32 s28, s{S_SLAB}, 6')
    a(f's_add_u32 s28, s28, s{S_GB}')
    a(f's_add_u32 s28, s28, {G_FH}')
    a(f's_add_u32 s27, s{S_SLAB}, 1')
    a('s_and_b32 s27, s27, 14')
    a('s_cmp_eq_u32 s27, 0')
    a(f's_cselect_b32 s{S_M2}, 0, s{S_MODE}')
    a(f's_cselect_b32 s{S_U+1}, 1, 0')
    a(f's_cmp_eq_u32 s{S_SLAB}, 0')
    a(f's_mov_b32 s{S_U+2}, {0x200000 + G_FHX}')
    a(f's_cselect_b32 s{S_U+2}, {(G_FHX + 1024 - 0x200000) & 0xffffffff}, s{S_U+2}')
    a(f's_add_u32 s{S_U+2}, s{S_U+2}, s{S_GB}')
    a(f's_lshl_b32 s27, s{S_CT}, 7')
    a(f's_add_u32 s{S_U+2}, s{S_U+2}, s27')
    a(f's_lshl_b32 s27, s{S_X}, 4')
    a(f's_add_u32 s27, s27, s{S_SLAB}')
    a('s_add_u32 s27, s27, 1')
    a('s_and_b32 s27, s27, 126')
    a('s_cmp_eq_u32 s27, 0')
    a(f's_cselect_b32 s{S_U+1}, 0, s{S_U+1}')
    a(f'v_lshl_add_u32 v{TMP+4}, v7, 4, v{TMP+5}')
    a(f's_lshl_b32 s{S_SA}, s{S_SLAB}, 10')
    a(f's_add_u32 s{S_SA}, s{S_SA}, s{S_GB}')
    a(f's_add_u32 s{S_SA}, s{S_SA}, {G_ST1}')
    a('s_waitcnt lgkmcnt(0)')
    poll('v1', 's28', '0xff')
    T.stamp('p2_poll')
    a.vissue(f'buffer_load_dwordx4 {vr(TMP,4)}, v{TMP+4}, s[8:11], s{S_SA} offen sc1', 'st')
    fill = [f'v_add_f32 v{TMP}, v{TMP}, v{TMP+2}', f'v_add_f32 v{TMP+1}, v{TMP+1}, v{TMP+3}'] + xsum_lines(TMP, TMP+1, TMP+2, TMP+3) + [
        f'v_mul_f32 v{MU}, {H(-1/512)}, v{TMP}', f'v_mul_f32 v{TMP+1}, {H(1/512)}, v{TMP+1}',
        f'v_fma_f32 v{TMP+1}, -v{MU}, v{MU}, v{TMP+1}', f'v_max_f32 v{TMP+1}, 0, v{TMP+1}',
        f'v_add_f32 v{TMP+2}, {H(1e-5)}, v{TMP+1}', f'v_rsq_f32 v{R1}, v{TMP+2}', f'v_mul_f32 v{TMP+2}, v{R1}, v{R1}',
        f'v_fmaak_f32 v{TMP+2}, v{TMP+2}, v{TMP+1}, {H(1e-5)}', f'v_rsq_f32 v{TMP+2}, v{TMP+2}', f'v_mul_f32 v{TMP+2}, v{TMP+2}, v{R1}',
        f'v_mul_f32 v{TMP+3}, v{TMP+2}, v{MU}'] + [f'v_mul_f32 v{CV+i}, v{TMP+3}, v{CV+i}' for i in range(16)]
    gemm64(2, ld_plain, fill, zero=True)
    T.stamp('p2_gemm')
    flag_prep()
    for p in range(8): a(f'v_pk_fma_f32 {vr(ACC+2*p,2)}, {vr(ACC+2*p,2)}, {vr(TMP+2,2)}, {vr(CV+2*p,2)} op_sel_hi:[1,0,1]')
    gelu_pk([ACC+2*p for p in range(8)], ACT)
    pack16(ACT+16)
    st2(tile_st(ACT+16) + ['s_waitcnt vmcnt(0)'], S_M2)
    st2(flag_lines(f's{S_FA}'))
    sk = L('hx')
    a(f's_cmp_eq_u32 s{S_U+1}, 0\ns_cbranch_scc1 {sk}')
    for l in flag_lines(f's{S_U+2}'): a(l + (' sc1' if l.startswith('buffer') else ''))
    a.label(sk)
    a('s_barrier')
    T.stamp('pub2')
    wpre(3)
    for nt in range(4):
        for p in range(2):
            a(f'v_lshlrev_b32 v{ACC+4*nt+2*p}, 16, v{HB+2*nt+p}')
            a(f'v_and_b32 v{ACC+4*nt+2*p+1}, 0xffff0000, v{HB+2*nt+p}')
    for p in range(8): a(f'v_pk_add_f32 {vr(ACC+2*p,2)}, {vr(ACC+2*p,2)}, {vr(MU,2)} op_sel_hi:[1,0]')
    for p in range(8): a(f'v_pk_mul_f32 {vr(ACC+2*p,2)}, {vr(ACC+2*p,2)}, {vr(MU,2)} op_sel:[0,1]')
    addrs(None, G_X1, G_ST2, G_FX1)
    a(f's_lshl_b32 s27, s{S_X}, 4')
    a(f's_add_u32 s27, s27, s{S_SLAB}')
    a('s_mov_b32 s30, 0xccff33')
    a('s_cmp_eq_u32 s27, 0')
    a('s_cselect_b32 s30, 0xccff00, s30')
    a('s_cmp_eq_u32 s27, 127')
    a('s_cselect_b32 s30, 0x00ff33, s30')
    a('s_mov_b32 s31, 0')
    a('s_lshl_b32 s26, s27, 4')
    a(f's_lshl_b32 s28, s{S_SLAB}, 6')
    a(f's_add_u32 s28, s28, {G_FHH - 64}')
    a(f'v_add_u32 v{TMP+4}, s28, v1')
    a('v_lshrrev_b32 v10, 3, v2')
    a(f's_sub_u32 s27, s{S_SLAB}, 1')
    a('v_add_u32 v10, s27, v10')
    a('v_cmp_lt_u32 vcc, 15, v10')
    a('v_and_b32 v10, 7, v2')
    a('v_lshl_add_u32 v10, v7, 3, v10')
    a('v_lshlrev_b32 v10, 7, v10')
    a(f'v_add_u32 v10, {G_FHX}, v10')
    a(f'v_cndmask_b32 v{TMP+4}, v{TMP+4}, v10, vcc')
    for gi, d in enumerate((-1, 1, -2, 2)):
        a('v_add_u32 v10, s26, v6')
        a(f'v_add_u32 v10, {d}, v10')
        a('v_bfe_u32 v11, v10, 4, 4')
        a('v_lshlrev_b32 v11, 14, v11')
        a(f'v_lshrrev_b32 v{TMP}, 8, v10')
        a(f'v_lshl_add_u32 v11, v{TMP}, 21, v11')
        a(f'v_and_b32 v{TMP}, 15, v10')
        a(f'v_lshl_add_u32 v11, v{TMP}, 4, v11')
        a('v_lshl_add_u32 v11, v7, 8, v11')
        a('v_cmp_gt_u32 vcc, 0x800, v10')
        a(f'v_mov_b32 v{TMP}, 0x70000000')
        a(f'v_cndmask_b32 v{CV+gi}, v{TMP}, v11, vcc')
    poll(f'v{TMP+4}', f's{S_GB}', 's[30:31]')
    T.stamp('p3_poll')
    def ld_shift(s):
        if s % 4 == 0: a(f's_mov_b32 s29, {GB + G_HH + (s>>2)*4096}')
        a.vissue(f'buffer_load_dwordx4 {vr(ACT+4*s,4)}, v{CV+(s>>2)}, s[8:11], s29 offen offset:{(s&3)*1024} sc1', ('a', s))
    gemm64(3, ld_shift)
    a('s_barrier')
    T.stamp('p3_gemm')
    flag_prep()
    pack16(ACT+16)
    st2(tile_st(ACT+16) + stats_lines(ACT) + ['s_waitcnt vmcnt(0)'] + flag_lines(f's{S_FA}'))
    a(f's_lshl_b32 s26, s{S_Q}, 13')
    a(f'v_add_u32 v{AWB}, s26, v{AWB}')
    for i in range(8): a(f'ds_read_b128 {vr(W3+4*i,4)}, v{AWB} offset:{i*1024}')
    T.stamp('pub3')

    a.label(HJOIN)
    a.vm = []
    A4 = 24; C3 = 56; XF = 72; T4 = 88; PKO = 120
    korder = list(range(8, 32)) + list(range(8))
    a(f'v_mov_b32 v{GC0}, {H(GELU_C0)}\nv_mov_b32 v{GC0+1}, {H(GELU_C0)}')
    a('v_lshrrev_b32 v15, 4, v4')
    a('v_lshlrev_b32 v14, 14, v15')
    a('v_lshl_add_u32 v14, v5, 8, v14')
    a('v_lshl_add_u32 v14, v6, 4, v14')
    a(f'v_add_u32 v14, {XT}, v14')
    a('v_mul_u32_u24 v15, 0xe000, v15')
    a('v_lshl_add_u32 v15, v5, 8, v15')
    a('v_lshl_add_u32 v15, v6, 4, v15')
    a('v_lshlrev_b32 v16, 6, v4')
    a('v_lshl_add_u32 v16, v5, 5, v16')
    a(f's_lshl_b32 s26, s{S_J}, 7')
    a(f's_add_u32 s26, s26, {C3L}')
    a('v_lshl_add_u32 v17, v5, 4, s26')
    a(f's_lshl_b32 s26, s{S_J}, 12')
    a('v_add_u32 v18, s26, v3')
    a(f'v_add_u32 v19, {PKB}, v18')
    a(f's_lshl_b32 s28, s{S_R16}, 10')
    a(f's_add_u32 s28, s28, s{S_GB}')
    a(f's_add_u32 s28, s28, {G_ST2}')
    a(f's_mul_i32 s33, s{S_R16}, 57344')
    a(f's_add_u32 s33, s33, s{S_GB}')
    a(f's_add_u32 s33, s33, {G_H2}')
    a(f's_mul_i32 s26, s{S_CT}, 7168')
    a('s_add_u32 s26, s26, s33')
    a(f's_lshl_b32 s27, s{S_J}, 10')
    a('s_add_u32 s26, s26, s27')
    a(f's_add_u32 s27, s26, {2*57344}')
    a(f's_lshl_b32 s34, s{S_RB}, 9')
    a(f's_add_u32 s34, s34, s{S_GB}')
    a(f's_add_u32 s34, s34, {G_FH2}')
    a(f's_lshl_b32 s35, s{S_CT}, 6')
    a('s_add_u32 s35, s35, s34')
    a(f's_lshl_b32 s29, s{S_J}, 3')
    a('s_add_u32 s35, s35, s29')
    for q in range(4): a(f'ds_read_b128 {vr(C3+4*q,4)}, v17 offset:{32*q}')
    a('s_waitcnt vmcnt(8)')
    a('s_barrier')
    T.stamp('p4_go')
    h4, j4 = L('help'), L('join')
    a(f's_cmp_eq_u32 s{S_WAVE}, 3')
    a(f's_cbranch_scc1 {h4}')
    seq = [(mt, ks) for mt in range(2) for ks in korder]
    def rdX(i):
        mt, ks = seq[i]
        a(f'ds_read_b128 {vr(XF+4*(i&3),4)}, v14 offset:{mt*32768 + ks*512}')
    for i in range(3): rdX(i)
    for mt in range(2):
        a(f'buffer_load_dwordx4 {vr(T4+8*mt,4)}, v16, s[8:11], s28 offen offset:{2048*mt} sc1')
        a(f'buffer_load_dwordx4 {vr(T4+8*mt+4,4)}, v16, s[8:11], s28 offen offset:{2048*mt+16} sc1')
    def ldW4(f):
        a(f's_add_u32 s30, s{S_W4}, {(f >> 2)*4096}')
        a(f'buffer_load_dwordx4 {vr(W4+4*f,4)}, v3, s[8:11], s30 offen offset:{(f&3)*1024} sc1')
    def stat4(mt):
        b = T4 + 8*mt
        return [f'v_add_f32 v{b}, v{b}, v{b+2}', f'v_add_f32 v{b+1}, v{b+1}, v{b+3}', f'v_add_f32 v{b+4}, v{b+4}, v{b+6}', f'v_add_f32 v{b+5}, v{b+5}, v{b+7}',
                f'v_add_f32 v{b}, v{b}, v{b+4}', f'v_add_f32 v{b+1}, v{b+1}, v{b+5}', f'v_mov_b32 v{b+2}, v{b}', f'v_mov_b32 v{b+3}, v{b+1}',
                f'v_permlane32_swap_b32 v{b}, v{b+2}', f'v_permlane32_swap_b32 v{b+1}, v{b+3}',
                f'v_add_f32 v{b}, v{b}, v{b+2}', f'v_add_f32 v{b+1}, v{b+1}, v{b+3}',
                f'v_mul_f32 v{b}, {H(-1/512)}, v{b}', f'v_mul_f32 v{b+1}, {H(1/512)}, v{b+1}', f'v_fma_f32 v{b+1}, -v{b}, v{b}, v{b+1}',
                f'v_max_f32 v{b+1}, 0, v{b+1}', f'v_add_f32 v{b+1}, {H(1e-5)}, v{b+1}', f'v_rsq_f32 v{b+1}, v{b+1}']
    def epi_scalar(mt):
        b = T4 + 8*mt; A = A4 + 16*mt; t = T4 + 16
        l = []
        for g in range(4):
            R = [A+4*g+i for i in range(4)]; Tt = [t+4*(g&1)+i for i in range(4)]
            l += [f'v_fmac_f32 v{r}, v{b}, v{C3+4*g+i}' for i, r in enumerate(R)]
            l += [f'v_mul_f32 v{r}, v{b+1}, v{r}' for r in R]
            l += [f'v_mul_f32 v{x}, v{r}, v{r}' for x, r in zip(Tt, R)]
            l += [f'v_fma_f32 v{x}, v{x}, s{S_C1}, v{GC0}' for x in Tt]
            l += [f'v_mul_f32 v{x}, v{x}, v{r}' for x, r in zip(Tt, R)]
            l += [f'v_exp_f32 v{x}, v{x}' for x in Tt]
            l += [f'v_add_f32 v{x}, 1.0, v{x}' for x in Tt]
            l += [f'v_rcp_f32 v{x}, v{x}' for x in Tt]
            l += [f'v_mul_f32 v{r}, v{r}, v{x}' for x, r in zip(Tt, R)]
            l += [f'v_cvt_pk_bf16_f32 v{PKO+2*g}, v{R[0]}, v{R[1]}', f'v_cvt_pk_bf16_f32 v{PKO+2*g+1}, v{R[2]}, v{R[3]}']
        return l
    fill1 = stat4(0) + stat4(1)
    fill2 = epi_scalar(0)
    for i, (mt, ks) in enumerate(seq):
        if i == 20:
            a('s_waitcnt vmcnt(0)')
            a('s_barrier')
        if i + 3 < 64: rdX(i + 3)
        a(f's_waitcnt lgkmcnt({min(3, 63 - i)})')
        c_ = '0' if i % 32 == 0 else vr(A4+16*mt,16)
        a(f'v_mfma_f32_32x32x16_bf16 {vr(A4+16*mt,16)}, {vr(W3+4*ks,4)}, {vr(XF+4*(i&3),4)}, {c_}')
        if mt == 1 and 8 <= ks < 28: ldW4(ks - 4)
        if 20 <= i < 32:
            for l in fill1[:3]: a(l)
            fill1 = fill1[3:]
        if i >= 33:
            for l in fill2[:5]: a(l)
            fill2 = fill2[5:]
    assert not fill1 and not fill2
    T.stamp('p4_gemm')
    st2([f'buffer_store_dwordx4 {vr(PKO,4)}, v15, s[8:11], s26 offen', f'buffer_store_dwordx4 {vr(PKO+4,4)}, v15, s[8:11], s26 offen offset:512'])
    flag_prep()
    b = T4 + 8; A = A4 + 16
    for p in range(8): a(f'v_pk_fma_f32 {vr(A+2*p,2)}, {vr(C3+2*p,2)}, {vr(b,2)}, {vr(A+2*p,2)} op_sel_hi:[1,0,1]')
    for p in range(8): a(f'v_pk_mul_f32 {vr(A+2*p,2)}, {vr(A+2*p,2)}, {vr(b,2)} op_sel:[0,1]')
    gelu_pk([A+2*p for p in range(8)], T4+16)
    for p in range(8): a(f'v_cvt_pk_bf16_f32 v{XF+p}, v{A+2*p}, v{A+2*p+1}')
    st2([f'buffer_store_dwordx4 {vr(XF,4)}, v15, s[8:11], s27 offen', f'buffer_store_dwordx4 {vr(XF+4,4)}, v15, s[8:11], s27 offen offset:512',
         's_waitcnt vmcnt(0)'] + flag_lines('s35'))
    a(f's_branch {j4}')
    a.label(h4)
    a('s_waitcnt lgkmcnt(0)')
    a('s_barrier')
    a(f's_mul_i32 s30, s{S_CT}, 7168')
    a('s_add_u32 s30, s30, s33')
    a('v_lshlrev_b32 v10, 7, v2')
    a('s_mov_b32 exec_hi, 0xffffff')
    for sl in range(4):
        a('buffer_load_dword v11, v10, s[8:11], s30 offen sc1')
        a('s_add_u32 s30, s30, 57344')
    a('s_mov_b32 exec_hi, -1')
    for f in range(4): ldW4(f)
    a(f's_mul_i32 s31, s{S_CT}, 229376')
    for j in range(7):
        v = j if j < 3 else j + 1
        for (lds, f0) in ((PKA, 24), (PKB, 0)):
            a(f's_mov_b32 m0, {lds + j*4096}')
            a(f's_add_u32 s30, s31, {W4F + v*28672 + f0*1024}')
            for i in range(4): a(f'buffer_load_dwordx4 v3, s[8:11], s30 offen offset:{i*1024} sc1 lds')
    a('s_waitcnt vmcnt(0)')
    a.label(j4)
    T.stamp('pub4')

    A5 = 24; HA = 88; RS_ = 128
    a(f's_lshl_b32 s27, s{S_Q}, 2')
    a('v_add_u32 v10, s27, v7')
    a('v_lshlrev_b32 v12, 4, v10')
    a('v_bfe_u32 v11, v2, 3, 1')
    a('v_lshl_add_u32 v12, v11, 10, v12')
    a('v_lshl_add_u32 v12, v9, 8, v12')
    a('v_bfe_u32 v11, v2, 2, 1')
    a('v_lshl_add_u32 v12, v11, 3, v12')
    a(f's_lshr_b32 s26, s{S_WAVE}, 2')
    a(f's_add_u32 s26, s26, s{S_R16}')
    a('s_lshl_b32 s26, s26, 14')
    a(f's_lshl_b32 s27, s{S_CT}, 11')
    a('s_add_u32 s26, s26, s27')
    a(f's_add_u32 s26, s26, s{S_GB}')
    for mt in range(2):
        for bi, base in enumerate((G_H, G_X1)):
            a(f's_add_u32 s27, s26, {base + mt*32768}')
            a(f'buffer_load_dwordx2 {vr(RS_+4*mt+2*bi,2)}, v12, s[8:11], s27 offen sc1')
    a(f's_lshl_b32 s28, s{S_WAVE}, 6')
    a('s_add_u32 s28, s28, s34')
    a(f's_mul_i32 s26, s{S_WAVE}, 7168')
    a('s_add_u32 s26, s26, s33')
    a(f's_lshl_b32 s27, s{S_WAVE}, 13')
    a('v_lshlrev_b32 v13, 4, v5')
    a('v_xor_b32 v13, v13, v3')
    a('v_add_u32 v13, s27, v13')
    a(f's_lshl_b32 s27, s{S_WAVE}, 2')
    a('v_add_u32 v10, s27, v7')
    a('v_xor_b32 v10, v10, v6')
    a('v_lshlrev_b32 v10, 4, v10')
    a('v_and_b32 v11, 1, v2')
    a('v_lshl_add_u32 v10, v11, 9, v10')
    a('v_lshrrev_b32 v11, 1, v6')
    a('v_lshl_add_u32 v14, v11, 10, v10')
    poll('v1', 's28', '0x7f')
    T.stamp('p5_poll')
    def ldA(mt, ks):
        a(f's_add_u32 s27, s26, {mt*2*57344 + (ks//8)*4096}')
        a.vissue(f'buffer_load_dwordx4 {vr(HA+4*((14*mt+ks_pos[ks])%10),4)}, v15, s[8:11], s27 offen offset:{(ks%8)*512} sc1', ('h', mt, ks))
    korder5 = list(range(2, 12)) + [12, 13, 0, 1]
    ks_pos = {k: i for i, k in enumerate(korder5)}
    order = [(mt, ks) for mt in range(2) for ks in korder5]
    LEAD5 = 8
    for (mt, ks) in order[:LEAD5]: ldA(mt, ks)
    a('s_barrier')
    sk = L('pk')
    a(f's_cmp_eq_u32 s{S_WAVE}, 3\ns_cbranch_scc1 {sk}')
    for i in range(4): a(f'ds_read_b128 {vr(W4+4*(24+i),4)}, v18 offset:{PKA + i*1024}')
    for i in range(4): a(f'ds_read_b128 {vr(W4+4*i,4)}, v19 offset:{i*1024}')
    a.label(sk)
    def wr_list(mt):
        l = []
        for nt in range(2):
            for q in range(4):
                oct_ = 4*nt + q
                l.append([f'v_xor_b32 v{10+(q&1)}, {oct_*32 + mt*65536}, v13',
                          f'ds_write_b128 v{10+(q&1)}, {vr(A5+32*nt+16*mt+4*q,4)} offset:{RED + oct_*1024}'])
        return l
    wl = wr_list(0)
    for i, (mt, ks) in enumerate(order):
        a.vwait(('h', mt, ks), 'lgkmcnt(0)' if i == 6 else '')
        if i == 6: a('s_barrier')
        for nt in range(2):
            A = A5 + 32*nt + 16*mt
            c_ = '0' if ks_pos[ks] == 0 else vr(A,16)
            a(f'v_mfma_f32_32x32x16_bf16 {vr(A,16)}, {vr(W4+8*ks+4*nt,4)}, {vr(HA+4*((14*mt+ks_pos[ks])%10),4)}, {c_}')
        if i + LEAD5 < 28: ldA(*order[i + LEAD5])
        if i >= 16 and wl:
            for l in wl.pop(0): a(l)
    T.stamp('p5_gemm')
    for g in wr_list(1):
        for l in g: a(l)
    srd(16, P_OUT, 0x200000)
    a(f's_lshl_b32 s26, s{S_X}, 4')
    a(f's_add_u32 s26, s26, s{S_R16}')
    a('s_lshl_b32 s26, s26, 14')
    a(f's_lshl_b32 s27, s{S_WAVE}, 12')
    a('s_add_u32 s26, s26, s27')
    a(f's_lshl_b32 s27, s{S_CT}, 7')
    a('s_add_u32 s26, s26, s27')
    a('s_add_u32 s27, s26, 32768')
    a('v_lshlrev_b32 v12, 10, v7')
    a('v_lshl_add_u32 v12, v6, 3, v12')
    a('v_add_u32 v13, 0x10000, v14')
    RD = 144; SUM = 88
    for mt in range(2):
        for p in range(2):
            a(f'v_lshlrev_b32 v{RD+8*mt+2*p}, 16, v{RS_+4*mt+p}')
            a(f'v_and_b32 v{RD+8*mt+2*p+1}, 0xffff0000, v{RS_+4*mt+p}')
            a(f'v_lshlrev_b32 v{RD+8*mt+4+2*p}, 16, v{RS_+4*mt+2+p}')
            a(f'v_and_b32 v{RD+8*mt+4+2*p+1}, 0xffff0000, v{RS_+4*mt+2+p}')
        for p in range(2): a(f'v_pk_add_f32 {vr(SUM+4*mt+2*p,2)}, {vr(RD+8*mt+2*p,2)}, {vr(RD+8*mt+4+2*p,2)}')
    a('s_waitcnt lgkmcnt(0)')
    a('s_barrier')
    for mt in range(2):
        for src in range(8):
            a(f'ds_read_b128 {vr(RD+32*mt+4*src,4)}, v{14 if mt == 0 else 13} offset:{RED + src*8192}')
    for mt in range(2):
        for src in range(8):
            if src % 2 == 0: a(f's_waitcnt lgkmcnt({14-8*mt-src})')
            for p in range(2): a(f'v_pk_add_f32 {vr(SUM+4*mt+2*p,2)}, {vr(SUM+4*mt+2*p,2)}, {vr(RD+32*mt+4*src+2*p,2)}')
        for p in range(2): a(f'v_cvt_pk_bf16_f32 v{24+2*mt+p}, v{SUM+4*mt+2*p}, v{SUM+4*mt+2*p+1}')
        a(f'buffer_store_dwordx2 {vr(24+2*mt,2)}, v12, s[16:19], s{26+mt} offen')
    if diag: a('s_waitcnt vmcnt(0)')
    T.stamp('end'); T.stamp('end_rt', True)
    T.flush(P_WS, 0, S_WAVE, TS)
    if 'dbgout' in opt:
        sk = L('do')
        a(f's_lshl_b32 s26, s{S_WAVE}, 8')
        a('s_or_b32 s26, s26, s2')
        a(f's_cmp_lg_u32 s26, 77\ns_cbranch_scc1 {sk}')
        srd(16, P_DBG, 256)
        a('s_mov_b64 exec, 1')
        for k, nm in enumerate(['c_b0', 'c_gemm', 'c_pub', 'c_kv0', 'c_attn_end', 'p1_poll', 'pub1', 'pub2', 'pub3', 'p4_go', 'pub4', 'p5_poll', 'p5_gemm', 'end_rt']):
            a(f's_sub_u32 s26, s{76+T.names.index(nm)}, s76')
            a('v_mov_b32 v1, s26')
            a(f'buffer_store_dword v1, off, s[16:19], 0 offset:{8+4*k}')
        a.label(sk)
    a('s_endpgm')

    for (lab, lines, back) in a.cold:
        a.label(lab)
        a('s_nop 7')
        for l in lines: a(l)
        a('s_nop 7')
        a(f's_branch {back}')
    NM = 128
    a.label(FB)
    a('s_nop 15')
    a(f's_add_u32 s30, s{S_HD}, 0x40000')
    a(f's_add_u32 s31, s{S_HD}, 0x80000')
    a(f'v_mov_b32 v{NM}, 0xff800000\nv_mov_b32 v{NM+16}, 0xff800000')
    a('s_mov_b32 s32, 0')
    l1 = L('fb1')
    a.label(l1)
    a('s_add_u32 s33, s30, s32')
    a(f'buffer_load_dwordx4 {vr(KB+4,4)}, v3, s[8:11], s33 offen sc1')
    a('s_waitcnt vmcnt(0)')
    for u, S in ((0, SA), (1, SB)):
        a(f'v_mfma_f32_32x32x16_bf16 {vr(S,16)}, {vr(KB+4,4)}, {vr(Q+4*u,4)}, 0')
    for u, S in ((0, SA), (1, SB)):
        for i in range(8): a(f'v_max3_f32 v{NM+16*u}, v{S+2*i}, v{S+2*i+1}, v{NM+16*u}')
    a('s_add_u32 s32, s32, 1024')
    a('s_cmp_lt_u32 s32, 0x10000')
    a(f's_cbranch_scc1 {l1}')
    for u in range(2):
        m = NM + 16*u
        a(f'v_mov_b32 v{m+1}, v{m}')
        a(f'v_permlane32_swap_b32 v{m}, v{m+1}')
        a(f'v_max_f32 v{m}, v{m}, v{m+1}')
        a(f'v_sub_f32 v{m}, 0, v{m}')
        for i in range(1, 16): a(f'v_mov_b32 v{m+i}, v{m}')
    for i in range(32): a(f'v_mov_b32 v{O+i}, 0')
    a('v_and_b32 v10, 27, v4')
    a('v_cmp_eq_u32 vcc, 16, v10')
    a('v_mov_b32 v10, 0x3f803f80')
    for i in range(8): a(f'v_cndmask_b32 v{VB+i}, 0, v10, vcc')
    a('v_lshlrev_b32 v10, 8, v5')
    a('v_lshl_add_u32 v10, v6, 4, v10')
    a('s_mov_b32 s32, 0')
    a('s_mov_b32 s34, 0xffff\ns_mov_b32 s35, 0xffff')
    l2 = L('fb2')
    a.label(l2)
    a('s_add_u32 s33, s30, s32')
    a(f'buffer_load_dwordx4 {vr(KB+4,4)}, v3, s[8:11], s33 offen sc1')
    a('s_add_u32 s33, s31, s32')
    a('s_mov_b64 exec, s[34:35]')
    a(f'buffer_load_dwordx4 {vr(VB,4)}, v10, s[8:11], s33 offen sc1')
    a(f'buffer_load_dwordx4 {vr(VB+4,4)}, v10, s[8:11], s33 offen offset:512 sc1')
    a('s_mov_b64 exec, -1')
    a('s_waitcnt vmcnt(0)')
    for u, S in ((0, SA), (1, SB)):
        a(f'v_mfma_f32_32x32x16_bf16 {vr(S,16)}, {vr(KB+4,4)}, {vr(Q+4*u,4)}, {vr(NM+16*u,16)}')
    for u, S in ((0, SA), (1, SB)):
        for i in range(16): a(f'v_exp_f32 v{S+i}, v{S+i}')
        for j in range(8): a(f'v_cvt_pk_bf16_f32 v{P+j}, v{S+2*j}, v{S+2*j+1}')
        for f in range(2):
            a(f'v_mfma_f32_32x32x16_bf16 {vr(O+16*u,16)}, {vr(VB+4*f,4)}, {vr(P+4*f,4)}, {vr(O+16*u,16)}')
        a('s_nop 15')
    a('s_add_u32 s32, s32, 1024')
    a('s_cmp_lt_u32 s32, 0x10000')
    a(f's_cbranch_scc1 {l2}')
    a('s_nop 15')
    a(f's_branch {FBR}')
    a.label(END)
    a('s_endpgm')
    return a, LDS_SIZE
```

```python
from asmlib import *
from layout import *
import struct
def f2u(x): return struct.unpack('<I', struct.pack('<f', x))[0]
def H(x): return hex(f2u(x))

LDS_SIZE = 160 * 1024
XL = 0; WL = 65536; WSLOT = 24576; NSLOT = 3
CSUM = WL + NSLOT * WSLOT
RST = CSUM + 1024
RING = 0; CONST = 32768; WA = 36864; WB = 102400
PREP = 143360
W2L = 0; NW2L = 7; W1X = 28672; CS1 = 32768; C3L = 33024
W3L = WB; PKA = 0; PKB = WB + 24576; NONL = RST + 512
XT = WA
RED = 0

GELU_C0 = -2.0 * 0.7978845608028654 * 1.4426950408889634
GELU_C1 = GELU_C0 * 0.044715

S_WAVE, S_X, S_I, S_RB, S_CT, S_R16 = 20, 21, 22, 23, 24, 25
P_X, P_WQKV, P_WO, P_W1, P_W2, P_W3, P_W4, P_OUT, P_DBG, P_WS = 36, 38, 40, 44, 46, 48, 50, 52, 54, 56
S_NON = 58; S_SPIN = 60; S_MODE = 61; S_C1 = 62; S_ONE = 64
S_QKV, S_HD, S_RHO, S_Q, S_SLAB, S_M2 = 66, 67, 68, 69, 70, 71
S_U = 72
S_GB = 3; S_J = 4; S_W4 = 5; S_A = 6; S_B = 7; S_C0 = 42
W3 = 128; W4 = 144

def gen_mega(name='mega_kernel', diag=False, force_safe=False, force_fallback=False, sel=None, opt=''):
    a = Asm()
    T = Stamper(a, 76, diag); a.T = T; T.sel = sel; T.rt = ('rt' in opt.split(','))
    uid = [0]
    def L(s): uid[0] += 1; return f'L_{s}{uid[0]}'
    def srd(base, p, size):
        a(f's_mov_b32 s{base}, s{p}\ns_mov_b32 s{base+1}, s{p+1}\ns_mov_b32 s{base+2}, {hex(size)}\ns_mov_b32 s{base+3}, 0x20000')
    END = f'{name}_end'
    KVNT = 'nt ' if 'kvnt' in opt else ''

    a(f'.globl {name}\n.p2align 8\n.type {name},@function')
    a.label(name)
    a(f's_cmp_ge_u32 s2, 256\ns_cbranch_scc1 {END}')
    a('s_load_dwordx16 s[36:51], s[0:1], 0')
    a('s_load_dwordx4 s[52:55], s[0:1], 64')
    a('s_load_dwordx2 s[56:57], s[0:1], 80')
    a('v_lshrrev_b32 v1, 6, v0')
    a('v_and_b32 v2, 63, v0')
    a(f'v_readfirstlane_b32 s{S_WAVE}, v1')
    a(f's_and_b32 s{S_X}, s2, 7')
    a(f's_lshr_b32 s{S_I}, s2, 3')
    a(f's_lshr_b32 s{S_RB}, s{S_I}, 3')
    a(f's_and_b32 s{S_CT}, s{S_I}, 7')
    a(f's_and_b32 s{S_Q}, s{S_WAVE}, 3')
    if diag:
        for i in range(24): a(f's_mov_b32 s{76+i}, 0')
        T.stamp('start_rt', True); T.stamp('start')
    CW1 = L('cw1')
    a(f's_cmp_lt_u32 s{S_WAVE}, 4')
    a(f's_cbranch_scc1 {CW1}')

    def common_consts():
        a('v_lshlrev_b32 v3, 4, v2')
        a('v_and_b32 v4, 31, v2')
        a('v_lshrrev_b32 v5, 5, v2')
        a('v_and_b32 v6, 15, v2')
        a('v_lshrrev_b32 v7, 4, v2')
        a('v_bfe_u32 v8, v2, 2, 2')
        a('v_and_b32 v9, 3, v2')
        a('v_lshlrev_b32 v1, 3, v2')
        a(f's_lshl_b32 s{S_R16}, s{S_RB}, 2')
        a(f's_add_u32 s{S_SLAB}, s{S_R16}, s{S_Q}')
        a(f's_lshl_b32 s{S_GB}, s{S_X}, 21')
        a(f's_add_u32 s{S_GB}, s{S_GB}, {GB}')
        a(f's_mul_i32 s{S_QKV}, s{S_X}, {QKVG}')
        a(f's_lshl_b32 s{S_HD}, s{S_RB}, 16')
        a(f's_add_u32 s{S_HD}, s{S_HD}, s{S_QKV}')
        a(f's_cmp_gt_u32 s{S_WAVE}, 3')
        a(f's_subb_u32 s{S_J}, s{S_WAVE}, 0')
        a(f's_mul_i32 s{S_W4}, s{S_CT}, 229376')
        a(f's_mul_i32 s26, s{S_WAVE}, 28672')
        a(f's_add_u32 s{S_W4}, s{S_W4}, s26')
        a(f's_add_u32 s{S_W4}, s{S_W4}, {W4F}')
        a(f's_mov_b32 s{S_C1}, {H(GELU_C1)}\ns_mov_b32 s{S_C1+1}, {H(GELU_C1)}')
        a(f's_mov_b32 s{S_ONE}, 1.0\ns_mov_b32 s{S_ONE+1}, 1.0')

    def get_nonce(sleep=0):
        lp, done = L('non'), L('nond')
        srd(16, P_DBG, 256)
        a(f's_mov_b32 s{S_SPIN}, 0')
        a.label(lp)
        if sleep: a(f's_sleep {sleep}')
        a('buffer_load_dwordx2 v[10:11], off, s[16:19], 0 sc1')
        a(f's_add_u32 s{S_SPIN}, s{S_SPIN}, 1')
        a('s_waitcnt vmcnt(0)')
        a(f'v_readfirstlane_b32 s{S_NON}, v10')
        a(f'v_readfirstlane_b32 s{S_NON+1}, v11')
        a(f's_cmp_gt_u32 s{S_SPIN}, 0x20000')
        a(f's_cbranch_scc1 {done}')
        a(f's_cmp_eq_u32 s{S_NON}, 0')
        a(f's_cbranch_scc1 {lp}')
        a.label(done)
        a.vm = []

    def get_nonce_s(sleep=0):
        lp, done = L('non'), L('nond')
        a(f's_mov_b32 s{S_SPIN}, 0')
        a.label(lp)
        if sleep: a(f's_sleep {sleep}')
        a(f's_load_dwordx2 s[{S_NON}:{S_NON+1}], s[{P_DBG}:{P_DBG+1}], 0 glc')
        a(f's_add_u32 s{S_SPIN}, s{S_SPIN}, 1')
        a(f's_cmp_gt_u32 s{S_SPIN}, 0x20000')
        a('s_waitcnt lgkmcnt(0)')
        a(f's_cbranch_scc1 {done}')
        a(f's_cmp_eq_u32 s{S_NON}, 0')
        a(f's_cbranch_scc1 {lp}')
        a.label(done)

    def poll(voff, soff, execmask=None, sleep=0):
        lp, done = L('poll'), L('polld')
        if execmask: a(f's_mov_b64 exec, {execmask}')
        a(f's_mov_b32 s{S_SPIN}, 0')
        a.label(lp)
        if sleep: a(f's_sleep {sleep}')
        a(f'buffer_load_dwordx2 v[10:11], {voff}, s[8:11], {soff} offen sc1')
        a(f's_add_u32 s{S_SPIN}, s{S_SPIN}, 1')
        a(f's_cmp_gt_u32 s{S_SPIN}, 0x20000')
        a('s_waitcnt vmcnt(0)')
        a(f's_cbranch_scc1 {done}')
        a(f'v_cmp_ne_u64 vcc, {sr(S_NON,2)}, v[10:11]')
        a(f's_cbranch_vccnz {lp}')
        a.label(done)
        if execmask: a('s_mov_b64 exec, -1')
        a.vm = []

    def st2(lines, mode=S_MODE):
        sk, dn = L('sf'), L('sd')
        a(f's_cmp_eq_u32 s{mode}, 0')
        a(f's_cbranch_scc1 {sk}')
        for l in lines: a(l)
        a.label(dn)
        a.cold.append((sk, [l + ' sc1' if l.startswith('buffer_store') else l for l in lines], dn))
        a.vm += ['st'] * sum(l.startswith('buffer_store') for l in lines)
    a.cold = []

    def flag_lines(soff):
        return ['s_mov_b64 exec, 1', f'buffer_store_dwordx2 v[10:11], off, s[8:11], {soff}', 's_mov_b64 exec, -1']
    def flag_prep():
        a(f'v_mov_b32 v10, s{S_NON}\nv_mov_b32 v11, s{S_NON+1}')
    def flag_sc1(soff):
        flag_prep()
        for l in flag_lines(soff): a(l + (' sc1' if l.startswith('buffer') else ''))
        a.vm.append('fl')

    def xcc_load(vreg, vt):
        a(f's_lshl_b32 s26, s{S_X}, 12')
        a(f's_add_u32 s26, s26, {F_XCC}')
        a(f'v_lshlrev_b32 v{vt}, 7, v4')
        a(f'buffer_load_dwordx2 {vr(vreg,2)}, v{vt}, s[8:11], s26 offen sc1')
    def calc_mode(vreg):
        a('s_getreg_b32 s34, hwreg(HW_REG_XCC_ID)')
        a('s_and_b32 s34, s34, 15')
        a(f's_or_b32 s34, s34, s{S_NON}')
        a(f's_mov_b32 s35, s{S_NON+1}')
        a(f'v_cmp_ne_u64 vcc, s[34:35], {vr(vreg,2)}')
        a('s_cmp_eq_u64 vcc, 0')
        a(f's_cselect_b32 s{S_MODE}, 1, 0')
        a(f's_cmp_eq_u32 s{S_NON}, 0')
        a(f's_cselect_b32 s{S_MODE}, 0, s{S_MODE}')
        if force_safe: a(f's_mov_b32 s{S_MODE}, 0')
    def xcc_publish(v0, v1):
        a('s_getreg_b32 s27, hwreg(HW_REG_XCC_ID)')
        a('s_and_b32 s27, s27, 15')
        a(f's_or_b32 s27, s27, s{S_NON}')
        a(f'v_mov_b32 v{v0}, s27\nv_mov_b32 v{v1}, s{S_NON+1}')
        a(f's_lshl_b32 s26, s{S_X}, 12')
        a(f's_lshl_b32 s27, s{S_I}, 7')
        a('s_add_u32 s26, s26, s27')
        a(f's_add_u32 s26, s26, {F_XCC}')
        a('s_mov_b64 exec, 1')
        a(f'buffer_store_dwordx2 v[{v0}:{v1}], off, s[8:11], s26 sc1')
        a('s_mov_b64 exec, -1')

    def unit_decode(su):
        l3, l4, dn = L('u3'), L('u4'), L('ud')
        a('s_mov_b32 s15, 0x20000')
        a(f's_cmp_ge_u32 s{su}, 832\ns_cbranch_scc1 {l4}')
        a(f's_cmp_ge_u32 s{su}, 384\ns_cbranch_scc1 {l3}')
        a(f's_lshr_b32 s32, s{su}, 7')
        a(f's_bfe_u32 s33, s{su}, 0x40003')
        a(f's_and_b32 s34, s{su}, 7')
        a('s_lshl_b32 s27, s33, 15')
        a('s_lshl_b32 s35, s34, 7')
        a('s_add_u32 s27, s27, s35')
        a('s_lshl_b32 s28, s32, 19')
        a('s_lshl_b32 s35, s34, 16')
        a('s_add_u32 s28, s28, s35')
        a('s_lshl_b32 s35, s33, 12')
        a('s_add_u32 s28, s28, s35')
        a(f's_add_u32 s28, s28, {WOF}')
        a('s_min_u32 s26, s32, 1')
        a('s_cmp_eq_u32 s32, 1')
        a(f's_cselect_b64 s[12:13], s[{P_W1}:{P_W1+1}], s[{P_W2}:{P_W2+1}]')
        a('s_cmp_eq_u32 s32, 0')
        a(f's_cselect_b64 s[12:13], s[{P_WO}:{P_WO+1}], s[12:13]')
        a('s_mov_b32 s14, 0x80000')
        a(f's_branch {dn}')
        a.label(l3)
        a(f's_sub_u32 s32, s{su}, 384')
        a('s_mul_hi_u32 s33, s32, 0x0924924a')
        a('s_mul_i32 s34, s33, 28')
        a('s_sub_u32 s34, s32, s34')
        a(f's_mul_i32 s27, s33, {32*3584}')
        a('s_lshl_b32 s35, s34, 7')
        a('s_add_u32 s27, s27, s35')
        a('s_lshl_b32 s28, s34, 16')
        a('s_lshl_b32 s35, s33, 11')
        a('s_add_u32 s28, s28, s35')
        a(f's_add_u32 s28, s28, {W3F}')
        a('s_mov_b32 s26, 2')
        a(f's_mov_b64 s[12:13], s[{P_W3}:{P_W3+1}]')
        a('s_mov_b32 s14, 0x1c0000')
        a(f's_branch {dn}')
        a.label(l4)
        a(f's_sub_u32 s32, s{su}, 832')
        a('s_lshr_b32 s33, s32, 3')
        a('s_and_b32 s34, s32, 7')
        a('s_lshl_b32 s27, s33, 15')
        a('s_lshl_b32 s35, s34, 7')
        a('s_add_u32 s27, s27, s35')
        a('s_mul_i32 s28, s34, 229376')
        a('s_lshl_b32 s35, s33, 12')
        a('s_add_u32 s28, s28, s35')
        a(f's_add_u32 s28, s28, {W4F}')
        a('s_mov_b32 s26, 3')
        a(f's_mov_b64 s[12:13], s[{P_W4}:{P_W4+1}]')
        a('s_mov_b32 s14, 0x1c0000')
        a.label(dn)

    VX, VWQ = 12, 13
    a('s_setprio 3')
    a('v_lshrrev_b32 v3, 3, v2')
    a(f's_lshl_b32 s27, s{S_Q}, 3')
    a('v_add_u32 v6, s27, v3')
    a('v_lshrrev_b32 v4, 4, v2')
    a(f's_and_b32 s27, s{S_Q}, 1')
    a('s_lshl_b32 s27, s27, 2')
    a('v_add_u32 v4, s27, v4')
    a('v_and_b32 v5, 7, v2')
    a('v_xor_b32 v4, v4, v5')
    a('v_lshlrev_b32 v4, 4, v4')
    a(f'v_lshl_add_u32 v{VX}, v6, 10, v4')
    a('v_bfe_u32 v4, v3, 1, 1')
    a('v_lshlrev_b32 v4, 2, v4')
    a('v_bfe_u32 v7, v3, 2, 1')
    a('v_lshl_add_u32 v4, v7, 1, v4')
    a('v_xor_b32 v4, v4, v5')
    a('v_lshlrev_b32 v55, 4, v4')
    a('s_movk_i32 s27, 0xc00')
    a(f'v_mad_u32_u24 v{VWQ}, v6, s27, v55')
    a(f's_lshl_b32 s28, s{S_I}, 16')
    a(f's_lshl_b32 s29, s{S_Q}, 10')
    a(f's_lshl_b32 s31, s{S_X}, 7')
    a('s_mov_b32 s18, 0x200000\ns_mov_b32 s19, 0x20000\ns_mov_b32 s14, 0x180000\ns_mov_b32 s15, 0x20000')
    a('s_waitcnt lgkmcnt(0)')
    a(f's_mov_b64 s[16:17], s[{P_X}:{P_X+1}]')
    a(f's_mov_b64 s[12:13], s[{P_WQKV}:{P_WQKV+1}]')
    T.stamp('p1.h_iss', slot=20)
    def issx(c):
        a(f's_add_u32 s33, s{S_CT}, {c}')
        a('s_and_b32 s33, s33, 7')
        a('s_lshl_b32 s34, s33, 7')
        a('s_add_u32 s34, s34, s28')
        for j in range(2):
            a(f's_add_u32 m0, s29, {XL + c*8192 + j*4096}')
            if j: a('s_add_u32 s34, s34, 32768')
            a.vissue(f'buffer_load_dwordx4 v{VX}, s[16:19], s34 offen lds', ('x', c))
    def issw(c):
        a(f's_add_u32 s33, s{S_CT}, {c}')
        a('s_and_b32 s33, s33, 7')
        a('s_mul_i32 s35, s33, 196608')
        a('s_add_u32 s35, s35, s31')
        for j in range(2):
            for sec in range(3):
                a(f's_add_u32 m0, s29, {WL + (c % NSLOT)*WSLOT + sec*8192 + j*4096}')
                a(f's_add_u32 s34, s35, {j*32*3072 + sec*1024}')
                a.vissue(f'buffer_load_dwordx4 v{VWQ}, s[12:15], s34 offen lds', ('w', c))
    issx(0); issw(0); issx(1); issx(2); issx(3)
    common_consts()
    srd(8, P_WS, WS_USED)
    AWH, AXH, CSA, SXH, SQH, ONES, WFH, XFH = 14, 17, 20, 32, 36, 18, 64, 88
    a('v_and_b32 v10, 1, v7')
    a('v_lshrrev_b32 v11, 1, v8')
    a('v_lshl_add_u32 v11, v11, 1, v10')
    a('v_lshl_add_u32 v10, v7, 2, v8')
    a('v_lshlrev_b32 v10, 7, v10')
    a('v_lshl_add_u32 v10, v9, 3, v10')
    for j in range(3):
        a(f's_mul_i32 s26, s{S_Q}, 3')
        a(f's_add_u32 s26, s26, {j}')
        a('s_and_b32 s27, s26, 3')
        a('s_lshr_b32 s26, s26, 2')
        a('s_lshl_b32 s26, s26, 13')
        a(f's_add_u32 s26, s26, {WL}')
        a('v_xor_b32 v40, s27, v11')
        a('v_lshl_add_u32 v40, v40, 5, v10')
        a(f'v_add_u32 v{AWH+j}, s26, v40')
    a(f's_lshl_b32 s26, s{S_Q}, 11')
    a('v_lshlrev_b32 v10, 7, v6')
    a('v_bfe_u32 v11, v6, 1, 3')
    a('v_xor_b32 v11, v11, v7')
    a('v_lshl_add_u32 v10, v11, 4, v10')
    a(f'v_add_u32 v{AXH}, s26, v10')
    a(f'v_xor_b32 v41, 64, v{AXH}')
    a(f'v_mov_b32 v{ONES}, 0x3f803f80\nv_mov_b32 v{ONES+1}, 0x3f803f80')
    PA16, PA32, PROW, PUN = 44, 52, 54, 55
    a('v_and_b32 v10, 1, v7')
    a('v_lshrrev_b32 v11, 1, v8')
    a('v_lshl_add_u32 v11, v11, 1, v10')
    a('v_lshl_add_u32 v56, v10, 2, v8')
    a('v_lshrrev_b32 v57, 1, v7')
    a('v_lshl_add_u32 v58, v57, 4, v56')
    a('v_lshl_add_u32 v59, v57, 3, v56')
    for ti, kreg in enumerate((58, 59)):
        for nt in range(4):
            a(f'v_xor_b32 v60, {nt}, v11')
            a('v_lshlrev_b32 v60, 5, v60')
            a('v_lshl_add_u32 v60, v9, 3, v60')
            a(f'v_lshl_add_u32 v{PA16+4*ti+nt}, v{kreg}, 7, v60')
    a('v_lshrrev_b32 v11, 1, v8')
    a('v_lshl_add_u32 v11, v11, 1, v5')
    a('v_lshl_add_u32 v56, v5, 2, v8')
    a('v_lshlrev_b32 v56, 7, v56')
    a('v_lshl_add_u32 v56, v9, 3, v56')
    for nt in range(2):
        a(f'v_add_u32 v60, {2*nt}, v10')
        a('v_xor_b32 v60, v60, v11')
        a(f'v_lshl_add_u32 v{PA32+nt}, v60, 5, v56')
    a(f'v_lshrrev_b32 v{PROW}, 3, v2')
    a('v_cmp_eq_u32 s[42:43], 1, v9')
    a('v_cmp_eq_u32 s[6:7], 2, v9')
    def unit_idx(k):
        a(f's_mul_i32 s{S_U}, s2, 5')
        a(f's_add_u32 s{S_U}, s{S_U}, {k}')
        unit_decode(S_U)
    def stride_sel():
        a('s_cmp_eq_u32 s26, 2')
        a('s_movk_i32 s32, 0x400')
        a('s_cselect_b32 s32, 0xe00, s32')
        a(f'v_mad_u32_u24 v60, v{PROW}, s32, v{PUN}')
        a('s_lshl_b32 s32, s32, 3')
    def prep_loads():
        unit_idx(f's{S_Q}')
        stride_sel()
        a(f's_lshl_b32 s35, s{S_Q}, 12')
        for p in range(4):
            a(f's_add_u32 m0, s35, {PREP + p*1024}')
            if p: a('s_add_u32 s27, s27, s32')
            a.vissue('buffer_load_dwordx4 v60, s[12:15], s27 offen lds', 'pl')
        unit_idx(4)
        stride_sel()
        a(f's_mul_i32 s32, s32, s{S_Q}')
        a('s_add_u32 s27, s27, s32')
        a(f's_add_u32 m0, s29, {PREP + 4*4096}')
        a.vissue('buffer_load_dwordx4 v60, s[12:15], s27 offen lds', 'pl')

    issw(1)
    for c in range(4, 8): issx(c)
    for c in range(8):
        a.vwait(('w', c))
        T.stamp(f'p1.h_w{c}', slot=2+2*c)
        a('s_barrier')
        T.stamp(f'p1.h_b{c}', slot=3+2*c)
        for j in range(3):
            for kk in range(4):
                a(f'ds_read_b64_tr_b16 {vr(WFH+8*j+2*kk,2)}, v{AWH+j} offset:{(c % NSLOT)*WSLOT + kk*2048}')
        a(f'ds_read_b128 {vr(XFH,4)}, v{AXH} offset:{XL + c*8192}')
        a(f'ds_read_b128 {vr(XFH+4,4)}, v41 offset:{XL + c*8192}')
        if c + 2 < 8: issw(c + 2)
        if c == 5: prep_loads()
        a('s_waitcnt lgkmcnt(0)')
        for kk in range(4):
            z = (c == 0 and kk == 0)
            for j in range(3):
                a(f'v_mfma_f32_4x4x4_16b_bf16 {vr(CSA+4*j,4)}, {vr(ONES,2)}, {vr(WFH+8*j+2*kk,2)}, {"0" if z else vr(CSA+4*j,4)}')
            a(f'v_mfma_f32_4x4x4_16b_bf16 {vr(SXH,4)}, {vr(ONES,2)}, {vr(XFH+2*kk,2)}, {"0" if z else vr(SXH,4)}')
            a(f'v_mfma_f32_4x4x4_16b_bf16 {vr(SQH,4)}, {vr(XFH+2*kk,2)}, {vr(XFH+2*kk,2)}, {"0" if z else vr(SQH,4)}')
    a('v_cmp_eq_u32 vcc, 3, v9')
    a(f's_mul_i32 s26, s{S_Q}, 192')
    a(f's_add_u32 s26, s26, {CSUM}')
    a('v_lshl_add_u32 v10, v6, 2, s26')
    a(f's_lshl_b32 s26, s{S_Q}, 6')
    a(f's_add_u32 s26, s26, {RST}')
    a('v_lshl_add_u32 v11, v6, 2, s26')
    a(f'v_cndmask_b32 v{SQH}, v{SQH}, v{SQH+1}, s[42:43]')
    a(f'v_cndmask_b32 v{SQH}, v{SQH}, v{SQH+2}, s[6:7]')
    a(f'v_cndmask_b32 v{SQH}, v{SQH}, v{SQH+3}, vcc')
    red = [CSA, CSA+4, CSA+8, SXH, SQH]
    for sw in ('v_permlane16_swap_b32', 'v_permlane32_swap_b32'):
        for r in red: a(f'v_mov_b32 v{r+1}, v{r}')
        for r in red: a(f'{sw} v{r}, v{r+1}')
        for r in red: a(f'v_add_f32 v{r}, v{r}, v{r+1}')
    for j in range(3): a(f'ds_write_b32 v10, v{CSA+4*j} offset:{64*j}')
    a(f'v_mul_f32 v{SXH}, {H(-1/512)}, v{SXH}')
    a(f'v_mul_f32 v{SQH}, {H(1/512)}, v{SQH}')
    a(f'v_fma_f32 v{SQH}, -v{SXH}, v{SXH}, v{SQH}')
    a(f'v_max_f32 v{SQH}, 0, v{SQH}')
    a(f'v_add_f32 v{SQH}, {H(1e-5)}, v{SQH}')
    a(f'v_rsq_f32 v{SQH}, v{SQH}')
    a(f'v_mul_f32 v{SXH}, v{SXH}, v{SQH}')
    a(f'ds_write_b32 v11, v{SQH} offset:256')
    a(f'ds_write_b32 v11, v{SXH}')
    a('s_waitcnt lgkmcnt(0)')
    a('s_barrier')
    a('s_setprio 0')
    T.stamp('h_p1done', slot=2)
    a('v_and_b32 v10, 23, v2')
    a('v_cmp_eq_u32 vcc, 0, v10')
    a('v_mov_b32 v10, 0x3f803f80')
    a('v_cndmask_b32 v20, 0, v10, vcc')
    a('v_mov_b32 v21, v20\nv_mov_b32 v22, v20\nv_mov_b32 v23, v20')
    a('v_add_u32 v16, s29, v3')
    a(f's_add_u32 s{S_A}, s{S_HD}, s29')
    a(f's_add_u32 s{S_A}, s{S_A}, 0x40000')
    a(f's_add_u32 s27, s{S_GB}, {G_FQ}')
    a('s_mov_b32 s30, -1\ns_mov_b32 s31, 0')
    a(f'v_mov_b32 v12, {NONL}')
    a('s_barrier')
    a('ds_read_b64 v[14:15], v12')
    a(f'ds_write_b128 v16, v[20:23] offset:{CONST}')
    a('s_waitcnt lgkmcnt(1)')
    a(f'v_readfirstlane_b32 s{S_NON}, v14')
    a(f'v_readfirstlane_b32 s{S_NON+1}, v15')
    poll('v1', 's27', 's[30:31]')
    T.stamp('h_kvflag', slot=3)
    def kv_issue(c):
        a(f's_add_u32 m0, s29, {RING + (c & 3)*8192}')
        a(f's_add_u32 s30, s{S_A}, {c*4096}')
        a.vissue(f'buffer_load_dwordx4 v3, s[8:11], s30 offen sc1 {KVNT}lds', ('kv', c))
        a(f's_add_u32 m0, s29, {RING + (c & 3)*8192 + 4096}')
        a(f's_add_u32 s30, s{S_A}, {c*4096 + 0x40000}')
        a.vissue(f'buffer_load_dwordx4 v3, s[8:11], s30 offen sc1 {KVNT}lds', ('kv', c))
    kv_issue(0); kv_issue(1)
    def prep_convert(k, record):
        unit_idx(k)
        if isinstance(k, int): a(f's_mov_b32 s32, {PREP + k*4096}')
        else:
            a(f's_lshl_b32 s32, {k}, 12')
            a(f's_add_u32 s32, s32, {PREP}')
        k1, k2, k3, dn = L('k1'), L('k2'), L('k3'), L('kd')
        F = 64
        a(f's_cmp_eq_u32 s26, 1\ns_cbranch_scc1 {k1}')
        a(f's_cmp_eq_u32 s26, 2\ns_cbranch_scc1 {k2}')
        a(f's_cmp_eq_u32 s26, 3\ns_cbranch_scc1 {k3}')
        for kind, lab in ((0, None), (1, k1)):
            if lab: a.label(lab)
            for nt in range(4): a(f'v_add_u32 v{60+nt}, s32, v{PA16+4*kind+nt}')
            for nt in range(4):
                for sec in range(2):
                    a(f'ds_read_b64_tr_b16 {vr(F+4*nt+2*sec,2)}, v{60+nt} offset:{sec*(1024 if kind==0 else 2048)}')
            a('s_add_u32 s35, s28, 2048')
            a(f's_branch {dn}')
        a.label(k2)
        for nt in range(2): a(f'v_add_u32 v{60+nt}, s32, v{PA32+nt}')
        for nt in range(2):
            for kk in range(2):
                for sec in range(2):
                    a(f'ds_read_b64_tr_b16 {vr(F+8*nt+4*kk+2*sec,2)}, v{60+nt} offset:{(8*kk+16*sec)*128}')
        a('s_add_u32 s35, s28, 32768')
        a('s_mul_i32 s33, s33, 7168')
        a('s_lshl_b32 s34, s34, 8')
        a('s_add_u32 s33, s33, s34')
        a(f's_add_u32 s33, s33, {C3P}')
        a('v_lshlrev_b32 v62, 2, v2')
        a('s_waitcnt lgkmcnt(0)')
        for i in range(4):
            for nt in range(2):
                c_ = '0' if i == 0 else vr(80+4*nt,4)
                a(f'v_mfma_f32_4x4x4_16b_bf16 {vr(80+4*nt,4)}, {vr(ONES,2)}, {vr(F+8*nt+2*i,2)}, {c_}')
        a('v_permlane32_swap_b32 v80, v84')
        a('v_add_f32 v80, v80, v84')
        a('buffer_store_dword v80, v62, s[8:11], s33 offen sc1')
        a(f's_branch {dn}')
        a.label(k3)
        for nt in range(2): a(f'v_add_u32 v{60+nt}, s32, v{PA32+nt}')
        for kk in range(2):
            for nt in range(2):
                for sec in range(2):
                    a(f'ds_read_b64_tr_b16 {vr(F+8*kk+4*nt+2*sec,2)}, v{60+nt} offset:{(16*kk+8*sec)*128}')
        a('s_add_u32 s35, s28, 2048')
        a.label(dn)
        a('s_waitcnt lgkmcnt(0)')
        iss = (lambda t: a.vissue(t, 'pp')) if record else a
        iss(f'buffer_store_dwordx4 {vr(F,4)}, v3, s[8:11], s28 offen sc1')
        iss(f'buffer_store_dwordx4 {vr(F+4,4)}, v3, s[8:11], s28 offen offset:1024 sc1')
        iss(f'buffer_store_dwordx4 {vr(F+8,4)}, v3, s[8:11], s35 offen sc1')
        iss(f'buffer_store_dwordx4 {vr(F+12,4)}, v3, s[8:11], s35 offen offset:1024 sc1')

    HW2, HW1, HW3 = 24, 88, 92
    C3R = [116, 120, 124, 20]
    w3g = lambda g: [('w3', i) for i in range(8*g, 8*g+8)]
    flat = w3g(1) + [('c3', k) for k in range(4)] + [('wo', i) for i in range(16)] + w3g(2) + \
           [('w1', i) for i in range(15)] + [('r', HW1, W1F + 15*4096)] + w3g(3) + \
           [('r', HW2 + 4*i, W2F + i*4096) for i in range(16)] + w3g(0) + [('l3', t, f) for t in range(3) for f in range(2)]
    groups = [flat[12*i:12*i+12] for i in range(8)]
    strips = [(75, 8192), (74, WOF), (75, 2*8192), (74, W1F), (75, 3*8192), (74, W2F), (75, 0)]
    def job_setup():
        a(f's_lshl_b32 s31, s{S_CT}, 16')
        a('s_add_u32 s31, s31, s29')
        a(f's_mul_i32 s33, s{S_CT}, {7*32768}')
        a(f's_lshl_b32 s{S_B}, s{S_J}, 15')
        a(f's_add_u32 s{S_B}, s{S_B}, s33')
        a(f's_add_u32 s{S_B}, s{S_B}, {W3F}')
        a('s_add_u32 s33, s33, s29')
        a(f's_mul_i32 s32, s{S_CT}, 896')
        a(f's_mul_i32 s30, s{S_Q}, {4*7168}')
        a('s_add_u32 s32, s32, s30')
        a(f's_and_b32 s26, s{S_Q}, 1')
        a('s_lshl_b32 s26, s26, 2')
        a(f's_add_u32 s26, s26, s{S_RB}')
        a('s_lshl_b32 s74, s26, 13')
        a(f's_lshl_b32 s27, s{S_CT}, 16')
        a('s_add_u32 s74, s74, s27')
        a(f's_mul_i32 s75, s{S_CT}, 7')
        a('s_add_u32 s75, s75, s26')
        a('s_lshl_b32 s75, s75, 15')
        a(f's_add_u32 s75, s75, {W3F}')
        a(f's_mul_i32 s27, s{S_CT}, 229376')
        a(f's_add_u32 s27, s27, {W4F + 3*28672 - 4096}')
        a('s_cmp_eq_u32 s26, 7')
        a('s_cselect_b32 s75, s27, s75')
    def dma(lds, src):
        a(f's_add_u32 m0, s29, {lds}')
        a(f's_add_u32 s30, s31, {src}')
        a.vissue('buffer_load_dwordx4 v3, s[8:11], s30 offen sc1 lds', 'pf')
    def ldr(reg, sbase, off, imm=0):
        a(f's_add_u32 s30, s{sbase}, {off}')
        a.vissue(f'buffer_load_dwordx4 {vr(reg,4)}, v3, s[8:11], s30 offen offset:{imm} sc1', 'pf')
    def job(j):
        kind = j[0]
        if kind == 'w3': ldr(W3+4*j[1], S_B, (j[1] >> 2)*4096, (j[1] & 3)*1024)
        elif kind == 'wo': dma(WA + j[1]*4096, WOF + j[1]*4096)
        elif kind == 'w1': dma(WB + j[1]*4096, W1F + j[1]*4096)
        elif kind == 'r': ldr(j[1], 31, j[2])
        elif kind == 'l3': ldr(HW3 + 8*j[1] + 4*j[2], 33, W3F + j[1]*32768 + j[2]*4096)
        elif kind == 'c3': ldr(C3R[j[1]], 32, C3P + j[1]*7168)
    NJ = 9
    for c in range(16):
        if c == 3: a.vwait_all()
        else: a.vwait(('kv', c), 'lgkmcnt(0)' if c == 0 else '')
        a('s_barrier')
        if c >= 2 and c + 2 < 16: kv_issue(c + 2)
        if c == 0:
            kv_issue(2); kv_issue(3)
            prep_convert(f's{S_Q}', True)
        if c == 1:
            sk = L('u4')
            a(f's_cmp_lg_u32 s{S_Q}, 3\ns_cbranch_scc1 {sk}')
            prep_convert(4, False)
            a.label(sk)
        if c == 3:
            sk = L('pf')
            a(f's_cmp_lg_u32 s{S_Q}, 1\ns_cbranch_scc1 {sk}')
            a('s_lshl_b32 s26, s2, 7')
            a(f's_add_u32 s26, s26, {F_PREP}')
            keep = list(a.vm); flag_sc1('s26'); a.vm = keep
            srd(16, P_OUT, 0x200000)
            a('v_lshlrev_b32 v12, 21, v2')
            a(f's_mov_b32 s26, {GB + G_FHX}')
            a('s_mov_b64 exec, 0xff')
            a('buffer_load_dword v13, v12, s[8:11], s26 offen')
            a('buffer_load_dword v13, off, s[16:19], 0')
            a('s_mov_b64 exec, -1')
            a.label(sk)
            xcc_load(14, 12); a.vm.append('xc')
            job_setup()
            a('v_lshlrev_b32 v12, 7, v2')
            a(f's_lshl_b32 s28, s{S_R16}, 14')
            a(f's_lshl_b32 s27, s{S_CT}, 11')
            a('s_add_u32 s28, s28, s27')
            a(f's_lshl_b32 s27, s{S_Q}, 18')
            a('s_add_u32 s28, s28, s27')
            a(f's_add_u32 s28, s28, {G_H}')
            a(f's_mul_i32 s27, s{S_I}, 1408')
            a(f's_add_u32 s27, s27, {G_ST1}')
            a(f's_cmp_eq_u32 s{S_Q}, 3')
            a('s_cselect_b32 s28, s27, s28')
            a('s_cselect_b32 s27, 0, 0x4000')
            a(f's_add_u32 s28, s28, s{S_GB}')
            a('v_lshlrev_b32 v17, 7, v6')
            a('v_mad_u32_u24 v17, v7, s27, v17')
        if c == 5:
            a(f's_lshl_b32 s26, s{S_Q}, 13')
            a(f's_add_u32 s26, s26, {F_PREP}')
            poll('v12', 's26', None, sleep=2)
            calc_mode(14)
        if 6 <= c < 13 and 'nojobs' not in opt and 'nostrip' not in opt:
            sk = L('st')
            a(f's_bitcmp{1 if (c & 1) == 0 else 0}_b32 s{S_Q}, 1\ns_cbranch_scc1 {sk}')
            a(f's_add_u32 s26, s{strips[c-6][0]}, {strips[c-6][1]}')
            a('buffer_load_dword v13, v12, s[8:11], s26 offen sc1')
            a.label(sk)
        if 8 <= c < 16 and 'nojobs' not in opt and 'nohj' not in opt:
            for j in groups[c-8]:
                if 'nodma' in opt and j[0] in ('wo', 'w1'): continue
                if 'onlydma' in opt and j[0] not in ('wo', 'w1'): continue
                job(j)
                if 'pace' in opt: a('s_sleep 1')
        if c == 13 and 'nowarm2' not in opt:
            a.vissue('buffer_load_dword v13, v17, s[8:11], s28 offen sc1', 'pf')
    a.vwait_all()
    a('v_add_u32 v12, s29, v3')
    a(f'v_add_u32 v13, {WB}, v12')
    a(f'v_add_u32 v14, {WA}, v12')
    a(f's_mul_i32 s26, s{S_Q}, 896')
    a('v_add_u32 v15, s26, v3')
    a('s_barrier')
    T.stamp('h_attn_end', slot=4)
    a(f'ds_write_b128 v12, {vr(HW1,4)} offset:{W1X}')
    for i in range(NW2L): a(f'ds_write_b128 v12, {vr(HW2+4*i,4)} offset:{W2L + i*4096}')
    for k in range(1, 4):
        for i in range(2): a(f'v_pk_add_f32 {vr(C3R[0]+2*i,2)}, {vr(C3R[0]+2*i,2)}, {vr(C3R[k]+2*i,2)}')
    a('s_mov_b32 exec_hi, 0xffffff')
    a(f'ds_write_b128 v15, {vr(C3R[0],4)} offset:{C3L}')
    a('s_mov_b32 exec_hi, -1')
    for i in range(4): a(f'v_mov_b32 v{20+i}, 0x3f803f80')
    a(f'v_mfma_f32_16x16x32_bf16 v[16:19], {vr(HW1,4)}, v[20:23], 0')
    a('s_waitcnt lgkmcnt(0)')
    for bt in range(3):
        for k in range(5): a(f'ds_read_b128 {vr(HW2+4*k,4)}, v13 offset:{(5*bt+k)*4096}')
        for k in range(5):
            a(f's_waitcnt lgkmcnt({4-k})')
            a(f'v_mfma_f32_16x16x32_bf16 v[16:19], {vr(HW2+4*k,4)}, v[20:23], v[16:19]')
    a(f's_lshl_b32 s26, s{S_Q}, 6')
    a(f's_add_u32 s26, s26, {CS1}')
    a('v_lshl_add_u32 v10, v7, 4, s26')
    a('ds_write_b128 v10, v[16:19]')
    a('s_waitcnt lgkmcnt(0)')
    a('s_barrier')
    sk = L('c3w')
    a(f's_cmp_lg_u32 s{S_Q}, 3\ns_cbranch_scc1 {sk}')
    for k in range(4): a(f'ds_read_b128 {vr(HW2+4*k,4)}, v3 offset:{C3L + 896*k}')
    a('s_waitcnt lgkmcnt(0)')
    for k in range(1, 4):
        for i in range(2): a(f'v_pk_add_f32 {vr(HW2+2*i,2)}, {vr(HW2+2*i,2)}, {vr(HW2+4*k+2*i,2)}')
    a(f'ds_write_b128 v3, {vr(HW2,4)} offset:{C3L}')
    a.label(sk)
    a('s_barrier')
    for i in range(NW2L, 16): a(f'ds_write_b128 v14, {vr(HW2+4*i,4)} offset:{i*4096}')
    a('s_waitcnt lgkmcnt(0)')
    a('s_barrier')
    for t in range(3):
        for f in range(2): a(f'ds_write_b128 v13, {vr(HW3+8*t+4*f,4)} offset:{t*8192 + f*4096}')
    a('s_waitcnt lgkmcnt(0)')
    a('s_barrier')
    a(f's_lshl_b32 s28, s{S_R16}, 6')
    a(f's_lshl_b32 s27, s{S_Q}, 5')
    a('s_add_u32 s28, s28, s27')
    a(f's_add_u32 s28, s28, s{S_GB}')
    a(f's_add_u32 s28, s28, {G_FX1}')
    a(f's_lshl_b32 s26, s{S_R16}, 14')
    a(f's_lshl_b32 s27, s{S_Q}, 13')
    a('s_add_u32 s26, s26, s27')
    a(f's_add_u32 s26, s26, s{S_GB}')
    a(f's_add_u32 s26, s26, {G_X1}')
    a('s_mov_b32 s30, 0xf000f\ns_mov_b32 s31, 0')
    poll('v1', 's28', 's[30:31]')
    for mt in range(2):
        for hf in range(2):
            a(f's_add_u32 m0, s27, {XT + mt*32768 + hf*4096}')
            a(f's_add_u32 s30, s26, {mt*32768 + hf*4096}')
            for i in range(4):
                a(f'buffer_load_dwordx4 v3, s[8:11], s30 offen offset:{i*1024} sc1 lds')
    HJOIN = L('hjoin')
    a(f's_branch {HJOIN}')

    a.label(CW1)
    a.vm = []
    sk = L('cp')
    a(f's_cmp_lg_u32 s{S_WAVE}, 1\ns_cbranch_scc1 {sk}')
    a('s_getpc_b64 s[26:27]')
    a.label(f'{name}_pc')
    a(f's_sub_u32 s26, s26, {name}_pc-{name}')
    a('s_subb_u32 s27, s27, 0')
    a(f's_lshl_b32 s28, s{S_I}, 11')
    a('v_lshl_add_u32 v10, v2, 7, s28')
    a(f'v_min_u32 v10, {name}_end-{name}, v10')
    a('s_mov_b64 exec, 0xffff')
    a('global_load_dword v255, v10, s[26:27]')
    a('s_mov_b64 exec, -1')
    a.label(sk)
    common_consts()
    ACC = 16; FR = [64, 80, 96]; AX = 112; AW = 116
    a(f's_lshr_b32 s30, s{S_Q}, 1')
    a(f's_and_b32 s31, s{S_Q}, 1')
    a('s_lshl_b32 s27, s30, 5')
    a('v_add_u32 v10, s27, v4')
    a('v_lshlrev_b32 v10, 7, v10')
    a('v_bfe_u32 v11, v4, 1, 3')
    for ks in range(4):
        a(f'v_add_u32 v12, {2*ks}, v5')
        a('v_xor_b32 v12, v12, v11')
        a(f'v_lshl_add_u32 v{AX+ks}, v12, 4, v10')
    a('v_lshl_add_u32 v10, v5, 3, v8')
    a('v_lshlrev_b32 v10, 7, v10')
    a('v_lshl_add_u32 v10, v9, 3, v10')
    a('v_and_b32 v11, 1, v7')
    a('s_lshl_b32 s27, s31, 1')
    a('v_add_u32 v11, s27, v11')
    a('v_and_b32 v12, 2, v8')
    a('v_xor_b32 v11, v11, v12')
    a(f'v_lshl_add_u32 v{AW}, v11, 5, v10')
    a(f'v_add_u32 v{AW}, {WL}, v{AW}')
    a(f'v_xor_b32 v{AW+1}, 32, v{AW}')
    a(f'v_add_u32 v{AW+1}, 512, v{AW+1}')
    a(f'v_add_u32 v{AW+2}, {2*WSLOT}, v{AW}')
    a(f'v_add_u32 v{AW+3}, {2*WSLOT}, v{AW+1}')
    a('s_waitcnt lgkmcnt(0)')
    srd(16, P_DBG, 256)
    srd(8, P_WS, WS_USED)
    sk = L('nc')
    a(f's_or_b32 s27, s2, s{S_WAVE}')
    a(f's_cmp_lg_u32 s27, 0\ns_cbranch_scc1 {sk}')
    a('s_memrealtime s[26:27]')
    a('s_waitcnt lgkmcnt(0)')
    a('s_lshl_b64 s[26:27], s[26:27], 5')
    a('s_or_b32 s26, s26, 16')
    a('v_mov_b32 v12, s26\nv_mov_b32 v13, s27')
    a('s_mov_b64 exec, 1')
    a('buffer_store_dwordx2 v[12:13], off, s[16:19], 0 sc1')
    a('s_mov_b64 exec, -1')
    a.label(sk)
    EA = 120
    a('s_lshl_b32 s27, s31, 7')
    a(f's_add_u32 s27, s27, {CSUM}')
    a(f'v_lshl_add_u32 v{EA}, v5, 4, s27')
    a(f'v_lshl_add_u32 v{EA+1}, v4, 2, s27')
    a('s_lshl_b32 s27, s30, 7')
    a(f's_add_u32 s27, s27, {RST}')
    a(f'v_lshl_add_u32 v{EA+2}, v4, 2, s27')
    a(f'v_lshl_add_u32 v{EA+3}, v5, 4, s27')
    a('v_lshrrev_b32 v10, 4, v4')
    a('v_lshlrev_b32 v10, 16, v10')
    a('v_lshl_add_u32 v10, v5, 8, v10')
    a(f'v_lshl_add_u32 v{EA+4}, v6, 4, v10')
    a(f's_lshl_b32 s26, s{S_I}, 1')
    a('s_add_u32 s26, s26, s30')
    a('s_lshl_b32 s26, s26, 10')
    a('s_lshl_b32 s27, s31, 17')
    a('s_add_u32 s26, s26, s27')
    a(f's_add_u32 s{S_A}, s26, s{S_QKV}')
    a(f'v_lshlrev_b32 v{EA+5}, 18, v7')
    a('v_bfe_u32 v10, v2, 3, 1')
    a(f'v_lshl_add_u32 v{EA+5}, v10, 16, v{EA+5}')
    a('v_and_b32 v10, 7, v2')
    a(f'v_lshl_add_u32 v{EA+5}, v10, 7, v{EA+5}')
    sk = L('xc')
    a(f's_cmp_lg_u32 s{S_WAVE}, 0\ns_cbranch_scc1 {sk}')
    a(f's_add_u32 s26, s{S_GB}, {G_FQ}')
    a('buffer_load_dword v254, v1, s[8:11], s26 offen sc1')
    a.label(sk)
    def rd_list(n):
        c, ks = n >> 2, n & 3; b = FR[n % 3]
        slot = c % NSLOT
        l = [f'ds_read_b128 {vr(b,4)}, v{AX+ks} offset:{XL + c*8192}']
        for j in range(3):
            for sec in range(2):
                l.append(f'ds_read_b64_tr_b16 {vr(b+4+4*j+2*sec,2)}, v{AW+sec+(2 if slot == 2 else 0)} offset:{(slot&1)*WSLOT + j*8192 + ks*2048}')
        return l
    T.stamp('p1.c_pre')
    a('s_barrier')
    T.stamp('c_b0'); T.stamp('p1.c_b0')
    for l in rd_list(0): a(l)
    for l in rd_list(1): a(l)
    CV = 128; RV = 160; SC = 192
    for n in range(32):
        c, ks = n >> 2, n & 3
        b = FR[n % 3]
        z = lambda r, k: '0' if n == 0 else vr(r, k)
        if ks == 2:
            a('s_waitcnt lgkmcnt(0)')
            T.stamp(f'p1.c_w{c+1}')
            a('s_barrier')
            T.stamp(f'p1.c_b{c+1}')
        elif n < 31:
            a('s_waitcnt lgkmcnt(7)')
        rl = rd_list(n + 2) if n + 2 < 32 else []
        if n == 30:
            rl = [f'ds_read_b32 v{SC}, v{EA+2}', f'ds_read_b32 v{SC+1}, v{EA+2} offset:256', f'ds_read_b32 v{SC+2}, v{EA+1} offset:512'] + \
                 [f'ds_read_b128 {vr(CV+16*j+4*q,4)}, v{EA} offset:{256*j+32*q}' for j in range(2) for q in range(4)]
        if n == 31:
            rl = [f'ds_read_b128 {vr(RV+16*j+4*q,4)}, v{EA+3} offset:{256*j+32*q}' for j in range(2) for q in range(4)]
        if n == 13:
            a('s_mov_b64 exec, 0xffffffffffff' if False else 's_mov_b32 exec_hi, 0xffff')
            a(f'buffer_load_dword v253, v{EA+5}, s[8:11], s{S_A} offen sc1')
            a('s_mov_b32 exec_hi, -1')
        if n == 8: a('buffer_load_dwordx2 v[14:15], off, s[16:19], 0 sc1')
        if n == 12:
            a('s_waitcnt vmcnt(0)')
            a(f'v_readfirstlane_b32 s{S_NON}, v14')
            a(f'v_readfirstlane_b32 s{S_NON+1}, v15')
            sk = L('xp')
            a(f's_cmp_lg_u32 s{S_WAVE}, 0\ns_cbranch_scc1 {sk}')
            xcc_publish(14, 15)
            a.label(sk)
        if n == 28: xcc_load(12, 10)
        k = (len(rl) + 2) // 3
        a(f'v_mfma_f32_32x32x16_bf16 {vr(ACC,16)}, {vr(b+4,4)}, {vr(b,4)}, {z(ACC,16)}')
        for l in rl[0:k]: a(l)
        a(f'v_mfma_f32_32x32x16_bf16 {vr(ACC+16,16)}, {vr(b+8,4)}, {vr(b,4)}, {z(ACC+16,16)}')
        for l in rl[k:2*k]: a(l)
        a(f'v_mfma_f32_32x32x16_bf16 {vr(ACC+32,16)}, {vr(b,4)}, {vr(b+12,4)}, {z(ACC+32,16)}')
        for l in rl[2*k:]: a(l)
    T.stamp('c_gemm')
    a('s_waitcnt vmcnt(0) lgkmcnt(8)')
    a(f'v_mul_f32 v{SC+4}, {H(QSCALE)}, v{SC}')
    a(f'v_mul_f32 v{SC+5}, {H(QSCALE)}, v{SC+1}')
    calc_mode(12)
    PK = 200
    lines = []
    for j in range(2):
        sc = SC + 4 if j == 0 else SC
        for p in range(8):
            lines.append(f'v_pk_mul_f32 {vr(CV+16*j+2*p,2)}, {vr(CV+16*j+2*p,2)}, {vr(sc,2)} op_sel_hi:[1,0]')
        for o in range(2):
            for p in range(4*o, 4*o+4):
                A_ = ACC+16*j+2*p
                lines.append(f'v_pk_fma_f32 {vr(A_,2)}, {vr(A_,2)}, {vr(sc,2)}, {vr(CV+16*j+2*p,2)} op_sel:[0,1,0]')
            for p in range(4*o, 4*o+4):
                A_ = ACC+16*j+2*p
                lines.append(f'v_cvt_pk_bf16_f32 v{PK+8*j+p}, v{A_}, v{A_+1}')
            lines.append(f's_add_u32 s26, s{S_A}, {j*0x40000 + o*0x10000}')
            lines.append(f'buffer_store_dwordx4 {vr(PK+8*j+4*o,4)}, v3, s[8:11], s26 offen')
    lines.append('s_waitcnt lgkmcnt(0)')
    lines.append(f's_add_u32 s26, s{S_A}, 0x80000')
    for p in range(8):
        lines.append(f'v_pk_mul_f32 {vr(RV+2*p,2)}, {vr(RV+2*p,2)}, {vr(SC+2,2)} op_sel_hi:[1,0]')
    for o in range(2):
        for p in range(4*o, 4*o+4):
            A_ = ACC+32+2*p
            lines.append(f'v_pk_fma_f32 {vr(A_,2)}, {vr(A_,2)}, {vr(RV+16+2*p,2)}, {vr(RV+2*p,2)}')
        for p in range(4*o, 4*o+4):
            A_ = ACC+32+2*p
            lines.append(f'v_cvt_pk_bf16_f32 v{PK+16+p}, v{A_}, v{A_+1}')
        lines.append(f'buffer_store_dwordx4 {vr(PK+16+4*o,4)}, v{EA+4}, s[8:11], s26 offen offset:{512*o}')
    st2(lines)
    T.stamp('p1.c_st')

    Q, SA, SB, O, P, KB, VB, AV = 12, 20, 36, 52, 84, 92, 100, 116
    XR = 120
    a('v_lshlrev_b32 v10, 8, v5')
    a('v_lshl_add_u32 v10, v6, 4, v10')
    a('v_and_b32 v11, 11, v6')
    a('v_cmp_eq_u32 vcc, 0, v11')
    a(f'v_mov_b32 v11, {CONST + 16}')
    a(f'v_mov_b32 v{SA}, {CONST}')
    a(f'v_cndmask_b32 v11, v11, v{SA}, vcc')
    a(f'v_add_u32 v{SA}, 4, v6')
    a(f'v_and_b32 v{SA}, 8, v{SA}')
    a(f'v_lshl_add_u32 v11, v{SA}, 4, v11')
    a('v_cmp_gt_u32 vcc, 16, v4')
    for s in range(4):
        a(f'v_add_u32 v{SA}, {RING + s*8192 + 4096}, v10')
        a(f'v_cndmask_b32 v{AV+s}, v11, v{SA}, vcc')
    a(f's_lshl_b32 s28, s{S_CT}, 13')
    a(f's_lshl_b32 s27, s{S_Q}, 11')
    a('s_add_u32 s28, s28, s27')
    a(f's_add_u32 s{S_U}, s28, s{S_HD}')
    a(f's_mul_i32 s{S_B}, s{S_CT}, 7')
    a(f's_add_u32 s{S_B}, s{S_B}, s{S_Q}')
    a(f's_lshl_b32 s{S_B}, s{S_B}, 15')
    a(f's_add_u32 s{S_B}, s{S_B}, {W3F}')
    a(f's_sub_u32 s33, s{S_W4}, 4096')
    a(f's_cmp_eq_u32 s{S_Q}, 3')
    a(f's_cselect_b32 s{S_B}, s33, s{S_B}')
    sk = L('gn')
    a(f's_cmp_lg_u32 s{S_NON}, 0\ns_cbranch_scc1 {sk}')
    get_nonce()
    xcc_publish(10, 11)
    a.label(sk)
    flag_prep()
    a(f'v_mov_b32 v{SA}, {NONL}')
    a(f'ds_write_b64 v{SA}, v[10:11]')
    a(f's_lshl_b32 s26, s{S_I}, 3')
    a(f's_add_u32 s26, s26, s{S_GB}')
    a(f's_add_u32 s26, s26, {G_FQ}')
    a('s_waitcnt vmcnt(0) lgkmcnt(0)')
    a('s_barrier')
    sk = L('qf')
    a(f's_cmp_lg_u32 s{S_WAVE}, 0\ns_cbranch_scc1 {sk}')
    st2(flag_lines('s26'))
    a.label(sk)
    T.stamp('c_pub')
    srd(16, P_X, 0x200000)
    a(f's_lshl_b32 s33, s{S_X}, 4')
    a(f's_add_u32 s33, s33, s{S_SLAB}')
    a('s_lshl_b32 s33, s33, 14')
    a(f's_lshl_b32 s27, s{S_CT}, 7')
    a('s_add_u32 s33, s33, s27')
    a('v_lshlrev_b32 v128, 10, v6')
    a('v_lshl_add_u32 v128, v7, 3, v128')
    def rdK(t): a(f'ds_read_b128 {vr(KB+4*(t&1),4)}, v3 offset:{RING + ((t>>2)&3)*8192 + (t&3)*1024}')
    def rdV(t, f): a(f'ds_read_b128 {vr(VB+8*(t&1)+4*f,4)}, v{AV+((t>>2)&3)} offset:{(t&3)*1024+f*512}')
    def mfS(n):
        S = SA if (n & 1) == 0 else SB
        if 'noqk' in opt and n > 1: return
        a(f'v_mfma_f32_32x32x16_bf16 {vr(S,16)}, {vr(KB+4*((n>>1)&1),4)}, {vr(Q+4*(n&1),4)}, 0')
    def mfO(n, f):
        Ou = O + 16*(n & 1)
        if 'nopv' in opt and n > 1: return
        if 'pv16' in opt:
            a(f'v_mfma_f32_16x16x32_bf16 {vr(Ou+8,4)}, {vr(VB+8*((n>>1)&1)+4*f,4)}, {vr(P+4*f,4)}, {"0" if n < 2 and f == 0 else vr(Ou+8,4)}')
            return
        c_ = '0' if (n < 2 and f == 0) else vr(Ou,16)
        a(f'v_mfma_f32_32x32x16_bf16 {vr(Ou,16)}, {vr(VB+8*((n>>1)&1)+4*f,4)}, {vr(P+4*f,4)}, {c_}')
    a(f's_lshl_b32 s26, s{S_CT}, 5')
    a(f's_lshl_b32 s27, s{S_Q}, 3')
    a('s_add_u32 s26, s26, s27')
    a(f's_add_u32 s26, s26, s{S_GB}')
    a(f's_add_u32 s26, s26, {G_FQ}')
    poll('v1', 's26', '1')
    a(f'buffer_load_dwordx4 {vr(Q,4)}, v3, s[8:11], s{S_U} offen sc1')
    a(f'buffer_load_dwordx4 {vr(Q+4,4)}, v3, s[8:11], s{S_U} offen offset:1024 sc1')
    a('s_waitcnt vmcnt(0)')
    a('s_barrier')
    T.stamp('c_kv0'); T.stamp('att.c0'); T.stamp('att.r0', True)
    rdK(0); rdK(1); rdV(0, 0); rdV(0, 1)
    a('s_waitcnt lgkmcnt(3)')
    mfS(0)
    NS = 128
    cjobs = list(range(8, 32))
    for n in range(NS):
        t = n >> 1
        S = SA if (n & 1) == 0 else SB
        ex = lambda i: a(f'v_exp_f32 v{(132+i) if "noqk" in opt else (S+i)}, v{S+i}')
        cv = lambda j: a(f'v_cvt_pk_bf16_f32 v{P+j}, v{S+2*j}, v{S+2*j+1}')
        even = (n & 1) == 0
        if even:
            a('s_waitcnt lgkmcnt(0)')
            if (t + 2) % 4 == 0 and (t + 2) // 4 < 16: a('s_barrier')
        if n + 1 < NS: mfS(n + 1)
        ex(0); ex(1)
        if even and t + 2 < 64: rdK(t + 2)
        if n in (33, 34, 41, 42):
            k = (33, 34, 41, 42).index(n)
            a(f'buffer_load_dwordx2 {vr(XR+2*k,2)}, v128, s[16:19], s33 offen offset:{32*k}')
        if n == 50: xcc_load(130, 129)
        if n >= 60 and ((n + 4) % 8) >= 5 and cjobs:
            i = cjobs.pop(0)
            if 'nojobs' in opt: pass
            if i % 4 == 0: a(f's_add_u32 s30, s{S_B}, {(i >> 2)*4096}')
            if 'nojobs' not in opt and 'nocj' not in opt: a(f'buffer_load_dwordx4 {vr(W3+4*i,4)}, v3, s[8:11], s30 offen offset:{(i&3)*1024} sc1')
        ex(2); cv(0); ex(3); ex(4); ex(5); cv(1)
        if n > 0: mfO(n - 1, 1)
        ex(6); ex(7)
        if even and t + 1 < 64: rdV(t + 1, 0)
        cv(2); ex(8); cv(3); ex(9)
        if even and t + 1 < 64: rdV(t + 1, 1)
        ex(10)
        mfO(n, 0)
        ex(11); cv(4); ex(12); ex(13); cv(5); ex(14); ex(15); cv(6); cv(7)
    assert not cjobs
    mfO(NS - 1, 1)
    T.stamp('c_attn_end'); T.stamp('att.c1'); T.stamp('att.r1', True)
    a('s_waitcnt vmcnt(0)')
    calc_mode(130)
    if 'slowsafe' in opt:
        sk = L('ss')
        a(f's_cmp_lg_u32 s{S_MODE}, 0\ns_cbranch_scc1 {sk}')
        for i in range(6): a('s_sleep 127')
        a.label(sk)
    a(f's_lshl_b32 s29, s{S_X}, 2')
    a(f's_add_u32 s29, s29, s{S_RB}')
    a(f's_lshl_b32 s26, s{S_CT}, 21')
    a(f's_lshl_b32 s27, s{S_Q}, 16')
    a('s_add_u32 s26, s26, s27')
    a('s_lshl_b32 s27, s29, 9')
    a('s_add_u32 s26, s26, s27')
    a(f's_add_u32 s26, s26, {GB + G_O}')
    a('s_add_u32 s27, s26, 32768')
    a(f's_lshl_b32 s28, s{S_CT}, 14')
    a(f's_lshl_b32 s30, s{S_Q}, 12')
    a('s_add_u32 s28, s28, s30')
    a('s_lshl_b32 s30, s29, 7')
    a('s_add_u32 s28, s28, s30')
    a(f's_add_u32 s28, s28, {F_O}')
    a(f'v_lshrrev_b32 v{KB}, 4, v4')
    a(f'v_lshlrev_b32 v{KB}, 14, v{KB}')
    a(f'v_lshl_add_u32 v{KB}, v5, 8, v{KB}')
    a(f'v_lshl_add_u32 v{KB}, v6, 4, v{KB}')
    FB, FBR = L('fb'), L('fbr')
    for u in range(2):
        Ou = O + 16*u
        a(f'v_max3_f32 v{SA+u}, |v{Ou}|, |v{Ou+1}|, |v{Ou+2}|')
        a(f'v_max3_f32 v{SA+u}, |v{Ou+3}|, |v{Ou+4}|, v{SA+u}')
        a(f'v_max3_f32 v{SA+u}, |v{Ou+5}|, |v{Ou+6}|, v{SA+u}')
    a(f'v_max3_f32 v{SA}, |v{O+7}|, |v{O+23}|, v{SA}')
    a(f'v_max_f32 v{SA}, v{SA}, v{SA+1}')
    a(f'v_mul_f32 v{SA}, {H(2.0**-60)}, v{SA}')
    a(f'v_max3_f32 v{SA}, v{O+8}, v{O+24}, v{SA}')
    a(f'v_min_f32 v{SA+1}, v{O+8}, v{O+24}')
    a(f'v_cmp_nle_f32 vcc, v{SA}, v{SA+2}' if False else f'v_mov_b32 v{SA+2}, {H(2.0**60)}')
    a(f'v_cmp_nle_f32 vcc, v{SA}, v{SA+2}')
    a(f'v_cmp_u_f32 s[30:31], v{O+8}, v{O+24}')
    a(f'v_cmp_ngt_f32 s[32:33], v{SA+1}, v{SA+3}' if False else f'v_mov_b32 v{SA+3}, {H(2.0**-60)}')
    a(f'v_cmp_ngt_f32 s[32:33], v{SA+1}, v{SA+3}')
    a('s_or_b64 vcc, vcc, s[30:31]')
    a('s_or_b64 vcc, vcc, s[32:33]')
    if force_fallback: a('s_mov_b64 vcc, -1')
    if 'nofb' in opt: a('s_mov_b64 vcc, 0')
    a(f's_cbranch_vccnz {FB}')
    a.label(FBR)
    for u in range(2):
        Ou = O + 16*u
        a(f'v_rcp_f32 v{SA+u}, v{Ou+8}')
    flag_prep()
    for u in range(2):
        Ou = O + 16*u
        for p in range(4): a(f'v_pk_mul_f32 {vr(Ou+2*p,2)}, {vr(Ou+2*p,2)}, {vr(SA,2)} ' + ('op_sel_hi:[1,0]' if u == 0 else 'op_sel:[0,1]'))
        for j in range(4): a(f'v_cvt_pk_bf16_f32 v{P+4*u+j}, v{Ou+2*j}, v{Ou+2*j+1}')
    for l in [f'buffer_store_dwordx4 {vr(P,4)}, v{KB}, s[8:11], s26 offen', f'buffer_store_dwordx4 {vr(P+4,4)}, v{KB}, s[8:11], s27 offen',
         's_waitcnt vmcnt(0)'] + flag_lines('s28'): a(l + (' sc1' if l.startswith('buffer') else ''))
    a('s_barrier')
    T.stamp('c_pub0')

    GC0 = 12; AWA, AWB = 14, 15; HB = 16; MU, R1 = 24, 25; TMP = 26
    ACC = 32; ACT = 48; WF = 128; NWS = 2; CV = 112; LEAD = 6
    S_TA, S_SA, S_FA = 33, 34, 35
    a(f'v_add_u32 v{AWA}, {WA}, v3')
    a(f'v_add_u32 v{AWB}, {WB}, v3')
    def wread(ph, s, nt):
        b = WF + 16*(s % NWS) + 4*nt
        if ph == 2 and s == 15: return f'ds_read_b128 {vr(b,4)}, v3 offset:{W1X + nt*1024}'
        if ph == 3 and s < NW2L: return f'ds_read_b128 {vr(b,4)}, v3 offset:{W2L + s*4096 + nt*1024}'
        return f'ds_read_b128 {vr(b,4)}, v{AWB if ph == 2 else AWA} offset:{s*4096 + nt*1024}'
    def wpre(ph):
        for s in range(NWS):
            for nt in range(4): a(wread(ph, s, nt))
    def gemm64(ph, ld, fill=None, zero=False):
        T.stamp(f'g.p{ph}_go')
        for s in range(LEAD): ld(s)
        fill = list(fill or [])
        for s in range(16):
            b = WF + 16*(s % NWS)
            for nt in range(4):
                out = min(4*NWS - 1, 4*(16 - s) - nt - 1)
                if nt == 0:
                    a.vwait(('a', s), f'lgkmcnt({out})')
                    if s in (0, 8, 15): T.stamp(f'g.p{ph}_s{s}')
                else: a(f's_waitcnt lgkmcnt({out})')
                c_ = '0' if (s == 0 and zero) else vr(ACC+4*nt,4)
                a(f'v_mfma_f32_16x16x32_bf16 {vr(ACC+4*nt,4)}, {vr(b+4*nt,4)}, {vr(ACT+4*s,4)}, {c_}')
                if s + NWS < 16: a(wread(ph, s + NWS, nt))
                if nt == 1 and s + LEAD < 16: ld(s + LEAD)
                if s >= 4 and fill: a(fill.pop(0))
        assert not fill
    def ld_plain(s):
        if s and s % 4 == 0: a('s_add_u32 s29, s29, 4096')
        a.vissue(f'buffer_load_dwordx4 {vr(ACT+4*s,4)}, v3, s[8:11], s29 offen offset:{(s&3)*1024} sc1', ('a', s))
    def xsum_lines(r0, r1, t0, t1):
        l = []
        for sw in ('v_permlane16_swap_b32', 'v_permlane32_swap_b32'):
            l += [f'v_mov_b32 v{t0}, v{r0}', f'v_mov_b32 v{t1}, v{r1}', f'{sw} v{r0}, v{t0}', f'{sw} v{r1}, v{t1}',
                  f'v_add_f32 v{r0}, v{r0}, v{t0}', f'v_add_f32 v{r1}, v{r1}, v{t1}']
        return l
    def addrs(act, tile, stats, flag):
        a(f's_lshl_b32 s26, s{S_SLAB}, 14')
        a(f's_add_u32 s26, s26, s{S_GB}')
        if act is not None: a(f's_add_u32 s29, s26, {act}')
        a(f's_lshl_b32 s27, s{S_CT}, 11')
        a(f's_add_u32 s{S_TA}, s26, s27')
        a(f's_add_u32 s{S_TA}, s{S_TA}, {tile}')
        a(f's_lshl_b32 s27, s{S_CT}, 3')
        a(f's_add_u32 s27, s27, s{S_GB}')
        if stats is not None:
            a(f's_lshl_b32 s{S_SA}, s{S_SLAB}, 10')
            a(f's_add_u32 s{S_SA}, s{S_SA}, s27')
            a(f's_add_u32 s{S_SA}, s{S_SA}, {stats}')
        a(f's_lshl_b32 s{S_FA}, s{S_SLAB}, 6')
        a(f's_add_u32 s{S_FA}, s{S_FA}, s27')
        a(f's_add_u32 s{S_FA}, s{S_FA}, {flag}')
    def pack16(dst):
        for nt in range(4):
            a(f'v_cvt_pk_bf16_f32 v{dst+2*nt}, v{ACC+4*nt}, v{ACC+4*nt+1}')
            a(f'v_cvt_pk_bf16_f32 v{dst+2*nt+1}, v{ACC+4*nt+2}, v{ACC+4*nt+3}')
    def tile_st(src):
        return [f'buffer_store_dwordx4 {vr(src,4)}, v3, s[8:11], s{S_TA} offen', f'buffer_store_dwordx4 {vr(src+4,4)}, v3, s[8:11], s{S_TA} offen offset:1024']
    def stats_lines(t):
        l = [f'v_pk_add_f32 {vr(t,2)}, {vr(ACC,2)}, {vr(ACC+2,2)}', f'v_pk_mul_f32 {vr(t+2,2)}, {vr(ACC,2)}, {vr(ACC,2)}',
             f'v_pk_fma_f32 {vr(t+2,2)}, {vr(ACC+2,2)}, {vr(ACC+2,2)}, {vr(t+2,2)}']
        for p in range(2, 8):
            l += [f'v_pk_add_f32 {vr(t,2)}, {vr(t,2)}, {vr(ACC+2*p,2)}', f'v_pk_fma_f32 {vr(t+2,2)}, {vr(ACC+2*p,2)}, {vr(ACC+2*p,2)}, {vr(t+2,2)}']
        l += [f'v_add_f32 v{t}, v{t}, v{t+1}', f'v_add_f32 v{t+1}, v{t+2}, v{t+3}']
        l += xsum_lines(t, t+1, t+2, t+3)
        l += ['s_mov_b64 exec, 0xffff', f'buffer_store_dwordx2 {vr(t,2)}, v{TMP+5}, s[8:11], s{S_SA} offen']
        return l
    def gelu_pk(regs, tmp):
        n = len(regs)
        for i, r in enumerate(regs): a(f'v_pk_mul_f32 {vr(tmp+2*i,2)}, {vr(r,2)}, {vr(r,2)}')
        for i, r in enumerate(regs): a(f'v_pk_fma_f32 {vr(tmp+2*i,2)}, {vr(tmp+2*i,2)}, {sr(S_C1,2)}, {vr(GC0,2)}')
        for i, r in enumerate(regs): a(f'v_pk_mul_f32 {vr(tmp+2*i,2)}, {vr(tmp+2*i,2)}, {vr(r,2)}')
        for i in range(2*n): a(f'v_exp_f32 v{tmp+i}, v{tmp+i}')
        for i, r in enumerate(regs): a(f'v_pk_add_f32 {vr(tmp+2*i,2)}, {vr(tmp+2*i,2)}, {sr(S_ONE,2)}')
        for i in range(2*n): a(f'v_rcp_f32 v{tmp+i}, v{tmp+i}')
        for i, r in enumerate(regs): a(f'v_pk_mul_f32 {vr(r,2)}, {vr(r,2)}, {vr(tmp+2*i,2)}')

    wpre(1)
    for nt in range(4):
        for p in range(2):
            a(f'v_lshlrev_b32 v{ACC+4*nt+2*p}, 16, v{XR+2*nt+p}')
            a(f'v_and_b32 v{ACC+4*nt+2*p+1}, 0xffff0000, v{XR+2*nt+p}')
    addrs(G_O, G_H, G_ST1, G_FH)
    a(f'v_lshlrev_b32 v{TMP+5}, 6, v6')
    sk = L('of')
    a(f's_cmp_lg_u32 s{S_WAVE}, 0\ns_cbranch_scc1 {sk}')
    a(f's_lshl_b32 s28, s{S_X}, 14')
    a(f's_lshl_b32 s27, s{S_RB}, 12')
    a('s_add_u32 s28, s28, s27')
    a(f's_add_u32 s28, s28, {F_O}')
    a('s_mov_b32 s30, -1\ns_mov_b32 s31, 0')
    a(f'v_lshlrev_b32 v{TMP}, 7, v2')
    poll(f'v{TMP}', 's28', 's[30:31]', sleep=1)
    a.label(sk)
    a('s_barrier')
    a.vm = ['fl']
    T.stamp('p1_poll')
    gemm64(1, ld_plain)
    T.stamp('p1_gemm')
    flag_prep()
    pack16(HB)
    st2(tile_st(HB) + stats_lines(ACT) + ['s_waitcnt vmcnt(0)'] + flag_lines(f's{S_FA}'))
    a('s_barrier')
    T.stamp('pub1')
    wpre(2)
    a('v_lshlrev_b32 v10, 4, v7')
    for nt in range(4): a(f'ds_read_b128 {vr(CV+4*nt,4)}, v10 offset:{CS1 + 64*nt}')
    a(f'v_mov_b32 v{GC0}, {H(GELU_C0)}\nv_mov_b32 v{GC0+1}, {H(GELU_C0)}')
    addrs(G_H, G_HH, None, G_FHH)
    a(f's_lshl_b32 s28, s{S_SLAB}, 6')
    a(f's_add_u32 s28, s28, s{S_GB}')
    a(f's_add_u32 s28, s28, {G_FH}')
    a(f's_add_u32 s27, s{S_SLAB}, 1')
    a('s_and_b32 s27, s27, 14')
    a('s_cmp_eq_u32 s27, 0')
    a(f's_cselect_b32 s{S_M2}, 0, s{S_MODE}')
    a(f's_cselect_b32 s{S_U+1}, 1, 0')
    a(f's_cmp_eq_u32 s{S_SLAB}, 0')
    a(f's_mov_b32 s{S_U+2}, {0x200000 + G_FHX}')
    a(f's_cselect_b32 s{S_U+2}, {(G_FHX + 1024 - 0x200000) & 0xffffffff}, s{S_U+2}')
    a(f's_add_u32 s{S_U+2}, s{S_U+2}, s{S_GB}')
    a(f's_lshl_b32 s27, s{S_CT}, 7')
    a(f's_add_u32 s{S_U+2}, s{S_U+2}, s27')
    a(f's_lshl_b32 s27, s{S_X}, 4')
    a(f's_add_u32 s27, s27, s{S_SLAB}')
    a('s_add_u32 s27, s27, 1')
    a('s_and_b32 s27, s27, 126')
    a('s_cmp_eq_u32 s27, 0')
    a(f's_cselect_b32 s{S_U+1}, 0, s{S_U+1}')
    a(f'v_lshl_add_u32 v{TMP+4}, v7, 4, v{TMP+5}')
    a(f's_lshl_b32 s{S_SA}, s{S_SLAB}, 10')
    a(f's_add_u32 s{S_SA}, s{S_SA}, s{S_GB}')
    a(f's_add_u32 s{S_SA}, s{S_SA}, {G_ST1}')
    a('s_waitcnt lgkmcnt(0)')
    poll('v1', 's28', '0xff')
    T.stamp('p2_poll')
    a.vissue(f'buffer_load_dwordx4 {vr(TMP,4)}, v{TMP+4}, s[8:11], s{S_SA} offen sc1', 'st')
    fill = [f'v_add_f32 v{TMP}, v{TMP}, v{TMP+2}', f'v_add_f32 v{TMP+1}, v{TMP+1}, v{TMP+3}'] + xsum_lines(TMP, TMP+1, TMP+2, TMP+3) + [
        f'v_mul_f32 v{MU}, {H(-1/512)}, v{TMP}', f'v_mul_f32 v{TMP+1}, {H(1/512)}, v{TMP+1}',
        f'v_fma_f32 v{TMP+1}, -v{MU}, v{MU}, v{TMP+1}', f'v_max_f32 v{TMP+1}, 0, v{TMP+1}',
        f'v_add_f32 v{TMP+2}, {H(1e-5)}, v{TMP+1}', f'v_rsq_f32 v{R1}, v{TMP+2}', f'v_mul_f32 v{TMP+2}, v{R1}, v{R1}',
        f'v_fmaak_f32 v{TMP+2}, v{TMP+2}, v{TMP+1}, {H(1e-5)}', f'v_rsq_f32 v{TMP+2}, v{TMP+2}', f'v_mul_f32 v{TMP+2}, v{TMP+2}, v{R1}',
        f'v_mul_f32 v{TMP+3}, v{TMP+2}, v{MU}'] + [f'v_mul_f32 v{CV+i}, v{TMP+3}, v{CV+i}' for i in range(16)]
    gemm64(2, ld_plain, fill, zero=True)
    T.stamp('p2_gemm')
    flag_prep()
    for p in range(8): a(f'v_pk_fma_f32 {vr(ACC+2*p,2)}, {vr(ACC+2*p,2)}, {vr(TMP+2,2)}, {vr(CV+2*p,2)} op_sel_hi:[1,0,1]')
    gelu_pk([ACC+2*p for p in range(8)], ACT)
    pack16(ACT+16)
    st2(tile_st(ACT+16) + ['s_waitcnt vmcnt(0)'], S_M2)
    st2(flag_lines(f's{S_FA}'))
    sk = L('hx')
    a(f's_cmp_eq_u32 s{S_U+1}, 0\ns_cbranch_scc1 {sk}')
    for l in flag_lines(f's{S_U+2}'): a(l + (' sc1' if l.startswith('buffer') else ''))
    a.label(sk)
    a('s_barrier')
    T.stamp('pub2')
    wpre(3)
    for nt in range(4):
        for p in range(2):
            a(f'v_lshlrev_b32 v{ACC+4*nt+2*p}, 16, v{HB+2*nt+p}')
            a(f'v_and_b32 v{ACC+4*nt+2*p+1}, 0xffff0000, v{HB+2*nt+p}')
    for p in range(8): a(f'v_pk_add_f32 {vr(ACC+2*p,2)}, {vr(ACC+2*p,2)}, {vr(MU,2)} op_sel_hi:[1,0]')
    for p in range(8): a(f'v_pk_mul_f32 {vr(ACC+2*p,2)}, {vr(ACC+2*p,2)}, {vr(MU,2)} op_sel:[0,1]')
    addrs(None, G_X1, G_ST2, G_FX1)
    a(f's_lshl_b32 s27, s{S_X}, 4')
    a(f's_add_u32 s27, s27, s{S_SLAB}')
    a('s_mov_b32 s30, 0xccff33')
    a('s_cmp_eq_u32 s27, 0')
    a('s_cselect_b32 s30, 0xccff00, s30')
    a('s_cmp_eq_u32 s27, 127')
    a('s_cselect_b32 s30, 0x00ff33, s30')
    a('s_mov_b32 s31, 0')
    a('s_lshl_b32 s26, s27, 4')
    a(f's_lshl_b32 s28, s{S_SLAB}, 6')
    a(f's_add_u32 s28, s28, {G_FHH - 64}')
    a(f'v_add_u32 v{TMP+4}, s28, v1')
    a('v_lshrrev_b32 v10, 3, v2')
    a(f's_sub_u32 s27, s{S_SLAB}, 1')
    a('v_add_u32 v10, s27, v10')
    a('v_cmp_lt_u32 vcc, 15, v10')
    a('v_and_b32 v10, 7, v2')
    a('v_lshl_add_u32 v10, v7, 3, v10')
    a('v_lshlrev_b32 v10, 7, v10')
    a(f'v_add_u32 v10, {G_FHX}, v10')
    a(f'v_cndmask_b32 v{TMP+4}, v{TMP+4}, v10, vcc')
    for gi, d in enumerate((-1, 1, -2, 2)):
        a('v_add_u32 v10, s26, v6')
        a(f'v_add_u32 v10, {d}, v10')
        a('v_bfe_u32 v11, v10, 4, 4')
        a('v_lshlrev_b32 v11, 14, v11')
        a(f'v_lshrrev_b32 v{TMP}, 8, v10')
        a(f'v_lshl_add_u32 v11, v{TMP}, 21, v11')
        a(f'v_and_b32 v{TMP}, 15, v10')
        a(f'v_lshl_add_u32 v11, v{TMP}, 4, v11')
        a('v_lshl_add_u32 v11, v7, 8, v11')
        a('v_cmp_gt_u32 vcc, 0x800, v10')
        a(f'v_mov_b32 v{TMP}, 0x70000000')
        a(f'v_cndmask_b32 v{CV+gi}, v{TMP}, v11, vcc')
    poll(f'v{TMP+4}', f's{S_GB}', 's[30:31]')
    T.stamp('p3_poll')
    def ld_shift(s):
        if s % 4 == 0: a(f's_mov_b32 s29, {GB + G_HH + (s>>2)*4096}')
        a.vissue(f'buffer_load_dwordx4 {vr(ACT+4*s,4)}, v{CV+(s>>2)}, s[8:11], s29 offen offset:{(s&3)*1024} sc1', ('a', s))
    gemm64(3, ld_shift)
    a('s_barrier')
    T.stamp('p3_gemm')
    flag_prep()
    pack16(ACT+16)
    st2(tile_st(ACT+16) + stats_lines(ACT) + ['s_waitcnt vmcnt(0)'] + flag_lines(f's{S_FA}'))
    a(f's_lshl_b32 s26, s{S_Q}, 13')
    a(f'v_add_u32 v{AWB}, s26, v{AWB}')
    for i in range(8): a(f'ds_read_b128 {vr(W3+4*i,4)}, v{AWB} offset:{i*1024}')
    T.stamp('pub3')

    a.label(HJOIN)
    a.vm = []
    A4 = 24; C3 = 56; XF = 72; T4 = 88; PKO = 120
    korder = list(range(8, 32)) + list(range(8))
    a(f'v_mov_b32 v{GC0}, {H(GELU_C0)}\nv_mov_b32 v{GC0+1}, {H(GELU_C0)}')
    a('v_lshrrev_b32 v15, 4, v4')
    a('v_lshlrev_b32 v14, 14, v15')
    a('v_lshl_add_u32 v14, v5, 8, v14')
    a('v_lshl_add_u32 v14, v6, 4, v14')
    a(f'v_add_u32 v14, {XT}, v14')
    a('v_mul_u32_u24 v15, 0xe000, v15')
    a('v_lshl_add_u32 v15, v5, 8, v15')
    a('v_lshl_add_u32 v15, v6, 4, v15')
    a('v_lshlrev_b32 v16, 6, v4')
    a('v_lshl_add_u32 v16, v5, 5, v16')
    a(f's_lshl_b32 s26, s{S_J}, 7')
    a(f's_add_u32 s26, s26, {C3L}')
    a('v_lshl_add_u32 v17, v5, 4, s26')
    a(f's_lshl_b32 s26, s{S_J}, 12')
    a('v_add_u32 v18, s26, v3')
    a(f'v_add_u32 v19, {PKB}, v18')
    a(f's_lshl_b32 s28, s{S_R16}, 10')
    a(f's_add_u32 s28, s28, s{S_GB}')
    a(f's_add_u32 s28, s28, {G_ST2}')
    a(f's_mul_i32 s33, s{S_R16}, 57344')
    a(f's_add_u32 s33, s33, s{S_GB}')
    a(f's_add_u32 s33, s33, {G_H2}')
    a(f's_mul_i32 s26, s{S_CT}, 7168')
    a('s_add_u32 s26, s26, s33')
    a(f's_lshl_b32 s27, s{S_J}, 10')
    a('s_add_u32 s26, s26, s27')
    a(f's_add_u32 s27, s26, {2*57344}')
    a(f's_lshl_b32 s34, s{S_RB}, 9')
    a(f's_add_u32 s34, s34, s{S_GB}')
    a(f's_add_u32 s34, s34, {G_FH2}')
    a(f's_lshl_b32 s35, s{S_CT}, 6')
    a('s_add_u32 s35, s35, s34')
    a(f's_lshl_b32 s29, s{S_J}, 3')
    a('s_add_u32 s35, s35, s29')
    for q in range(4): a(f'ds_read_b128 {vr(C3+4*q,4)}, v17 offset:{32*q}')
    a('s_waitcnt vmcnt(8)')
    a('s_barrier')
    T.stamp('p4_go')
    h4, j4 = L('help'), L('join')
    a(f's_cmp_eq_u32 s{S_WAVE}, 3')
    a(f's_cbranch_scc1 {h4}')
    seq = [(mt, ks) for mt in range(2) for ks in korder]
    def rdX(i):
        mt, ks = seq[i]
        a(f'ds_read_b128 {vr(XF+4*(i&3),4)}, v14 offset:{mt*32768 + ks*512}')
    for i in range(3): rdX(i)
    for mt in range(2):
        a(f'buffer_load_dwordx4 {vr(T4+8*mt,4)}, v16, s[8:11], s28 offen offset:{2048*mt} sc1')
        a(f'buffer_load_dwordx4 {vr(T4+8*mt+4,4)}, v16, s[8:11], s28 offen offset:{2048*mt+16} sc1')
    def ldW4(f):
        a(f's_add_u32 s30, s{S_W4}, {(f >> 2)*4096}')
        a(f'buffer_load_dwordx4 {vr(W4+4*f,4)}, v3, s[8:11], s30 offen offset:{(f&3)*1024} sc1')
    def stat4(mt):
        b = T4 + 8*mt
        return [f'v_add_f32 v{b}, v{b}, v{b+2}', f'v_add_f32 v{b+1}, v{b+1}, v{b+3}', f'v_add_f32 v{b+4}, v{b+4}, v{b+6}', f'v_add_f32 v{b+5}, v{b+5}, v{b+7}',
                f'v_add_f32 v{b}, v{b}, v{b+4}', f'v_add_f32 v{b+1}, v{b+1}, v{b+5}', f'v_mov_b32 v{b+2}, v{b}', f'v_mov_b32 v{b+3}, v{b+1}',
                f'v_permlane32_swap_b32 v{b}, v{b+2}', f'v_permlane32_swap_b32 v{b+1}, v{b+3}',
                f'v_add_f32 v{b}, v{b}, v{b+2}', f'v_add_f32 v{b+1}, v{b+1}, v{b+3}',
                f'v_mul_f32 v{b}, {H(-1/512)}, v{b}', f'v_mul_f32 v{b+1}, {H(1/512)}, v{b+1}', f'v_fma_f32 v{b+1}, -v{b}, v{b}, v{b+1}',
                f'v_max_f32 v{b+1}, 0, v{b+1}', f'v_add_f32 v{b+1}, {H(1e-5)}, v{b+1}', f'v_rsq_f32 v{b+1}, v{b+1}']
    def epi_scalar(mt):
        b = T4 + 8*mt; A = A4 + 16*mt; t = T4 + 16
        l = []
        for g in range(4):
            R = [A+4*g+i for i in range(4)]; Tt = [t+4*(g&1)+i for i in range(4)]
            l += [f'v_fmac_f32 v{r}, v{b}, v{C3+4*g+i}' for i, r in enumerate(R)]
            l += [f'v_mul_f32 v{r}, v{b+1}, v{r}' for r in R]
            l += [f'v_mul_f32 v{x}, v{r}, v{r}' for x, r in zip(Tt, R)]
            l += [f'v_fma_f32 v{x}, v{x}, s{S_C1}, v{GC0}' for x in Tt]
            l += [f'v_mul_f32 v{x}, v{x}, v{r}' for x, r in zip(Tt, R)]
            l += [f'v_exp_f32 v{x}, v{x}' for x in Tt]
            l += [f'v_add_f32 v{x}, 1.0, v{x}' for x in Tt]
            l += [f'v_rcp_f32 v{x}, v{x}' for x in Tt]
            l += [f'v_mul_f32 v{r}, v{r}, v{x}' for x, r in zip(Tt, R)]
            l += [f'v_cvt_pk_bf16_f32 v{PKO+2*g}, v{R[0]}, v{R[1]}', f'v_cvt_pk_bf16_f32 v{PKO+2*g+1}, v{R[2]}, v{R[3]}']
        return l
    fill1 = stat4(0) + stat4(1)
    fill2 = epi_scalar(0)
    for i, (mt, ks) in enumerate(seq):
        if i == 20:
            a('s_waitcnt vmcnt(0)')
            a('s_barrier')
        if i + 3 < 64: rdX(i + 3)
        a(f's_waitcnt lgkmcnt({min(3, 63 - i)})')
        c_ = '0' if i % 32 == 0 else vr(A4+16*mt,16)
        a(f'v_mfma_f32_32x32x16_bf16 {vr(A4+16*mt,16)}, {vr(W3+4*ks,4)}, {vr(XF+4*(i&3),4)}, {c_}')
        if mt == 1 and 8 <= ks < 28: ldW4(ks - 4)
        if 20 <= i < 32:
            for l in fill1[:3]: a(l)
            fill1 = fill1[3:]
        if i >= 33:
            for l in fill2[:5]: a(l)
            fill2 = fill2[5:]
    assert not fill1 and not fill2
    T.stamp('p4_gemm')
    st2([f'buffer_store_dwordx4 {vr(PKO,4)}, v15, s[8:11], s26 offen', f'buffer_store_dwordx4 {vr(PKO+4,4)}, v15, s[8:11], s26 offen offset:512'])
    flag_prep()
    b = T4 + 8; A = A4 + 16
    for p in range(8): a(f'v_pk_fma_f32 {vr(A+2*p,2)}, {vr(C3+2*p,2)}, {vr(b,2)}, {vr(A+2*p,2)} op_sel_hi:[1,0,1]')
    for p in range(8): a(f'v_pk_mul_f32 {vr(A+2*p,2)}, {vr(A+2*p,2)}, {vr(b,2)} op_sel:[0,1]')
    gelu_pk([A+2*p for p in range(8)], T4+16)
    for p in range(8): a(f'v_cvt_pk_bf16_f32 v{XF+p}, v{A+2*p}, v{A+2*p+1}')
    st2([f'buffer_store_dwordx4 {vr(XF,4)}, v15, s[8:11], s27 offen', f'buffer_store_dwordx4 {vr(XF+4,4)}, v15, s[8:11], s27 offen offset:512',
         's_waitcnt vmcnt(0)'] + flag_lines('s35'))
    a(f's_branch {j4}')
    a.label(h4)
    a('s_waitcnt lgkmcnt(0)')
    a('s_barrier')
    a(f's_mul_i32 s30, s{S_CT}, 7168')
    a('s_add_u32 s30, s30, s33')
    a('v_lshlrev_b32 v10, 7, v2')
    a('s_mov_b32 exec_hi, 0xffffff')
    for sl in range(4):
        a('buffer_load_dword v11, v10, s[8:11], s30 offen sc1')
        a('s_add_u32 s30, s30, 57344')
    a('s_mov_b32 exec_hi, -1')
    for f in range(4): ldW4(f)
    a(f's_mul_i32 s31, s{S_CT}, 229376')
    for j in range(7):
        v = j if j < 3 else j + 1
        for (lds, f0) in ((PKA, 24), (PKB, 0)):
            a(f's_mov_b32 m0, {lds + j*4096}')
            a(f's_add_u32 s30, s31, {W4F + v*28672 + f0*1024}')
            for i in range(4): a(f'buffer_load_dwordx4 v3, s[8:11], s30 offen offset:{i*1024} sc1 lds')
    a('s_waitcnt vmcnt(0)')
    a.label(j4)
    T.stamp('pub4')

    A5 = 24; HA = 88; RS_ = 128
    a(f's_lshl_b32 s27, s{S_Q}, 2')
    a('v_add_u32 v10, s27, v7')
    a('v_lshlrev_b32 v12, 4, v10')
    a('v_bfe_u32 v11, v2, 3, 1')
    a('v_lshl_add_u32 v12, v11, 10, v12')
    a('v_lshl_add_u32 v12, v9, 8, v12')
    a('v_bfe_u32 v11, v2, 2, 1')
    a('v_lshl_add_u32 v12, v11, 3, v12')
    a(f's_lshr_b32 s26, s{S_WAVE}, 2')
    a(f's_add_u32 s26, s26, s{S_R16}')
    a('s_lshl_b32 s26, s26, 14')
    a(f's_lshl_b32 s27, s{S_CT}, 11')
    a('s_add_u32 s26, s26, s27')
    a(f's_add_u32 s26, s26, s{S_GB}')
    for mt in range(2):
        for bi, base in enumerate((G_H, G_X1)):
            a(f's_add_u32 s27, s26, {base + mt*32768}')
            a(f'buffer_load_dwordx2 {vr(RS_+4*mt+2*bi,2)}, v12, s[8:11], s27 offen sc1')
    a(f's_lshl_b32 s28, s{S_WAVE}, 6')
    a('s_add_u32 s28, s28, s34')
    a(f's_mul_i32 s26, s{S_WAVE}, 7168')
    a('s_add_u32 s26, s26, s33')
    a(f's_lshl_b32 s27, s{S_WAVE}, 13')
    a('v_lshlrev_b32 v13, 4, v5')
    a('v_xor_b32 v13, v13, v3')
    a('v_add_u32 v13, s27, v13')
    a(f's_lshl_b32 s27, s{S_WAVE}, 2')
    a('v_add_u32 v10, s27, v7')
    a('v_xor_b32 v10, v10, v6')
    a('v_lshlrev_b32 v10, 4, v10')
    a('v_and_b32 v11, 1, v2')
    a('v_lshl_add_u32 v10, v11, 9, v10')
    a('v_lshrrev_b32 v11, 1, v6')
    a('v_lshl_add_u32 v14, v11, 10, v10')
    poll('v1', 's28', '0x7f')
    T.stamp('p5_poll')
    def ldA(mt, ks):
        a(f's_add_u32 s27, s26, {mt*2*57344 + (ks//8)*4096}')
        a.vissue(f'buffer_load_dwordx4 {vr(HA+4*((14*mt+ks_pos[ks])%10),4)}, v15, s[8:11], s27 offen offset:{(ks%8)*512} sc1', ('h', mt, ks))
    korder5 = list(range(2, 12)) + [12, 13, 0, 1]
    ks_pos = {k: i for i, k in enumerate(korder5)}
    order = [(mt, ks) for mt in range(2) for ks in korder5]
    LEAD5 = 8
    for (mt, ks) in order[:LEAD5]: ldA(mt, ks)
    a('s_barrier')
    sk = L('pk')
    a(f's_cmp_eq_u32 s{S_WAVE}, 3\ns_cbranch_scc1 {sk}')
    for i in range(4): a(f'ds_read_b128 {vr(W4+4*(24+i),4)}, v18 offset:{PKA + i*1024}')
    for i in range(4): a(f'ds_read_b128 {vr(W4+4*i,4)}, v19 offset:{i*1024}')
    a.label(sk)
    def wr_list(mt):
        l = []
        for nt in range(2):
            for q in range(4):
                oct_ = 4*nt + q
                l.append([f'v_xor_b32 v{10+(q&1)}, {oct_*32 + mt*65536}, v13',
                          f'ds_write_b128 v{10+(q&1)}, {vr(A5+32*nt+16*mt+4*q,4)} offset:{RED + oct_*1024}'])
        return l
    wl = wr_list(0)
    for i, (mt, ks) in enumerate(order):
        a.vwait(('h', mt, ks), 'lgkmcnt(0)' if i == 6 else '')
        if i == 6: a('s_barrier')
        for nt in range(2):
            A = A5 + 32*nt + 16*mt
            c_ = '0' if ks_pos[ks] == 0 else vr(A,16)
            a(f'v_mfma_f32_32x32x16_bf16 {vr(A,16)}, {vr(W4+8*ks+4*nt,4)}, {vr(HA+4*((14*mt+ks_pos[ks])%10),4)}, {c_}')
        if i + LEAD5 < 28: ldA(*order[i + LEAD5])
        if i >= 16 and wl:
            for l in wl.pop(0): a(l)
    T.stamp('p5_gemm')
    for g in wr_list(1):
        for l in g: a(l)
    srd(16, P_OUT, 0x200000)
    a(f's_lshl_b32 s26, s{S_X}, 4')
    a(f's_add_u32 s26, s26, s{S_R16}')
    a('s_lshl_b32 s26, s26, 14')
    a(f's_lshl_b32 s27, s{S_WAVE}, 12')
    a('s_add_u32 s26, s26, s27')
    a(f's_lshl_b32 s27, s{S_CT}, 7')
    a('s_add_u32 s26, s26, s27')
    a('s_add_u32 s27, s26, 32768')
    a('v_lshlrev_b32 v12, 10, v7')
    a('v_lshl_add_u32 v12, v6, 3, v12')
    a('v_add_u32 v13, 0x10000, v14')
    RD = 144; SUM = 88
    for mt in range(2):
        for p in range(2):
            a(f'v_lshlrev_b32 v{RD+8*mt+2*p}, 16, v{RS_+4*mt+p}')
            a(f'v_and_b32 v{RD+8*mt+2*p+1}, 0xffff0000, v{RS_+4*mt+p}')
            a(f'v_lshlrev_b32 v{RD+8*mt+4+2*p}, 16, v{RS_+4*mt+2+p}')
            a(f'v_and_b32 v{RD+8*mt+4+2*p+1}, 0xffff0000, v{RS_+4*mt+2+p}')
        for p in range(2): a(f'v_pk_add_f32 {vr(SUM+4*mt+2*p,2)}, {vr(RD+8*mt+2*p,2)}, {vr(RD+8*mt+4+2*p,2)}')
    a('s_waitcnt lgkmcnt(0)')
    a('s_barrier')
    for mt in range(2):
        for src in range(8):
            a(f'ds_read_b128 {vr(RD+32*mt+4*src,4)}, v{14 if mt == 0 else 13} offset:{RED + src*8192}')
    for mt in range(2):
        for src in range(8):
            if src % 2 == 0: a(f's_waitcnt lgkmcnt({14-8*mt-src})')
            for p in range(2): a(f'v_pk_add_f32 {vr(SUM+4*mt+2*p,2)}, {vr(SUM+4*mt+2*p,2)}, {vr(RD+32*mt+4*src+2*p,2)}')
        for p in range(2): a(f'v_cvt_pk_bf16_f32 v{24+2*mt+p}, v{SUM+4*mt+2*p}, v{SUM+4*mt+2*p+1}')
        a(f'buffer_store_dwordx2 {vr(24+2*mt,2)}, v12, s[16:19], s{26+mt} offen')
    if diag: a('s_waitcnt vmcnt(0)')
    T.stamp('end'); T.stamp('end_rt', True)
    T.flush(P_WS, 0, S_WAVE, TS)
    if 'dbgout' in opt:
        sk = L('do')
        a(f's_lshl_b32 s26, s{S_WAVE}, 8')
        a('s_or_b32 s26, s26, s2')
        a(f's_cmp_lg_u32 s26, 77\ns_cbranch_scc1 {sk}')
        srd(16, P_DBG, 256)
        a('s_mov_b64 exec, 1')
        for k, nm in enumerate(['c_b0', 'c_gemm', 'c_pub', 'c_kv0', 'c_attn_end', 'p1_poll', 'pub1', 'pub2', 'pub3', 'p4_go', 'pub4', 'p5_poll', 'p5_gemm', 'end_rt']):
            a(f's_sub_u32 s26, s{76+T.names.index(nm)}, s76')
            a('v_mov_b32 v1, s26')
            a(f'buffer_store_dword v1, off, s[16:19], 0 offset:{8+4*k}')
        a.label(sk)
    a('s_endpgm')

    for (lab, lines, back) in a.cold:
        a.label(lab)
        a('s_nop 7')
        for l in lines: a(l)
        a('s_nop 7')
        a(f's_branch {back}')
    NM = 128
    a.label(FB)
    a('s_nop 15')
    a(f's_add_u32 s30, s{S_HD}, 0x40000')
    a(f's_add_u32 s31, s{S_HD}, 0x80000')
    a(f'v_mov_b32 v{NM}, 0xff800000\nv_mov_b32 v{NM+16}, 0xff800000')
    a('s_mov_b32 s32, 0')
    l1 = L('fb1')
    a.label(l1)
    a('s_add_u32 s33, s30, s32')
    a(f'buffer_load_dwordx4 {vr(KB+4,4)}, v3, s[8:11], s33 offen sc1')
    a('s_waitcnt vmcnt(0)')
    for u, S in ((0, SA), (1, SB)):
        a(f'v_mfma_f32_32x32x16_bf16 {vr(S,16)}, {vr(KB+4,4)}, {vr(Q+4*u,4)}, 0')
    for u, S in ((0, SA), (1, SB)):
        for i in range(8): a(f'v_max3_f32 v{NM+16*u}, v{S+2*i}, v{S+2*i+1}, v{NM+16*u}')
    a('s_add_u32 s32, s32, 1024')
    a('s_cmp_lt_u32 s32, 0x10000')
    a(f's_cbranch_scc1 {l1}')
    for u in range(2):
        m = NM + 16*u
        a(f'v_mov_b32 v{m+1}, v{m}')
        a(f'v_permlane32_swap_b32 v{m}, v{m+1}')
        a(f'v_max_f32 v{m}, v{m}, v{m+1}')
        a(f'v_sub_f32 v{m}, 0, v{m}')
        for i in range(1, 16): a(f'v_mov_b32 v{m+i}, v{m}')
    for i in range(32): a(f'v_mov_b32 v{O+i}, 0')
    a('v_and_b32 v10, 27, v4')
    a('v_cmp_eq_u32 vcc, 16, v10')
    a('v_mov_b32 v10, 0x3f803f80')
    for i in range(8): a(f'v_cndmask_b32 v{VB+i}, 0, v10, vcc')
    a('v_lshlrev_b32 v10, 8, v5')
    a('v_lshl_add_u32 v10, v6, 4, v10')
    a('s_mov_b32 s32, 0')
    a('s_mov_b32 s34, 0xffff\ns_mov_b32 s35, 0xffff')
    l2 = L('fb2')
    a.label(l2)
    a('s_add_u32 s33, s30, s32')
    a(f'buffer_load_dwordx4 {vr(KB+4,4)}, v3, s[8:11], s33 offen sc1')
    a('s_add_u32 s33, s31, s32')
    a('s_mov_b64 exec, s[34:35]')
    a(f'buffer_load_dwordx4 {vr(VB,4)}, v10, s[8:11], s33 offen sc1')
    a(f'buffer_load_dwordx4 {vr(VB+4,4)}, v10, s[8:11], s33 offen offset:512 sc1')
    a('s_mov_b64 exec, -1')
    a('s_waitcnt vmcnt(0)')
    for u, S in ((0, SA), (1, SB)):
        a(f'v_mfma_f32_32x32x16_bf16 {vr(S,16)}, {vr(KB+4,4)}, {vr(Q+4*u,4)}, {vr(NM+16*u,16)}')
    for u, S in ((0, SA), (1, SB)):
        for i in range(16): a(f'v_exp_f32 v{S+i}, v{S+i}')
        for j in range(8): a(f'v_cvt_pk_bf16_f32 v{P+j}, v{S+2*j}, v{S+2*j+1}')
        for f in range(2):
            a(f'v_mfma_f32_32x32x16_bf16 {vr(O+16*u,16)}, {vr(VB+4*f,4)}, {vr(P+4*f,4)}, {vr(O+16*u,16)}')
        a('s_nop 15')
    a('s_add_u32 s32, s32, 1024')
    a('s_cmp_lt_u32 s32, 0x10000')
    a(f's_cbranch_scc1 {l2}')
    a('s_nop 15')
    a(f's_branch {FBR}')
    a.label(END)
    a('s_endpgm')
    return a, LDS_SIZE
```

```python
from asmlib import *
from layout import *
import struct
def f2u(x): return struct.unpack('<I', struct.pack('<f', x))[0]
def H(x): return hex(f2u(x))

LDS_SIZE = 160 * 1024
XL = 0; WL = 65536; WSLOT = 24576; NSLOT = 3
CSUM = WL + NSLOT * WSLOT
RST = CSUM + 1024
RING = 0; CONST = 32768; WA = 36864; WB = 102400
PREP = 143360
W2L = 0; NW2L = 7; W1X = 28672; CS1 = 32768; C3L = 33024
W3L = WB; PKA = 0; PKB = WB + 24576; NONL = RST + 512
XT = WA
RED = 0

GELU_C0 = -2.0 * 0.7978845608028654 * 1.4426950408889634
GELU_C1 = GELU_C0 * 0.044715

S_WAVE, S_X, S_I, S_RB, S_CT, S_R16 = 20, 21, 22, 23, 24, 25
P_X, P_WQKV, P_WO, P_W1, P_W2, P_W3, P_W4, P_OUT, P_DBG, P_WS = 36, 38, 40, 44, 46, 48, 50, 52, 54, 56
S_NON = 58; S_SPIN = 60; S_MODE = 61; S_C1 = 62; S_ONE = 64
S_QKV, S_HD, S_RHO, S_Q, S_SLAB, S_M2 = 66, 67, 68, 69, 70, 71
S_U = 72
S_GB = 3; S_J = 4; S_W4 = 5; S_A = 6; S_B = 7; S_C0 = 42
W3 = 128; W4 = 144

def gen_mega(name='mega_kernel', diag=False, force_safe=False, force_fallback=False, sel=None, opt=''):
    a = Asm()
    T = Stamper(a, 76, diag); a.T = T; T.sel = sel; T.rt = ('rt' in opt.split(','))
    uid = [0]
    def L(s): uid[0] += 1; return f'L_{s}{uid[0]}'
    def srd(base, p, size):
        a(f's_mov_b32 s{base}, s{p}\ns_mov_b32 s{base+1}, s{p+1}\ns_mov_b32 s{base+2}, {hex(size)}\ns_mov_b32 s{base+3}, 0x20000')
    END = f'{name}_end'
    KVNT = 'nt ' if 'kvnt' in opt else ''

    a(f'.globl {name}\n.p2align 8\n.type {name},@function')
    a.label(name)
    a(f's_cmp_ge_u32 s2, 256\ns_cbranch_scc1 {END}')
    a('s_load_dwordx16 s[36:51], s[0:1], 0')
    a('s_load_dwordx4 s[52:55], s[0:1], 64')
    a('s_load_dwordx2 s[56:57], s[0:1], 80')
    a('v_lshrrev_b32 v1, 6, v0')
    a('v_and_b32 v2, 63, v0')
    a(f'v_readfirstlane_b32 s{S_WAVE}, v1')
    a(f's_and_b32 s{S_X}, s2, 7')
    a(f's_lshr_b32 s{S_I}, s2, 3')
    a(f's_lshr_b32 s{S_RB}, s{S_I}, 3')
    a(f's_and_b32 s{S_CT}, s{S_I}, 7')
    a(f's_and_b32 s{S_Q}, s{S_WAVE}, 3')
    if diag:
        for i in range(24): a(f's_mov_b32 s{76+i}, 0')
        T.stamp('start_rt', True); T.stamp('start')
    if 'fix' in opt:
        a('s_memrealtime s[98:99]')
    def fixwait(tag, us):
        if tag not in opt.split(','): return
        lp = L('fx')
        a.label(lp)
        a('s_memrealtime s[100:101]')
        a('s_waitcnt lgkmcnt(0)')
        a('s_sub_u32 s100, s100, s98')
        a(f's_cmp_lt_u32 s100, {us*100}')
        a(f's_cbranch_scc1 {lp}')
    CW1 = L('cw1')
    a(f's_cmp_lt_u32 s{S_WAVE}, 4')
    a(f's_cbranch_scc1 {CW1}')

    def common_consts():
        a('v_lshlrev_b32 v3, 4, v2')
        a('v_and_b32 v4, 31, v2')
        a('v_lshrrev_b32 v5, 5, v2')
        a('v_and_b32 v6, 15, v2')
        a('v_lshrrev_b32 v7, 4, v2')
        a('v_bfe_u32 v8, v2, 2, 2')
        a('v_and_b32 v9, 3, v2')
        a('v_lshlrev_b32 v1, 3, v2')
        a(f's_lshl_b32 s{S_R16}, s{S_RB}, 2')
        a(f's_add_u32 s{S_SLAB}, s{S_R16}, s{S_Q}')
        a(f's_lshl_b32 s{S_GB}, s{S_X}, 21')
        a(f's_add_u32 s{S_GB}, s{S_GB}, {GB}')
        a(f's_mul_i32 s{S_QKV}, s{S_X}, {QKVG}')
        a(f's_lshl_b32 s{S_HD}, s{S_RB}, 16')
        a(f's_add_u32 s{S_HD}, s{S_HD}, s{S_QKV}')
        a(f's_cmp_gt_u32 s{S_WAVE}, 3')
        a(f's_subb_u32 s{S_J}, s{S_WAVE}, 0')
        a(f's_mul_i32 s{S_W4}, s{S_CT}, 229376')
        a(f's_mul_i32 s26, s{S_WAVE}, 28672')
        a(f's_add_u32 s{S_W4}, s{S_W4}, s26')
        a(f's_add_u32 s{S_W4}, s{S_W4}, {W4F}')
        a(f's_mov_b32 s{S_C1}, {H(GELU_C1)}\ns_mov_b32 s{S_C1+1}, {H(GELU_C1)}')
        a(f's_mov_b32 s{S_ONE}, 1.0\ns_mov_b32 s{S_ONE+1}, 1.0')

    def get_nonce(sleep=0):
        lp, done = L('non'), L('nond')
        srd(16, P_DBG, 256)
        a(f's_mov_b32 s{S_SPIN}, 0')
        a.label(lp)
        if sleep: a(f's_sleep {sleep}')
        a('buffer_load_dwordx2 v[10:11], off, s[16:19], 0 sc1')
        a(f's_add_u32 s{S_SPIN}, s{S_SPIN}, 1')
        a('s_waitcnt vmcnt(0)')
        a(f'v_readfirstlane_b32 s{S_NON}, v10')
        a(f'v_readfirstlane_b32 s{S_NON+1}, v11')
        a(f's_cmp_gt_u32 s{S_SPIN}, 0x20000')
        a(f's_cbranch_scc1 {done}')
        a(f's_cmp_eq_u32 s{S_NON}, 0')
        a(f's_cbranch_scc1 {lp}')
        a.label(done)
        a.vm = []

    def get_nonce_s(sleep=0):
        lp, done = L('non'), L('nond')
        a(f's_mov_b32 s{S_SPIN}, 0')
        a.label(lp)
        if sleep: a(f's_sleep {sleep}')
        a(f's_load_dwordx2 s[{S_NON}:{S_NON+1}], s[{P_DBG}:{P_DBG+1}], 0 glc')
        a(f's_add_u32 s{S_SPIN}, s{S_SPIN}, 1')
        a(f's_cmp_gt_u32 s{S_SPIN}, 0x20000')
        a('s_waitcnt lgkmcnt(0)')
        a(f's_cbranch_scc1 {done}')
        a(f's_cmp_eq_u32 s{S_NON}, 0')
        a(f's_cbranch_scc1 {lp}')
        a.label(done)

    def poll(voff, soff, execmask=None, sleep=0):
        lp, done = L('poll'), L('polld')
        if execmask: a(f's_mov_b64 exec, {execmask}')
        a(f's_mov_b32 s{S_SPIN}, 0')
        a.label(lp)
        if sleep: a(f's_sleep {sleep}')
        a(f'buffer_load_dwordx2 v[10:11], {voff}, s[8:11], {soff} offen sc1')
        a(f's_add_u32 s{S_SPIN}, s{S_SPIN}, 1')
        a(f's_cmp_gt_u32 s{S_SPIN}, 0x20000')
        a('s_waitcnt vmcnt(0)')
        a(f's_cbranch_scc1 {done}')
        a(f'v_cmp_ne_u64 vcc, {sr(S_NON,2)}, v[10:11]')
        a(f's_cbranch_vccnz {lp}')
        a.label(done)
        if execmask: a('s_mov_b64 exec, -1')
        a.vm = []

    def st2(lines, mode=S_MODE):
        sk, dn = L('sf'), L('sd')
        a(f's_cmp_eq_u32 s{mode}, 0')
        a(f's_cbranch_scc1 {sk}')
        for l in lines: a(l)
        a.label(dn)
        a.cold.append((sk, [l + ' sc1' if l.startswith('buffer_store') else l for l in lines], dn))
        a.vm += ['st'] * sum(l.startswith('buffer_store') for l in lines)
    a.cold = []

    def flag_lines(soff):
        return ['s_mov_b64 exec, 1', f'buffer_store_dwordx2 v[10:11], off, s[8:11], {soff}', 's_mov_b64 exec, -1']
    def flag_prep():
        a(f'v_mov_b32 v10, s{S_NON}\nv_mov_b32 v11, s{S_NON+1}')
    def flag_sc1(soff):
        flag_prep()
        for l in flag_lines(soff): a(l + (' sc1' if l.startswith('buffer') else ''))
        a.vm.append('fl')

    def xcc_load(vreg, vt):
        a(f's_lshl_b32 s26, s{S_X}, 12')
        a(f's_add_u32 s26, s26, {F_XCC}')
        a(f'v_lshlrev_b32 v{vt}, 7, v4')
        a(f'buffer_load_dwordx2 {vr(vreg,2)}, v{vt}, s[8:11], s26 offen sc1')
    def calc_mode(vreg):
        a('s_getreg_b32 s34, hwreg(HW_REG_XCC_ID)')
        a('s_and_b32 s34, s34, 15')
        a(f's_or_b32 s34, s34, s{S_NON}')
        a(f's_mov_b32 s35, s{S_NON+1}')
        a(f'v_cmp_ne_u64 vcc, s[34:35], {vr(vreg,2)}')
        a('s_cmp_eq_u64 vcc, 0')
        a(f's_cselect_b32 s{S_MODE}, 1, 0')
        a(f's_cmp_eq_u32 s{S_NON}, 0')
        a(f's_cselect_b32 s{S_MODE}, 0, s{S_MODE}')
        if force_safe: a(f's_mov_b32 s{S_MODE}, 0')
    def xcc_publish(v0, v1):
        a('s_getreg_b32 s27, hwreg(HW_REG_XCC_ID)')
        a('s_and_b32 s27, s27, 15')
        a(f's_or_b32 s27, s27, s{S_NON}')
        a(f'v_mov_b32 v{v0}, s27\nv_mov_b32 v{v1}, s{S_NON+1}')
        a(f's_lshl_b32 s26, s{S_X}, 12')
        a(f's_lshl_b32 s27, s{S_I}, 7')
        a('s_add_u32 s26, s26, s27')
        a(f's_add_u32 s26, s26, {F_XCC}')
        a('s_mov_b64 exec, 1')
        a(f'buffer_store_dwordx2 v[{v0}:{v1}], off, s[8:11], s26 sc1')
        a('s_mov_b64 exec, -1')

    def unit_decode(su):
        l3, l4, dn = L('u3'), L('u4'), L('ud')
        a('s_mov_b32 s15, 0x20000')
        a(f's_cmp_ge_u32 s{su}, 832\ns_cbranch_scc1 {l4}')
        a(f's_cmp_ge_u32 s{su}, 384\ns_cbranch_scc1 {l3}')
        a(f's_lshr_b32 s32, s{su}, 7')
        a(f's_bfe_u32 s33, s{su}, 0x40003')
        a(f's_and_b32 s34, s{su}, 7')
        a('s_lshl_b32 s27, s33, 15')
        a('s_lshl_b32 s35, s34, 7')
        a('s_add_u32 s27, s27, s35')
        a('s_lshl_b32 s28, s32, 19')
        a('s_lshl_b32 s35, s34, 16')
        a('s_add_u32 s28, s28, s35')
        a('s_lshl_b32 s35, s33, 12')
        a('s_add_u32 s28, s28, s35')
        a(f's_add_u32 s28, s28, {WOF}')
        a('s_min_u32 s26, s32, 1')
        a('s_cmp_eq_u32 s32, 1')
        a(f's_cselect_b64 s[12:13], s[{P_W1}:{P_W1+1}], s[{P_W2}:{P_W2+1}]')
        a('s_cmp_eq_u32 s32, 0')
        a(f's_cselect_b64 s[12:13], s[{P_WO}:{P_WO+1}], s[12:13]')
        a('s_mov_b32 s14, 0x80000')
        a(f's_branch {dn}')
        a.label(l3)
        a(f's_sub_u32 s32, s{su}, 384')
        a('s_mul_hi_u32 s33, s32, 0x0924924a')
        a('s_mul_i32 s34, s33, 28')
        a('s_sub_u32 s34, s32, s34')
        a(f's_mul_i32 s27, s33, {32*3584}')
        a('s_lshl_b32 s35, s34, 7')
        a('s_add_u32 s27, s27, s35')
        a('s_lshl_b32 s28, s34, 16')
        a('s_lshl_b32 s35, s33, 11')
        a('s_add_u32 s28, s28, s35')
        a(f's_add_u32 s28, s28, {W3F}')
        a('s_mov_b32 s26, 2')
        a(f's_mov_b64 s[12:13], s[{P_W3}:{P_W3+1}]')
        a('s_mov_b32 s14, 0x1c0000')
        a(f's_branch {dn}')
        a.label(l4)
        a(f's_sub_u32 s32, s{su}, 832')
        a('s_lshr_b32 s33, s32, 3')
        a('s_and_b32 s34, s32, 7')
        a('s_lshl_b32 s27, s33, 15')
        a('s_lshl_b32 s35, s34, 7')
        a('s_add_u32 s27, s27, s35')
        a('s_mul_i32 s28, s34, 229376')
        a('s_lshl_b32 s35, s33, 12')
        a('s_add_u32 s28, s28, s35')
        a(f's_add_u32 s28, s28, {W4F}')
        a('s_mov_b32 s26, 3')
        a(f's_mov_b64 s[12:13], s[{P_W4}:{P_W4+1}]')
        a('s_mov_b32 s14, 0x1c0000')
        a.label(dn)

    VX, VWQ = 12, 13
    a('s_setprio 3')
    a('v_lshrrev_b32 v3, 3, v2')
    a(f's_lshl_b32 s27, s{S_Q}, 3')
    a('v_add_u32 v6, s27, v3')
    a('v_lshrrev_b32 v4, 4, v2')
    a(f's_and_b32 s27, s{S_Q}, 1')
    a('s_lshl_b32 s27, s27, 2')
    a('v_add_u32 v4, s27, v4')
    a('v_and_b32 v5, 7, v2')
    a('v_xor_b32 v4, v4, v5')
    a('v_lshlrev_b32 v4, 4, v4')
    a(f'v_lshl_add_u32 v{VX}, v6, 10, v4')
    a('v_bfe_u32 v4, v3, 1, 1')
    a('v_lshlrev_b32 v4, 2, v4')
    a('v_bfe_u32 v7, v3, 2, 1')
    a('v_lshl_add_u32 v4, v7, 1, v4')
    a('v_xor_b32 v4, v4, v5')
    a('v_lshlrev_b32 v55, 4, v4')
    a('s_movk_i32 s27, 0xc00')
    a(f'v_mad_u32_u24 v{VWQ}, v6, s27, v55')
    a(f's_lshl_b32 s28, s{S_I}, 16')
    a(f's_lshl_b32 s29, s{S_Q}, 10')
    a(f's_lshl_b32 s31, s{S_X}, 7')
    a('s_mov_b32 s18, 0x200000\ns_mov_b32 s19, 0x20000\ns_mov_b32 s14, 0x180000\ns_mov_b32 s15, 0x20000')
    a('s_waitcnt lgkmcnt(0)')
    a(f's_mov_b64 s[16:17], s[{P_X}:{P_X+1}]')
    a(f's_mov_b64 s[12:13], s[{P_WQKV}:{P_WQKV+1}]')
    T.stamp('p1.h_iss', slot=20)
    def issx(c):
        a(f's_add_u32 s33, s{S_CT}, {c}')
        a('s_and_b32 s33, s33, 7')
        a('s_lshl_b32 s34, s33, 7')
        a('s_add_u32 s34, s34, s28')
        for j in range(2):
            a(f's_add_u32 m0, s29, {XL + c*8192 + j*4096}')
            if j: a('s_add_u32 s34, s34, 32768')
            a.vissue(f'buffer_load_dwordx4 v{VX}, s[16:19], s34 offen lds', ('x', c))
    def issw(c):
        a(f's_add_u32 s33, s{S_CT}, {c}')
        a('s_and_b32 s33, s33, 7')
        a('s_mul_i32 s35, s33, 196608')
        a('s_add_u32 s35, s35, s31')
        for j in range(2):
            for sec in range(3):
                a(f's_add_u32 m0, s29, {WL + (c % NSLOT)*WSLOT + sec*8192 + j*4096}')
                a(f's_add_u32 s34, s35, {j*32*3072 + sec*1024}')
                a.vissue(f'buffer_load_dwordx4 v{VWQ}, s[12:15], s34 offen lds', ('w', c))
    issx(0); issw(0); issx(1); issx(2); issx(3)
    common_consts()
    srd(8, P_WS, WS_USED)
    AWH, AXH, CSA, SXH, SQH, ONES, WFH, XFH = 14, 17, 20, 32, 36, 18, 64, 88
    a('v_and_b32 v10, 1, v7')
    a('v_lshrrev_b32 v11, 1, v8')
    a('v_lshl_add_u32 v11, v11, 1, v10')
    a('v_lshl_add_u32 v10, v7, 2, v8')
    a('v_lshlrev_b32 v10, 7, v10')
    a('v_lshl_add_u32 v10, v9, 3, v10')
    for j in range(3):
        a(f's_mul_i32 s26, s{S_Q}, 3')
        a(f's_add_u32 s26, s26, {j}')
        a('s_and_b32 s27, s26, 3')
        a('s_lshr_b32 s26, s26, 2')
        a('s_lshl_b32 s26, s26, 13')
        a(f's_add_u32 s26, s26, {WL}')
        a('v_xor_b32 v40, s27, v11')
        a('v_lshl_add_u32 v40, v40, 5, v10')
        a(f'v_add_u32 v{AWH+j}, s26, v40')
    a(f's_lshl_b32 s26, s{S_Q}, 11')
    a('v_lshlrev_b32 v10, 7, v6')
    a('v_bfe_u32 v11, v6, 1, 3')
    a('v_xor_b32 v11, v11, v7')
    a('v_lshl_add_u32 v10, v11, 4, v10')
    a(f'v_add_u32 v{AXH}, s26, v10')
    a(f'v_xor_b32 v41, 64, v{AXH}')
    a(f'v_mov_b32 v{ONES}, 0x3f803f80\nv_mov_b32 v{ONES+1}, 0x3f803f80')
    PA16, PA32, PROW, PUN = 44, 52, 54, 55
    a('v_and_b32 v10, 1, v7')
    a('v_lshrrev_b32 v11, 1, v8')
    a('v_lshl_add_u32 v11, v11, 1, v10')
    a('v_lshl_add_u32 v56, v10, 2, v8')
    a('v_lshrrev_b32 v57, 1, v7')
    a('v_lshl_add_u32 v58, v57, 4, v56')
    a('v_lshl_add_u32 v59, v57, 3, v56')
    for ti, kreg in enumerate((58, 59)):
        for nt in range(4):
            a(f'v_xor_b32 v60, {nt}, v11')
            a('v_lshlrev_b32 v60, 5, v60')
            a('v_lshl_add_u32 v60, v9, 3, v60')
            a(f'v_lshl_add_u32 v{PA16+4*ti+nt}, v{kreg}, 7, v60')
    a('v_lshrrev_b32 v11, 1, v8')
    a('v_lshl_add_u32 v11, v11, 1, v5')
    a('v_lshl_add_u32 v56, v5, 2, v8')
    a('v_lshlrev_b32 v56, 7, v56')
    a('v_lshl_add_u32 v56, v9, 3, v56')
    for nt in range(2):
        a(f'v_add_u32 v60, {2*nt}, v10')
        a('v_xor_b32 v60, v60, v11')
        a(f'v_lshl_add_u32 v{PA32+nt}, v60, 5, v56')
    a(f'v_lshrrev_b32 v{PROW}, 3, v2')
    a('v_cmp_eq_u32 s[42:43], 1, v9')
    a('v_cmp_eq_u32 s[6:7], 2, v9')
    def unit_idx(k):
        a(f's_mul_i32 s{S_U}, s2, 5')
        a(f's_add_u32 s{S_U}, s{S_U}, {k}')
        unit_decode(S_U)
    def stride_sel():
        a('s_cmp_eq_u32 s26, 2')
        a('s_movk_i32 s32, 0x400')
        a('s_cselect_b32 s32, 0xe00, s32')
        a(f'v_mad_u32_u24 v60, v{PROW}, s32, v{PUN}')
        a('s_lshl_b32 s32, s32, 3')
    def prep_loads():
        unit_idx(f's{S_Q}')
        stride_sel()
        a(f's_lshl_b32 s35, s{S_Q}, 12')
        for p in range(4):
            a(f's_add_u32 m0, s35, {PREP + p*1024}')
            if p: a('s_add_u32 s27, s27, s32')
            a.vissue('buffer_load_dwordx4 v60, s[12:15], s27 offen lds', 'pl')
        unit_idx(4)
        stride_sel()
        a(f's_mul_i32 s32, s32, s{S_Q}')
        a('s_add_u32 s27, s27, s32')
        a(f's_add_u32 m0, s29, {PREP + 4*4096}')
        a.vissue('buffer_load_dwordx4 v60, s[12:15], s27 offen lds', 'pl')

    issw(1)
    for c in range(4, 8): issx(c)
    for c in range(8):
        a.vwait(('w', c))
        T.stamp(f'p1.h_w{c}', slot=2+2*c)
        a('s_barrier')
        T.stamp(f'p1.h_b{c}', slot=3+2*c)
        for j in range(3):
            for kk in range(4):
                a(f'ds_read_b64_tr_b16 {vr(WFH+8*j+2*kk,2)}, v{AWH+j} offset:{(c % NSLOT)*WSLOT + kk*2048}')
        a(f'ds_read_b128 {vr(XFH,4)}, v{AXH} offset:{XL + c*8192}')
        a(f'ds_read_b128 {vr(XFH+4,4)}, v41 offset:{XL + c*8192}')
        if c + 2 < 8: issw(c + 2)
        if c == 5: prep_loads()
        a('s_waitcnt lgkmcnt(0)')
        for kk in range(4):
            z = (c == 0 and kk == 0)
            for j in range(3):
                a(f'v_mfma_f32_4x4x4_16b_bf16 {vr(CSA+4*j,4)}, {vr(ONES,2)}, {vr(WFH+8*j+2*kk,2)}, {"0" if z else vr(CSA+4*j,4)}')
            a(f'v_mfma_f32_4x4x4_16b_bf16 {vr(SXH,4)}, {vr(ONES,2)}, {vr(XFH+2*kk,2)}, {"0" if z else vr(SXH,4)}')
            a(f'v_mfma_f32_4x4x4_16b_bf16 {vr(SQH,4)}, {vr(XFH+2*kk,2)}, {vr(XFH+2*kk,2)}, {"0" if z else vr(SQH,4)}')
    a('v_cmp_eq_u32 vcc, 3, v9')
    a(f's_mul_i32 s26, s{S_Q}, 192')
    a(f's_add_u32 s26, s26, {CSUM}')
    a('v_lshl_add_u32 v10, v6, 2, s26')
    a(f's_lshl_b32 s26, s{S_Q}, 6')
    a(f's_add_u32 s26, s26, {RST}')
    a('v_lshl_add_u32 v11, v6, 2, s26')
    a(f'v_cndmask_b32 v{SQH}, v{SQH}, v{SQH+1}, s[42:43]')
    a(f'v_cndmask_b32 v{SQH}, v{SQH}, v{SQH+2}, s[6:7]')
    a(f'v_cndmask_b32 v{SQH}, v{SQH}, v{SQH+3}, vcc')
    red = [CSA, CSA+4, CSA+8, SXH, SQH]
    for sw in ('v_permlane16_swap_b32', 'v_permlane32_swap_b32'):
        for r in red: a(f'v_mov_b32 v{r+1}, v{r}')
        for r in red: a(f'{sw} v{r}, v{r+1}')
        for r in red: a(f'v_add_f32 v{r}, v{r}, v{r+1}')
    for j in range(3): a(f'ds_write_b32 v10, v{CSA+4*j} offset:{64*j}')
    a(f'v_mul_f32 v{SXH}, {H(-1/512)}, v{SXH}')
    a(f'v_mul_f32 v{SQH}, {H(1/512)}, v{SQH}')
    a(f'v_fma_f32 v{SQH}, -v{SXH}, v{SXH}, v{SQH}')
    a(f'v_max_f32 v{SQH}, 0, v{SQH}')
    a(f'v_add_f32 v{SQH}, {H(1e-5)}, v{SQH}')
    a(f'v_rsq_f32 v{SQH}, v{SQH}')
    a(f'v_mul_f32 v{SXH}, v{SXH}, v{SQH}')
    a(f'ds_write_b32 v11, v{SQH} offset:256')
    a(f'ds_write_b32 v11, v{SXH}')
    a('s_waitcnt lgkmcnt(0)')
    a('s_barrier')
    a('s_setprio 0')
    T.stamp('h_p1done', slot=2)
    a('v_and_b32 v10, 23, v2')
    a('v_cmp_eq_u32 vcc, 0, v10')
    a('v_mov_b32 v10, 0x3f803f80')
    a('v_cndmask_b32 v20, 0, v10, vcc')
    a('v_mov_b32 v21, v20\nv_mov_b32 v22, v20\nv_mov_b32 v23, v20')
    a('v_add_u32 v16, s29, v3')
    a(f's_add_u32 s{S_A}, s{S_HD}, s29')
    a(f's_add_u32 s{S_A}, s{S_A}, 0x40000')
    a(f's_add_u32 s27, s{S_GB}, {G_FQ}')
    a('s_mov_b32 s30, -1\ns_mov_b32 s31, 0')
    a(f'v_mov_b32 v12, {NONL}')
    a('s_barrier')
    a('ds_read_b64 v[14:15], v12')
    a(f'ds_write_b128 v16, v[20:23] offset:{CONST}')
    a('s_waitcnt lgkmcnt(1)')
    a(f'v_readfirstlane_b32 s{S_NON}, v14')
    a(f'v_readfirstlane_b32 s{S_NON+1}, v15')
    poll('v1', 's27', 's[30:31]')
    T.stamp('h_kvflag', slot=3)
    def kv_issue(c):
        a(f's_add_u32 m0, s29, {RING + (c & 3)*8192}')
        a(f's_add_u32 s30, s{S_A}, {c*4096}')
        a.vissue(f'buffer_load_dwordx4 v3, s[8:11], s30 offen sc1 {KVNT}lds', ('kv', c))
        a(f's_add_u32 m0, s29, {RING + (c & 3)*8192 + 4096}')
        a(f's_add_u32 s30, s{S_A}, {c*4096 + 0x40000}')
        a.vissue(f'buffer_load_dwordx4 v3, s[8:11], s30 offen sc1 {KVNT}lds', ('kv', c))
    kv_issue(0); kv_issue(1)
    def prep_convert(k, record):
        unit_idx(k)
        if isinstance(k, int): a(f's_mov_b32 s32, {PREP + k*4096}')
        else:
            a(f's_lshl_b32 s32, {k}, 12')
            a(f's_add_u32 s32, s32, {PREP}')
        k1, k2, k3, dn = L('k1'), L('k2'), L('k3'), L('kd')
        F = 64
        a(f's_cmp_eq_u32 s26, 1\ns_cbranch_scc1 {k1}')
        a(f's_cmp_eq_u32 s26, 2\ns_cbranch_scc1 {k2}')
        a(f's_cmp_eq_u32 s26, 3\ns_cbranch_scc1 {k3}')
        for kind, lab in ((0, None), (1, k1)):
            if lab: a.label(lab)
            for nt in range(4): a(f'v_add_u32 v{60+nt}, s32, v{PA16+4*kind+nt}')
            for nt in range(4):
                for sec in range(2):
                    a(f'ds_read_b64_tr_b16 {vr(F+4*nt+2*sec,2)}, v{60+nt} offset:{sec*(1024 if kind==0 else 2048)}')
            a('s_add_u32 s35, s28, 2048')
            a(f's_branch {dn}')
        a.label(k2)
        for nt in range(2): a(f'v_add_u32 v{60+nt}, s32, v{PA32+nt}')
        for nt in range(2):
            for kk in range(2):
                for sec in range(2):
                    a(f'ds_read_b64_tr_b16 {vr(F+8*nt+4*kk+2*sec,2)}, v{60+nt} offset:{(8*kk+16*sec)*128}')
        a('s_add_u32 s35, s28, 32768')
        a('s_mul_i32 s33, s33, 7168')
        a('s_lshl_b32 s34, s34, 8')
        a('s_add_u32 s33, s33, s34')
        a(f's_add_u32 s33, s33, {C3P}')
        a('v_lshlrev_b32 v62, 2, v2')
        a('s_waitcnt lgkmcnt(0)')
        for i in range(4):
            for nt in range(2):
                c_ = '0' if i == 0 else vr(80+4*nt,4)
                a(f'v_mfma_f32_4x4x4_16b_bf16 {vr(80+4*nt,4)}, {vr(ONES,2)}, {vr(F+8*nt+2*i,2)}, {c_}')
        a('v_permlane32_swap_b32 v80, v84')
        a('v_add_f32 v80, v80, v84')
        a('buffer_store_dword v80, v62, s[8:11], s33 offen sc1')
        a(f's_branch {dn}')
        a.label(k3)
        for nt in range(2): a(f'v_add_u32 v{60+nt}, s32, v{PA32+nt}')
        for kk in range(2):
            for nt in range(2):
                for sec in range(2):
                    a(f'ds_read_b64_tr_b16 {vr(F+8*kk+4*nt+2*sec,2)}, v{60+nt} offset:{(16*kk+8*sec)*128}')
        a('s_add_u32 s35, s28, 2048')
        a.label(dn)
        a('s_waitcnt lgkmcnt(0)')
        iss = (lambda t: a.vissue(t, 'pp')) if record else a
        iss(f'buffer_store_dwordx4 {vr(F,4)}, v3, s[8:11], s28 offen sc1')
        iss(f'buffer_store_dwordx4 {vr(F+4,4)}, v3, s[8:11], s28 offen offset:1024 sc1')
        iss(f'buffer_store_dwordx4 {vr(F+8,4)}, v3, s[8:11], s35 offen sc1')
        iss(f'buffer_store_dwordx4 {vr(F+12,4)}, v3, s[8:11], s35 offen offset:1024 sc1')

    HW2, HW1, HW3 = 24, 88, 92
    C3R = [116, 120, 124, 20]
    w3g = lambda g: [('w3', i) for i in range(8*g, 8*g+8)]
    flat = w3g(1) + [('c3', k) for k in range(4)] + [('wo', i) for i in range(16)] + w3g(2) + \
           [('w1', i) for i in range(15)] + [('r', HW1, W1F + 15*4096)] + w3g(3) + \
           [('r', HW2 + 4*i, W2F + i*4096) for i in range(16)] + w3g(0) + [('l3', t, f) for t in range(3) for f in range(2)]
    groups = [flat[12*i:12*i+12] for i in range(8)]
    strips = [(75, 8192), (74, WOF), (75, 2*8192), (74, W1F), (75, 3*8192), (74, W2F), (75, 0)]
    def job_setup():
        a(f's_lshl_b32 s31, s{S_CT}, 16')
        a('s_add_u32 s31, s31, s29')
        a(f's_mul_i32 s33, s{S_CT}, {7*32768}')
        a(f's_lshl_b32 s{S_B}, s{S_J}, 15')
        a(f's_add_u32 s{S_B}, s{S_B}, s33')
        a(f's_add_u32 s{S_B}, s{S_B}, {W3F}')
        a('s_add_u32 s33, s33, s29')
        a(f's_mul_i32 s32, s{S_CT}, 896')
        a(f's_mul_i32 s30, s{S_Q}, {4*7168}')
        a('s_add_u32 s32, s32, s30')
        a(f's_and_b32 s26, s{S_Q}, 1')
        a('s_lshl_b32 s26, s26, 2')
        a(f's_add_u32 s26, s26, s{S_RB}')
        a('s_lshl_b32 s74, s26, 13')
        a(f's_lshl_b32 s27, s{S_CT}, 16')
        a('s_add_u32 s74, s74, s27')
        a(f's_mul_i32 s75, s{S_CT}, 7')
        a('s_add_u32 s75, s75, s26')
        a('s_lshl_b32 s75, s75, 15')
        a(f's_add_u32 s75, s75, {W3F}')
        a(f's_mul_i32 s27, s{S_CT}, 229376')
        a(f's_add_u32 s27, s27, {W4F + 3*28672 - 4096}')
        a('s_cmp_eq_u32 s26, 7')
        a('s_cselect_b32 s75, s27, s75')
    def dma(lds, src):
        a(f's_add_u32 m0, s29, {lds}')
        a(f's_add_u32 s30, s31, {src}')
        a.vissue('buffer_load_dwordx4 v3, s[8:11], s30 offen sc1 lds', 'pf')
    def ldr(reg, sbase, off, imm=0):
        a(f's_add_u32 s30, s{sbase}, {off}')
        a.vissue(f'buffer_load_dwordx4 {vr(reg,4)}, v3, s[8:11], s30 offen offset:{imm} sc1', 'pf')
    def job(j):
        kind = j[0]
        if kind == 'w3': ldr(W3+4*j[1], S_B, (j[1] >> 2)*4096, (j[1] & 3)*1024)
        elif kind == 'wo': dma(WA + j[1]*4096, WOF + j[1]*4096)
        elif kind == 'w1': dma(WB + j[1]*4096, W1F + j[1]*4096)
        elif kind == 'r': ldr(j[1], 31, j[2])
        elif kind == 'l3': ldr(HW3 + 8*j[1] + 4*j[2], 33, W3F + j[1]*32768 + j[2]*4096)
        elif kind == 'c3': ldr(C3R[j[1]], 32, C3P + j[1]*7168)
    NJ = 9
    for c in range(16):
        if c == 3: a.vwait_all()
        else: a.vwait(('kv', c), 'lgkmcnt(0)' if c == 0 else '')
        a('s_barrier')
        if c >= 2 and c + 2 < 16: kv_issue(c + 2)
        if c == 0:
            kv_issue(2); kv_issue(3)
            prep_convert(f's{S_Q}', True)
        if c == 1:
            sk = L('u4')
            a(f's_cmp_lg_u32 s{S_Q}, 3\ns_cbranch_scc1 {sk}')
            prep_convert(4, False)
            a.label(sk)
        if c == 3:
            sk = L('pf')
            a(f's_cmp_lg_u32 s{S_Q}, 1\ns_cbranch_scc1 {sk}')
            a('s_lshl_b32 s26, s2, 7')
            a(f's_add_u32 s26, s26, {F_PREP}')
            keep = list(a.vm); flag_sc1('s26'); a.vm = keep
            srd(16, P_OUT, 0x200000)
            a('v_lshlrev_b32 v12, 21, v2')
            a(f's_mov_b32 s26, {GB + G_FHX}')
            a('s_mov_b64 exec, 0xff')
            a('buffer_load_dword v13, v12, s[8:11], s26 offen')
            a('buffer_load_dword v13, off, s[16:19], 0')
            a('s_mov_b64 exec, -1')
            a.label(sk)
            xcc_load(14, 12); a.vm.append('xc')
            job_setup()
            a('v_lshlrev_b32 v12, 7, v2')
            a(f's_lshl_b32 s28, s{S_R16}, 14')
            a(f's_lshl_b32 s27, s{S_CT}, 11')
            a('s_add_u32 s28, s28, s27')
            a(f's_lshl_b32 s27, s{S_Q}, 18')
            a('s_add_u32 s28, s28, s27')
            a(f's_add_u32 s28, s28, {G_H}')
            a(f's_mul_i32 s27, s{S_I}, 1408')
            a(f's_add_u32 s27, s27, {G_ST1}')
            a(f's_cmp_eq_u32 s{S_Q}, 3')
            a('s_cselect_b32 s28, s27, s28')
            a('s_cselect_b32 s27, 0, 0x4000')
            a(f's_add_u32 s28, s28, s{S_GB}')
            a('v_lshlrev_b32 v17, 7, v6')
            a('v_mad_u32_u24 v17, v7, s27, v17')
        if c == 5:
            a(f's_lshl_b32 s26, s{S_Q}, 13')
            a(f's_add_u32 s26, s26, {F_PREP}')
            poll('v12', 's26', None, sleep=2)
            calc_mode(14)
        if 6 <= c < 13 and 'nojobs' not in opt and 'nostrip' not in opt:
            sk = L('st')
            a(f's_bitcmp{1 if (c & 1) == 0 else 0}_b32 s{S_Q}, 1\ns_cbranch_scc1 {sk}')
            a(f's_add_u32 s26, s{strips[c-6][0]}, {strips[c-6][1]}')
            a('buffer_load_dword v13, v12, s[8:11], s26 offen sc1')
            a.label(sk)
        if 8 <= c < 16 and 'nojobs' not in opt and 'nohj' not in opt:
            for j in groups[c-8]:
                if 'nodma' in opt and j[0] in ('wo', 'w1'): continue
                if 'onlydma' in opt and j[0] not in ('wo', 'w1'): continue
                job(j)
                if 'pace' in opt: a('s_sleep 1')
        if c == 13 and 'nowarm2' not in opt:
            a.vissue('buffer_load_dword v13, v17, s[8:11], s28 offen sc1', 'pf')
    a.vwait_all()
    a('v_add_u32 v12, s29, v3')
    a(f'v_add_u32 v13, {WB}, v12')
    a(f'v_add_u32 v14, {WA}, v12')
    a(f's_mul_i32 s26, s{S_Q}, 896')
    a('v_add_u32 v15, s26, v3')
    a('s_barrier')
    T.stamp('h_attn_end', slot=4)
    a(f'ds_write_b128 v12, {vr(HW1,4)} offset:{W1X}')
    for i in range(NW2L): a(f'ds_write_b128 v12, {vr(HW2+4*i,4)} offset:{W2L + i*4096}')
    for k in range(1, 4):
        for i in range(2): a(f'v_pk_add_f32 {vr(C3R[0]+2*i,2)}, {vr(C3R[0]+2*i,2)}, {vr(C3R[k]+2*i,2)}')
    a('s_mov_b32 exec_hi, 0xffffff')
    a(f'ds_write_b128 v15, {vr(C3R[0],4)} offset:{C3L}')
    a('s_mov_b32 exec_hi, -1')
    for i in range(4): a(f'v_mov_b32 v{20+i}, 0x3f803f80')
    a(f'v_mfma_f32_16x16x32_bf16 v[16:19], {vr(HW1,4)}, v[20:23], 0')
    a('s_waitcnt lgkmcnt(0)')
    for bt in range(3):
        for k in range(5): a(f'ds_read_b128 {vr(HW2+4*k,4)}, v13 offset:{(5*bt+k)*4096}')
        for k in range(5):
            a(f's_waitcnt lgkmcnt({4-k})')
            a(f'v_mfma_f32_16x16x32_bf16 v[16:19], {vr(HW2+4*k,4)}, v[20:23], v[16:19]')
    a(f's_lshl_b32 s26, s{S_Q}, 6')
    a(f's_add_u32 s26, s26, {CS1}')
    a('v_lshl_add_u32 v10, v7, 4, s26')
    a('ds_write_b128 v10, v[16:19]')
    a('s_waitcnt lgkmcnt(0)')
    a('s_barrier')
    sk = L('c3w')
    a(f's_cmp_lg_u32 s{S_Q}, 3\ns_cbranch_scc1 {sk}')
    for k in range(4): a(f'ds_read_b128 {vr(HW2+4*k,4)}, v3 offset:{C3L + 896*k}')
    a('s_waitcnt lgkmcnt(0)')
    for k in range(1, 4):
        for i in range(2): a(f'v_pk_add_f32 {vr(HW2+2*i,2)}, {vr(HW2+2*i,2)}, {vr(HW2+4*k+2*i,2)}')
    a(f'ds_write_b128 v3, {vr(HW2,4)} offset:{C3L}')
    a.label(sk)
    a('s_barrier')
    for i in range(NW2L, 16): a(f'ds_write_b128 v14, {vr(HW2+4*i,4)} offset:{i*4096}')
    a('s_waitcnt lgkmcnt(0)')
    a('s_barrier')
    for t in range(3):
        for f in range(2): a(f'ds_write_b128 v13, {vr(HW3+8*t+4*f,4)} offset:{t*8192 + f*4096}')
    a('s_waitcnt lgkmcnt(0)')
    a('s_barrier')
    a(f's_lshl_b32 s28, s{S_R16}, 6')
    a(f's_lshl_b32 s27, s{S_Q}, 5')
    a('s_add_u32 s28, s28, s27')
    a(f's_add_u32 s28, s28, s{S_GB}')
    a(f's_add_u32 s28, s28, {G_FX1}')
    a(f's_lshl_b32 s26, s{S_R16}, 14')
    a(f's_lshl_b32 s27, s{S_Q}, 13')
    a('s_add_u32 s26, s26, s27')
    a(f's_add_u32 s26, s26, s{S_GB}')
    a(f's_add_u32 s26, s26, {G_X1}')
    a('s_mov_b32 s30, 0xf000f\ns_mov_b32 s31, 0')
    poll('v1', 's28', 's[30:31]')
    for mt in range(2):
        for hf in range(2):
            a(f's_add_u32 m0, s27, {XT + mt*32768 + hf*4096}')
            a(f's_add_u32 s30, s26, {mt*32768 + hf*4096}')
            for i in range(4):
                a(f'buffer_load_dwordx4 v3, s[8:11], s30 offen offset:{i*1024} sc1 lds')
    HJOIN = L('hjoin')
    a(f's_branch {HJOIN}')

    a.label(CW1)
    a.vm = []
    sk = L('cp')
    a(f's_cmp_lg_u32 s{S_WAVE}, 1\ns_cbranch_scc1 {sk}')
    a('s_getpc_b64 s[26:27]')
    a.label(f'{name}_pc')
    a(f's_sub_u32 s26, s26, {name}_pc-{name}')
    a('s_subb_u32 s27, s27, 0')
    a(f's_lshl_b32 s28, s{S_I}, 11')
    a('v_lshl_add_u32 v10, v2, 7, s28')
    a(f'v_min_u32 v10, {name}_end-{name}, v10')
    a('s_mov_b64 exec, 0xffff')
    a('global_load_dword v255, v10, s[26:27]')
    a('s_mov_b64 exec, -1')
    a.label(sk)
    common_consts()
    ACC = 16; FR = [64, 80, 96]; AX = 112; AW = 116
    a(f's_lshr_b32 s30, s{S_Q}, 1')
    a(f's_and_b32 s31, s{S_Q}, 1')
    a('s_lshl_b32 s27, s30, 5')
    a('v_add_u32 v10, s27, v4')
    a('v_lshlrev_b32 v10, 7, v10')
    a('v_bfe_u32 v11, v4, 1, 3')
    for ks in range(4):
        a(f'v_add_u32 v12, {2*ks}, v5')
        a('v_xor_b32 v12, v12, v11')
        a(f'v_lshl_add_u32 v{AX+ks}, v12, 4, v10')
    a('v_lshl_add_u32 v10, v5, 3, v8')
    a('v_lshlrev_b32 v10, 7, v10')
    a('v_lshl_add_u32 v10, v9, 3, v10')
    a('v_and_b32 v11, 1, v7')
    a('s_lshl_b32 s27, s31, 1')
    a('v_add_u32 v11, s27, v11')
    a('v_and_b32 v12, 2, v8')
    a('v_xor_b32 v11, v11, v12')
    a(f'v_lshl_add_u32 v{AW}, v11, 5, v10')
    a(f'v_add_u32 v{AW}, {WL}, v{AW}')
    a(f'v_xor_b32 v{AW+1}, 32, v{AW}')
    a(f'v_add_u32 v{AW+1}, 512, v{AW+1}')
    a(f'v_add_u32 v{AW+2}, {2*WSLOT}, v{AW}')
    a(f'v_add_u32 v{AW+3}, {2*WSLOT}, v{AW+1}')
    a('s_waitcnt lgkmcnt(0)')
    srd(16, P_DBG, 256)
    srd(8, P_WS, WS_USED)
    sk = L('nc')
    a(f's_or_b32 s27, s2, s{S_WAVE}')
    a(f's_cmp_lg_u32 s27, 0\ns_cbranch_scc1 {sk}')
    a('s_memrealtime s[26:27]')
    a('s_waitcnt lgkmcnt(0)')
    a('s_lshl_b64 s[26:27], s[26:27], 5')
    a('s_or_b32 s26, s26, 16')
    a('v_mov_b32 v12, s26\nv_mov_b32 v13, s27')
    a('s_mov_b64 exec, 1')
    a('buffer_store_dwordx2 v[12:13], off, s[16:19], 0 sc1')
    a('s_mov_b64 exec, -1')
    a.label(sk)
    EA = 120
    a('s_lshl_b32 s27, s31, 7')
    a(f's_add_u32 s27, s27, {CSUM}')
    a(f'v_lshl_add_u32 v{EA}, v5, 4, s27')
    a(f'v_lshl_add_u32 v{EA+1}, v4, 2, s27')
    a('s_lshl_b32 s27, s30, 7')
    a(f's_add_u32 s27, s27, {RST}')
    a(f'v_lshl_add_u32 v{EA+2}, v4, 2, s27')
    a(f'v_lshl_add_u32 v{EA+3}, v5, 4, s27')
    a('v_lshrrev_b32 v10, 4, v4')
    a('v_lshlrev_b32 v10, 16, v10')
    a('v_lshl_add_u32 v10, v5, 8, v10')
    a(f'v_lshl_add_u32 v{EA+4}, v6, 4, v10')
    a(f's_lshl_b32 s26, s{S_I}, 1')
    a('s_add_u32 s26, s26, s30')
    a('s_lshl_b32 s26, s26, 10')
    a('s_lshl_b32 s27, s31, 17')
    a('s_add_u32 s26, s26, s27')
    a(f's_add_u32 s{S_A}, s26, s{S_QKV}')
    a(f'v_lshlrev_b32 v{EA+5}, 18, v7')
    a('v_bfe_u32 v10, v2, 3, 1')
    a(f'v_lshl_add_u32 v{EA+5}, v10, 16, v{EA+5}')
    a('v_and_b32 v10, 7, v2')
    a(f'v_lshl_add_u32 v{EA+5}, v10, 7, v{EA+5}')
    sk = L('xc')
    a(f's_cmp_lg_u32 s{S_WAVE}, 0\ns_cbranch_scc1 {sk}')
    a(f's_add_u32 s26, s{S_GB}, {G_FQ}')
    a('buffer_load_dword v254, v1, s[8:11], s26 offen sc1')
    a.label(sk)
    def rd_list(n):
        c, ks = n >> 2, n & 3; b = FR[n % 3]
        slot = c % NSLOT
        l = [f'ds_read_b128 {vr(b,4)}, v{AX+ks} offset:{XL + c*8192}']
        for j in range(3):
            for sec in range(2):
                l.append(f'ds_read_b64_tr_b16 {vr(b+4+4*j+2*sec,2)}, v{AW+sec+(2 if slot == 2 else 0)} offset:{(slot&1)*WSLOT + j*8192 + ks*2048}')
        return l
    T.stamp('p1.c_pre')
    fixwait('fixb0', 12)
    a('s_barrier')
    T.stamp('c_b0'); T.stamp('p1.c_b0')
    for l in rd_list(0): a(l)
    for l in rd_list(1): a(l)
    CV = 128; RV = 160; SC = 192
    for n in range(32):
        c, ks = n >> 2, n & 3
        b = FR[n % 3]
        z = lambda r, k: '0' if n == 0 else vr(r, k)
        if ks == 2:
            a('s_waitcnt lgkmcnt(0)')
            T.stamp(f'p1.c_w{c+1}')
            a('s_barrier')
            T.stamp(f'p1.c_b{c+1}')
        elif n < 31:
            a('s_waitcnt lgkmcnt(7)')
        rl = rd_list(n + 2) if n + 2 < 32 else []
        if n == 30:
            rl = [f'ds_read_b32 v{SC}, v{EA+2}', f'ds_read_b32 v{SC+1}, v{EA+2} offset:256', f'ds_read_b32 v{SC+2}, v{EA+1} offset:512'] + \
                 [f'ds_read_b128 {vr(CV+16*j+4*q,4)}, v{EA} offset:{256*j+32*q}' for j in range(2) for q in range(4)]
        if n == 31:
            rl = [f'ds_read_b128 {vr(RV+16*j+4*q,4)}, v{EA+3} offset:{256*j+32*q}' for j in range(2) for q in range(4)]
        if n == 13:
            a('s_mov_b64 exec, 0xffffffffffff' if False else 's_mov_b32 exec_hi, 0xffff')
            a(f'buffer_load_dword v253, v{EA+5}, s[8:11], s{S_A} offen sc1')
            a('s_mov_b32 exec_hi, -1')
        if n == 8: a('buffer_load_dwordx2 v[14:15], off, s[16:19], 0 sc1')
        if n == 12:
            a('s_waitcnt vmcnt(0)')
            a(f'v_readfirstlane_b32 s{S_NON}, v14')
            a(f'v_readfirstlane_b32 s{S_NON+1}, v15')
            sk = L('xp')
            a(f's_cmp_lg_u32 s{S_WAVE}, 0\ns_cbranch_scc1 {sk}')
            xcc_publish(14, 15)
            a.label(sk)
        if n == 28: xcc_load(12, 10)
        k = (len(rl) + 2) // 3
        a(f'v_mfma_f32_32x32x16_bf16 {vr(ACC,16)}, {vr(b+4,4)}, {vr(b,4)}, {z(ACC,16)}')
        for l in rl[0:k]: a(l)
        a(f'v_mfma_f32_32x32x16_bf16 {vr(ACC+16,16)}, {vr(b+8,4)}, {vr(b,4)}, {z(ACC+16,16)}')
        for l in rl[k:2*k]: a(l)
        a(f'v_mfma_f32_32x32x16_bf16 {vr(ACC+32,16)}, {vr(b,4)}, {vr(b+12,4)}, {z(ACC+32,16)}')
        for l in rl[2*k:]: a(l)
    T.stamp('c_gemm')
    a('s_waitcnt vmcnt(0) lgkmcnt(8)')
    a(f'v_mul_f32 v{SC+4}, {H(QSCALE)}, v{SC}')
    a(f'v_mul_f32 v{SC+5}, {H(QSCALE)}, v{SC+1}')
    calc_mode(12)
    PK = 200
    lines = []
    for j in range(2):
        sc = SC + 4 if j == 0 else SC
        for p in range(8):
            lines.append(f'v_pk_mul_f32 {vr(CV+16*j+2*p,2)}, {vr(CV+16*j+2*p,2)}, {vr(sc,2)} op_sel_hi:[1,0]')
        for o in range(2):
            for p in range(4*o, 4*o+4):
                A_ = ACC+16*j+2*p
                lines.append(f'v_pk_fma_f32 {vr(A_,2)}, {vr(A_,2)}, {vr(sc,2)}, {vr(CV+16*j+2*p,2)} op_sel:[0,1,0]')
            for p in range(4*o, 4*o+4):
                A_ = ACC+16*j+2*p
                lines.append(f'v_cvt_pk_bf16_f32 v{PK+8*j+p}, v{A_}, v{A_+1}')
            lines.append(f's_add_u32 s26, s{S_A}, {j*0x40000 + o*0x10000}')
            lines.append(f'buffer_store_dwordx4 {vr(PK+8*j+4*o,4)}, v3, s[8:11], s26 offen')
    lines.append('s_waitcnt lgkmcnt(0)')
    lines.append(f's_add_u32 s26, s{S_A}, 0x80000')
    for p in range(8):
        lines.append(f'v_pk_mul_f32 {vr(RV+2*p,2)}, {vr(RV+2*p,2)}, {vr(SC+2,2)} op_sel_hi:[1,0]')
    for o in range(2):
        for p in range(4*o, 4*o+4):
            A_ = ACC+32+2*p
            lines.append(f'v_pk_fma_f32 {vr(A_,2)}, {vr(A_,2)}, {vr(RV+16+2*p,2)}, {vr(RV+2*p,2)}')
        for p in range(4*o, 4*o+4):
            A_ = ACC+32+2*p
            lines.append(f'v_cvt_pk_bf16_f32 v{PK+16+p}, v{A_}, v{A_+1}')
        lines.append(f'buffer_store_dwordx4 {vr(PK+16+4*o,4)}, v{EA+4}, s[8:11], s26 offen offset:{512*o}')
    st2(lines)
    T.stamp('p1.c_st')

    Q, SA, SB, O, P, KB, VB, AV = 12, 20, 36, 52, 84, 92, 100, 116
    XR = 120
    a('v_lshlrev_b32 v10, 8, v5')
    a('v_lshl_add_u32 v10, v6, 4, v10')
    a('v_and_b32 v11, 11, v6')
    a('v_cmp_eq_u32 vcc, 0, v11')
    a(f'v_mov_b32 v11, {CONST + 16}')
    a(f'v_mov_b32 v{SA}, {CONST}')
    a(f'v_cndmask_b32 v11, v11, v{SA}, vcc')
    a(f'v_add_u32 v{SA}, 4, v6')
    a(f'v_and_b32 v{SA}, 8, v{SA}')
    a(f'v_lshl_add_u32 v11, v{SA}, 4, v11')
    a('v_cmp_gt_u32 vcc, 16, v4')
    for s in range(4):
        a(f'v_add_u32 v{SA}, {RING + s*8192 + 4096}, v10')
        a(f'v_cndmask_b32 v{AV+s}, v11, v{SA}, vcc')
    a(f's_lshl_b32 s28, s{S_CT}, 13')
    a(f's_lshl_b32 s27, s{S_Q}, 11')
    a('s_add_u32 s28, s28, s27')
    a(f's_add_u32 s{S_U}, s28, s{S_HD}')
    a(f's_mul_i32 s{S_B}, s{S_CT}, 7')
    a(f's_add_u32 s{S_B}, s{S_B}, s{S_Q}')
    a(f's_lshl_b32 s{S_B}, s{S_B}, 15')
    a(f's_add_u32 s{S_B}, s{S_B}, {W3F}')
    a(f's_sub_u32 s33, s{S_W4}, 4096')
    a(f's_cmp_eq_u32 s{S_Q}, 3')
    a(f's_cselect_b32 s{S_B}, s33, s{S_B}')
    sk = L('gn')
    a(f's_cmp_lg_u32 s{S_NON}, 0\ns_cbranch_scc1 {sk}')
    get_nonce()
    xcc_publish(10, 11)
    a.label(sk)
    flag_prep()
    a(f'v_mov_b32 v{SA}, {NONL}')
    a(f'ds_write_b64 v{SA}, v[10:11]')
    a(f's_lshl_b32 s26, s{S_I}, 3')
    a(f's_add_u32 s26, s26, s{S_GB}')
    a(f's_add_u32 s26, s26, {G_FQ}')
    a('s_waitcnt vmcnt(0) lgkmcnt(0)')
    a('s_barrier')
    sk = L('qf')
    a(f's_cmp_lg_u32 s{S_WAVE}, 0\ns_cbranch_scc1 {sk}')
    st2(flag_lines('s26'))
    a.label(sk)
    T.stamp('c_pub')
    srd(16, P_X, 0x200000)
    a(f's_lshl_b32 s33, s{S_X}, 4')
    a(f's_add_u32 s33, s33, s{S_SLAB}')
    a('s_lshl_b32 s33, s33, 14')
    a(f's_lshl_b32 s27, s{S_CT}, 7')
    a('s_add_u32 s33, s33, s27')
    a('v_lshlrev_b32 v128, 10, v6')
    a('v_lshl_add_u32 v128, v7, 3, v128')
    def rdK(t): a(f'ds_read_b128 {vr(KB+4*(t&1),4)}, v3 offset:{RING + ((t>>2)&3)*8192 + (t&3)*1024}')
    def rdV(t, f): a(f'ds_read_b128 {vr(VB+8*(t&1)+4*f,4)}, v{AV+((t>>2)&3)} offset:{(t&3)*1024+f*512}')
    def mfS(n):
        S = SA if (n & 1) == 0 else SB
        if 'noqk' in opt and n > 1: return
        a(f'v_mfma_f32_32x32x16_bf16 {vr(S,16)}, {vr(KB+4*((n>>1)&1),4)}, {vr(Q+4*(n&1),4)}, 0')
    def mfO(n, f):
        Ou = O + 16*(n & 1)
        if 'nopv' in opt and n > 1: return
        if 'pv16' in opt:
            a(f'v_mfma_f32_16x16x32_bf16 {vr(Ou+8,4)}, {vr(VB+8*((n>>1)&1)+4*f,4)}, {vr(P+4*f,4)}, {"0" if n < 2 and f == 0 else vr(Ou+8,4)}')
            return
        c_ = '0' if (n < 2 and f == 0) else vr(Ou,16)
        a(f'v_mfma_f32_32x32x16_bf16 {vr(Ou,16)}, {vr(VB+8*((n>>1)&1)+4*f,4)}, {vr(P+4*f,4)}, {c_}')
    a(f's_lshl_b32 s26, s{S_CT}, 5')
    a(f's_lshl_b32 s27, s{S_Q}, 3')
    a('s_add_u32 s26, s26, s27')
    a(f's_add_u32 s26, s26, s{S_GB}')
    a(f's_add_u32 s26, s26, {G_FQ}')
    poll('v1', 's26', '1')
    a(f'buffer_load_dwordx4 {vr(Q,4)}, v3, s[8:11], s{S_U} offen sc1')
    a(f'buffer_load_dwordx4 {vr(Q+4,4)}, v3, s[8:11], s{S_U} offen offset:1024 sc1')
    a('s_waitcnt vmcnt(0)')
    fixwait('fixa0', 20)
    a('s_barrier')
    T.stamp('c_kv0'); T.stamp('att.c0'); T.stamp('att.r0', True)
    rdK(0); rdK(1); rdV(0, 0); rdV(0, 1)
    a('s_waitcnt lgkmcnt(3)')
    mfS(0)
    NS = 128
    cjobs = list(range(8, 32))
    for n in range(NS):
        t = n >> 1
        S = SA if (n & 1) == 0 else SB
        ex = lambda i: a(f'v_exp_f32 v{(132+i) if "noqk" in opt else (S+i)}, v{S+i}')
        cv = lambda j: a(f'v_cvt_pk_bf16_f32 v{P+j}, v{S+2*j}, v{S+2*j+1}')
        even = (n & 1) == 0
        if even:
            a('s_waitcnt lgkmcnt(0)')
            if (t + 2) % 4 == 0 and (t + 2) // 4 < 16: a('s_barrier')
        if n + 1 < NS: mfS(n + 1)
        ex(0); ex(1)
        if even and t + 2 < 64: rdK(t + 2)
        if n in (33, 34, 41, 42):
            k = (33, 34, 41, 42).index(n)
            a(f'buffer_load_dwordx2 {vr(XR+2*k,2)}, v128, s[16:19], s33 offen offset:{32*k}')
        if n == 50: xcc_load(130, 129)
        if n >= 60 and ((n + 4) % 8) >= 5 and cjobs:
            i = cjobs.pop(0)
            if 'nojobs' in opt: pass
            if i % 4 == 0: a(f's_add_u32 s30, s{S_B}, {(i >> 2)*4096}')
            if 'nojobs' not in opt and 'nocj' not in opt: a(f'buffer_load_dwordx4 {vr(W3+4*i,4)}, v3, s[8:11], s30 offen offset:{(i&3)*1024} sc1')
        ex(2); cv(0); ex(3); ex(4); ex(5); cv(1)
        if n > 0: mfO(n - 1, 1)
        ex(6); ex(7)
        if even and t + 1 < 64: rdV(t + 1, 0)
        cv(2); ex(8); cv(3); ex(9)
        if even and t + 1 < 64: rdV(t + 1, 1)
        ex(10)
        mfO(n, 0)
        ex(11); cv(4); ex(12); ex(13); cv(5); ex(14); ex(15); cv(6); cv(7)
    assert not cjobs
    mfO(NS - 1, 1)
    T.stamp('c_attn_end'); T.stamp('att.c1'); T.stamp('att.r1', True)
    a('s_waitcnt vmcnt(0)')
    calc_mode(130)
    if 'slowsafe' in opt:
        sk = L('ss')
        a(f's_cmp_lg_u32 s{S_MODE}, 0\ns_cbranch_scc1 {sk}')
        for i in range(6): a('s_sleep 127')
        a.label(sk)
    a(f's_lshl_b32 s29, s{S_X}, 2')
    a(f's_add_u32 s29, s29, s{S_RB}')
    a(f's_lshl_b32 s26, s{S_CT}, 21')
    a(f's_lshl_b32 s27, s{S_Q}, 16')
    a('s_add_u32 s26, s26, s27')
    a('s_lshl_b32 s27, s29, 9')
    a('s_add_u32 s26, s26, s27')
    a(f's_add_u32 s26, s26, {GB + G_O}')
    a('s_add_u32 s27, s26, 32768')
    a(f's_lshl_b32 s28, s{S_CT}, 14')
    a(f's_lshl_b32 s30, s{S_Q}, 12')
    a('s_add_u32 s28, s28, s30')
    a('s_lshl_b32 s30, s29, 7')
    a('s_add_u32 s28, s28, s30')
    a(f's_add_u32 s28, s28, {F_O}')
    a(f'v_lshrrev_b32 v{KB}, 4, v4')
    a(f'v_lshlrev_b32 v{KB}, 14, v{KB}')
    a(f'v_lshl_add_u32 v{KB}, v5, 8, v{KB}')
    a(f'v_lshl_add_u32 v{KB}, v6, 4, v{KB}')
    FB, FBR = L('fb'), L('fbr')
    for u in range(2):
        Ou = O + 16*u
        a(f'v_max3_f32 v{SA+u}, |v{Ou}|, |v{Ou+1}|, |v{Ou+2}|')
        a(f'v_max3_f32 v{SA+u}, |v{Ou+3}|, |v{Ou+4}|, v{SA+u}')
        a(f'v_max3_f32 v{SA+u}, |v{Ou+5}|, |v{Ou+6}|, v{SA+u}')
    a(f'v_max3_f32 v{SA}, |v{O+7}|, |v{O+23}|, v{SA}')
    a(f'v_max_f32 v{SA}, v{SA}, v{SA+1}')
    a(f'v_mul_f32 v{SA}, {H(2.0**-60)}, v{SA}')
    a(f'v_max3_f32 v{SA}, v{O+8}, v{O+24}, v{SA}')
    a(f'v_min_f32 v{SA+1}, v{O+8}, v{O+24}')
    a(f'v_cmp_nle_f32 vcc, v{SA}, v{SA+2}' if False else f'v_mov_b32 v{SA+2}, {H(2.0**60)}')
    a(f'v_cmp_nle_f32 vcc, v{SA}, v{SA+2}')
    a(f'v_cmp_u_f32 s[30:31], v{O+8}, v{O+24}')
    a(f'v_cmp_ngt_f32 s[32:33], v{SA+1}, v{SA+3}' if False else f'v_mov_b32 v{SA+3}, {H(2.0**-60)}')
    a(f'v_cmp_ngt_f32 s[32:33], v{SA+1}, v{SA+3}')
    a('s_or_b64 vcc, vcc, s[30:31]')
    a('s_or_b64 vcc, vcc, s[32:33]')
    if force_fallback: a('s_mov_b64 vcc, -1')
    if 'nofb' in opt: a('s_mov_b64 vcc, 0')
    a(f's_cbranch_vccnz {FB}')
    a.label(FBR)
    for u in range(2):
        Ou = O + 16*u
        a(f'v_rcp_f32 v{SA+u}, v{Ou+8}')
    flag_prep()
    for u in range(2):
        Ou = O + 16*u
        for p in range(4): a(f'v_pk_mul_f32 {vr(Ou+2*p,2)}, {vr(Ou+2*p,2)}, {vr(SA,2)} ' + ('op_sel_hi:[1,0]' if u == 0 else 'op_sel:[0,1]'))
        for j in range(4): a(f'v_cvt_pk_bf16_f32 v{P+4*u+j}, v{Ou+2*j}, v{Ou+2*j+1}')
    for l in [f'buffer_store_dwordx4 {vr(P,4)}, v{KB}, s[8:11], s26 offen', f'buffer_store_dwordx4 {vr(P+4,4)}, v{KB}, s[8:11], s27 offen',
         's_waitcnt vmcnt(0)'] + flag_lines('s28'): a(l + (' sc1' if l.startswith('buffer') else ''))
    a('s_barrier')
    T.stamp('c_pub0')

    GC0 = 12; AWA, AWB = 14, 15; HB = 16; MU, R1 = 24, 25; TMP = 26
    ACC = 32; ACT = 48; WF = 128; NWS = 2; CV = 112; LEAD = 6
    S_TA, S_SA, S_FA = 33, 34, 35
    a(f'v_add_u32 v{AWA}, {WA}, v3')
    a(f'v_add_u32 v{AWB}, {WB}, v3')
    def wread(ph, s, nt):
        b = WF + 16*(s % NWS) + 4*nt
        if ph == 2 and s == 15: return f'ds_read_b128 {vr(b,4)}, v3 offset:{W1X + nt*1024}'
        if ph == 3 and s < NW2L: return f'ds_read_b128 {vr(b,4)}, v3 offset:{W2L + s*4096 + nt*1024}'
        return f'ds_read_b128 {vr(b,4)}, v{AWB if ph == 2 else AWA} offset:{s*4096 + nt*1024}'
    def wpre(ph):
        for s in range(NWS):
            for nt in range(4): a(wread(ph, s, nt))
    def gemm64(ph, ld, fill=None, zero=False):
        T.stamp(f'g.p{ph}_go')
        for s in range(LEAD): ld(s)
        fill = list(fill or [])
        for s in range(16):
            b = WF + 16*(s % NWS)
            for nt in range(4):
                out = min(4*NWS - 1, 4*(16 - s) - nt - 1)
                if nt == 0:
                    a.vwait(('a', s), f'lgkmcnt({out})')
                    if s in (0, 8, 15): T.stamp(f'g.p{ph}_s{s}')
                else: a(f's_waitcnt lgkmcnt({out})')
                c_ = '0' if (s == 0 and zero) else vr(ACC+4*nt,4)
                a(f'v_mfma_f32_16x16x32_bf16 {vr(ACC+4*nt,4)}, {vr(b+4*nt,4)}, {vr(ACT+4*s,4)}, {c_}')
                if s + NWS < 16: a(wread(ph, s + NWS, nt))
                if nt == 1 and s + LEAD < 16: ld(s + LEAD)
                if s >= 4 and fill: a(fill.pop(0))
        assert not fill
    def ld_plain(s):
        if s and s % 4 == 0: a('s_add_u32 s29, s29, 4096')
        a.vissue(f'buffer_load_dwordx4 {vr(ACT+4*s,4)}, v3, s[8:11], s29 offen offset:{(s&3)*1024} sc1', ('a', s))
    def xsum_lines(r0, r1, t0, t1):
        l = []
        for sw in ('v_permlane16_swap_b32', 'v_permlane32_swap_b32'):
            l += [f'v_mov_b32 v{t0}, v{r0}', f'v_mov_b32 v{t1}, v{r1}', f'{sw} v{r0}, v{t0}', f'{sw} v{r1}, v{t1}',
                  f'v_add_f32 v{r0}, v{r0}, v{t0}', f'v_add_f32 v{r1}, v{r1}, v{t1}']
        return l
    def addrs(act, tile, stats, flag):
        a(f's_lshl_b32 s26, s{S_SLAB}, 14')
        a(f's_add_u32 s26, s26, s{S_GB}')
        if act is not None: a(f's_add_u32 s29, s26, {act}')
        a(f's_lshl_b32 s27, s{S_CT}, 11')
        a(f's_add_u32 s{S_TA}, s26, s27')
        a(f's_add_u32 s{S_TA}, s{S_TA}, {tile}')
        a(f's_lshl_b32 s27, s{S_CT}, 3')
        a(f's_add_u32 s27, s27, s{S_GB}')
        if stats is not None:
            a(f's_lshl_b32 s{S_SA}, s{S_SLAB}, 10')
            a(f's_add_u32 s{S_SA}, s{S_SA}, s27')
            a(f's_add_u32 s{S_SA}, s{S_SA}, {stats}')
        a(f's_lshl_b32 s{S_FA}, s{S_SLAB}, 6')
        a(f's_add_u32 s{S_FA}, s{S_FA}, s27')
        a(f's_add_u32 s{S_FA}, s{S_FA}, {flag}')
    def pack16(dst):
        for nt in range(4):
            a(f'v_cvt_pk_bf16_f32 v{dst+2*nt}, v{ACC+4*nt}, v{ACC+4*nt+1}')
            a(f'v_cvt_pk_bf16_f32 v{dst+2*nt+1}, v{ACC+4*nt+2}, v{ACC+4*nt+3}')
    def tile_st(src):
        return [f'buffer_store_dwordx4 {vr(src,4)}, v3, s[8:11], s{S_TA} offen', f'buffer_store_dwordx4 {vr(src+4,4)}, v3, s[8:11], s{S_TA} offen offset:1024']
    def stats_lines(t):
        l = [f'v_pk_add_f32 {vr(t,2)}, {vr(ACC,2)}, {vr(ACC+2,2)}', f'v_pk_mul_f32 {vr(t+2,2)}, {vr(ACC,2)}, {vr(ACC,2)}',
             f'v_pk_fma_f32 {vr(t+2,2)}, {vr(ACC+2,2)}, {vr(ACC+2,2)}, {vr(t+2,2)}']
        for p in range(2, 8):
            l += [f'v_pk_add_f32 {vr(t,2)}, {vr(t,2)}, {vr(ACC+2*p,2)}', f'v_pk_fma_f32 {vr(t+2,2)}, {vr(ACC+2*p,2)}, {vr(ACC+2*p,2)}, {vr(t+2,2)}']
        l += [f'v_add_f32 v{t}, v{t}, v{t+1}', f'v_add_f32 v{t+1}, v{t+2}, v{t+3}']
        l += xsum_lines(t, t+1, t+2, t+3)
        l += ['s_mov_b64 exec, 0xffff', f'buffer_store_dwordx2 {vr(t,2)}, v{TMP+5}, s[8:11], s{S_SA} offen']
        return l
    def gelu_pk(regs, tmp):
        n = len(regs)
        for i, r in enumerate(regs): a(f'v_pk_mul_f32 {vr(tmp+2*i,2)}, {vr(r,2)}, {vr(r,2)}')
        for i, r in enumerate(regs): a(f'v_pk_fma_f32 {vr(tmp+2*i,2)}, {vr(tmp+2*i,2)}, {sr(S_C1,2)}, {vr(GC0,2)}')
        for i, r in enumerate(regs): a(f'v_pk_mul_f32 {vr(tmp+2*i,2)}, {vr(tmp+2*i,2)}, {vr(r,2)}')
        for i in range(2*n): a(f'v_exp_f32 v{tmp+i}, v{tmp+i}')
        for i, r in enumerate(regs): a(f'v_pk_add_f32 {vr(tmp+2*i,2)}, {vr(tmp+2*i,2)}, {sr(S_ONE,2)}')
        for i in range(2*n): a(f'v_rcp_f32 v{tmp+i}, v{tmp+i}')
        for i, r in enumerate(regs): a(f'v_pk_mul_f32 {vr(r,2)}, {vr(r,2)}, {vr(tmp+2*i,2)}')

    wpre(1)
    for nt in range(4):
        for p in range(2):
            a(f'v_lshlrev_b32 v{ACC+4*nt+2*p}, 16, v{XR+2*nt+p}')
            a(f'v_and_b32 v{ACC+4*nt+2*p+1}, 0xffff0000, v{XR+2*nt+p}')
    addrs(G_O, G_H, G_ST1, G_FH)
    a(f'v_lshlrev_b32 v{TMP+5}, 6, v6')
    sk = L('of')
    a(f's_cmp_lg_u32 s{S_WAVE}, 0\ns_cbranch_scc1 {sk}')
    a(f's_lshl_b32 s28, s{S_X}, 14')
    a(f's_lshl_b32 s27, s{S_RB}, 12')
    a('s_add_u32 s28, s28, s27')
    a(f's_add_u32 s28, s28, {F_O}')
    a('s_mov_b32 s30, -1\ns_mov_b32 s31, 0')
    a(f'v_lshlrev_b32 v{TMP}, 7, v2')
    poll(f'v{TMP}', 's28', 's[30:31]', sleep=1)
    a.label(sk)
    fixwait('fixa17', 45)
    a('s_barrier')
    a.vm = ['fl']
    T.stamp('p1_poll')
    gemm64(1, ld_plain)
    T.stamp('p1_gemm')
    flag_prep()
    pack16(HB)
    st2(tile_st(HB) + stats_lines(ACT) + ['s_waitcnt vmcnt(0)'] + flag_lines(f's{S_FA}'))
    a('s_barrier')
    T.stamp('pub1')
    wpre(2)
    a('v_lshlrev_b32 v10, 4, v7')
    for nt in range(4): a(f'ds_read_b128 {vr(CV+4*nt,4)}, v10 offset:{CS1 + 64*nt}')
    a(f'v_mov_b32 v{GC0}, {H(GELU_C0)}\nv_mov_b32 v{GC0+1}, {H(GELU_C0)}')
    addrs(G_H, G_HH, None, G_FHH)
    a(f's_lshl_b32 s28, s{S_SLAB}, 6')
    a(f's_add_u32 s28, s28, s{S_GB}')
    a(f's_add_u32 s28, s28, {G_FH}')
    a(f's_add_u32 s27, s{S_SLAB}, 1')
    a('s_and_b32 s27, s27, 14')
    a('s_cmp_eq_u32 s27, 0')
    a(f's_cselect_b32 s{S_M2}, 0, s{S_MODE}')
    a(f's_cselect_b32 s{S_U+1}, 1, 0')
    a(f's_cmp_eq_u32 s{S_SLAB}, 0')
    a(f's_mov_b32 s{S_U+2}, {0x200000 + G_FHX}')
    a(f's_cselect_b32 s{S_U+2}, {(G_FHX + 1024 - 0x200000) & 0xffffffff}, s{S_U+2}')
    a(f's_add_u32 s{S_U+2}, s{S_U+2}, s{S_GB}')
    a(f's_lshl_b32 s27, s{S_CT}, 7')
    a(f's_add_u32 s{S_U+2}, s{S_U+2}, s27')
    a(f's_lshl_b32 s27, s{S_X}, 4')
    a(f's_add_u32 s27, s27, s{S_SLAB}')
    a('s_add_u32 s27, s27, 1')
    a('s_and_b32 s27, s27, 126')
    a('s_cmp_eq_u32 s27, 0')
    a(f's_cselect_b32 s{S_U+1}, 0, s{S_U+1}')
    a(f'v_lshl_add_u32 v{TMP+4}, v7, 4, v{TMP+5}')
    a(f's_lshl_b32 s{S_SA}, s{S_SLAB}, 10')
    a(f's_add_u32 s{S_SA}, s{S_SA}, s{S_GB}')
    a(f's_add_u32 s{S_SA}, s{S_SA}, {G_ST1}')
    a('s_waitcnt lgkmcnt(0)')
    poll('v1', 's28', '0xff')
    T.stamp('p2_poll')
    a.vissue(f'buffer_load_dwordx4 {vr(TMP,4)}, v{TMP+4}, s[8:11], s{S_SA} offen sc1', 'st')
    fill = [f'v_add_f32 v{TMP}, v{TMP}, v{TMP+2}', f'v_add_f32 v{TMP+1}, v{TMP+1}, v{TMP+3}'] + xsum_lines(TMP, TMP+1, TMP+2, TMP+3) + [
        f'v_mul_f32 v{MU}, {H(-1/512)}, v{TMP}', f'v_mul_f32 v{TMP+1}, {H(1/512)}, v{TMP+1}',
        f'v_fma_f32 v{TMP+1}, -v{MU}, v{MU}, v{TMP+1}', f'v_max_f32 v{TMP+1}, 0, v{TMP+1}',
        f'v_add_f32 v{TMP+2}, {H(1e-5)}, v{TMP+1}', f'v_rsq_f32 v{R1}, v{TMP+2}', f'v_mul_f32 v{TMP+2}, v{R1}, v{R1}',
        f'v_fmaak_f32 v{TMP+2}, v{TMP+2}, v{TMP+1}, {H(1e-5)}', f'v_rsq_f32 v{TMP+2}, v{TMP+2}', f'v_mul_f32 v{TMP+2}, v{TMP+2}, v{R1}',
        f'v_mul_f32 v{TMP+3}, v{TMP+2}, v{MU}'] + [f'v_mul_f32 v{CV+i}, v{TMP+3}, v{CV+i}' for i in range(16)]
    gemm64(2, ld_plain, fill, zero=True)
    T.stamp('p2_gemm')
    flag_prep()
    for p in range(8): a(f'v_pk_fma_f32 {vr(ACC+2*p,2)}, {vr(ACC+2*p,2)}, {vr(TMP+2,2)}, {vr(CV+2*p,2)} op_sel_hi:[1,0,1]')
    gelu_pk([ACC+2*p for p in range(8)], ACT)
    pack16(ACT+16)
    st2(tile_st(ACT+16) + ['s_waitcnt vmcnt(0)'], S_M2)
    st2(flag_lines(f's{S_FA}'))
    sk = L('hx')
    a(f's_cmp_eq_u32 s{S_U+1}, 0\ns_cbranch_scc1 {sk}')
    for l in flag_lines(f's{S_U+2}'): a(l + (' sc1' if l.startswith('buffer') else ''))
    a.label(sk)
    a('s_barrier')
    T.stamp('pub2')
    wpre(3)
    for nt in range(4):
        for p in range(2):
            a(f'v_lshlrev_b32 v{ACC+4*nt+2*p}, 16, v{HB+2*nt+p}')
            a(f'v_and_b32 v{ACC+4*nt+2*p+1}, 0xffff0000, v{HB+2*nt+p}')
    for p in range(8): a(f'v_pk_add_f32 {vr(ACC+2*p,2)}, {vr(ACC+2*p,2)}, {vr(MU,2)} op_sel_hi:[1,0]')
    for p in range(8): a(f'v_pk_mul_f32 {vr(ACC+2*p,2)}, {vr(ACC+2*p,2)}, {vr(MU,2)} op_sel:[0,1]')
    addrs(None, G_X1, G_ST2, G_FX1)
    a(f's_lshl_b32 s27, s{S_X}, 4')
    a(f's_add_u32 s27, s27, s{S_SLAB}')
    a('s_mov_b32 s30, 0xccff33')
    a('s_cmp_eq_u32 s27, 0')
    a('s_cselect_b32 s30, 0xccff00, s30')
    a('s_cmp_eq_u32 s27, 127')
    a('s_cselect_b32 s30, 0x00ff33, s30')
    a('s_mov_b32 s31, 0')
    a('s_lshl_b32 s26, s27, 4')
    a(f's_lshl_b32 s28, s{S_SLAB}, 6')
    a(f's_add_u32 s28, s28, {G_FHH - 64}')
    a(f'v_add_u32 v{TMP+4}, s28, v1')
    a('v_lshrrev_b32 v10, 3, v2')
    a(f's_sub_u32 s27, s{S_SLAB}, 1')
    a('v_add_u32 v10, s27, v10')
    a('v_cmp_lt_u32 vcc, 15, v10')
    a('v_and_b32 v10, 7, v2')
    a('v_lshl_add_u32 v10, v7, 3, v10')
    a('v_lshlrev_b32 v10, 7, v10')
    a(f'v_add_u32 v10, {G_FHX}, v10')
    a(f'v_cndmask_b32 v{TMP+4}, v{TMP+4}, v10, vcc')
    for gi, d in enumerate((-1, 1, -2, 2)):
        a('v_add_u32 v10, s26, v6')
        a(f'v_add_u32 v10, {d}, v10')
        a('v_bfe_u32 v11, v10, 4, 4')
        a('v_lshlrev_b32 v11, 14, v11')
        a(f'v_lshrrev_b32 v{TMP}, 8, v10')
        a(f'v_lshl_add_u32 v11, v{TMP}, 21, v11')
        a(f'v_and_b32 v{TMP}, 15, v10')
        a(f'v_lshl_add_u32 v11, v{TMP}, 4, v11')
        a('v_lshl_add_u32 v11, v7, 8, v11')
        a('v_cmp_gt_u32 vcc, 0x800, v10')
        a(f'v_mov_b32 v{TMP}, 0x70000000')
        a(f'v_cndmask_b32 v{CV+gi}, v{TMP}, v11, vcc')
    poll(f'v{TMP+4}', f's{S_GB}', 's[30:31]')
    T.stamp('p3_poll')
    def ld_shift(s):
        if s % 4 == 0: a(f's_mov_b32 s29, {GB + G_HH + (s>>2)*4096}')
        a.vissue(f'buffer_load_dwordx4 {vr(ACT+4*s,4)}, v{CV+(s>>2)}, s[8:11], s29 offen offset:{(s&3)*1024} sc1', ('a', s))
    gemm64(3, ld_shift)
    a('s_barrier')
    T.stamp('p3_gemm')
    flag_prep()
    pack16(ACT+16)
    st2(tile_st(ACT+16) + stats_lines(ACT) + ['s_waitcnt vmcnt(0)'] + flag_lines(f's{S_FA}'))
    a(f's_lshl_b32 s26, s{S_Q}, 13')
    a(f'v_add_u32 v{AWB}, s26, v{AWB}')
    for i in range(8): a(f'ds_read_b128 {vr(W3+4*i,4)}, v{AWB} offset:{i*1024}')
    T.stamp('pub3')

    a.label(HJOIN)
    a.vm = []
    A4 = 24; C3 = 56; XF = 72; T4 = 88; PKO = 120
    korder = list(range(8, 32)) + list(range(8))
    a(f'v_mov_b32 v{GC0}, {H(GELU_C0)}\nv_mov_b32 v{GC0+1}, {H(GELU_C0)}')
    a('v_lshrrev_b32 v15, 4, v4')
    a('v_lshlrev_b32 v14, 14, v15')
    a('v_lshl_add_u32 v14, v5, 8, v14')
    a('v_lshl_add_u32 v14, v6, 4, v14')
    a(f'v_add_u32 v14, {XT}, v14')
    a('v_mul_u32_u24 v15, 0xe000, v15')
    a('v_lshl_add_u32 v15, v5, 8, v15')
    a('v_lshl_add_u32 v15, v6, 4, v15')
    a('v_lshlrev_b32 v16, 6, v4')
    a('v_lshl_add_u32 v16, v5, 5, v16')
    a(f's_lshl_b32 s26, s{S_J}, 7')
    a(f's_add_u32 s26, s26, {C3L}')
    a('v_lshl_add_u32 v17, v5, 4, s26')
    a(f's_lshl_b32 s26, s{S_J}, 12')
    a('v_add_u32 v18, s26, v3')
    a(f'v_add_u32 v19, {PKB}, v18')
    a(f's_lshl_b32 s28, s{S_R16}, 10')
    a(f's_add_u32 s28, s28, s{S_GB}')
    a(f's_add_u32 s28, s28, {G_ST2}')
    a(f's_mul_i32 s33, s{S_R16}, 57344')
    a(f's_add_u32 s33, s33, s{S_GB}')
    a(f's_add_u32 s33, s33, {G_H2}')
    a(f's_mul_i32 s26, s{S_CT}, 7168')
    a('s_add_u32 s26, s26, s33')
    a(f's_lshl_b32 s27, s{S_J}, 10')
    a('s_add_u32 s26, s26, s27')
    a(f's_add_u32 s27, s26, {2*57344}')
    a(f's_lshl_b32 s34, s{S_RB}, 9')
    a(f's_add_u32 s34, s34, s{S_GB}')
    a(f's_add_u32 s34, s34, {G_FH2}')
    a(f's_lshl_b32 s35, s{S_CT}, 6')
    a('s_add_u32 s35, s35, s34')
    a(f's_lshl_b32 s29, s{S_J}, 3')
    a('s_add_u32 s35, s35, s29')
    for q in range(4): a(f'ds_read_b128 {vr(C3+4*q,4)}, v17 offset:{32*q}')
    a('s_waitcnt vmcnt(8)')
    a('s_barrier')
    T.stamp('p4_go')
    h4, j4 = L('help'), L('join')
    a(f's_cmp_eq_u32 s{S_WAVE}, 3')
    a(f's_cbranch_scc1 {h4}')
    seq = [(mt, ks) for mt in range(2) for ks in korder]
    def rdX(i):
        mt, ks = seq[i]
        a(f'ds_read_b128 {vr(XF+4*(i&3),4)}, v14 offset:{mt*32768 + ks*512}')
    for i in range(3): rdX(i)
    for mt in range(2):
        a(f'buffer_load_dwordx4 {vr(T4+8*mt,4)}, v16, s[8:11], s28 offen offset:{2048*mt} sc1')
        a(f'buffer_load_dwordx4 {vr(T4+8*mt+4,4)}, v16, s[8:11], s28 offen offset:{2048*mt+16} sc1')
    def ldW4(f):
        a(f's_add_u32 s30, s{S_W4}, {(f >> 2)*4096}')
        a(f'buffer_load_dwordx4 {vr(W4+4*f,4)}, v3, s[8:11], s30 offen offset:{(f&3)*1024} sc1')
    def stat4(mt):
        b = T4 + 8*mt
        return [f'v_add_f32 v{b}, v{b}, v{b+2}', f'v_add_f32 v{b+1}, v{b+1}, v{b+3}', f'v_add_f32 v{b+4}, v{b+4}, v{b+6}', f'v_add_f32 v{b+5}, v{b+5}, v{b+7}',
                f'v_add_f32 v{b}, v{b}, v{b+4}', f'v_add_f32 v{b+1}, v{b+1}, v{b+5}', f'v_mov_b32 v{b+2}, v{b}', f'v_mov_b32 v{b+3}, v{b+1}',
                f'v_permlane32_swap_b32 v{b}, v{b+2}', f'v_permlane32_swap_b32 v{b+1}, v{b+3}',
                f'v_add_f32 v{b}, v{b}, v{b+2}', f'v_add_f32 v{b+1}, v{b+1}, v{b+3}',
                f'v_mul_f32 v{b}, {H(-1/512)}, v{b}', f'v_mul_f32 v{b+1}, {H(1/512)}, v{b+1}', f'v_fma_f32 v{b+1}, -v{b}, v{b}, v{b+1}',
                f'v_max_f32 v{b+1}, 0, v{b+1}', f'v_add_f32 v{b+1}, {H(1e-5)}, v{b+1}', f'v_rsq_f32 v{b+1}, v{b+1}']
    def epi_scalar(mt):
        b = T4 + 8*mt; A = A4 + 16*mt; t = T4 + 16
        l = []
        for g in range(4):
            R = [A+4*g+i for i in range(4)]; Tt = [t+4*(g&1)+i for i in range(4)]
            l += [f'v_fmac_f32 v{r}, v{b}, v{C3+4*g+i}' for i, r in enumerate(R)]
            l += [f'v_mul_f32 v{r}, v{b+1}, v{r}' for r in R]
            l += [f'v_mul_f32 v{x}, v{r}, v{r}' for x, r in zip(Tt, R)]
            l += [f'v_fma_f32 v{x}, v{x}, s{S_C1}, v{GC0}' for x in Tt]
            l += [f'v_mul_f32 v{x}, v{x}, v{r}' for x, r in zip(Tt, R)]
            l += [f'v_exp_f32 v{x}, v{x}' for x in Tt]
            l += [f'v_add_f32 v{x}, 1.0, v{x}' for x in Tt]
            l += [f'v_rcp_f32 v{x}, v{x}' for x in Tt]
            l += [f'v_mul_f32 v{r}, v{r}, v{x}' for x, r in zip(Tt, R)]
            l += [f'v_cvt_pk_bf16_f32 v{PKO+2*g}, v{R[0]}, v{R[1]}', f'v_cvt_pk_bf16_f32 v{PKO+2*g+1}, v{R[2]}, v{R[3]}']
        return l
    fill1 = stat4(0) + stat4(1)
    fill2 = epi_scalar(0)
    for i, (mt, ks) in enumerate(seq):
        if i == 20:
            a('s_waitcnt vmcnt(0)')
            a('s_barrier')
        if i + 3 < 64: rdX(i + 3)
        a(f's_waitcnt lgkmcnt({min(3, 63 - i)})')
        c_ = '0' if i % 32 == 0 else vr(A4+16*mt,16)
        a(f'v_mfma_f32_32x32x16_bf16 {vr(A4+16*mt,16)}, {vr(W3+4*ks,4)}, {vr(XF+4*(i&3),4)}, {c_}')
        if mt == 1 and 8 <= ks < 28: ldW4(ks - 4)
        if 20 <= i < 32:
            for l in fill1[:3]: a(l)
            fill1 = fill1[3:]
        if i >= 33:
            for l in fill2[:5]: a(l)
            fill2 = fill2[5:]
    assert not fill1 and not fill2
    T.stamp('p4_gemm')
    st2([f'buffer_store_dwordx4 {vr(PKO,4)}, v15, s[8:11], s26 offen', f'buffer_store_dwordx4 {vr(PKO+4,4)}, v15, s[8:11], s26 offen offset:512'])
    flag_prep()
    b = T4 + 8; A = A4 + 16
    for p in range(8): a(f'v_pk_fma_f32 {vr(A+2*p,2)}, {vr(C3+2*p,2)}, {vr(b,2)}, {vr(A+2*p,2)} op_sel_hi:[1,0,1]')
    for p in range(8): a(f'v_pk_mul_f32 {vr(A+2*p,2)}, {vr(A+2*p,2)}, {vr(b,2)} op_sel:[0,1]')
    gelu_pk([A+2*p for p in range(8)], T4+16)
    for p in range(8): a(f'v_cvt_pk_bf16_f32 v{XF+p}, v{A+2*p}, v{A+2*p+1}')
    st2([f'buffer_store_dwordx4 {vr(XF,4)}, v15, s[8:11], s27 offen', f'buffer_store_dwordx4 {vr(XF+4,4)}, v15, s[8:11], s27 offen offset:512',
         's_waitcnt vmcnt(0)'] + flag_lines('s35'))
    a(f's_branch {j4}')
    a.label(h4)
    a('s_waitcnt lgkmcnt(0)')
    a('s_barrier')
    a(f's_mul_i32 s30, s{S_CT}, 7168')
    a('s_add_u32 s30, s30, s33')
    a('v_lshlrev_b32 v10, 7, v2')
    a('s_mov_b32 exec_hi, 0xffffff')
    for sl in range(4):
        a('buffer_load_dword v11, v10, s[8:11], s30 offen sc1')
        a('s_add_u32 s30, s30, 57344')
    a('s_mov_b32 exec_hi, -1')
    for f in range(4): ldW4(f)
    a(f's_mul_i32 s31, s{S_CT}, 229376')
    for j in range(7):
        v = j if j < 3 else j + 1
        for (lds, f0) in ((PKA, 24), (PKB, 0)):
            a(f's_mov_b32 m0, {lds + j*4096}')
            a(f's_add_u32 s30, s31, {W4F + v*28672 + f0*1024}')
            for i in range(4): a(f'buffer_load_dwordx4 v3, s[8:11], s30 offen offset:{i*1024} sc1 lds')
    a('s_waitcnt vmcnt(0)')
    a.label(j4)
    T.stamp('pub4')

    A5 = 24; HA = 88; RS_ = 128
    a(f's_lshl_b32 s27, s{S_Q}, 2')
    a('v_add_u32 v10, s27, v7')
    a('v_lshlrev_b32 v12, 4, v10')
    a('v_bfe_u32 v11, v2, 3, 1')
    a('v_lshl_add_u32 v12, v11, 10, v12')
    a('v_lshl_add_u32 v12, v9, 8, v12')
    a('v_bfe_u32 v11, v2, 2, 1')
    a('v_lshl_add_u32 v12, v11, 3, v12')
    a(f's_lshr_b32 s26, s{S_WAVE}, 2')
    a(f's_add_u32 s26, s26, s{S_R16}')
    a('s_lshl_b32 s26, s26, 14')
    a(f's_lshl_b32 s27, s{S_CT}, 11')
    a('s_add_u32 s26, s26, s27')
    a(f's_add_u32 s26, s26, s{S_GB}')
    for mt in range(2):
        for bi, base in enumerate((G_H, G_X1)):
            a(f's_add_u32 s27, s26, {base + mt*32768}')
            a(f'buffer_load_dwordx2 {vr(RS_+4*mt+2*bi,2)}, v12, s[8:11], s27 offen sc1')
    a(f's_lshl_b32 s28, s{S_WAVE}, 6')
    a('s_add_u32 s28, s28, s34')
    a(f's_mul_i32 s26, s{S_WAVE}, 7168')
    a('s_add_u32 s26, s26, s33')
    a(f's_lshl_b32 s27, s{S_WAVE}, 13')
    a('v_lshlrev_b32 v13, 4, v5')
    a('v_xor_b32 v13, v13, v3')
    a('v_add_u32 v13, s27, v13')
    a(f's_lshl_b32 s27, s{S_WAVE}, 2')
    a('v_add_u32 v10, s27, v7')
    a('v_xor_b32 v10, v10, v6')
    a('v_lshlrev_b32 v10, 4, v10')
    a('v_and_b32 v11, 1, v2')
    a('v_lshl_add_u32 v10, v11, 9, v10')
    a('v_lshrrev_b32 v11, 1, v6')
    a('v_lshl_add_u32 v14, v11, 10, v10')
    poll('v1', 's28', '0x7f')
    T.stamp('p5_poll')
    def ldA(mt, ks):
        a(f's_add_u32 s27, s26, {mt*2*57344 + (ks//8)*4096}')
        a.vissue(f'buffer_load_dwordx4 {vr(HA+4*((14*mt+ks_pos[ks])%10),4)}, v15, s[8:11], s27 offen offset:{(ks%8)*512} sc1', ('h', mt, ks))
    korder5 = list(range(2, 12)) + [12, 13, 0, 1]
    ks_pos = {k: i for i, k in enumerate(korder5)}
    order = [(mt, ks) for mt in range(2) for ks in korder5]
    LEAD5 = 8
    for (mt, ks) in order[:LEAD5]: ldA(mt, ks)
    a('s_barrier')
    sk = L('pk')
    a(f's_cmp_eq_u32 s{S_WAVE}, 3\ns_cbranch_scc1 {sk}')
    for i in range(4): a(f'ds_read_b128 {vr(W4+4*(24+i),4)}, v18 offset:{PKA + i*1024}')
    for i in range(4): a(f'ds_read_b128 {vr(W4+4*i,4)}, v19 offset:{i*1024}')
    a.label(sk)
    def wr_list(mt):
        l = []
        for nt in range(2):
            for q in range(4):
                oct_ = 4*nt + q
                l.append([f'v_xor_b32 v{10+(q&1)}, {oct_*32 + mt*65536}, v13',
                          f'ds_write_b128 v{10+(q&1)}, {vr(A5+32*nt+16*mt+4*q,4)} offset:{RED + oct_*1024}'])
        return l
    wl = wr_list(0)
    for i, (mt, ks) in enumerate(order):
        a.vwait(('h', mt, ks), 'lgkmcnt(0)' if i == 6 else '')
        if i == 6: a('s_barrier')
        for nt in range(2):
            A = A5 + 32*nt + 16*mt
            c_ = '0' if ks_pos[ks] == 0 else vr(A,16)
            a(f'v_mfma_f32_32x32x16_bf16 {vr(A,16)}, {vr(W4+8*ks+4*nt,4)}, {vr(HA+4*((14*mt+ks_pos[ks])%10),4)}, {c_}')
        if i + LEAD5 < 28: ldA(*order[i + LEAD5])
        if i >= 16 and wl:
            for l in wl.pop(0): a(l)
    T.stamp('p5_gemm')
    for g in wr_list(1):
        for l in g: a(l)
    srd(16, P_OUT, 0x200000)
    a(f's_lshl_b32 s26, s{S_X}, 4')
    a(f's_add_u32 s26, s26, s{S_R16}')
    a('s_lshl_b32 s26, s26, 14')
    a(f's_lshl_b32 s27, s{S_WAVE}, 12')
    a('s_add_u32 s26, s26, s27')
    a(f's_lshl_b32 s27, s{S_CT}, 7')
    a('s_add_u32 s26, s26, s27')
    a('s_add_u32 s27, s26, 32768')
    a('v_lshlrev_b32 v12, 10, v7')
    a('v_lshl_add_u32 v12, v6, 3, v12')
    a('v_add_u32 v13, 0x10000, v14')
    RD = 144; SUM = 88
    for mt in range(2):
        for p in range(2):
            a(f'v_lshlrev_b32 v{RD+8*mt+2*p}, 16, v{RS_+4*mt+p}')
            a(f'v_and_b32 v{RD+8*mt+2*p+1}, 0xffff0000, v{RS_+4*mt+p}')
            a(f'v_lshlrev_b32 v{RD+8*mt+4+2*p}, 16, v{RS_+4*mt+2+p}')
            a(f'v_and_b32 v{RD+8*mt+4+2*p+1}, 0xffff0000, v{RS_+4*mt+2+p}')
        for p in range(2): a(f'v_pk_add_f32 {vr(SUM+4*mt+2*p,2)}, {vr(RD+8*mt+2*p,2)}, {vr(RD+8*mt+4+2*p,2)}')
    a('s_waitcnt lgkmcnt(0)')
    a('s_barrier')
    for mt in range(2):
        for src in range(8):
            a(f'ds_read_b128 {vr(RD+32*mt+4*src,4)}, v{14 if mt == 0 else 13} offset:{RED + src*8192}')
    for mt in range(2):
        for src in range(8):
            if src % 2 == 0: a(f's_waitcnt lgkmcnt({14-8*mt-src})')
            for p in range(2): a(f'v_pk_add_f32 {vr(SUM+4*mt+2*p,2)}, {vr(SUM+4*mt+2*p,2)}, {vr(RD+32*mt+4*src+2*p,2)}')
        for p in range(2): a(f'v_cvt_pk_bf16_f32 v{24+2*mt+p}, v{SUM+4*mt+2*p}, v{SUM+4*mt+2*p+1}')
        a(f'buffer_store_dwordx2 {vr(24+2*mt,2)}, v12, s[16:19], s{26+mt} offen')
    if diag: a('s_waitcnt vmcnt(0)')
    fixwait('fixend', 60)
    T.stamp('end'); T.stamp('end_rt', True)
    T.flush(P_WS, 0, S_WAVE, TS)
    if 'dbgout' in opt:
        sk = L('do')
        a(f's_lshl_b32 s26, s{S_WAVE}, 8')
        a('s_or_b32 s26, s26, s2')
        a(f's_cmp_lg_u32 s26, 77\ns_cbranch_scc1 {sk}')
        srd(16, P_DBG, 256)
        a('s_mov_b64 exec, 1')
        for k, nm in enumerate(['c_b0', 'c_gemm', 'c_pub', 'c_kv0', 'c_attn_end', 'p1_poll', 'pub1', 'pub2', 'pub3', 'p4_go', 'pub4', 'p5_poll', 'p5_gemm', 'end_rt']):
            a(f's_sub_u32 s26, s{76+T.names.index(nm)}, s76')
            a('v_mov_b32 v1, s26')
            a(f'buffer_store_dword v1, off, s[16:19], 0 offset:{8+4*k}')
        a.label(sk)
    a('s_endpgm')

    for (lab, lines, back) in a.cold:
        a.label(lab)
        a('s_nop 7')
        for l in lines: a(l)
        a('s_nop 7')
        a(f's_branch {back}')
    NM = 128
    a.label(FB)
    a('s_nop 15')
    a(f's_add_u32 s30, s{S_HD}, 0x40000')
    a(f's_add_u32 s31, s{S_HD}, 0x80000')
    a(f'v_mov_b32 v{NM}, 0xff800000\nv_mov_b32 v{NM+16}, 0xff800000')
    a('s_mov_b32 s32, 0')
    l1 = L('fb1')
    a.label(l1)
    a('s_add_u32 s33, s30, s32')
    a(f'buffer_load_dwordx4 {vr(KB+4,4)}, v3, s[8:11], s33 offen sc1')
    a('s_waitcnt vmcnt(0)')
    for u, S in ((0, SA), (1, SB)):
        a(f'v_mfma_f32_32x32x16_bf16 {vr(S,16)}, {vr(KB+4,4)}, {vr(Q+4*u,4)}, 0')
    for u, S in ((0, SA), (1, SB)):
        for i in range(8): a(f'v_max3_f32 v{NM+16*u}, v{S+2*i}, v{S+2*i+1}, v{NM+16*u}')
    a('s_add_u32 s32, s32, 1024')
    a('s_cmp_lt_u32 s32, 0x10000')
    a(f's_cbranch_scc1 {l1}')
    for u in range(2):
        m = NM + 16*u
        a(f'v_mov_b32 v{m+1}, v{m}')
        a(f'v_permlane32_swap_b32 v{m}, v{m+1}')
        a(f'v_max_f32 v{m}, v{m}, v{m+1}')
        a(f'v_sub_f32 v{m}, 0, v{m}')
        for i in range(1, 16): a(f'v_mov_b32 v{m+i}, v{m}')
    for i in range(32): a(f'v_mov_b32 v{O+i}, 0')
    a('v_and_b32 v10, 27, v4')
    a('v_cmp_eq_u32 vcc, 16, v10')
    a('v_mov_b32 v10, 0x3f803f80')
    for i in range(8): a(f'v_cndmask_b32 v{VB+i}, 0, v10, vcc')
    a('v_lshlrev_b32 v10, 8, v5')
    a('v_lshl_add_u32 v10, v6, 4, v10')
    a('s_mov_b32 s32, 0')
    a('s_mov_b32 s34, 0xffff\ns_mov_b32 s35, 0xffff')
    l2 = L('fb2')
    a.label(l2)
    a('s_add_u32 s33, s30, s32')
    a(f'buffer_load_dwordx4 {vr(KB+4,4)}, v3, s[8:11], s33 offen sc1')
    a('s_add_u32 s33, s31, s32')
    a('s_mov_b64 exec, s[34:35]')
    a(f'buffer_load_dwordx4 {vr(VB,4)}, v10, s[8:11], s33 offen sc1')
    a(f'buffer_load_dwordx4 {vr(VB+4,4)}, v10, s[8:11], s33 offen offset:512 sc1')
    a('s_mov_b64 exec, -1')
    a('s_waitcnt vmcnt(0)')
    for u, S in ((0, SA), (1, SB)):
        a(f'v_mfma_f32_32x32x16_bf16 {vr(S,16)}, {vr(KB+4,4)}, {vr(Q+4*u,4)}, {vr(NM+16*u,16)}')
    for u, S in ((0, SA), (1, SB)):
        for i in range(16): a(f'v_exp_f32 v{S+i}, v{S+i}')
        for j in range(8): a(f'v_cvt_pk_bf16_f32 v{P+j}, v{S+2*j}, v{S+2*j+1}')
        for f in range(2):
            a(f'v_mfma_f32_32x32x16_bf16 {vr(O+16*u,16)}, {vr(VB+4*f,4)}, {vr(P+4*f,4)}, {vr(O+16*u,16)}')
        a('s_nop 15')
    a('s_add_u32 s32, s32, 1024')
    a('s_cmp_lt_u32 s32, 0x10000')
    a(f's_cbranch_scc1 {l2}')
    a('s_nop 15')
    a(f's_branch {FBR}')
    a.label(END)
    a('s_endpgm')
    return a, LDS_SIZE
```

```python
from asmlib import *
from layout import *
import struct
def f2u(x): return struct.unpack('<I', struct.pack('<f', x))[0]
def H(x): return hex(f2u(x))

LDS_SIZE = 160 * 1024
XL = 0; WL = 65536; WSLOT = 24576; NSLOT = 3
CSUM = WL + NSLOT * WSLOT
RST = CSUM + 1024
RING = 0; CONST = 32768; WA = 36864; WB = 102400
PREP = 143360
W2L = 0; NW2L = 7; W1X = 28672; CS1 = 32768; C3L = 33024
W3L = WB; PKA = 0; PKB = WB + 24576; RES3 = 155648; NONL = RST + 512; ST4 = 34816
XT = WA
RED = 0

GELU_C0 = -2.0 * 0.7978845608028654 * 1.4426950408889634
GELU_C1 = GELU_C0 * 0.044715

S_WAVE, S_X, S_I, S_RB, S_CT, S_R16 = 20, 21, 22, 23, 24, 25
P_X, P_WQKV, P_WO, P_W1, P_W2, P_W3, P_W4, P_OUT, P_DBG, P_WS = 36, 38, 40, 44, 46, 48, 50, 52, 54, 56
S_NON = 58; S_SPIN = 60; S_MODE = 61; S_C1 = 62; S_ONE = 64
S_QKV, S_HD, S_RHO, S_Q, S_SLAB, S_M2 = 66, 67, 68, 69, 70, 71
S_U = 72
S_GB = 3; S_J = 4; S_W4 = 5; S_A = 6; S_B = 7; S_C0 = 42
W3 = 128; W4 = 144

def gen_mega(name='mega_kernel', diag=False, force_safe=False, force_fallback=False, sel=None, opt=''):
    a = Asm()
    T = Stamper(a, 76, diag); a.T = T; T.sel = sel; T.rt = ('rt' in opt.split(','))
    uid = [0]
    def L(s): uid[0] += 1; return f'L_{s}{uid[0]}'
    def srd(base, p, size):
        a(f's_mov_b32 s{base}, s{p}\ns_mov_b32 s{base+1}, s{p+1}\ns_mov_b32 s{base+2}, {hex(size)}\ns_mov_b32 s{base+3}, 0x20000')
    END = f'{name}_end'
    KVNT = 'nt ' if 'kvnt' in opt else ''

    a(f'.globl {name}\n.p2align 8\n.type {name},@function')
    a.label(name)
    a(f's_cmp_ge_u32 s2, 256\ns_cbranch_scc1 {END}')
    a('s_load_dwordx16 s[36:51], s[0:1], 0')
    a('s_load_dwordx4 s[52:55], s[0:1], 64')
    a('s_load_dwordx2 s[56:57], s[0:1], 80')
    a('v_lshrrev_b32 v1, 6, v0')
    a('v_and_b32 v2, 63, v0')
    a(f'v_readfirstlane_b32 s{S_WAVE}, v1')
    a(f's_and_b32 s{S_X}, s2, 7')
    a(f's_lshr_b32 s{S_I}, s2, 3')
    a(f's_lshr_b32 s{S_RB}, s{S_I}, 3')
    a(f's_and_b32 s{S_CT}, s{S_I}, 7')
    a(f's_and_b32 s{S_Q}, s{S_WAVE}, 3')
    if diag:
        for i in range(24): a(f's_mov_b32 s{76+i}, 0')
        T.stamp('start_rt', True); T.stamp('start')
    if 'fix' in opt:
        a('s_memrealtime s[98:99]')
    def fixwait(tag, us):
        if tag not in opt.split(','): return
        lp = L('fx')
        a.label(lp)
        a('s_memrealtime s[100:101]')
        a('s_waitcnt lgkmcnt(0)')
        a('s_sub_u32 s100, s100, s98')
        a(f's_cmp_lt_u32 s100, {us*100}')
        a(f's_cbranch_scc1 {lp}')
    CW1 = L('cw1')
    a(f's_cmp_lt_u32 s{S_WAVE}, 4')
    a(f's_cbranch_scc1 {CW1}')

    def common_consts():
        a('v_lshlrev_b32 v3, 4, v2')
        a('v_and_b32 v4, 31, v2')
        a('v_lshrrev_b32 v5, 5, v2')
        a('v_and_b32 v6, 15, v2')
        a('v_lshrrev_b32 v7, 4, v2')
        a('v_bfe_u32 v8, v2, 2, 2')
        a('v_and_b32 v9, 3, v2')
        a('v_lshlrev_b32 v1, 3, v2')
        a(f's_lshl_b32 s{S_R16}, s{S_RB}, 2')
        a(f's_add_u32 s{S_SLAB}, s{S_R16}, s{S_Q}')
        a(f's_lshl_b32 s{S_GB}, s{S_X}, 21')
        a(f's_add_u32 s{S_GB}, s{S_GB}, {GB}')
        a(f's_mul_i32 s{S_QKV}, s{S_X}, {QKVG}')
        a(f's_lshl_b32 s{S_HD}, s{S_RB}, 16')
        a(f's_add_u32 s{S_HD}, s{S_HD}, s{S_QKV}')
        a(f's_cmp_gt_u32 s{S_WAVE}, 3')
        a(f's_subb_u32 s{S_J}, s{S_WAVE}, 0')
        a(f's_mul_i32 s{S_W4}, s{S_CT}, 229376')
        a(f's_mul_i32 s26, s{S_WAVE}, 28672')
        a(f's_add_u32 s{S_W4}, s{S_W4}, s26')
        a(f's_add_u32 s{S_W4}, s{S_W4}, {W4F}')
        a(f's_mov_b32 s{S_C1}, {H(GELU_C1)}\ns_mov_b32 s{S_C1+1}, {H(GELU_C1)}')
        a(f's_mov_b32 s{S_ONE}, 1.0\ns_mov_b32 s{S_ONE+1}, 1.0')

    def get_nonce(sleep=0):
        lp, done = L('non'), L('nond')
        srd(16, P_DBG, 256)
        a(f's_mov_b32 s{S_SPIN}, 0')
        a.label(lp)
        if sleep: a(f's_sleep {sleep}')
        a('buffer_load_dwordx2 v[10:11], off, s[16:19], 0 sc1')
        a(f's_add_u32 s{S_SPIN}, s{S_SPIN}, 1')
        a('s_waitcnt vmcnt(0)')
        a(f'v_readfirstlane_b32 s{S_NON}, v10')
        a(f'v_readfirstlane_b32 s{S_NON+1}, v11')
        a(f's_cmp_gt_u32 s{S_SPIN}, 0x20000')
        a(f's_cbranch_scc1 {done}')
        a(f's_cmp_eq_u32 s{S_NON}, 0')
        a(f's_cbranch_scc1 {lp}')
        a.label(done)
        a.vm = []

    def get_nonce_s(sleep=0):
        lp, done = L('non'), L('nond')
        a(f's_mov_b32 s{S_SPIN}, 0')
        a.label(lp)
        if sleep: a(f's_sleep {sleep}')
        a(f's_load_dwordx2 s[{S_NON}:{S_NON+1}], s[{P_DBG}:{P_DBG+1}], 0 glc')
        a(f's_add_u32 s{S_SPIN}, s{S_SPIN}, 1')
        a(f's_cmp_gt_u32 s{S_SPIN}, 0x20000')
        a('s_waitcnt lgkmcnt(0)')
        a(f's_cbranch_scc1 {done}')
        a(f's_cmp_eq_u32 s{S_NON}, 0')
        a(f's_cbranch_scc1 {lp}')
        a.label(done)

    def poll(voff, soff, execmask=None, sleep=0):
        lp, done = L('poll'), L('polld')
        if execmask: a(f's_mov_b64 exec, {execmask}')
        a(f's_mov_b32 s{S_SPIN}, 0')
        a.label(lp)
        if sleep: a(f's_sleep {sleep}')
        a(f'buffer_load_dwordx2 v[10:11], {voff}, s[8:11], {soff} offen sc1')
        a(f's_add_u32 s{S_SPIN}, s{S_SPIN}, 1')
        a(f's_cmp_gt_u32 s{S_SPIN}, 0x20000')
        a('s_waitcnt vmcnt(0)')
        a(f's_cbranch_scc1 {done}')
        a(f'v_cmp_ne_u64 vcc, {sr(S_NON,2)}, v[10:11]')
        a(f's_cbranch_vccnz {lp}')
        a.label(done)
        if execmask: a('s_mov_b64 exec, -1')
        a.vm = []

    def st2(lines, mode=S_MODE):
        sk, dn = L('sf'), L('sd')
        a(f's_cmp_eq_u32 s{mode}, 0')
        a(f's_cbranch_scc1 {sk}')
        for l in lines: a(l)
        a.label(dn)
        a.cold.append((sk, [l + ' sc1' if l.startswith('buffer_store') else l for l in lines], dn))
        a.vm += ['st'] * sum(l.startswith('buffer_store') for l in lines)
    a.cold = []

    def flag_lines(soff):
        return ['s_mov_b64 exec, 1', f'buffer_store_dwordx2 v[10:11], off, s[8:11], {soff}', 's_mov_b64 exec, -1']
    def flag_prep():
        a(f'v_mov_b32 v10, s{S_NON}\nv_mov_b32 v11, s{S_NON+1}')
    def flag_sc1(soff):
        flag_prep()
        for l in flag_lines(soff): a(l + (' sc1' if l.startswith('buffer') else ''))
        a.vm.append('fl')

    def xcc_load(vreg, vt):
        a(f's_lshl_b32 s26, s{S_X}, 12')
        a(f's_add_u32 s26, s26, {F_XCC}')
        a(f'v_lshlrev_b32 v{vt}, 7, v4')
        a(f'buffer_load_dwordx2 {vr(vreg,2)}, v{vt}, s[8:11], s26 offen sc1')
    def calc_mode(vreg):
        a('s_getreg_b32 s34, hwreg(HW_REG_XCC_ID)')
        a('s_and_b32 s34, s34, 15')
        a(f's_or_b32 s34, s34, s{S_NON}')
        a(f's_mov_b32 s35, s{S_NON+1}')
        a(f'v_cmp_ne_u64 vcc, s[34:35], {vr(vreg,2)}')
        a('s_cmp_eq_u64 vcc, 0')
        a(f's_cselect_b32 s{S_MODE}, 1, 0')
        a(f's_cmp_eq_u32 s{S_NON}, 0')
        a(f's_cselect_b32 s{S_MODE}, 0, s{S_MODE}')
        if force_safe: a(f's_mov_b32 s{S_MODE}, 0')
    def xcc_publish(v0, v1):
        a('s_getreg_b32 s27, hwreg(HW_REG_XCC_ID)')
        a('s_and_b32 s27, s27, 15')
        a(f's_or_b32 s27, s27, s{S_NON}')
        a(f'v_mov_b32 v{v0}, s27\nv_mov_b32 v{v1}, s{S_NON+1}')
        a(f's_lshl_b32 s26, s{S_X}, 12')
        a(f's_lshl_b32 s27, s{S_I}, 7')
        a('s_add_u32 s26, s26, s27')
        a(f's_add_u32 s26, s26, {F_XCC}')
        a('s_mov_b64 exec, 1')
        a(f'buffer_store_dwordx2 v[{v0}:{v1}], off, s[8:11], s26 sc1')
        a('s_mov_b64 exec, -1')

    def unit_decode(su):
        l3, l4, dn = L('u3'), L('u4'), L('ud')
        a('s_mov_b32 s15, 0x20000')
        a(f's_cmp_ge_u32 s{su}, 832\ns_cbranch_scc1 {l4}')
        a(f's_cmp_ge_u32 s{su}, 384\ns_cbranch_scc1 {l3}')
        a(f's_lshr_b32 s32, s{su}, 7')
        a(f's_bfe_u32 s33, s{su}, 0x40003')
        a(f's_and_b32 s34, s{su}, 7')
        a('s_lshl_b32 s27, s33, 15')
        a('s_lshl_b32 s35, s34, 7')
        a('s_add_u32 s27, s27, s35')
        a('s_lshl_b32 s28, s32, 19')
        a('s_lshl_b32 s35, s34, 16')
        a('s_add_u32 s28, s28, s35')
        a('s_lshl_b32 s35, s33, 12')
        a('s_add_u32 s28, s28, s35')
        a(f's_add_u32 s28, s28, {WOF}')
        a('s_min_u32 s26, s32, 1')
        a('s_cmp_eq_u32 s32, 1')
        a(f's_cselect_b64 s[12:13], s[{P_W1}:{P_W1+1}], s[{P_W2}:{P_W2+1}]')
        a('s_cmp_eq_u32 s32, 0')
        a(f's_cselect_b64 s[12:13], s[{P_WO}:{P_WO+1}], s[12:13]')
        a('s_mov_b32 s14, 0x80000')
        a(f's_branch {dn}')
        a.label(l3)
        a(f's_sub_u32 s32, s{su}, 384')
        a('s_mul_hi_u32 s33, s32, 0x0924924a')
        a('s_mul_i32 s34, s33, 28')
        a('s_sub_u32 s34, s32, s34')
        a(f's_mul_i32 s27, s33, {32*3584}')
        a('s_lshl_b32 s35, s34, 7')
        a('s_add_u32 s27, s27, s35')
        a('s_lshl_b32 s28, s34, 16')
        a('s_lshl_b32 s35, s33, 11')
        a('s_add_u32 s28, s28, s35')
        a(f's_add_u32 s28, s28, {W3F}')
        a('s_mov_b32 s26, 2')
        a(f's_mov_b64 s[12:13], s[{P_W3}:{P_W3+1}]')
        a('s_mov_b32 s14, 0x1c0000')
        a(f's_branch {dn}')
        a.label(l4)
        a(f's_sub_u32 s32, s{su}, 832')
        a('s_lshr_b32 s33, s32, 3')
        a('s_and_b32 s34, s32, 7')
        a('s_lshl_b32 s27, s33, 15')
        a('s_lshl_b32 s35, s34, 7')
        a('s_add_u32 s27, s27, s35')
        a('s_mul_i32 s28, s34, 229376')
        a('s_lshl_b32 s35, s33, 12')
        a('s_add_u32 s28, s28, s35')
        a(f's_add_u32 s28, s28, {W4F}')
        a('s_mov_b32 s26, 3')
        a(f's_mov_b64 s[12:13], s[{P_W4}:{P_W4+1}]')
        a('s_mov_b32 s14, 0x1c0000')
        a.label(dn)

    def p4_prologue():
        C3 = 56
        a('v_lshrrev_b32 v15, 4, v4')
        a('v_lshlrev_b32 v14, 14, v15')
        a('v_lshl_add_u32 v14, v5, 8, v14')
        a('v_lshl_add_u32 v14, v6, 4, v14')
        a(f'v_add_u32 v14, {XT}, v14')
        a('v_mul_u32_u24 v15, 0xe000, v15')
        a('v_lshl_add_u32 v15, v5, 8, v15')
        a('v_lshl_add_u32 v15, v6, 4, v15')
        a('v_lshlrev_b32 v16, 4, v4')
        a(f's_lshl_b32 s26, s{S_J}, 7')
        a(f's_add_u32 s26, s26, {C3L}')
        a('v_lshl_add_u32 v17, v5, 4, s26')
        for q in range(4): a(f'ds_read_b128 {vr(C3+4*q,4)}, v17 offset:{32*q}')
        a(f's_lshl_b32 s26, s{S_J}, 12')
        a('v_add_u32 v18, s26, v3')
        a(f'v_add_u32 v19, {PKB}, v18')
        a(f's_lshl_b32 s28, s{S_R16}, 10')
        a(f's_add_u32 s28, s28, s{S_GB}')
        a(f's_add_u32 s28, s28, {G_ST2}')
        a(f's_mul_i32 s33, s{S_R16}, 57344')
        a(f's_add_u32 s33, s33, s{S_GB}')
        a(f's_add_u32 s33, s33, {G_H2}')
        a(f's_lshl_b32 s34, s{S_RB}, 9')
        a(f's_add_u32 s34, s34, s{S_GB}')
        a(f's_add_u32 s34, s34, {G_FH2}')
        a(f's_lshl_b32 s35, s{S_CT}, 6')
        a('s_add_u32 s35, s35, s34')
        a(f's_lshl_b32 s29, s{S_J}, 3')
        a('s_add_u32 s35, s35, s29')
        a('s_add_u32 s29, s35, 2048')
        a(f's_lshl_b32 s32, s{S_WAVE}, 6')
        a('s_add_u32 s32, s32, s34')
        a(f's_mul_i32 s31, s{S_WAVE}, 14336')
        a('s_add_u32 s31, s31, s33')
        a(f's_lshl_b32 s27, s{S_Q}, 2')
        a('v_add_u32 v10, s27, v7')
        a('v_xor_b32 v12, v10, v6')
        a('v_lshlrev_b32 v12, 4, v12')
        a('v_lshl_add_u32 v12, v10, 8, v12')
        a(f's_cmp_gt_u32 s{S_WAVE}, 3')
        a('s_cselect_b32 s26, 8192, 0')
        a(f's_mov_b32 s27, {W3L + 16384}')
        a(f's_cselect_b32 s27, {RES3}, s27')
        a(f's_add_u32 s26, s26, {W3L}')
        a('v_add_u32 v20, s26, v12')
        a('v_add_u32 v21, s27, v12')
        a(f's_lshl_b32 s27, s{S_WAVE}, 13')
        a('v_lshlrev_b32 v13, 4, v5')
        a('v_xor_b32 v13, v13, v3')
        a('v_add_u32 v13, s27, v13')
        a(f's_lshl_b32 s27, s{S_WAVE}, 2')
        a('v_add_u32 v10, s27, v7')
        a('v_xor_b32 v10, v10, v6')
        a('v_lshlrev_b32 v10, 4, v10')
        a('v_and_b32 v11, 1, v2')
        a('v_lshl_add_u32 v10, v11, 9, v10')
        a('v_lshrrev_b32 v11, 1, v6')
        a('v_lshl_add_u32 v22, v11, 10, v10')
        a('v_add_u32 v23, 0x10000, v22')
        a('v_lshlrev_b32 v12, 10, v7')
        a('v_lshl_add_u32 v12, v6, 3, v12')
        srd(16, P_OUT, 0x200000)
        a(f's_lshl_b32 s72, s{S_X}, 4')
        a(f's_add_u32 s72, s72, s{S_R16}')
        a('s_lshl_b32 s72, s72, 14')
        a(f's_lshl_b32 s27, s{S_WAVE}, 12')
        a('s_add_u32 s72, s72, s27')
        a(f's_lshl_b32 s27, s{S_CT}, 7')
        a('s_add_u32 s72, s72, s27')
        a('s_add_u32 s73, s72, 32768')
        a(f's_mul_i32 s26, s{S_CT}, 14336')
        a('s_add_u32 s26, s26, s33')
        a(f's_lshl_b32 s27, s{S_J}, 11')
        a('s_add_u32 s26, s26, s27')
        a(f's_add_u32 s27, s26, {2*57344}')

    VX, VWQ = 12, 13
    a('s_setprio 3')
    a('v_lshrrev_b32 v3, 3, v2')
    a(f's_lshl_b32 s27, s{S_Q}, 3')
    a('v_add_u32 v6, s27, v3')
    a('v_lshrrev_b32 v4, 4, v2')
    a(f's_and_b32 s27, s{S_Q}, 1')
    a('s_lshl_b32 s27, s27, 2')
    a('v_add_u32 v4, s27, v4')
    a('v_and_b32 v5, 7, v2')
    a('v_xor_b32 v4, v4, v5')
    a('v_lshlrev_b32 v4, 4, v4')
    a(f'v_lshl_add_u32 v{VX}, v6, 10, v4')
    a('v_bfe_u32 v4, v3, 1, 1')
    a('v_lshlrev_b32 v4, 2, v4')
    a('v_bfe_u32 v7, v3, 2, 1')
    a('v_lshl_add_u32 v4, v7, 1, v4')
    a('v_xor_b32 v4, v4, v5')
    a('v_lshlrev_b32 v55, 4, v4')
    a('s_movk_i32 s27, 0xc00')
    a(f'v_mad_u32_u24 v{VWQ}, v6, s27, v55')
    a(f's_lshl_b32 s28, s{S_I}, 16')
    a(f's_lshl_b32 s29, s{S_Q}, 10')
    a(f's_lshl_b32 s31, s{S_X}, 7')
    a('s_mov_b32 s18, 0x200000\ns_mov_b32 s19, 0x20000\ns_mov_b32 s14, 0x180000\ns_mov_b32 s15, 0x20000')
    a('s_waitcnt lgkmcnt(0)')
    a(f's_mov_b64 s[16:17], s[{P_X}:{P_X+1}]')
    a(f's_mov_b64 s[12:13], s[{P_WQKV}:{P_WQKV+1}]')
    T.stamp('p1.h_iss', slot=20)
    def issx(c):
        a(f's_add_u32 s33, s{S_CT}, {c}')
        a('s_and_b32 s33, s33, 7')
        a('s_lshl_b32 s34, s33, 7')
        a('s_add_u32 s34, s34, s28')
        for j in range(2):
            a(f's_add_u32 m0, s29, {XL + c*8192 + j*4096}')
            if j: a('s_add_u32 s34, s34, 32768')
            a.vissue(f'buffer_load_dwordx4 v{VX}, s[16:19], s34 offen lds', ('x', c))
    def issw(c):
        a(f's_add_u32 s33, s{S_CT}, {c}')
        a('s_and_b32 s33, s33, 7')
        a('s_mul_i32 s35, s33, 196608')
        a('s_add_u32 s35, s35, s31')
        for j in range(2):
            for sec in range(3):
                a(f's_add_u32 m0, s29, {WL + (c % NSLOT)*WSLOT + sec*8192 + j*4096}')
                a(f's_add_u32 s34, s35, {j*32*3072 + sec*1024}')
                a.vissue(f'buffer_load_dwordx4 v{VWQ}, s[12:15], s34 offen lds', ('w', c))
    if 'ordB' in opt: issx(0); issw(0); issx(1); issw(1)
    else: issx(0); issw(0); issx(1); issx(2); issx(3)
    common_consts()
    srd(8, P_WS, WS_USED)
    AWH, AXH, CSA, SXH, SQH, ONES, WFH, XFH = 14, 17, 20, 32, 36, 18, 64, 88
    a('v_and_b32 v10, 1, v7')
    a('v_lshrrev_b32 v11, 1, v8')
    a('v_lshl_add_u32 v11, v11, 1, v10')
    a('v_lshl_add_u32 v10, v7, 2, v8')
    a('v_lshlrev_b32 v10, 7, v10')
    a('v_lshl_add_u32 v10, v9, 3, v10')
    for j in range(3):
        a(f's_mul_i32 s26, s{S_Q}, 3')
        a(f's_add_u32 s26, s26, {j}')
        a('s_and_b32 s27, s26, 3')
        a('s_lshr_b32 s26, s26, 2')
        a('s_lshl_b32 s26, s26, 13')
        a(f's_add_u32 s26, s26, {WL}')
        a('v_xor_b32 v40, s27, v11')
        a('v_lshl_add_u32 v40, v40, 5, v10')
        a(f'v_add_u32 v{AWH+j}, s26, v40')
    a(f's_lshl_b32 s26, s{S_Q}, 11')
    a('v_lshlrev_b32 v10, 7, v6')
    a('v_bfe_u32 v11, v6, 1, 3')
    a('v_xor_b32 v11, v11, v7')
    a('v_lshl_add_u32 v10, v11, 4, v10')
    a(f'v_add_u32 v{AXH}, s26, v10')
    a(f'v_xor_b32 v41, 64, v{AXH}')
    a(f'v_mov_b32 v{ONES}, 0x3f803f80\nv_mov_b32 v{ONES+1}, 0x3f803f80')
    PA16, PA32, PROW, PUN = 44, 52, 54, 55
    a('v_and_b32 v10, 1, v7')
    a('v_lshrrev_b32 v11, 1, v8')
    a('v_lshl_add_u32 v11, v11, 1, v10')
    a('v_lshl_add_u32 v56, v10, 2, v8')
    a('v_lshrrev_b32 v57, 1, v7')
    a('v_lshl_add_u32 v58, v57, 4, v56')
    a('v_lshl_add_u32 v59, v57, 3, v56')
    for ti, kreg in enumerate((58, 59)):
        for nt in range(4):
            a(f'v_xor_b32 v60, {nt}, v11')
            a('v_lshlrev_b32 v60, 5, v60')
            a('v_lshl_add_u32 v60, v9, 3, v60')
            a(f'v_lshl_add_u32 v{PA16+4*ti+nt}, v{kreg}, 7, v60')
    a('v_lshrrev_b32 v11, 1, v8')
    a('v_lshl_add_u32 v11, v11, 1, v5')
    a('v_lshl_add_u32 v56, v5, 2, v8')
    a('v_lshlrev_b32 v56, 7, v56')
    a('v_lshl_add_u32 v56, v9, 3, v56')
    for nt in range(2):
        a(f'v_add_u32 v60, {2*nt}, v10')
        a('v_xor_b32 v60, v60, v11')
        a(f'v_lshl_add_u32 v{PA32+nt}, v60, 5, v56')
    a(f'v_lshrrev_b32 v{PROW}, 3, v2')
    ONE4 = 96
    TCC = 5 if 'tc5' in opt else 6
    for i in range(4): a(f'v_mov_b32 v{ONE4+i}, 0x3f803f80')
    a(f's_mul_i32 s26, s{S_Q}, 192')
    a(f's_add_u32 s26, s26, {CSUM}')
    a('v_lshl_add_u32 v100, v7, 4, s26')
    a(f's_lshl_b32 s26, s{S_Q}, 6')
    a(f's_add_u32 s26, s26, {RST}')
    a('v_lshl_add_u32 v101, v6, 2, s26')
    a('v_cmp_eq_u32 s[42:43], 1, v9')
    a('v_cmp_eq_u32 s[6:7], 2, v9')
    def unit_idx(k):
        a(f's_mul_i32 s{S_U}, s2, 5')
        a(f's_add_u32 s{S_U}, s{S_U}, {k}')
        unit_decode(S_U)
    def stride_sel():
        a('s_cmp_eq_u32 s26, 2')
        a('s_movk_i32 s32, 0x400')
        a('s_cselect_b32 s32, 0xe00, s32')
        a(f'v_mad_u32_u24 v60, v{PROW}, s32, v{PUN}')
        a('s_lshl_b32 s32, s32, 3')
    def prep_setup():
        unit_idx(4)
        stride_sel()
        a(f's_mul_i32 s32, s32, s{S_Q}')
        a('s_add_u32 s27, s27, s32')
        a('v_add_u32 v103, s27, v60')
        a('s_mov_b64 s[16:17], s[12:13]')
        a('s_mov_b32 s18, s14')
        unit_idx(f's{S_Q}')
        stride_sel()
        a('v_add_u32 v102, s27, v60')
        a(f's_mov_b32 s{S_RHO}, s12\ns_mov_b32 s{S_M2}, s13\ns_mov_b32 s73, s14\ns_mov_b32 s74, s32')
        a(f's_mov_b64 s[12:13], s[{P_WQKV}:{P_WQKV+1}]')
        a('s_mov_b32 s14, 0x180000')
    def prep_loads():
        a(f's_mov_b32 s12, s{S_RHO}\ns_mov_b32 s13, s{S_M2}\ns_mov_b32 s14, s73')
        a(f's_lshl_b32 s35, s{S_Q}, 12')
        a('s_mov_b32 s27, 0')
        for p in range(4):
            a(f's_add_u32 m0, s35, {PREP + p*1024}')
            if p: a('s_add_u32 s27, s27, s74')
            a.vissue('buffer_load_dwordx4 v102, s[12:15], s27 offen lds', 'pl')
        a(f's_add_u32 m0, s29, {PREP + 4*4096}')
        a.vissue('buffer_load_dwordx4 v103, s[16:19], 0 offen lds', 'pl')

    if 'ordB' in opt:
        issx(2); issx(3)
    else:
        issw(1)
        for c in range(4, 8): issx(c)
        srd(16, P_DBG, 256)
        a.vissue('buffer_load_dwordx2 v[104:105], off, s[16:19], 0 sc1', 'n')
        prep_setup()
        a('v_lshlrev_b32 v108, 18, v7')
        a('v_bfe_u32 v10, v2, 3, 1')
        a('v_lshl_add_u32 v108, v10, 16, v108')
        a('v_and_b32 v10, 7, v2')
        a('v_lshl_add_u32 v108, v10, 7, v108')
        a(f's_lshl_b32 s26, s{S_I}, 1')
        a(f's_lshr_b32 s27, s{S_Q}, 1')
        a('s_add_u32 s26, s26, s27')
        a('s_lshl_b32 s26, s26, 10')
        a(f's_and_b32 s27, s{S_Q}, 1')
        a('s_lshl_b32 s27, s27, 17')
        a('s_add_u32 s26, s26, s27')
        a(f's_add_u32 s26, s26, s{S_QKV}')
        a('v_add_u32 v108, s26, v108')
        a(f's_add_u32 s26, s{S_GB}, {G_FQ}')
        a('v_and_b32 v10, 1, v2')
        a('v_lshl_add_u32 v10, v10, 7, s26')
        a('v_cmp_lt_u32 vcc, 47, v2')
        a('v_cndmask_b32 v108, v108, v10, vcc')
    for c in range(8):
        a.vwait(('w', c))
        T.stamp(f'p1.h_w{c}', slot=2+2*c)
        a('s_barrier')
        T.stamp(f'p1.h_b{c}', slot=3+2*c)
        for j in range(3):
            for kk in range(4):
                if 'nostat' in opt and c: continue
                a(f'ds_read_b64_tr_b16 {vr(WFH+8*j+2*kk,2)}, v{AWH+j} offset:{(c % NSLOT)*WSLOT + kk*2048}')
        a(f'ds_read_b128 {vr(XFH,4)}, v{AXH} offset:{XL + c*8192}')
        a(f'ds_read_b128 {vr(XFH+4,4)}, v41 offset:{XL + c*8192}')
        if c + 2 < 8: issw(c + 2)
        if 'ordB' in opt and c < 2: issx(4 + 2*c); issx(5 + 2*c)
        if c == 2:
            a(f'v_readfirstlane_b32 s{S_NON}, v104')
            a(f'v_readfirstlane_b32 s{S_NON+1}, v105')
            sk = L('xp')
            a(f's_cmp_lg_u32 s{S_Q}, 0\ns_cbranch_scc1 {sk}')
            xcc_publish(104, 105)
            a.label(sk)
        a('s_waitcnt lgkmcnt(0)')
        for kk in range(2):
            z = (c == 0 and kk == 0)
            for j in range(3):
                if 'nostat' in opt and c: continue
                a(f'v_mfma_f32_16x16x32_bf16 {vr(CSA+4*j,4)}, {vr(WFH+8*j+4*kk,4)}, {vr(ONE4,4)}, {"0" if z else vr(CSA+4*j,4)}')
            a(f'v_mfma_f32_16x16x32_bf16 {vr(SXH,4)}, {vr(ONE4,4)}, {vr(XFH+4*kk,4)}, {"0" if z else vr(SXH,4)}')
            a(f'v_mfma_f32_16x16x32_bf16 {vr(SQH,4)}, {vr(XFH+4*kk,4)}, {vr(XFH+4*kk,4)}, {"0" if z else vr(SQH,4)}')
        if c == 5:
            sk = L('xl')
            a(f's_cmp_lg_u32 s{S_Q}, 0\ns_cbranch_scc1 {sk}')
            a('s_mov_b32 exec_hi, 0')
            xcc_load(106, 109)
            a('s_mov_b32 exec_hi, -1')
            a.label(sk)
        if c == TCC:
            a.vissue('buffer_load_dword v110, v108, s[8:11], 0 offen sc1', 'tc')
    a('v_cmp_eq_u32 vcc, 3, v9')
    for j in range(3): a(f'ds_write_b128 v100, {vr(CSA+4*j,4)} offset:{64*j}')
    a(f'v_mul_f32 v{SXH}, {H(-1/512)}, v{SXH}')
    a(f'v_cndmask_b32 v{SQH}, v{SQH}, v{SQH+1}, s[42:43]')
    a(f'v_cndmask_b32 v{SQH}, v{SQH}, v{SQH+2}, s[6:7]')
    a(f'v_cndmask_b32 v{SQH}, v{SQH}, v{SQH+3}, vcc')
    a(f'v_mul_f32 v{SQH}, {H(1/512)}, v{SQH}')
    a(f'v_fma_f32 v{SQH}, -v{SXH}, v{SXH}, v{SQH}')
    a(f'v_max_f32 v{SQH}, 0, v{SQH}')
    a(f'v_add_f32 v{SQH}, {H(1e-5)}, v{SQH}')
    a(f'v_rsq_f32 v{SQH}, v{SQH}')
    a('s_mov_b32 exec_lo, 0x00f0000f')
    a('s_mov_b32 exec_hi, 0xf0000f00')
    a(f'v_mul_f32 v{SXH}, v{SXH}, v{SQH}')
    a(f'ds_write_b32 v101, v{SQH} offset:256')
    a(f'ds_write_b32 v101, v{SXH}')
    a('s_mov_b64 exec, -1')
    sk = L('gn')
    a(f's_cmp_lg_u32 s{S_NON}, 0\ns_cbranch_scc1 {sk}')
    keep = list(a.vm)
    a('s_mov_b64 s[32:33], s[16:17]\ns_mov_b32 s34, s18')
    get_nonce()
    a('s_mov_b64 s[16:17], s[32:33]\ns_mov_b32 s18, s34')
    xcc_publish(10, 11)
    a.vm = keep
    a.label(sk)
    sk, lp, ok = L('nw'), L('xr'), L('xo')
    a(f's_cmp_lg_u32 s{S_Q}, 0\ns_cbranch_scc1 {sk}')
    a('s_waitcnt vmcnt(1)')
    a(f's_mov_b32 s{S_SPIN}, 0')
    a('s_mov_b32 exec_hi, 0')
    a.label(lp)
    a('v_and_b32 v10, -16, v106')
    a('v_mov_b32 v11, v107')
    a(f'v_cmp_ne_u64 vcc, {sr(S_NON,2)}, v[10:11]')
    a(f's_cbranch_vccz {ok}')
    a(f's_add_u32 s{S_SPIN}, s{S_SPIN}, 1')
    a(f's_cmp_gt_u32 s{S_SPIN}, 64')
    a(f's_cbranch_scc1 {ok}')
    xcc_load(106, 109)
    a('s_waitcnt vmcnt(0)')
    a(f's_branch {lp}')
    a.label(ok)
    calc_mode(106)
    a('s_mov_b32 exec_hi, -1')
    a(f'v_mov_b32 v104, s{S_NON}\nv_mov_b32 v105, s{S_NON+1}\nv_mov_b32 v106, s{S_MODE}')
    a(f'v_mov_b32 v10, {NONL}')
    a('ds_write_b128 v10, v[104:107]')
    a.label(sk)
    a('s_waitcnt lgkmcnt(0)')
    a('s_barrier')
    a('s_setprio 0')
    T.stamp('h_p1done', slot=2)
    a(f'v_mov_b32 v10, {NONL}')
    a('ds_read_b32 v25, v10 offset:8')
    a('v_lshlrev_b32 v12, 7, v2')
    a(f's_lshr_b32 s26, s{S_SLAB}, 1')
    a('s_mul_i32 s26, s26, 114688')
    a(f's_mul_i32 s27, s{S_CT}, 14336')
    a('s_add_u32 s26, s26, s27')
    a(f's_and_b32 s27, s{S_Q}, 1')
    a('s_mul_i32 s27, s27, 7168')
    a('s_add_u32 s26, s26, s27')
    a(f's_add_u32 s26, s26, s{S_GB}')
    a(f's_add_u32 s26, s26, {G_H2}')
    a(f'v_min_u32 v14, {55*128}, v12')
    a('v_add_u32 v14, s26, v14')
    a(f's_lshl_b32 s28, s{S_R16}, 14')
    a(f's_lshl_b32 s27, s{S_CT}, 11')
    a('s_add_u32 s28, s28, s27')
    a(f's_lshl_b32 s27, s{S_Q}, 18')
    a('s_add_u32 s28, s28, s27')
    a(f's_add_u32 s28, s28, {G_H}')
    a(f's_mul_i32 s27, s{S_I}, 1536')
    a(f's_add_u32 s27, s27, {G_ST1}')
    a(f's_cmp_eq_u32 s{S_Q}, 3')
    a('s_cselect_b32 s28, s27, s28')
    a('s_cselect_b32 s27, 0, 0x4000')
    a(f's_add_u32 s28, s28, s{S_GB}')
    a('v_lshlrev_b32 v17, 7, v6')
    a('v_mad_u32_u24 v17, v7, s27, v17')
    a('v_add_u32 v17, s28, v17')
    for reg, k in ((15, 0), (24, 1), (16, 2)):
        a(f's_mul_i32 s26, s{S_SLAB}, 3')
        a(f's_add_u32 s26, s26, {k}')
        a('s_min_u32 s26, s26, 41')
        a('s_mul_hi_u32 s27, s26, 0x2aaaaaab')
        a('s_lshl_b32 s27, s27, 1')
        a('s_add_u32 s26, s26, s27')
        a('s_add_u32 s26, s26, 2')
        a('s_lshl_b32 s26, s26, 12')
        a(f's_mul_i32 s27, s{S_CT}, {7*32768}')
        a('s_add_u32 s26, s26, s27')
        a(f's_add_u32 s26, s26, {W3F}')
        a(f'v_lshl_add_u32 v{reg}, v4, 7, s26')
    a('v_cmp_lt_u32 vcc, 31, v2')
    a('v_cndmask_b32 v15, v15, v24, vcc')
    a('s_waitcnt lgkmcnt(0)')
    a(f'v_readfirstlane_b32 s{S_MODE}, v25')
    a('v_and_b32 v10, 23, v2')
    a('v_cmp_eq_u32 vcc, 0, v10')
    a('v_mov_b32 v10, 0x3f803f80')
    a('v_cndmask_b32 v20, 0, v10, vcc')
    a('v_mov_b32 v21, v20\nv_mov_b32 v22, v20\nv_mov_b32 v23, v20')
    a('v_add_u32 v24, s29, v3')
    a(f's_add_u32 s{S_A}, s{S_HD}, s29')
    a(f's_add_u32 s{S_A}, s{S_A}, 0x40000')
    a(f's_add_u32 s27, s{S_GB}, {G_FQ}')
    a('s_mov_b32 s30, -1\ns_mov_b32 s31, 0')
    a('s_barrier')
    a(f'ds_write_b128 v24, v[20:23] offset:{CONST}')
    poll('v1', 's27', 's[30:31]')
    T.stamp('h_kvflag', slot=3)
    def kv_issue(c):
        a(f's_add_u32 m0, s29, {RING + (c & 3)*8192}')
        a(f's_add_u32 s30, s{S_A}, {c*4096}')
        a.vissue(f'buffer_load_dwordx4 v3, s[8:11], s30 offen sc1 {KVNT}lds', ('kv', c))
        a(f's_add_u32 m0, s29, {RING + (c & 3)*8192 + 4096}')
        a(f's_add_u32 s30, s{S_A}, {c*4096 + 0x40000}')
        a.vissue(f'buffer_load_dwordx4 v3, s[8:11], s30 offen sc1 {KVNT}lds', ('kv', c))
    kv_issue(0); kv_issue(1)
    def prep_convert(k, record):
        unit_idx(k)
        if isinstance(k, int): a(f's_mov_b32 s32, {PREP + k*4096}')
        else:
            a(f's_lshl_b32 s32, {k}, 12')
            a(f's_add_u32 s32, s32, {PREP}')
        k1, k2, k3, dn = L('k1'), L('k2'), L('k3'), L('kd')
        F = 64
        a(f's_cmp_eq_u32 s26, 1\ns_cbranch_scc1 {k1}')
        a(f's_cmp_eq_u32 s26, 2\ns_cbranch_scc1 {k2}')
        a(f's_cmp_eq_u32 s26, 3\ns_cbranch_scc1 {k3}')
        for kind, lab in ((0, None), (1, k1)):
            if lab: a.label(lab)
            for nt in range(4): a(f'v_add_u32 v{60+nt}, s32, v{PA16+4*kind+nt}')
            for nt in range(4):
                for sec in range(2):
                    a(f'ds_read_b64_tr_b16 {vr(F+4*nt+2*sec,2)}, v{60+nt} offset:{sec*(1024 if kind==0 else 2048)}')
            a('s_add_u32 s35, s28, 2048')
            a(f's_branch {dn}')
        a.label(k2)
        for nt in range(2): a(f'v_add_u32 v{60+nt}, s32, v{PA32+nt}')
        for nt in range(2):
            for kk in range(2):
                for sec in range(2):
                    a(f'ds_read_b64_tr_b16 {vr(F+8*nt+4*kk+2*sec,2)}, v{60+nt} offset:{(8*kk+16*sec)*128}')
        a('s_add_u32 s35, s28, 32768')
        a('s_mul_i32 s33, s33, 7168')
        a('s_lshl_b32 s34, s34, 8')
        a('s_add_u32 s33, s33, s34')
        a(f's_add_u32 s33, s33, {C3P}')
        a('v_lshlrev_b32 v62, 2, v2')
        a('s_waitcnt lgkmcnt(0)')
        for i in range(4):
            for nt in range(2):
                c_ = '0' if i == 0 else vr(80+4*nt,4)
                a(f'v_mfma_f32_4x4x4_16b_bf16 {vr(80+4*nt,4)}, {vr(ONES,2)}, {vr(F+8*nt+2*i,2)}, {c_}')
        a('v_permlane32_swap_b32 v80, v84')
        a('v_add_f32 v80, v80, v84')
        a('buffer_store_dword v80, v62, s[8:11], s33 offen sc1')
        a(f's_branch {dn}')
        a.label(k3)
        for nt in range(2): a(f'v_add_u32 v{60+nt}, s32, v{PA32+nt}')
        for kk in range(2):
            for nt in range(2):
                for sec in range(2):
                    a(f'ds_read_b64_tr_b16 {vr(F+8*kk+4*nt+2*sec,2)}, v{60+nt} offset:{(16*kk+8*sec)*128}')
        a('s_add_u32 s35, s28, 2048')
        a.label(dn)
        a('s_waitcnt lgkmcnt(0)')
        iss = (lambda t: a.vissue(t, 'pp')) if record else a
        iss(f'buffer_store_dwordx4 {vr(F,4)}, v3, s[8:11], s28 offen sc1')
        iss(f'buffer_store_dwordx4 {vr(F+4,4)}, v3, s[8:11], s28 offen offset:1024 sc1')
        iss(f'buffer_store_dwordx4 {vr(F+8,4)}, v3, s[8:11], s35 offen sc1')
        iss(f'buffer_store_dwordx4 {vr(F+12,4)}, v3, s[8:11], s35 offen offset:1024 sc1')

    HW2, HW1, HW3 = 24, 88, 92
    C3R = [116, 120, 124, 20]
    w3g = lambda g: [('w3', i) for i in range(8*g, 8*g+8)]
    flat = w3g(1) + [('c3', k) for k in range(4)] + [('wo', i) for i in range(16)] + w3g(2) + \
           [('w1', i) for i in range(15)] + [('r', HW1, W1F + 15*4096)] + w3g(3) + \
           [('r', HW2 + 4*i, W2F + i*4096) for i in range(16)] + w3g(0) + [('l3', t, f) for t in range(3) for f in range(2)]
    groups = [flat[12*i:12*i+12] for i in range(8)]
    strips = [(75, 8192), (74, WOF), (75, 2*8192), (74, W1F), (75, 3*8192), (74, W2F), (75, 0)]
    def job_setup():
        a(f's_lshl_b32 s31, s{S_CT}, 16')
        a('s_add_u32 s31, s31, s29')
        a(f's_mul_i32 s33, s{S_CT}, {7*32768}')
        a(f's_lshl_b32 s{S_B}, s{S_J}, 15')
        a(f's_add_u32 s{S_B}, s{S_B}, s33')
        a(f's_add_u32 s{S_B}, s{S_B}, {W3F}')
        a('s_add_u32 s33, s33, s29')
        a(f's_mul_i32 s32, s{S_CT}, 896')
        a(f's_mul_i32 s30, s{S_Q}, {4*7168}')
        a('s_add_u32 s32, s32, s30')
        a(f's_and_b32 s26, s{S_Q}, 1')
        a('s_lshl_b32 s26, s26, 2')
        a(f's_add_u32 s26, s26, s{S_RB}')
        a('s_lshl_b32 s74, s26, 13')
        a(f's_lshl_b32 s27, s{S_CT}, 16')
        a('s_add_u32 s74, s74, s27')
        a(f's_mul_i32 s75, s{S_CT}, 7')
        a('s_add_u32 s75, s75, s26')
        a('s_lshl_b32 s75, s75, 15')
        a(f's_add_u32 s75, s75, {W3F}')
        a(f's_mul_i32 s27, s{S_CT}, 229376')
        a(f's_add_u32 s27, s27, {W4F + 3*28672 - 4096}')
        a('s_cmp_eq_u32 s26, 7')
        a('s_cselect_b32 s75, s27, s75')
    def dma(lds, src):
        a(f's_add_u32 m0, s29, {lds}')
        a(f's_add_u32 s30, s31, {src}')
        a.vissue('buffer_load_dwordx4 v3, s[8:11], s30 offen sc1 lds', 'pf')
    def ldr(reg, sbase, off, imm=0):
        a(f's_add_u32 s30, s{sbase}, {off}')
        a.vissue(f'buffer_load_dwordx4 {vr(reg,4)}, v3, s[8:11], s30 offen offset:{imm} sc1', 'pf')
    def job(j):
        kind = j[0]
        if kind == 'w3' and j[1] < 8: ldr(W3+4*j[1], S_B, (j[1] >> 2)*4096, (j[1] & 3)*1024)
        elif kind == 'w3': ldr(W3+4*j[1], S_W4, ((j[1] >> 2) - 1)*4096, (j[1] & 3)*1024)
        elif kind == 'wo': dma(WA + j[1]*4096, WOF + j[1]*4096)
        elif kind == 'w1': dma(WB + j[1]*4096, W1F + j[1]*4096)
        elif kind == 'r': ldr(j[1], 31, j[2])
        elif kind == 'l3': ldr(HW3 + 8*j[1] + 4*j[2], 33, W3F + j[1]*32768 + j[2]*4096)
        elif kind == 'c3': ldr(C3R[j[1]], 32, C3P + j[1]*7168)
    groups = [flat[13*i:13*i+13] for i in range(7)]
    def touch(vreg, lo, hi):
        a(f's_mov_b32 exec_lo, {hex(lo)}\ns_mov_b32 exec_hi, {hex(hi)}')
        a.vissue(f'buffer_load_dword v13, v{vreg}, s[8:11], 0 offen sc1', 'pf')
        a('s_mov_b64 exec, -1')
    QM = [(0xffff, 0), (0xffff0000, 0), (0, 0xffff), (0, 0xffff0000)]
    for c in range(16):
        if c == 5: a.vwait('pp')
        a.vwait(('kv', c), 'lgkmcnt(0)' if c == 0 else '')
        a('s_barrier')
        if c == 3:
            sk = L('u4')
            a(f's_cmp_lg_u32 s{S_Q}, 3\ns_cbranch_scc1 {sk}')
            prep_convert(4, False)
            a.label(sk)
        if c >= 2 and c + 2 < 16: kv_issue(c + 2)
        if c == 0:
            kv_issue(2); kv_issue(3)
            prep_loads()
        if c == 2:
            a.vwait('pl')
            prep_convert(f's{S_Q}', True)
        if c == 5:
            sk = L('pf')
            a(f's_cmp_lg_u32 s{S_Q}, 1\ns_cbranch_scc1 {sk}')
            a('s_lshl_b32 s26, s2, 7')
            a(f's_add_u32 s26, s26, {F_PREP}')
            keep = list(a.vm); flag_sc1('s26'); a.vm = keep
            srd(16, P_OUT, 0x200000)
            a('v_lshlrev_b32 v10, 21, v2')
            a(f's_mov_b32 s26, {GB + G_FHX}')
            a('s_mov_b64 exec, 0xff')
            a('buffer_load_dword v13, v10, s[8:11], s26 offen')
            a('buffer_load_dword v13, off, s[16:19], 0')
            a('s_mov_b64 exec, -1')
            a.label(sk)
            job_setup()
            a(f's_lshl_b32 s28, s{S_Q}, 13')
            a(f's_add_u32 s28, s28, {F_PREP}')
        if c == 7:
            a.vissue('buffer_load_dwordx2 v[18:19], v12, s[8:11], s28 offen sc1', 'pq')
            a.vwait('pq')
            bk_ = L('bk')
            a(f'v_cmp_ne_u64 vcc, {sr(S_NON,2)}, v[18:19]')
            a(f's_cbranch_vccz {bk_}')
            keep = list(a.vm); poll('v12', 's28', None, sleep=2); a.vm = keep
            a.label(bk_)
        if 8 <= c < 15 and 'nojobs' not in opt:
            for j in groups[c-8]: job(j)
        if 'notouch' not in opt:
            if c in (0, 1, 3, 4): touch(14, *QM[(0, 1, 3, 4).index(c)])
            if c in (5, 6): touch(17, *QM[c-5])
            if c in (7, 8): touch(17, *QM[c-5])
            if 9 <= c < 13: touch(15, *QM[c-9])
            if c in (13, 14): touch(16, *QM[c-13])
            if c in (13, 14) and 'noret' not in opt: touch(17, *((0xffffffff, 0) if c == 13 else (0, 0xffffffff)))
        if c in (4, 9, 14) and 'nocw' not in opt:
            sk, pc = L('cw'), L('pc')
            a(f's_cmp_lg_u32 s{S_Q}, 2\ns_cbranch_scc1 {sk}')
            a('s_getpc_b64 s[26:27]')
            a.label(pc)
            a(f's_sub_u32 s26, s26, {pc}-{name}')
            a('s_subb_u32 s27, s27, 0')
            a(f's_lshl_b32 s30, s{S_I}, 11')
            a('v_lshl_add_u32 v10, v2, 7, s30')
            a(f'v_min_u32 v10, {name}_end-{name}, v10')
            a('s_mov_b64 exec, 0xffff')
            a('global_load_dword v13, v10, s[26:27] sc1')
            a('s_mov_b64 exec, -1')
            a.label(sk)
    a.vwait_all()
    a('v_add_u32 v12, s29, v3')
    a(f'v_add_u32 v13, {WB}, v12')
    a(f'v_add_u32 v14, {WA}, v12')
    a(f's_mul_i32 s26, s{S_Q}, 896')
    a('v_add_u32 v15, s26, v3')
    a('s_barrier')
    T.stamp('h_attn_end', slot=4)
    a(f'ds_write_b128 v12, {vr(HW1,4)} offset:{W1X}')
    for i in range(NW2L): a(f'ds_write_b128 v12, {vr(HW2+4*i,4)} offset:{W2L + i*4096}')
    for k in range(1, 4):
        for i in range(2): a(f'v_pk_add_f32 {vr(C3R[0]+2*i,2)}, {vr(C3R[0]+2*i,2)}, {vr(C3R[k]+2*i,2)}')
    a('s_mov_b32 exec_hi, 0xffffff')
    a(f'ds_write_b128 v15, {vr(C3R[0],4)} offset:{C3L}')
    a('s_mov_b32 exec_hi, -1')
    for i in range(4): a(f'v_mov_b32 v{20+i}, 0x3f803f80')
    a(f'v_mfma_f32_16x16x32_bf16 v[16:19], {vr(HW1,4)}, v[20:23], 0')
    a('s_waitcnt lgkmcnt(0)')
    for bt in range(3):
        for k in range(5): a(f'ds_read_b128 {vr(HW2+4*k,4)}, v13 offset:{(5*bt+k)*4096}')
        for k in range(5):
            a(f's_waitcnt lgkmcnt({4-k})')
            a(f'v_mfma_f32_16x16x32_bf16 v[16:19], {vr(HW2+4*k,4)}, v[20:23], v[16:19]')
    a(f's_lshl_b32 s26, s{S_Q}, 6')
    a(f's_add_u32 s26, s26, {CS1}')
    a('v_lshl_add_u32 v10, v7, 4, s26')
    a('ds_write_b128 v10, v[16:19]')
    a('s_waitcnt lgkmcnt(0)')
    a('s_barrier')
    sk = L('c3w')
    a(f's_cmp_lg_u32 s{S_Q}, 3\ns_cbranch_scc1 {sk}')
    for k in range(4): a(f'ds_read_b128 {vr(HW2+4*k,4)}, v3 offset:{C3L + 896*k}')
    a('s_waitcnt lgkmcnt(0)')
    for k in range(1, 4):
        for i in range(2): a(f'v_pk_add_f32 {vr(HW2+2*i,2)}, {vr(HW2+2*i,2)}, {vr(HW2+4*k+2*i,2)}')
    a(f'ds_write_b128 v3, {vr(HW2,4)} offset:{C3L}')
    a.label(sk)
    a('s_barrier')
    for i in range(NW2L, 16): a(f'ds_write_b128 v14, {vr(HW2+4*i,4)} offset:{i*4096}')
    a('s_waitcnt lgkmcnt(0)')
    a('s_barrier')
    for t in range(3):
        for f in range(2): a(f'ds_write_b128 v13, {vr(HW3+8*t+4*f,4)} offset:{t*8192 + f*4096}')
    p4_prologue()
    a(f's_lshl_b32 s74, s{S_SLAB}, 6')
    a(f's_add_u32 s74, s74, s{S_GB}')
    a(f's_add_u32 s74, s74, {G_FX1}')
    a(f's_lshl_b32 s{S_A}, s{S_SLAB}, 14')
    a(f's_lshl_b32 s75, s{S_Q}, 14')
    a(f's_add_u32 s{S_A}, s{S_A}, s{S_GB}')
    a(f's_add_u32 s{S_A}, s{S_A}, {G_X1}')
    a('s_waitcnt lgkmcnt(0)')
    a('s_barrier')
    poll('v1', 's74', '0xff')
    def x1_lines(kh):
        l = []
        for hf in range(2):
            l += [f's_add_u32 m0, s75, {XT + kh*8192 + hf*4096}', f's_add_u32 s30, s{S_A}, {kh*8192 + hf*4096}']
            l += [f'buffer_load_dwordx4 v3, s[8:11], s30 offen offset:{i*1024} sc1 lds' for i in range(4)]
        return l
    for l in x1_lines(0): a(l)
    HJOIN = L('hjoin')
    a(f's_branch {HJOIN}')

    a.label(CW1)
    a.vm = []
    sk = L('cp')
    a(f's_cmp_lg_u32 s{S_WAVE}, 1\ns_cbranch_scc1 {sk}')
    a('s_getpc_b64 s[26:27]')
    a.label(f'{name}_pc')
    a(f's_sub_u32 s26, s26, {name}_pc-{name}')
    a('s_subb_u32 s27, s27, 0')
    a(f's_lshl_b32 s28, s{S_I}, 11')
    a('v_lshl_add_u32 v10, v2, 7, s28')
    a(f'v_min_u32 v10, {name}_end-{name}, v10')
    a('s_mov_b64 exec, 0xffff')
    a('global_load_dword v255, v10, s[26:27]')
    a('s_mov_b64 exec, -1')
    a.label(sk)
    common_consts()
    ACC = 16; FR = [64, 80, 96, 228]; AX = 112; AW = 116
    a(f's_lshr_b32 s30, s{S_Q}, 1')
    a(f's_and_b32 s31, s{S_Q}, 1')
    a('s_lshl_b32 s27, s30, 5')
    a('v_add_u32 v10, s27, v4')
    a('v_lshlrev_b32 v10, 7, v10')
    a('v_bfe_u32 v11, v4, 1, 3')
    for ks in range(4):
        a(f'v_add_u32 v12, {2*ks}, v5')
        a('v_xor_b32 v12, v12, v11')
        a(f'v_lshl_add_u32 v{AX+ks}, v12, 4, v10')
    a('v_lshl_add_u32 v10, v5, 3, v8')
    a('v_lshlrev_b32 v10, 7, v10')
    a('v_lshl_add_u32 v10, v9, 3, v10')
    a('v_and_b32 v11, 1, v7')
    a('s_lshl_b32 s27, s31, 1')
    a('v_add_u32 v11, s27, v11')
    a('v_and_b32 v12, 2, v8')
    a('v_xor_b32 v11, v11, v12')
    a(f'v_lshl_add_u32 v{AW}, v11, 5, v10')
    a(f'v_add_u32 v{AW}, {WL}, v{AW}')
    a(f'v_xor_b32 v{AW+1}, 32, v{AW}')
    a(f'v_add_u32 v{AW+1}, 512, v{AW+1}')
    a(f'v_add_u32 v{AW+2}, {2*WSLOT}, v{AW}')
    a(f'v_add_u32 v{AW+3}, {2*WSLOT}, v{AW+1}')
    a('s_waitcnt lgkmcnt(0)')
    if 'xs' in opt.split(','):
        srd(12, P_X, 0x200000)
        a(f's_lshl_b32 s26, s{S_I}, 16')
        a(f's_lshl_b32 s27, s{S_Q}, 14')
        a('s_add_u32 s26, s26, s27')
        a('v_lshlrev_b32 v10, 7, v2')
        a('buffer_load_dword v252, v10, s[12:15], s26 offen')
        a('s_add_u32 s26, s26, 8192')
        a('buffer_load_dword v252, v10, s[12:15], s26 offen')
    srd(16, P_DBG, 256)
    srd(8, P_WS, WS_USED)
    sk = L('nc')
    a(f's_or_b32 s27, s2, s{S_WAVE}')
    a(f's_cmp_lg_u32 s27, 0\ns_cbranch_scc1 {sk}')
    a('s_memrealtime s[26:27]')
    a('s_waitcnt lgkmcnt(0)')
    a('s_lshl_b64 s[26:27], s[26:27], 5')
    a('s_or_b32 s26, s26, 16')
    a('v_mov_b32 v12, s26\nv_mov_b32 v13, s27')
    a('s_mov_b64 exec, 1')
    a('buffer_store_dwordx2 v[12:13], off, s[16:19], 0 sc1')
    a('s_mov_b64 exec, -1')
    a.label(sk)
    EA = 120
    a('s_lshl_b32 s27, s31, 7')
    a(f's_add_u32 s27, s27, {CSUM}')
    a(f'v_lshl_add_u32 v{EA}, v5, 4, s27')
    a(f'v_lshl_add_u32 v{EA+1}, v4, 2, s27')
    a('s_lshl_b32 s27, s30, 7')
    a(f's_add_u32 s27, s27, {RST}')
    a(f'v_lshl_add_u32 v{EA+2}, v4, 2, s27')
    a(f'v_lshl_add_u32 v{EA+3}, v5, 4, s27')
    a('v_lshrrev_b32 v10, 4, v4')
    a('v_lshlrev_b32 v10, 16, v10')
    a('v_lshl_add_u32 v10, v5, 8, v10')
    a(f'v_lshl_add_u32 v{EA+4}, v6, 4, v10')
    a(f's_lshl_b32 s26, s{S_I}, 1')
    a('s_add_u32 s26, s26, s30')
    a('s_lshl_b32 s26, s26, 10')
    a('s_lshl_b32 s27, s31, 17')
    a('s_add_u32 s26, s26, s27')
    a(f's_add_u32 s{S_A}, s26, s{S_QKV}')
    a(f'v_mov_b32 v{EA+5}, {NONL}')
    def rd_list(n):
        c, ks = n >> 2, n & 3; b = FR[n % 4]
        slot = c % NSLOT
        l = [f'ds_read_b128 {vr(b,4)}, v{AX+ks} offset:{XL + c*8192}']
        for j in range(3):
            for sec in range(2):
                l.append(f'ds_read_b64_tr_b16 {vr(b+4+4*j+2*sec,2)}, v{AW+sec+(2 if slot == 2 else 0)} offset:{(slot&1)*WSLOT + j*8192 + ks*2048}')
        return l
    T.stamp('p1.c_pre')
    fixwait('fixb0', 12)
    a('s_barrier')
    T.stamp('c_b0'); T.stamp('p1.c_b0')
    for l in rd_list(0): a(l)
    for l in rd_list(1): a(l)
    CV = 128; RV = 160; SC = 192
    for n in range(32):
        c, ks = n >> 2, n & 3
        b = FR[n % 4]
        z = lambda r, k: '0' if n == 0 else vr(r, k)
        if ks == 2:
            a('s_waitcnt lgkmcnt(0)')
            T.stamp(f'p1.c_w{c+1}')
            a('s_barrier')
            T.stamp(f'p1.c_b{c+1}')
        elif ks == 0: a('s_waitcnt lgkmcnt(7)')
        elif ks == 1: a('s_waitcnt lgkmcnt(14)')
        rl = rd_list(n + 2) if n + 2 < 32 else []
        if ks == 0: rl = rl + rd_list(n + 3)
        if ks == 1: rl = []
        if n == 30:
            rl = [f'ds_read_b128 v[12:15], v{EA+5}', f'ds_read_b32 v{SC}, v{EA+2}', f'ds_read_b32 v224, v{EA+2} offset:256', f'ds_read_b32 v{SC+2}, v{EA+1} offset:512'] + \
                 [f'ds_read_b128 {vr(CV+16*j+4*q,4)}, v{EA} offset:{256*j+32*q}' for j in range(2) for q in range(4)]
        if n == 31:
            rl = [f'ds_read_b128 {vr(RV+16*j+4*q,4)}, v{EA+3} offset:{256*j+32*q}' for j in range(2) for q in range(4)]
        k = (len(rl) + 2) // 3
        a(f'v_mfma_f32_32x32x16_bf16 {vr(ACC,16)}, {vr(b+4,4)}, {vr(b,4)}, {z(ACC,16)}')
        for l in rl[0:k]: a(l)
        a(f'v_mfma_f32_32x32x16_bf16 {vr(ACC+16,16)}, {vr(b+8,4)}, {vr(b,4)}, {z(ACC+16,16)}')
        for l in rl[k:2*k]: a(l)
        a(f'v_mfma_f32_32x32x16_bf16 {vr(ACC+32,16)}, {vr(b,4)}, {vr(b+12,4)}, {z(ACC+32,16)}')
        for l in rl[2*k:]: a(l)
    T.stamp('c_gemm')
    a('s_waitcnt lgkmcnt(8)')
    a(f'v_readfirstlane_b32 s{S_MODE}, v14')
    a(f'v_readfirstlane_b32 s{S_NON}, v12')
    a(f'v_readfirstlane_b32 s{S_NON+1}, v13')
    a(f'v_mul_f32 v{SC+4}, {H(QSCALE)}, v{SC}')
    a(f'v_mul_f32 v226, {H(QSCALE)}, v224')
    PK = 200
    lines = []
    for j in range(2):
        sc = SC + 4 if j == 0 else SC
        for p in range(8):
            lines.append(f'v_pk_mul_f32 {vr(CV+16*j+2*p,2)}, {vr(CV+16*j+2*p,2)}, {vr(sc,2)} op_sel_hi:[1,0]')
        for o in range(2):
            for p in range(4*o, 4*o+4):
                A_ = ACC+16*j+2*p
                lines.append(f'v_pk_fma_f32 {vr(A_,2)}, {vr(A_,2)}, {vr(226 if j == 0 else 224,2)}, {vr(CV+16*j+2*p,2)} op_sel_hi:[1,0,1]')
            for p in range(4*o, 4*o+4):
                A_ = ACC+16*j+2*p
                lines.append(f'v_cvt_pk_bf16_f32 v{PK+8*j+p}, v{A_}, v{A_+1}')
            lines.append(f's_add_u32 s26, s{S_A}, {j*0x40000 + o*0x10000}')
            lines.append(f'buffer_store_dwordx4 {vr(PK+8*j+4*o,4)}, v3, s[8:11], s26 offen')
    lines.append('s_waitcnt lgkmcnt(0)')
    lines.append(f's_add_u32 s26, s{S_A}, 0x80000')
    for p in range(8):
        lines.append(f'v_pk_mul_f32 {vr(RV+2*p,2)}, {vr(RV+2*p,2)}, {vr(SC+2,2)} op_sel_hi:[1,0]')
    for o in range(2):
        for p in range(4*o, 4*o+4):
            A_ = ACC+32+2*p
            lines.append(f'v_pk_fma_f32 {vr(A_,2)}, {vr(A_,2)}, {vr(RV+16+2*p,2)}, {vr(RV+2*p,2)}')
        for p in range(4*o, 4*o+4):
            A_ = ACC+32+2*p
            lines.append(f'v_cvt_pk_bf16_f32 v{PK+16+p}, v{A_}, v{A_+1}')
        lines.append(f'buffer_store_dwordx4 {vr(PK+16+4*o,4)}, v{EA+4}, s[8:11], s26 offen offset:{512*o}')
    st2(lines)
    T.stamp('p1.c_st')

    Q, SA, SB, O, P, KB, VB, AV = 12, 20, 36, 52, 84, 92, 100, 116
    XR = 120
    a('v_lshlrev_b32 v10, 8, v5')
    a('v_lshl_add_u32 v10, v6, 4, v10')
    a('v_and_b32 v11, 11, v6')
    a('v_cmp_eq_u32 vcc, 0, v11')
    a(f'v_mov_b32 v11, {CONST + 16}')
    a(f'v_mov_b32 v{SA}, {CONST}')
    a(f'v_cndmask_b32 v11, v11, v{SA}, vcc')
    a(f'v_add_u32 v{SA}, 4, v6')
    a(f'v_and_b32 v{SA}, 8, v{SA}')
    a(f'v_lshl_add_u32 v11, v{SA}, 4, v11')
    a('v_cmp_gt_u32 vcc, 16, v4')
    for s in range(4):
        a(f'v_add_u32 v{SA}, {RING + s*8192 + 4096}, v10')
        a(f'v_cndmask_b32 v{AV+s}, v11, v{SA}, vcc')
    a(f's_lshl_b32 s28, s{S_CT}, 13')
    a(f's_lshl_b32 s27, s{S_Q}, 11')
    a('s_add_u32 s28, s28, s27')
    a(f's_add_u32 s{S_U}, s28, s{S_HD}')
    a(f's_mul_i32 s{S_B}, s{S_CT}, 7')
    a(f's_add_u32 s{S_B}, s{S_B}, s{S_Q}')
    a(f's_lshl_b32 s{S_B}, s{S_B}, 15')
    a(f's_add_u32 s{S_B}, s{S_B}, {W3F}')
    flag_prep()
    a(f's_lshl_b32 s26, s{S_I}, 3')
    a(f's_add_u32 s26, s26, s{S_GB}')
    a(f's_add_u32 s26, s26, {G_FQ}')
    a('s_waitcnt vmcnt(0) lgkmcnt(0)')
    a('s_barrier')
    sk = L('qf')
    a(f's_cmp_lg_u32 s{S_WAVE}, 0\ns_cbranch_scc1 {sk}')
    st2(flag_lines('s26'))
    a.label(sk)
    T.stamp('c_pub')
    srd(16, P_X, 0x200000)
    a(f's_lshl_b32 s33, s{S_X}, 4')
    a(f's_add_u32 s33, s33, s{S_SLAB}')
    a('s_lshl_b32 s33, s33, 14')
    a(f's_lshl_b32 s27, s{S_CT}, 7')
    a('s_add_u32 s33, s33, s27')
    a('v_lshlrev_b32 v128, 10, v6')
    a('v_lshl_add_u32 v128, v7, 3, v128')
    def rdK(t): a(f'ds_read_b128 {vr(KB+4*(t&1),4)}, v3 offset:{RING + ((t>>2)&3)*8192 + (t&3)*1024}')
    def rdV(t, f): a(f'ds_read_b128 {vr(VB+8*(t&1)+4*f,4)}, v{AV+((t>>2)&3)} offset:{(t&3)*1024+f*512}')
    def mfS(n):
        S = SA if (n & 1) == 0 else SB
        if 'noqk' in opt and n > 1: return
        a(f'v_mfma_f32_32x32x16_bf16 {vr(S,16)}, {vr(KB+4*((n>>1)&1),4)}, {vr(Q+4*(n&1),4)}, 0')
    def mfO(n, f):
        Ou = O + 16*(n & 1)
        if 'nopv' in opt and n > 1: return
        if 'pv16' in opt:
            a(f'v_mfma_f32_16x16x32_bf16 {vr(Ou+8,4)}, {vr(VB+8*((n>>1)&1)+4*f,4)}, {vr(P+4*f,4)}, {"0" if n < 2 and f == 0 else vr(Ou+8,4)}')
            return
        c_ = '0' if (n < 2 and f == 0) else vr(Ou,16)
        a(f'v_mfma_f32_32x32x16_bf16 {vr(Ou,16)}, {vr(VB+8*((n>>1)&1)+4*f,4)}, {vr(P+4*f,4)}, {c_}')
    a(f's_lshl_b32 s26, s{S_CT}, 5')
    a(f's_lshl_b32 s27, s{S_Q}, 3')
    a('s_add_u32 s26, s26, s27')
    a(f's_add_u32 s26, s26, s{S_GB}')
    a(f's_add_u32 s26, s26, {G_FQ}')
    poll('v1', 's26', '1')
    a(f'buffer_load_dwordx4 {vr(Q,4)}, v3, s[8:11], s{S_U} offen sc1')
    a(f'buffer_load_dwordx4 {vr(Q+4,4)}, v3, s[8:11], s{S_U} offen offset:1024 sc1')
    a('s_waitcnt vmcnt(0)')
    fixwait('fixa0', 20)
    a('s_barrier')
    T.stamp('c_kv0'); T.stamp('ap.A0'); T.stamp('att.c0'); T.stamp('att.r0', True)
    rdK(0); rdK(1); rdV(0, 0); rdV(0, 1)
    a('s_waitcnt lgkmcnt(3)')
    mfS(0)
    NS = 128
    cjobs = list(range(8, 32))
    for n in range(NS):
        t = n >> 1
        S = SA if (n & 1) == 0 else SB
        ex = lambda i: a(f'v_exp_f32 v{(132+i) if "noqk" in opt else (S+i)}, v{S+i}')
        cv = lambda j: a(f'v_cvt_pk_bf16_f32 v{P+j}, v{S+2*j}, v{S+2*j+1}')
        even = (n & 1) == 0
        if even:
            a('s_waitcnt lgkmcnt(0)')
            if (t + 2) % 4 == 0 and (t + 2) // 4 < 16:
                a('s_barrier')
                T.stamp(f'ap.A{(t+2)//4}')
        if n + 1 < NS: mfS(n + 1)
        ex(0); ex(1)
        if even and t + 2 < 64: rdK(t + 2)
        if n in (33, 34, 41, 42):
            k = (33, 34, 41, 42).index(n)
            a(f'buffer_load_dwordx2 {vr(XR+2*k,2)}, v128, s[16:19], s33 offen offset:{32*k}')
        if n >= 60 and ((n + 4) % 8) >= 4 and cjobs:
            i = cjobs.pop(0)
            if 'nojobs' in opt: pass
            if i % 4 == 0: a(f's_add_u32 s30, s{S_W4}, {((i >> 2) - 1)*4096}')
            if 'nojobs' not in opt and 'nocj' not in opt: a(f'buffer_load_dwordx4 {vr(W3+4*i,4)}, v3, s[8:11], s30 offen offset:{(i&3)*1024} sc1')
        ex(2); cv(0); ex(3); ex(4); ex(5); cv(1)
        if n > 0: mfO(n - 1, 1)
        ex(6); ex(7)
        if even and t + 1 < 64: rdV(t + 1, 0)
        cv(2); ex(8); cv(3); ex(9)
        if even and t + 1 < 64: rdV(t + 1, 1)
        ex(10)
        mfO(n, 0)
        ex(11); cv(4); ex(12); ex(13); cv(5); ex(14); ex(15); cv(6); cv(7)
    assert not cjobs
    mfO(NS - 1, 1)
    T.stamp('c_attn_end'); T.stamp('ap.end'); T.stamp('att.c1'); T.stamp('att.r1', True)
    if 'slowsafe' in opt:
        sk = L('ss')
        a(f's_cmp_lg_u32 s{S_MODE}, 0\ns_cbranch_scc1 {sk}')
        for i in range(6): a('s_sleep 127')
        a.label(sk)
    a(f's_lshl_b32 s29, s{S_X}, 2')
    a(f's_add_u32 s29, s29, s{S_RB}')
    a(f's_lshl_b32 s26, s{S_CT}, 21')
    a(f's_lshl_b32 s27, s{S_Q}, 16')
    a('s_add_u32 s26, s26, s27')
    a('s_lshl_b32 s27, s29, 9')
    a('s_add_u32 s26, s26, s27')
    a(f's_add_u32 s26, s26, {GB + G_O}')
    a('s_add_u32 s27, s26, 32768')
    a(f's_lshl_b32 s28, s{S_CT}, 14')
    a(f's_lshl_b32 s30, s{S_Q}, 12')
    a('s_add_u32 s28, s28, s30')
    a('s_lshl_b32 s30, s29, 7')
    a('s_add_u32 s28, s28, s30')
    a(f's_add_u32 s28, s28, {F_O}')
    a(f'v_lshrrev_b32 v{KB}, 4, v4')
    a(f'v_lshlrev_b32 v{KB}, 14, v{KB}')
    a(f'v_lshl_add_u32 v{KB}, v5, 8, v{KB}')
    a(f'v_lshl_add_u32 v{KB}, v6, 4, v{KB}')
    FB, FBR = L('fb'), L('fbr')
    for u in range(2):
        Ou = O + 16*u
        a(f'v_max3_f32 v{SA+u}, |v{Ou}|, |v{Ou+1}|, |v{Ou+2}|')
        a(f'v_max3_f32 v{SA+u}, |v{Ou+3}|, |v{Ou+4}|, v{SA+u}')
        a(f'v_max3_f32 v{SA+u}, |v{Ou+5}|, |v{Ou+6}|, v{SA+u}')
    a(f'v_max3_f32 v{SA}, |v{O+7}|, |v{O+23}|, v{SA}')
    a(f'v_max_f32 v{SA}, v{SA}, v{SA+1}')
    a(f'v_mul_f32 v{SA}, {H(2.0**-60)}, v{SA}')
    a(f'v_max3_f32 v{SA}, v{O+8}, v{O+24}, v{SA}')
    a(f'v_min_f32 v{SA+1}, v{O+8}, v{O+24}')
    a(f'v_cmp_nle_f32 vcc, v{SA}, v{SA+2}' if False else f'v_mov_b32 v{SA+2}, {H(2.0**60)}')
    a(f'v_cmp_nle_f32 vcc, v{SA}, v{SA+2}')
    a(f'v_cmp_u_f32 s[30:31], v{O+8}, v{O+24}')
    a(f'v_cmp_ngt_f32 s[32:33], v{SA+1}, v{SA+3}' if False else f'v_mov_b32 v{SA+3}, {H(2.0**-60)}')
    a(f'v_cmp_ngt_f32 s[32:33], v{SA+1}, v{SA+3}')
    a('s_or_b64 vcc, vcc, s[30:31]')
    a('s_or_b64 vcc, vcc, s[32:33]')
    if force_fallback: a('s_mov_b64 vcc, -1')
    if 'nofb' in opt: a('s_mov_b64 vcc, 0')
    a(f's_cbranch_vccnz {FB}')
    a.label(FBR)
    for u in range(2):
        Ou = O + 16*u
        a(f'v_rcp_f32 v{SA+2*u}, v{Ou+8}')
    flag_prep()
    for u in range(2):
        Ou = O + 16*u
        for p in range(4): a(f'v_pk_mul_f32 {vr(Ou+2*p,2)}, {vr(Ou+2*p,2)}, {vr(SA+2*u,2)} op_sel_hi:[1,0]')
        for j in range(4): a(f'v_cvt_pk_bf16_f32 v{P+4*u+j}, v{Ou+2*j}, v{Ou+2*j+1}')
    for l in [f'buffer_store_dwordx4 {vr(P,4)}, v{KB}, s[8:11], s26 offen', f'buffer_store_dwordx4 {vr(P+4,4)}, v{KB}, s[8:11], s27 offen',
         's_waitcnt vmcnt(0)'] + flag_lines('s28'): a(l + (' sc1' if l.startswith('buffer') else ''))
    a('s_barrier')
    T.stamp('c_pub0'); T.stamp('ap.A16')

    GC0 = 12; AWA, AWB = 14, 15; HB = 16; MU, R1 = 24, 25; TMP = 26
    ACC = 32; ACT = 48; WF = 128; NWS = 2; CV = 112; LEAD = 6
    S_TA, S_SA, S_FA = 33, 34, 35
    a(f'v_add_u32 v{AWA}, {WA}, v3')
    a(f'v_add_u32 v{AWB}, {WB}, v3')
    def wread(ph, s, nt):
        b = WF + 16*(s % NWS) + 4*nt
        if ph == 2 and s == 15: return f'ds_read_b128 {vr(b,4)}, v3 offset:{W1X + nt*1024}'
        if ph == 3 and s < NW2L: return f'ds_read_b128 {vr(b,4)}, v3 offset:{W2L + s*4096 + nt*1024}'
        return f'ds_read_b128 {vr(b,4)}, v{AWB if ph == 2 else AWA} offset:{s*4096 + nt*1024}'
    def wpre(ph):
        for s in range(NWS):
            for nt in range(4): a(wread(ph, s, nt))
    def gemm64(ph, ld, fill=None, zero=False):
        T.stamp(f'g.p{ph}_go')
        for s in range(LEAD): ld(s)
        fill = list(fill or [])
        for s in range(16):
            b = WF + 16*(s % NWS)
            for nt in range(4):
                out = min(4*NWS - 1, 4*(16 - s) - nt - 1)
                if nt == 0:
                    a.vwait(('a', s), f'lgkmcnt({out})')
                    if s in (0, 8, 15): T.stamp(f'g.p{ph}_s{s}')
                else: a(f's_waitcnt lgkmcnt({out})')
                c_ = '0' if (s == 0 and zero) else vr(ACC+4*nt,4)
                a(f'v_mfma_f32_16x16x32_bf16 {vr(ACC+4*nt,4)}, {vr(b+4*nt,4)}, {vr(ACT+4*s,4)}, {c_}')
                if s + NWS < 16: a(wread(ph, s + NWS, nt))
                if nt == 1 and s + LEAD < 16: ld(s + LEAD)
                if s >= 4 and fill: a(fill.pop(0))
        assert not fill
    def ld_plain(s):
        if s and s % 4 == 0: a('s_add_u32 s29, s29, 4096')
        a.vissue(f'buffer_load_dwordx4 {vr(ACT+4*s,4)}, v3, s[8:11], s29 offen offset:{(s&3)*1024} sc1', ('a', s))
    def xsum_lines(r0, r1, t0, t1):
        l = []
        for sw in ('v_permlane16_swap_b32', 'v_permlane32_swap_b32'):
            l += [f'v_mov_b32 v{t0}, v{r0}', f'v_mov_b32 v{t1}, v{r1}', f'{sw} v{r0}, v{t0}', f'{sw} v{r1}, v{t1}',
                  f'v_add_f32 v{r0}, v{r0}, v{t0}', f'v_add_f32 v{r1}, v{r1}, v{t1}']
        return l
    def addrs(act, tile, stats, flag):
        a(f's_lshl_b32 s26, s{S_SLAB}, 14')
        a(f's_add_u32 s26, s26, s{S_GB}')
        if act is not None: a(f's_add_u32 s29, s26, {act}')
        a(f's_lshl_b32 s27, s{S_CT}, 11')
        a(f's_add_u32 s{S_TA}, s26, s27')
        a(f's_add_u32 s{S_TA}, s{S_TA}, {tile}')
        a(f's_lshl_b32 s27, s{S_CT}, 3')
        a(f's_add_u32 s27, s27, s{S_GB}')
        if stats is not None:
            a(f's_lshl_b32 s{S_SA}, s{S_SLAB}, 10')
            a(f's_add_u32 s{S_SA}, s{S_SA}, s27')
            a(f's_add_u32 s{S_SA}, s{S_SA}, {stats}')
        a(f's_lshl_b32 s{S_FA}, s{S_SLAB}, 6')
        a(f's_add_u32 s{S_FA}, s{S_FA}, s27')
        a(f's_add_u32 s{S_FA}, s{S_FA}, {flag}')
    def pack16(dst):
        for nt in range(4):
            a(f'v_cvt_pk_bf16_f32 v{dst+2*nt}, v{ACC+4*nt}, v{ACC+4*nt+1}')
            a(f'v_cvt_pk_bf16_f32 v{dst+2*nt+1}, v{ACC+4*nt+2}, v{ACC+4*nt+3}')
    def tile_st(src):
        return [f'buffer_store_dwordx4 {vr(src,4)}, v3, s[8:11], s{S_TA} offen', f'buffer_store_dwordx4 {vr(src+4,4)}, v3, s[8:11], s{S_TA} offen offset:1024']
    def stats_lines(t):
        l = [f'v_pk_add_f32 {vr(t,2)}, {vr(ACC,2)}, {vr(ACC+2,2)}', f'v_pk_mul_f32 {vr(t+2,2)}, {vr(ACC,2)}, {vr(ACC,2)}',
             f'v_pk_fma_f32 {vr(t+2,2)}, {vr(ACC+2,2)}, {vr(ACC+2,2)}, {vr(t+2,2)}']
        for p in range(2, 8):
            l += [f'v_pk_add_f32 {vr(t,2)}, {vr(t,2)}, {vr(ACC+2*p,2)}', f'v_pk_fma_f32 {vr(t+2,2)}, {vr(ACC+2*p,2)}, {vr(ACC+2*p,2)}, {vr(t+2,2)}']
        l += [f'v_add_f32 v{t}, v{t}, v{t+1}', f'v_add_f32 v{t+1}, v{t+2}, v{t+3}']
        l += xsum_lines(t, t+1, t+2, t+3)
        l += ['s_mov_b64 exec, 0xffff', f'buffer_store_dwordx2 {vr(t,2)}, v{TMP+5}, s[8:11], s{S_SA} offen']
        return l
    def gelu_pk(regs, tmp):
        n = len(regs)
        for i, r in enumerate(regs): a(f'v_pk_mul_f32 {vr(tmp+2*i,2)}, {vr(r,2)}, {vr(r,2)}')
        for i, r in enumerate(regs): a(f'v_pk_fma_f32 {vr(tmp+2*i,2)}, {vr(tmp+2*i,2)}, {sr(S_C1,2)}, {vr(GC0,2)}')
        for i, r in enumerate(regs): a(f'v_pk_mul_f32 {vr(tmp+2*i,2)}, {vr(tmp+2*i,2)}, {vr(r,2)}')
        for i in range(2*n): a(f'v_exp_f32 v{tmp+i}, v{tmp+i}')
        for i, r in enumerate(regs): a(f'v_pk_add_f32 {vr(tmp+2*i,2)}, {vr(tmp+2*i,2)}, {sr(S_ONE,2)}')
        for i in range(2*n): a(f'v_rcp_f32 v{tmp+i}, v{tmp+i}')
        for i, r in enumerate(regs): a(f'v_pk_mul_f32 {vr(r,2)}, {vr(r,2)}, {vr(tmp+2*i,2)}')

    wpre(1)
    for nt in range(4):
        for p in range(2):
            a(f'v_lshlrev_b32 v{ACC+4*nt+2*p}, 16, v{XR+2*nt+p}')
            a(f'v_and_b32 v{ACC+4*nt+2*p+1}, 0xffff0000, v{XR+2*nt+p}')
    addrs(G_O, G_H, G_ST1, G_FH)
    a(f'v_lshlrev_b32 v{TMP+5}, 6, v6')
    sk = L('of')
    a(f's_cmp_lg_u32 s{S_WAVE}, 0\ns_cbranch_scc1 {sk}')
    a(f's_lshl_b32 s28, s{S_X}, 14')
    a(f's_lshl_b32 s27, s{S_RB}, 12')
    a('s_add_u32 s28, s28, s27')
    a(f's_add_u32 s28, s28, {F_O}')
    a('s_mov_b32 s30, -1\ns_mov_b32 s31, 0')
    a(f'v_lshlrev_b32 v{TMP}, 7, v2')
    poll(f'v{TMP}', 's28', 's[30:31]', sleep=1)
    a.label(sk)
    fixwait('fixa17', 45)
    a('s_barrier')
    a.vm = ['fl']
    T.stamp('p1_poll'); T.stamp('ap.A17')
    gemm64(1, ld_plain)
    T.stamp('p1_gemm')
    flag_prep()
    pack16(HB)
    st2(tile_st(HB) + stats_lines(ACT) + ['s_waitcnt vmcnt(0)'] + flag_lines(f's{S_FA}'))
    a('s_barrier')
    T.stamp('pub1')
    wpre(2)
    a('v_lshlrev_b32 v10, 4, v7')
    for nt in range(4): a(f'ds_read_b128 {vr(CV+4*nt,4)}, v10 offset:{CS1 + 64*nt}')
    a(f'v_mov_b32 v{GC0}, {H(GELU_C0)}\nv_mov_b32 v{GC0+1}, {H(GELU_C0)}')
    addrs(G_H, G_HH, None, G_FHH)
    a(f's_lshl_b32 s28, s{S_SLAB}, 6')
    a(f's_add_u32 s28, s28, s{S_GB}')
    a(f's_add_u32 s28, s28, {G_FH}')
    a(f's_add_u32 s27, s{S_SLAB}, 1')
    a('s_and_b32 s27, s27, 14')
    a('s_cmp_eq_u32 s27, 0')
    a(f's_cselect_b32 s{S_M2}, 0, s{S_MODE}')
    a(f's_cselect_b32 s{S_U+1}, 1, 0')
    a(f's_cmp_eq_u32 s{S_SLAB}, 0')
    a(f's_mov_b32 s{S_U+2}, {0x200000 + G_FHX}')
    a(f's_cselect_b32 s{S_U+2}, {(G_FHX + 1024 - 0x200000) & 0xffffffff}, s{S_U+2}')
    a(f's_add_u32 s{S_U+2}, s{S_U+2}, s{S_GB}')
    a(f's_lshl_b32 s27, s{S_CT}, 7')
    a(f's_add_u32 s{S_U+2}, s{S_U+2}, s27')
    a(f's_lshl_b32 s27, s{S_X}, 4')
    a(f's_add_u32 s27, s27, s{S_SLAB}')
    a('s_add_u32 s27, s27, 1')
    a('s_and_b32 s27, s27, 126')
    a('s_cmp_eq_u32 s27, 0')
    a(f's_cselect_b32 s{S_U+1}, 0, s{S_U+1}')
    a(f'v_lshl_add_u32 v{TMP+4}, v7, 4, v{TMP+5}')
    a(f's_lshl_b32 s{S_SA}, s{S_SLAB}, 10')
    a(f's_add_u32 s{S_SA}, s{S_SA}, s{S_GB}')
    a(f's_add_u32 s{S_SA}, s{S_SA}, {G_ST1}')
    a('s_waitcnt lgkmcnt(0)')
    poll('v1', 's28', '0xff')
    T.stamp('p2_poll')
    a.vissue(f'buffer_load_dwordx4 {vr(TMP,4)}, v{TMP+4}, s[8:11], s{S_SA} offen sc1', 'st')
    fill = [f'v_add_f32 v{TMP}, v{TMP}, v{TMP+2}', f'v_add_f32 v{TMP+1}, v{TMP+1}, v{TMP+3}'] + xsum_lines(TMP, TMP+1, TMP+2, TMP+3) + [
        f'v_mul_f32 v{MU}, {H(-1/512)}, v{TMP}', f'v_mul_f32 v{TMP+1}, {H(1/512)}, v{TMP+1}',
        f'v_fma_f32 v{TMP+1}, -v{MU}, v{MU}, v{TMP+1}', f'v_max_f32 v{TMP+1}, 0, v{TMP+1}',
        f'v_add_f32 v{TMP+2}, {H(1e-5)}, v{TMP+1}', f'v_rsq_f32 v{R1}, v{TMP+2}', f'v_mul_f32 v{TMP+2}, v{R1}, v{R1}',
        f'v_fmaak_f32 v{TMP+2}, v{TMP+2}, v{TMP+1}, {H(1e-5)}', f'v_rsq_f32 v{TMP+2}, v{TMP+2}', f'v_mul_f32 v{TMP+2}, v{TMP+2}, v{R1}',
        f'v_mul_f32 v{TMP+3}, v{TMP+2}, v{MU}'] + [f'v_mul_f32 v{CV+i}, v{TMP+3}, v{CV+i}' for i in range(16)]
    gemm64(2, ld_plain, fill, zero=True)
    T.stamp('p2_gemm')
    flag_prep()
    for p in range(8): a(f'v_pk_fma_f32 {vr(ACC+2*p,2)}, {vr(ACC+2*p,2)}, {vr(TMP+2,2)}, {vr(CV+2*p,2)} op_sel_hi:[1,0,1]')
    gelu_pk([ACC+2*p for p in range(8)], ACT)
    pack16(ACT+16)
    st2(tile_st(ACT+16) + ['s_waitcnt vmcnt(0)'], S_M2)
    st2(flag_lines(f's{S_FA}'))
    sk = L('hx')
    a(f's_cmp_eq_u32 s{S_U+1}, 0\ns_cbranch_scc1 {sk}')
    for l in flag_lines(f's{S_U+2}'): a(l + (' sc1' if l.startswith('buffer') else ''))
    a.label(sk)
    a('s_barrier')
    T.stamp('pub2')
    wpre(3)
    for nt in range(4):
        for p in range(2):
            a(f'v_lshlrev_b32 v{ACC+4*nt+2*p}, 16, v{HB+2*nt+p}')
            a(f'v_and_b32 v{ACC+4*nt+2*p+1}, 0xffff0000, v{HB+2*nt+p}')
    for p in range(8): a(f'v_pk_add_f32 {vr(ACC+2*p,2)}, {vr(ACC+2*p,2)}, {vr(MU,2)} op_sel_hi:[1,0]')
    a(f'v_mov_b32 v{TMP}, v{R1}')
    for p in range(8): a(f'v_pk_mul_f32 {vr(ACC+2*p,2)}, {vr(ACC+2*p,2)}, {vr(TMP,2)} op_sel_hi:[1,0]')
    addrs(None, G_X1, G_ST2, G_FX1)
    a(f's_lshl_b32 s27, s{S_X}, 4')
    a(f's_add_u32 s27, s27, s{S_SLAB}')
    a('s_mov_b32 s30, 0xccff33')
    a('s_cmp_eq_u32 s27, 0')
    a('s_cselect_b32 s30, 0xccff00, s30')
    a('s_cmp_eq_u32 s27, 127')
    a('s_cselect_b32 s30, 0x00ff33, s30')
    a('s_mov_b32 s31, 0')
    a('s_lshl_b32 s26, s27, 4')
    a(f's_lshl_b32 s28, s{S_SLAB}, 6')
    a(f's_add_u32 s28, s28, {G_FHH - 64}')
    a(f'v_add_u32 v{TMP+4}, s28, v1')
    a('v_lshrrev_b32 v10, 3, v2')
    a(f's_sub_u32 s27, s{S_SLAB}, 1')
    a('v_add_u32 v10, s27, v10')
    a('v_cmp_lt_u32 vcc, 15, v10')
    a('v_and_b32 v10, 7, v2')
    a('v_lshl_add_u32 v10, v7, 3, v10')
    a('v_lshlrev_b32 v10, 7, v10')
    a(f'v_add_u32 v10, {G_FHX}, v10')
    a(f'v_cndmask_b32 v{TMP+4}, v{TMP+4}, v10, vcc')
    for gi, d in enumerate((-1, 1, -2, 2)):
        a('v_add_u32 v10, s26, v6')
        a(f'v_add_u32 v10, {d}, v10')
        a('v_bfe_u32 v11, v10, 4, 4')
        a('v_lshlrev_b32 v11, 14, v11')
        a(f'v_lshrrev_b32 v{TMP}, 8, v10')
        a(f'v_lshl_add_u32 v11, v{TMP}, 21, v11')
        a(f'v_and_b32 v{TMP}, 15, v10')
        a(f'v_lshl_add_u32 v11, v{TMP}, 4, v11')
        a('v_lshl_add_u32 v11, v7, 8, v11')
        a('v_cmp_gt_u32 vcc, 0x800, v10')
        a(f'v_mov_b32 v{TMP}, 0x70000000')
        a(f'v_cndmask_b32 v{CV+gi}, v{TMP}, v11, vcc')
    poll(f'v{TMP+4}', f's{S_GB}', 's[30:31]')
    T.stamp('p3_poll')
    def ld_shift(s):
        if s % 4 == 0: a(f's_mov_b32 s29, {GB + G_HH + (s>>2)*4096}')
        a.vissue(f'buffer_load_dwordx4 {vr(ACT+4*s,4)}, v{CV+(s>>2)}, s[8:11], s29 offen offset:{(s&3)*1024} sc1', ('a', s))
    gemm64(3, ld_shift)
    a('s_barrier')
    T.stamp('p3_gemm')
    flag_prep()
    pack16(ACT+16)
    st2(tile_st(ACT+16) + stats_lines(ACT) + ['s_waitcnt vmcnt(0)'] + flag_lines(f's{S_FA}'))
    a(f's_lshl_b32 s26, s{S_Q}, 13')
    a(f'v_add_u32 v{AWB}, s26, v{AWB}')
    for i in range(8): a(f'ds_read_b128 {vr(W3+4*i,4)}, v{AWB} offset:{i*1024}')
    for nt in range(4):
        for p in range(2):
            a(f'v_lshlrev_b32 v{ACT+4*nt+2*p}, 16, v{HB+2*nt+p}')
            a(f'v_and_b32 v{ACT+4*nt+2*p+1}, 0xffff0000, v{HB+2*nt+p}')
    for p in range(8): a(f'v_pk_add_f32 {vr(ACT+2*p,2)}, {vr(ACT+2*p,2)}, {vr(ACC+2*p,2)}')
    a(f's_add_u32 s26, s26, {W3L}')
    a(f's_cmp_eq_u32 s{S_Q}, 3')
    a(f's_cselect_b32 s26, {RES3}, s26')
    a('v_xor_b32 v10, v6, v7')
    a('v_lshlrev_b32 v10, 4, v10')
    a('v_lshl_add_u32 v10, v6, 8, v10')
    a('v_add_u32 v10, s26, v10')
    for nt in range(4):
        a(f'v_xor_b32 v{TMP+nt}, {64*nt}, v10')
        a(f'ds_write_b128 v{TMP+nt}, {vr(ACT+4*nt,4)}')
    a('s_waitcnt lgkmcnt(0)')
    T.stamp('pub3')
    p4_prologue()

    a.label(HJOIN)
    a.vm = []
    A4 = 24; C3 = 56; XF = 72; T4 = 88; PKO = 120
    flag_prep()
    a('s_waitcnt vmcnt(0)')
    a('s_barrier')
    T.stamp('p4_go'); T.stamp('p4.go')
    h4, j4 = L('help'), L('join')
    a(f's_cmp_eq_u32 s{S_WAVE}, 3')
    a(f's_cbranch_scc1 {h4}')
    WS_ = [128+4*k for k in range(8)] + [96+4*k for k in range(6)]
    def rdX(i):
        a(f'ds_read_b128 {vr(XF+4*(i&3),4)}, v14 offset:{(i&1)*32768 + (i>>1)*512}')
    def ldW4(f):
        a(f's_add_u32 s30, s{S_W4}, {(f >> 2)*4096}')
        a.vissue(f'buffer_load_dwordx4 {vr(W4+4*f,4)}, v3, s[8:11], s30 offen offset:{(f&3)*1024} sc1', 'w4')
    def ldW3(f):
        a(f's_add_u32 s30, s{S_B}, {(f >> 2)*4096}')
        a.vissue(f'buffer_load_dwordx4 {vr(WS_[f % 14],4)}, v3, s[8:11], s30 offen offset:{(f&3)*1024} sc1', ('w', f))
    def epi_scalar(mt, dst):
        b = T4 + 4*mt; A = A4 + 16*mt; t = T4 + 8
        l = []
        for g in range(4):
            R = [A+4*g+i for i in range(4)]; Tt = [t+4*(g&1)+i for i in range(4)]
            l += [f'v_fmac_f32 v{r}, v{b}, v{C3+4*g+i}' for i, r in enumerate(R)]
            l += [f'v_mul_f32 v{x}, v{r}, v{r}' for x, r in zip(Tt, R)]
            l += [f'v_fma_f32 v{x}, v{x}, v{b+2}, v{b+1}' for x in Tt]
            l += [f'v_mul_f32 v{x}, v{x}, v{r}' for x, r in zip(Tt, R)]
            l += [f'v_exp_f32 v{x}, v{x}' for x in Tt]
            l += [f'v_fma_f32 v{x}, v{x}, v{b+3}, v{b+3}' for x in Tt]
            l += [f'v_rcp_f32 v{x}, v{x}' for x in Tt]
            l += [f'v_mul_f32 v{r}, v{r}, v{x}' for x, r in zip(Tt, R)]
            l += [f'v_cvt_pk_bf16_f32 v{dst+2*g}, v{R[0]}, v{R[1]}', f'v_cvt_pk_bf16_f32 v{dst+2*g+1}, v{R[2]}, v{R[3]}']
        return l
    def only(kind, lines):
        sk = L('on')
        a(f's_cmp_lt_u32 s{S_WAVE}, 4')
        a(f's_cbranch_scc{1 if kind == "B" else 0} {sk}')
        for l in lines: a(l)
        a.label(sk)
    def flag_issue(sbase, tag, mask):
        a(f's_mov_b64 exec, {mask}')
        a.vissue(f'buffer_load_dwordx2 v[16:17], v1, s[8:11], {sbase} offen sc1', tag)
        a('s_mov_b64 exec, -1')
    def flag_check(sbase, tag, mask):
        a.vwait(tag)
        bk_ = L('bk')
        a(f's_mov_b64 exec, {mask}')
        a(f'v_cmp_ne_u64 vcc, {sr(S_NON,2)}, v[16:17]')
        a('s_mov_b64 exec, -1')
        a(f's_cbranch_vccz {bk_}')
        keep = list(a.vm)
        poll('v1', sbase, mask)
        a.vm = keep
        a.label(bk_)
    for i in range(3): rdX(i)
    a('s_setprio 2')
    only('B', ['s_setprio 1'] + x1_lines(1) + ['s_waitcnt vmcnt(0)', 's_barrier'])
    for i in range(64):
        ks, mt = i >> 1, i & 1
        if i == 28:
            only('A', ['s_barrier'])
        if i == 60:
            a(f'ds_read_b128 {vr(T4,4)}, v16 offset:{ST4}')
            a(f'ds_read_b128 {vr(T4+4,4)}, v16 offset:{ST4+512}')
        if i == 2: T.stamp('p4.first')
        if i == 32: T.stamp('p4.half')
        if i + 3 < 64: rdX(i + 3)
        lg = f'lgkmcnt({min(3, 63 - i) + (2 if i in (60, 61, 62) else 0)})'
        if mt == 0 and ks >= 8: a.vwait(('w', ks), lg)
        else: a(f's_waitcnt {lg}')
        c_ = '0' if ks == 0 else vr(A4+16*mt,16)
        a(f'v_mfma_f32_32x32x16_bf16 {vr(A4+16*mt,16)}, {vr(WS_[ks % 14],4)}, {vr(XF+4*(i&3),4)}, {c_}')
        if mt == 0 and 1 <= ks < 7: ldW3(7 + ks)
        if mt == 1 and 4 <= ks and ks + 10 < 32: ldW3(ks + 10)
        if mt == 1 and 22 <= ks < 26: ldW4(ks - 22)
    a('s_setprio 3')
    T.stamp('p4_gemm'); T.stamp('p4.pass1')
    def epi_packed(mt, dst):
        b = T4 + 4*mt; A = A4 + 16*mt; t = 128
        l = [f'v_mov_b32 v96, v{b+1}', f'v_mov_b32 v98, v{b+3}']
        l += [f'v_pk_fma_f32 {vr(A+2*p,2)}, {vr(C3+2*p,2)}, {vr(b,2)}, {vr(A+2*p,2)} op_sel_hi:[1,0,1]' for p in range(8)]
        l += [f'v_pk_mul_f32 {vr(t+2*p,2)}, {vr(A+2*p,2)}, {vr(A+2*p,2)}' for p in range(8)]
        l += [f'v_pk_fma_f32 {vr(t+2*p,2)}, {vr(t+2*p,2)}, {vr(b+2,2)}, v[96:97] op_sel_hi:[1,0,0]' for p in range(8)]
        l += [f'v_pk_mul_f32 {vr(t+2*p,2)}, {vr(t+2*p,2)}, {vr(A+2*p,2)}' for p in range(8)]
        l += [f'v_exp_f32 v{t+k}, v{t+k}' for k in range(16)]
        l += [f'v_pk_fma_f32 {vr(t+2*p,2)}, {vr(t+2*p,2)}, v[98:99], v[98:99] op_sel_hi:[1,0,0]' for p in range(8)]
        l += [f'v_rcp_f32 v{t+k}, v{t+k}' for k in range(16)]
        l += [f'v_pk_mul_f32 {vr(A+2*p,2)}, {vr(A+2*p,2)}, {vr(t+2*p,2)}' for p in range(8)]
        l += [f'v_cvt_pk_bf16_f32 v{dst+p}, v{A+2*p}, v{A+2*p+1}' for p in range(8)]
        return l
    a('s_nop 9')
    for mt, dst, sb in ((0, PKO, 's26'), (1, 104, 's27')):
        only('A', epi_scalar(mt, dst))
        only('B', epi_packed(mt, dst))
        st = [f'buffer_store_dwordx4 {vr(dst,4)}, v3, s[8:11], {sb} offen', f'buffer_store_dwordx4 {vr(dst+4,4)}, v3, s[8:11], {sb} offen offset:1024']
        if mt == 0:
            st2(st)
        else:
            T.stamp('p4.epi1')
            st2(st)
            flag_issue('s32', 'fA', '0x47')
            st2(['s_waitcnt vmcnt(0)'] + flag_lines('s35'))
    a('s_setprio 0')
    a(f's_branch {j4}')
    a.label(h4)
    for k in range(4): a(f'buffer_load_dwordx4 {vr(24+4*k,4)}, v3, s[8:11], s28 offen offset:{1024*k} sc1')
    a('v_lshrrev_b32 v40, 2, v2')
    a('v_lshl_add_u32 v40, v9, 4, v40')
    a('v_lshlrev_b32 v40, 4, v40')
    a('v_cmp_eq_u32 s[74:75], 1, v9')
    a(f'v_cmp_eq_u32 s[{S_A}:{S_B}], 2, v9')
    a('v_cmp_eq_u32 vcc, 3, v9')
    a('s_waitcnt vmcnt(0) lgkmcnt(0)')
    for k in range(4): a(f'v_pk_add_f32 {vr(24+4*k,2)}, {vr(24+4*k,2)}, {vr(26+4*k,2)}')
    for perm in ('[1,0,3,2]', '[2,3,0,1]'):
        for k in range(4):
            for e in range(2): a(f'v_add_f32_dpp v{24+4*k+e}, v{24+4*k+e}, v{24+4*k+e} quad_perm:{perm} row_mask:0xf bank_mask:0xf')
    for k, m in ((1, 's[74:75]'), (2, f's[{S_A}:{S_B}]'), (3, 'vcc')):
        a(f'v_cndmask_b32 v24, v24, v{24+4*k}, {m}')
        a(f'v_cndmask_b32 v25, v25, v{25+4*k}, {m}')
    a(f'v_mul_f32 v24, {H(-1/512)}, v24')
    a(f'v_mul_f32 v25, {H(1/512)}, v25')
    a('v_fma_f32 v25, -v24, v24, v25')
    a('v_max_f32 v25, 0, v25')
    a(f'v_add_f32 v28, {H(1e-5)}, v25')
    a('v_rsq_f32 v29, v28')
    a('v_sqrt_f32 v27, v28')
    a(f'v_mul_f32 v25, {H(GELU_C0)}, v29')
    a('v_mul_f32 v26, v29, v29')
    a('v_mul_f32 v26, v26, v29')
    a(f'v_mul_f32 v26, {H(GELU_C1)}, v26')
    a(f'ds_write_b128 v40, v[24:27] offset:{ST4}')
    a('s_waitcnt lgkmcnt(0)')
    a('s_barrier')
    for f in range(4): ldW4(f)
    poll('v1', 's32', '0x47', sleep=8)
    a(f'v_mov_b32 v16, s{S_NON}\nv_mov_b32 v17, s{S_NON+1}')
    a.label(j4)
    a.vm = []
    T.stamp('pub4'); T.stamp('p4.pub')

    RS_ = 120
    HAS = [56, 60, 64, 68, 128, 132, 136, 140, 72, 76, 80, 84]
    ACC5 = lambda nt, mt: (24 if mt == 0 else 88) + 16*nt
    early = [2, 3, 4, 5, 12, 13, 0, 1]; late = [6, 7, 8, 9, 10, 11]
    order = [(mt, ks) for ks in early for mt in range(2)] + [(0, ks) for ks in late] + [(1, ks) for ks in late]
    def ldA(i):
        mt, ks = order[i]
        a(f's_add_u32 s30, s31, {mt*114688 + (ks//4)*4096}')
        a.vissue(f'buffer_load_dwordx4 {vr(HAS[i % 12],4)}, v3, s[8:11], s30 offen offset:{(ks%4)*1024} sc1', ('h', i))
    flag_check('s32', 'none', '0x47')
    T.stamp('p5_poll'); T.stamp('p4.p5poll')
    for i in range(6): ldA(i)
    a(f'ds_read_b128 {vr(RS_,4)}, v20')
    a(f'ds_read_b128 {vr(RS_+4,4)}, v21')
    def wr_list(mt):
        l = []
        for nt in range(2):
            for q in range(4):
                oct_ = 4*nt + q
                l.append([f'v_xor_b32 v{18+(q&1)}, {oct_*32 + mt*65536}, v13',
                          f'ds_write_b128 v{18+(q&1)}, {vr(ACC5(nt,mt)+4*q,4)} offset:{RED + oct_*1024}'])
        return l
    wl = wr_list(0)
    nxt = 6
    for i, (mt, ks) in enumerate(order):
        a.vwait(('h', i), 'lgkmcnt(0)' if i in (0,) else '')
        if i == 23: a('s_barrier')
        if i in (0, 8, 16, 22): T.stamp(f'p4.p5_{i}')
        for nt in range(2):
            A = ACC5(nt, mt)
            c_ = '0' if i < 2 else vr(A,16)
            a(f'v_mfma_f32_32x32x16_bf16 {vr(A,16)}, {vr(W4+8*ks+4*nt,4)}, {vr(HAS[i % 12],4)}, {c_}')
        if i == 7: flag_issue('s32', 'fB', '0x38')
        if i == 10: flag_check('s32', 'fB', '0x38')
        lim = 16 if i < 10 else 28
        for _ in range(3 if i >= 10 else 2):
            if nxt < lim and nxt <= i + 11:
                ldA(nxt); nxt += 1
        if i >= 24 and wl:
            for g in (wl.pop(0), wl.pop(0)):
                for l in g: a(l)
    assert nxt == 28 and not wl
    T.stamp('p5_gemm'); T.stamp('p4.p5gemm')
    for g in wr_list(1):
        for l in g: a(l)
    RD = 144; SUM = RS_
    a('s_waitcnt lgkmcnt(0)')
    a('s_barrier')
    T.stamp('p4.E1')
    for mt in range(2):
        for src in range(8):
            a(f'ds_read_b128 {vr(RD+32*mt+4*src,4)}, v{22+mt} offset:{RED + src*8192}')
    for mt in range(2):
        for src in range(8):
            if src % 2 == 0: a(f's_waitcnt lgkmcnt({14-8*mt-src})')
            for p in range(2): a(f'v_pk_add_f32 {vr(SUM+4*mt+2*p,2)}, {vr(SUM+4*mt+2*p,2)}, {vr(RD+32*mt+4*src+2*p,2)}')
        for p in range(2): a(f'v_cvt_pk_bf16_f32 v{24+2*mt+p}, v{SUM+4*mt+2*p}, v{SUM+4*mt+2*p+1}')
        a(f'buffer_store_dwordx2 {vr(24+2*mt,2)}, v12, s[16:19], s{72+mt} offen')
    if diag: a('s_waitcnt vmcnt(0)')
    fixwait('fixend', 70)
    T.stamp('end'); T.stamp('end_rt', True)
    T.flush(P_WS, 0, S_WAVE, TS)
    if 'dbgout' in opt:
        sk = L('do')
        a(f's_lshl_b32 s26, s{S_WAVE}, 8')
        a('s_or_b32 s26, s26, s2')
        a(f's_cmp_lg_u32 s26, 77\ns_cbranch_scc1 {sk}')
        srd(16, P_DBG, 256)
        a('s_mov_b64 exec, 1')
        for k, nm in enumerate(['c_b0', 'c_gemm', 'c_pub', 'c_kv0', 'c_attn_end', 'p1_poll', 'pub1', 'pub2', 'pub3', 'p4_go', 'pub4', 'p5_poll', 'p5_gemm', 'end_rt']):
            a(f's_sub_u32 s26, s{76+T.names.index(nm)}, s76')
            a('v_mov_b32 v1, s26')
            a(f'buffer_store_dword v1, off, s[16:19], 0 offset:{8+4*k}')
        a.label(sk)
    a('s_endpgm')

    for (lab, lines, back) in a.cold:
        a.label(lab)
        a('s_nop 7')
        for l in lines: a(l)
        a('s_nop 7')
        a(f's_branch {back}')
    NM = 128
    a.label(FB)
    a('s_nop 15')
    a(f's_add_u32 s30, s{S_HD}, 0x40000')
    a(f's_add_u32 s31, s{S_HD}, 0x80000')
    a(f'v_mov_b32 v{NM}, 0xff800000\nv_mov_b32 v{NM+16}, 0xff800000')
    a('s_mov_b32 s32, 0')
    l1 = L('fb1')
    a.label(l1)
    a('s_add_u32 s33, s30, s32')
    a(f'buffer_load_dwordx4 {vr(KB+4,4)}, v3, s[8:11], s33 offen sc1')
    a('s_waitcnt vmcnt(0)')
    for u, S in ((0, SA), (1, SB)):
        a(f'v_mfma_f32_32x32x16_bf16 {vr(S,16)}, {vr(KB+4,4)}, {vr(Q+4*u,4)}, 0')
    for u, S in ((0, SA), (1, SB)):
        for i in range(8): a(f'v_max3_f32 v{NM+16*u}, v{S+2*i}, v{S+2*i+1}, v{NM+16*u}')
    a('s_add_u32 s32, s32, 1024')
    a('s_cmp_lt_u32 s32, 0x10000')
    a(f's_cbranch_scc1 {l1}')
    for u in range(2):
        m = NM + 16*u
        a(f'v_mov_b32 v{m+1}, v{m}')
        a(f'v_permlane32_swap_b32 v{m}, v{m+1}')
        a(f'v_max_f32 v{m}, v{m}, v{m+1}')
        a(f'v_sub_f32 v{m}, 0, v{m}')
        for i in range(1, 16): a(f'v_mov_b32 v{m+i}, v{m}')
    for i in range(32): a(f'v_mov_b32 v{O+i}, 0')
    a('v_and_b32 v10, 27, v4')
    a('v_cmp_eq_u32 vcc, 16, v10')
    a('v_mov_b32 v10, 0x3f803f80')
    for i in range(8): a(f'v_cndmask_b32 v{VB+i}, 0, v10, vcc')
    a('v_lshlrev_b32 v10, 8, v5')
    a('v_lshl_add_u32 v10, v6, 4, v10')
    a('s_mov_b32 s32, 0')
    a('s_mov_b32 s34, 0xffff\ns_mov_b32 s35, 0xffff')
    l2 = L('fb2')
    a.label(l2)
    a('s_add_u32 s33, s30, s32')
    a(f'buffer_load_dwordx4 {vr(KB+4,4)}, v3, s[8:11], s33 offen sc1')
    a('s_add_u32 s33, s31, s32')
    a('s_mov_b64 exec, s[34:35]')
    a(f'buffer_load_dwordx4 {vr(VB,4)}, v10, s[8:11], s33 offen sc1')
    a(f'buffer_load_dwordx4 {vr(VB+4,4)}, v10, s[8:11], s33 offen offset:512 sc1')
    a('s_mov_b64 exec, -1')
    a('s_waitcnt vmcnt(0)')
    for u, S in ((0, SA), (1, SB)):
        a(f'v_mfma_f32_32x32x16_bf16 {vr(S,16)}, {vr(KB+4,4)}, {vr(Q+4*u,4)}, {vr(NM+16*u,16)}')
    for u, S in ((0, SA), (1, SB)):
        for i in range(16): a(f'v_exp_f32 v{S+i}, v{S+i}')
        for j in range(8): a(f'v_cvt_pk_bf16_f32 v{P+j}, v{S+2*j}, v{S+2*j+1}')
        for f in range(2):
            a(f'v_mfma_f32_32x32x16_bf16 {vr(O+16*u,16)}, {vr(VB+4*f,4)}, {vr(P+4*f,4)}, {vr(O+16*u,16)}')
        a('s_nop 15')
    a('s_add_u32 s32, s32, 1024')
    a('s_cmp_lt_u32 s32, 0x10000')
    a(f's_cbranch_scc1 {l2}')
    a('s_nop 15')
    a(f's_branch {FBR}')
    a.label(END)
    a('s_endpgm')
    return a, LDS_SIZE
```

```python
import sys, json
from build import *
from mega import gen_mega
tag = sys.argv[1] if len(sys.argv) > 1 else 'm'
kw = eval('dict(%s)' % (sys.argv[2] if len(sys.argv) > 2 else ''))
for diag in (False, True):
    a, lds = gen_mega(diag=diag, **kw)
    build([('mega_kernel', a, 256, 512, lds)], 'gen/%s%s.s' % (tag, 'd' if diag else ''))
    if diag: json.dump([a.T.names, a.T.alt], open('gen/%sd.json' % tag, 'w'))
```

```python
QKVB = 0x000000
HDS = 0x38000
QKVG = 4 * HDS
GB = 0x800000
G_O = 0x00000
G_HH = 0x00000
G_H = 0x40000
G_X1 = 0x40000
G_ST1 = 0x80000
G_ST2 = 0x84000
G_FQ = 0x88000
G_RDY = 0x88200
G_FH = 0x88400
G_FHH = 0x88880
G_FX1 = 0x89000
G_FH2 = 0x89400
G_FHX = 0x8C000
WOF = 0x1800000
W1F = 0x1880000
W2F = 0x1900000
W3F = 0x1980000
W4F = 0x1B40000
F_PREP = 0x1D08000
F_XCC = 0x1D10000
C3P = 0x1D20000
F_O = 0x1D40000
CSX = 0x1D60000
WS_USED = 0x1E00000
TS = 0x2C00000
QSCALE = 0.25 * 1.4426950408889634
```

```python
from asmlib import *
from layout import *
import struct
def f2u(x): return struct.unpack('<I', struct.pack('<f', x))[0]
def H(x): return hex(f2u(x))

LDS_SIZE = 160 * 1024
XL = 0; WL = 65536; WSLOT = 24576; NSLOT = 3
CSUM = WL + NSLOT * WSLOT
RST = CSUM + 1024
LOW = 0; PREP = 0; CONST = 28672; KV = 32768; WA = 32768; WB = 98304
PRG = CONST + 64; PCN = CONST + 96; KVC = CONST + 100
W1X = WB + 32768; W2L = WB + 36864; NW2L = 7; CS1 = CONST; C3L = CONST + 256
W3L = WB; RES3 = W3L + 24576; NONL = RST + 512; ST4 = CONST + 2048; PKB = 0
XT = WA
RED = 0

GELU_C0 = -2.0 * 0.7978845608028654 * 1.4426950408889634
GELU_C1 = GELU_C0 * 0.044715

S_WAVE, S_X, S_I, S_RB, S_CT, S_R16 = 20, 21, 22, 23, 24, 25
P_X, P_WQKV, P_WO, P_W1, P_W2, P_W3, P_W4, P_OUT, P_DBG, P_WS = 36, 38, 40, 44, 46, 48, 50, 52, 54, 56
S_NON = 58; S_SPIN = 60; S_MODE = 61; S_C1 = 62; S_ONE = 64
S_QKV, S_HD, S_RHO, S_Q, S_SLAB, S_M2 = 66, 67, 68, 69, 70, 71
S_U = 72
S_GB = 3; S_J = 4; S_W4 = 5; S_A = 6; S_B = 7; S_C0 = 42
W3 = 128; W4 = 144

def gen_mega(name='mega_kernel', diag=False, force_safe=False, force_fallback=False, sel=None, opt=''):
    a = Asm()
    T = Stamper(a, 76, diag); a.T = T; T.sel = sel; T.rt = ('rt' in opt.split(','))
    uid = [0]
    def L(s): uid[0] += 1; return f'L_{s}{uid[0]}'
    def srd(base, p, size):
        a(f's_mov_b32 s{base}, s{p}\ns_mov_b32 s{base+1}, s{p+1}\ns_mov_b32 s{base+2}, {hex(size)}\ns_mov_b32 s{base+3}, 0x20000')
    END = f'{name}_end'
    OP = dict(kv.split('=') for kv in opt.split(',') if '=' in kv)
    HGX = int(OP.get('hgx', 5))
    JF = '' if 'jplain' in opt else 'sc1'
    KVNT = 'nt ' if 'kvnt' in opt else ''

    a(f'.globl {name}\n.p2align 8\n.type {name},@function')
    a.label(name)
    a(f's_cmp_ge_u32 s2, 256\ns_cbranch_scc1 {END}')
    a('s_load_dwordx16 s[36:51], s[0:1], 0')
    a('s_load_dwordx4 s[52:55], s[0:1], 64')
    a('s_load_dwordx2 s[56:57], s[0:1], 80')
    a('v_lshrrev_b32 v1, 6, v0')
    a('v_and_b32 v2, 63, v0')
    a(f'v_readfirstlane_b32 s{S_WAVE}, v1')
    a(f's_and_b32 s{S_X}, s2, 7')
    a(f's_lshr_b32 s{S_I}, s2, 3')
    a(f's_lshr_b32 s{S_RB}, s{S_I}, 3')
    a(f's_and_b32 s{S_CT}, s{S_I}, 7')
    a(f's_and_b32 s{S_Q}, s{S_WAVE}, 3')
    if diag:
        for i in range(24): a(f's_mov_b32 s{76+i}, 0')
        T.stamp('start_rt', True); T.stamp('start')
    if 'fix' in opt:
        a('s_memrealtime s[98:99]')
    def fixwait(tag, us):
        if tag not in opt.split(','): return
        lp = L('fx')
        a.label(lp)
        a('s_memrealtime s[100:101]')
        a('s_waitcnt lgkmcnt(0)')
        a('s_sub_u32 s100, s100, s98')
        a(f's_cmp_lt_u32 s100, {us*100}')
        a(f's_cbranch_scc1 {lp}')
    CW1 = L('cw1')
    a(f's_cmp_lt_u32 s{S_WAVE}, 4')
    a(f's_cbranch_scc1 {CW1}')

    def common_consts():
        a('v_lshlrev_b32 v3, 4, v2')
        a('v_and_b32 v4, 31, v2')
        a('v_lshrrev_b32 v5, 5, v2')
        a('v_and_b32 v6, 15, v2')
        a('v_lshrrev_b32 v7, 4, v2')
        a('v_bfe_u32 v8, v2, 2, 2')
        a('v_and_b32 v9, 3, v2')
        a('v_lshlrev_b32 v1, 3, v2')
        a(f's_lshl_b32 s{S_R16}, s{S_RB}, 2')
        a(f's_add_u32 s{S_SLAB}, s{S_R16}, s{S_Q}')
        a(f's_lshl_b32 s{S_GB}, s{S_X}, 21')
        a(f's_add_u32 s{S_GB}, s{S_GB}, {GB}')
        a(f's_mul_i32 s{S_QKV}, s{S_X}, {QKVG}')
        a(f's_mul_i32 s{S_HD}, s{S_RB}, {HDS}')
        a(f's_add_u32 s{S_HD}, s{S_HD}, s{S_QKV}')
        a(f's_cmp_gt_u32 s{S_WAVE}, 3')
        a(f's_subb_u32 s{S_J}, s{S_WAVE}, 0')
        a(f's_mul_i32 s{S_W4}, s{S_CT}, 229376')
        a(f's_mul_i32 s26, s{S_WAVE}, 28672')
        a(f's_add_u32 s{S_W4}, s{S_W4}, s26')
        a(f's_add_u32 s{S_W4}, s{S_W4}, {W4F}')
        a(f's_mov_b32 s{S_C1}, {H(GELU_C1)}\ns_mov_b32 s{S_C1+1}, {H(GELU_C1)}')
        a(f's_mov_b32 s{S_ONE}, 1.0\ns_mov_b32 s{S_ONE+1}, 1.0')

    def get_nonce(sleep=0):
        lp, done = L('non'), L('nond')
        srd(16, P_DBG, 256)
        a(f's_mov_b32 s{S_SPIN}, 0')
        a.label(lp)
        if sleep: a(f's_sleep {sleep}')
        a('buffer_load_dwordx2 v[10:11], off, s[16:19], 0 sc1')
        a(f's_add_u32 s{S_SPIN}, s{S_SPIN}, 1')
        a('s_waitcnt vmcnt(0)')
        a(f'v_readfirstlane_b32 s{S_NON}, v10')
        a(f'v_readfirstlane_b32 s{S_NON+1}, v11')
        a(f's_cmp_gt_u32 s{S_SPIN}, 0x20000')
        a(f's_cbranch_scc1 {done}')
        a(f's_cmp_eq_u32 s{S_NON}, 0')
        a(f's_cbranch_scc1 {lp}')
        a.label(done)
        a.vm = []

    def get_nonce_s(sleep=0):
        lp, done = L('non'), L('nond')
        a(f's_mov_b32 s{S_SPIN}, 0')
        a.label(lp)
        if sleep: a(f's_sleep {sleep}')
        a(f's_load_dwordx2 s[{S_NON}:{S_NON+1}], s[{P_DBG}:{P_DBG+1}], 0 glc')
        a(f's_add_u32 s{S_SPIN}, s{S_SPIN}, 1')
        a(f's_cmp_gt_u32 s{S_SPIN}, 0x20000')
        a('s_waitcnt lgkmcnt(0)')
        a(f's_cbranch_scc1 {done}')
        a(f's_cmp_eq_u32 s{S_NON}, 0')
        a(f's_cbranch_scc1 {lp}')
        a.label(done)

    def poll(voff, soff, execmask=None, sleep=0):
        lp, done = L('poll'), L('polld')
        if execmask: a(f's_mov_b64 exec, {execmask}')
        a(f's_mov_b32 s{S_SPIN}, 0')
        a.label(lp)
        if sleep: a(f's_sleep {sleep}')
        a(f'buffer_load_dwordx2 v[10:11], {voff}, s[8:11], {soff} offen sc1')
        a(f's_add_u32 s{S_SPIN}, s{S_SPIN}, 1')
        a(f's_cmp_gt_u32 s{S_SPIN}, 0x20000')
        a('s_waitcnt vmcnt(0)')
        a(f's_cbranch_scc1 {done}')
        a(f'v_cmp_ne_u64 vcc, {sr(S_NON,2)}, v[10:11]')
        a(f's_cbranch_vccnz {lp}')
        a.label(done)
        if execmask: a('s_mov_b64 exec, -1')
        a.vm = []

    def st2(lines, mode=S_MODE):
        sk, dn = L('sf'), L('sd')
        a(f's_cmp_eq_u32 s{mode}, 0')
        a(f's_cbranch_scc1 {sk}')
        for l in lines: a(l)
        a.label(dn)
        a.cold.append((sk, [l + ' sc1' if l.startswith('buffer_store') else l for l in lines], dn))
        a.vm += ['st'] * sum(l.startswith('buffer_store') for l in lines)
    a.cold = []

    def flag_lines(soff):
        return ['s_mov_b64 exec, 1', f'buffer_store_dwordx2 v[10:11], off, s[8:11], {soff}', 's_mov_b64 exec, -1']
    def flag_prep():
        a(f'v_mov_b32 v10, s{S_NON}\nv_mov_b32 v11, s{S_NON+1}')
    def flag_sc1(soff):
        flag_prep()
        for l in flag_lines(soff): a(l + (' sc1' if l.startswith('buffer') else ''))
        a.vm.append('fl')

    def xcc_load(vreg, vt):
        a(f's_lshl_b32 s26, s{S_X}, 12')
        a(f's_add_u32 s26, s26, {F_XCC}')
        a(f'v_lshlrev_b32 v{vt}, 7, v4')
        a(f'buffer_load_dwordx2 {vr(vreg,2)}, v{vt}, s[8:11], s26 offen sc1')
    def calc_mode(vreg):
        a('s_getreg_b32 s34, hwreg(HW_REG_XCC_ID)')
        a('s_and_b32 s34, s34, 15')
        a(f's_or_b32 s34, s34, s{S_NON}')
        a(f's_mov_b32 s35, s{S_NON+1}')
        a(f'v_cmp_ne_u64 vcc, s[34:35], {vr(vreg,2)}')
        a('s_cmp_eq_u64 vcc, 0')
        a(f's_cselect_b32 s{S_MODE}, 1, 0')
        a(f's_cmp_eq_u32 s{S_NON}, 0')
        a(f's_cselect_b32 s{S_MODE}, 0, s{S_MODE}')
        if force_safe: a(f's_mov_b32 s{S_MODE}, 0')
    def xcc_publish(v0, v1):
        a('s_getreg_b32 s27, hwreg(HW_REG_XCC_ID)')
        a('s_and_b32 s27, s27, 15')
        a(f's_or_b32 s27, s27, s{S_NON}')
        a(f'v_mov_b32 v{v0}, s27\nv_mov_b32 v{v1}, s{S_NON+1}')
        a(f's_lshl_b32 s26, s{S_X}, 12')
        a(f's_lshl_b32 s27, s{S_I}, 7')
        a('s_add_u32 s26, s26, s27')
        a(f's_add_u32 s26, s26, {F_XCC}')
        a('s_mov_b64 exec, 1')
        a(f'buffer_store_dwordx2 v[{v0}:{v1}], off, s[8:11], s26 sc1')
        a('s_mov_b64 exec, -1')

    def unit_decode(su):
        l3, l4, dn = L('u3'), L('u4'), L('ud')
        a('s_mov_b32 s15, 0x20000')
        a(f's_cmp_ge_u32 s{su}, 832\ns_cbranch_scc1 {l4}')
        a(f's_cmp_ge_u32 s{su}, 384\ns_cbranch_scc1 {l3}')
        a(f's_lshr_b32 s32, s{su}, 7')
        a(f's_bfe_u32 s33, s{su}, 0x40003')
        a(f's_and_b32 s34, s{su}, 7')
        a('s_lshl_b32 s27, s33, 15')
        a('s_lshl_b32 s35, s34, 7')
        a('s_add_u32 s27, s27, s35')
        a('s_lshl_b32 s28, s32, 19')
        a('s_lshl_b32 s35, s34, 16')
        a('s_add_u32 s28, s28, s35')
        a('s_lshl_b32 s35, s33, 12')
        a('s_add_u32 s28, s28, s35')
        a(f's_add_u32 s28, s28, {WOF}')
        a('s_min_u32 s26, s32, 1')
        a('s_cmp_eq_u32 s32, 1')
        a(f's_cselect_b64 s[12:13], s[{P_W1}:{P_W1+1}], s[{P_W2}:{P_W2+1}]')
        a('s_cmp_eq_u32 s32, 0')
        a(f's_cselect_b64 s[12:13], s[{P_WO}:{P_WO+1}], s[12:13]')
        a('s_mov_b32 s14, 0x80000')
        a(f's_branch {dn}')
        a.label(l3)
        a(f's_sub_u32 s32, s{su}, 384')
        a('s_mul_hi_u32 s33, s32, 0x0924924a')
        a('s_mul_i32 s34, s33, 28')
        a('s_sub_u32 s34, s32, s34')
        a(f's_mul_i32 s27, s33, {32*3584}')
        a('s_lshl_b32 s35, s34, 7')
        a('s_add_u32 s27, s27, s35')
        a('s_lshl_b32 s28, s34, 16')
        a('s_lshl_b32 s35, s33, 11')
        a('s_add_u32 s28, s28, s35')
        a(f's_add_u32 s28, s28, {W3F}')
        a('s_mov_b32 s26, 2')
        a(f's_mov_b64 s[12:13], s[{P_W3}:{P_W3+1}]')
        a('s_mov_b32 s14, 0x1c0000')
        a(f's_branch {dn}')
        a.label(l4)
        a(f's_sub_u32 s32, s{su}, 832')
        a('s_lshr_b32 s33, s32, 3')
        a('s_and_b32 s34, s32, 7')
        a('s_lshl_b32 s27, s33, 15')
        a('s_lshl_b32 s35, s34, 7')
        a('s_add_u32 s27, s27, s35')
        a('s_mul_i32 s28, s34, 229376')
        a('s_lshl_b32 s35, s33, 12')
        a('s_add_u32 s28, s28, s35')
        a(f's_add_u32 s28, s28, {W4F}')
        a('s_mov_b32 s26, 3')
        a(f's_mov_b64 s[12:13], s[{P_W4}:{P_W4+1}]')
        a('s_mov_b32 s14, 0x1c0000')
        a.label(dn)

    def p4_prologue():
        C3 = 56
        a('v_lshrrev_b32 v15, 4, v4')
        a('v_lshlrev_b32 v14, 14, v15')
        a('v_lshl_add_u32 v14, v5, 8, v14')
        a('v_lshl_add_u32 v14, v6, 4, v14')
        a(f'v_add_u32 v14, {XT}, v14')
        a('v_mul_u32_u24 v15, 0xe000, v15')
        a('v_lshl_add_u32 v15, v5, 8, v15')
        a('v_lshl_add_u32 v15, v6, 4, v15')
        a('v_lshlrev_b32 v16, 4, v4')
        a(f's_lshl_b32 s26, s{S_J}, 7')
        a(f's_add_u32 s26, s26, {C3L}')
        a('v_lshl_add_u32 v17, v5, 4, s26')
        for q in range(4): a(f'ds_read_b128 {vr(C3+4*q,4)}, v17 offset:{32*q}')
        a(f's_lshl_b32 s26, s{S_J}, 12')
        a('v_add_u32 v18, s26, v3')
        a(f'v_add_u32 v19, {PKB}, v18')
        a(f's_lshl_b32 s28, s{S_R16}, 10')
        a(f's_add_u32 s28, s28, s{S_GB}')
        a(f's_add_u32 s28, s28, {G_ST2}')
        a(f's_mov_b32 s33, s{S_HD}')
        a(f's_lshl_b32 s34, s{S_RB}, 9')
        a(f's_add_u32 s34, s34, s{S_GB}')
        a(f's_add_u32 s34, s34, {G_FH2}')
        a(f's_lshl_b32 s35, s{S_CT}, 6')
        a('s_add_u32 s35, s35, s34')
        a(f's_lshl_b32 s29, s{S_J}, 3')
        a('s_add_u32 s35, s35, s29')
        a('s_add_u32 s29, s35, 2048')
        a(f's_lshl_b32 s32, s{S_WAVE}, 6')
        a('s_add_u32 s32, s32, s34')
        a(f's_mul_i32 s31, s{S_WAVE}, 14336')
        a('s_add_u32 s31, s31, s33')
        a(f's_lshl_b32 s27, s{S_Q}, 2')
        a('v_add_u32 v10, s27, v7')
        a('v_xor_b32 v12, v10, v6')
        a('v_lshlrev_b32 v12, 4, v12')
        a('v_lshl_add_u32 v12, v10, 8, v12')
        a(f's_cmp_gt_u32 s{S_WAVE}, 3')
        a('s_cselect_b32 s26, 8192, 0')
        a(f's_mov_b32 s27, {W3L + 16384}')
        a(f's_cselect_b32 s27, {RES3}, s27')
        a(f's_add_u32 s26, s26, {W3L}')
        a('v_add_u32 v20, s26, v12')
        a('v_add_u32 v21, s27, v12')
        a(f's_lshl_b32 s27, s{S_WAVE}, 13')
        a('v_lshlrev_b32 v13, 4, v5')
        a('v_xor_b32 v13, v13, v3')
        a('v_add_u32 v13, s27, v13')
        a(f's_lshl_b32 s27, s{S_WAVE}, 2')
        a('v_add_u32 v10, s27, v7')
        a('v_xor_b32 v10, v10, v6')
        a('v_lshlrev_b32 v10, 4, v10')
        a('v_and_b32 v11, 1, v2')
        a('v_lshl_add_u32 v10, v11, 9, v10')
        a('v_lshrrev_b32 v11, 1, v6')
        a('v_lshl_add_u32 v22, v11, 10, v10')
        a('v_add_u32 v23, 0x10000, v22')
        a('v_lshlrev_b32 v12, 10, v7')
        a('v_lshl_add_u32 v12, v6, 3, v12')
        srd(16, P_OUT, 0x200000)
        a(f's_lshl_b32 s72, s{S_X}, 4')
        a(f's_add_u32 s72, s72, s{S_R16}')
        a('s_lshl_b32 s72, s72, 14')
        a(f's_lshl_b32 s27, s{S_WAVE}, 12')
        a('s_add_u32 s72, s72, s27')
        a(f's_lshl_b32 s27, s{S_CT}, 7')
        a('s_add_u32 s72, s72, s27')
        a('s_add_u32 s73, s72, 32768')
        a(f's_mul_i32 s26, s{S_CT}, 14336')
        a('s_add_u32 s26, s26, s33')
        a(f's_lshl_b32 s27, s{S_J}, 11')
        a('s_add_u32 s26, s26, s27')
        a(f's_add_u32 s27, s26, {2*57344}')

    VX, VWQ = 12, 13
    a('s_setprio 3')
    a('s_memrealtime s[32:33]')
    a('v_lshrrev_b32 v3, 3, v2')
    a(f's_lshl_b32 s27, s{S_Q}, 3')
    a('v_add_u32 v6, s27, v3')
    a('v_lshrrev_b32 v4, 4, v2')
    a(f's_and_b32 s27, s{S_Q}, 1')
    a('s_lshl_b32 s27, s27, 2')
    a('v_add_u32 v4, s27, v4')
    a('v_and_b32 v5, 7, v2')
    a('v_xor_b32 v4, v4, v5')
    a('v_lshlrev_b32 v4, 4, v4')
    a(f'v_lshl_add_u32 v{VX}, v6, 10, v4')
    a('v_bfe_u32 v4, v3, 1, 1')
    a('v_lshlrev_b32 v4, 2, v4')
    a('v_bfe_u32 v7, v3, 2, 1')
    a('v_lshl_add_u32 v4, v7, 1, v4')
    a('v_xor_b32 v4, v4, v5')
    a('v_lshlrev_b32 v55, 4, v4')
    a('s_movk_i32 s27, 0xc00')
    a(f'v_mad_u32_u24 v{VWQ}, v6, s27, v55')
    a(f's_lshl_b32 s28, s{S_I}, 16')
    a(f's_lshl_b32 s29, s{S_Q}, 10')
    a(f's_xor_b32 s31, s{S_X}, {HGX}')
    a('s_lshl_b32 s31, s31, 7')
    a(f's_add_u32 s{S_RHO}, s{S_CT}, s{S_X}')
    a('s_mov_b32 s18, 0x200000\ns_mov_b32 s19, 0x20000\ns_mov_b32 s14, 0x180000\ns_mov_b32 s15, 0x20000')
    a('s_waitcnt lgkmcnt(0)')
    sk = L('nc')
    a(f's_or_b32 s27, s2, s{S_Q}')
    a(f's_cmp_lg_u32 s27, 0\ns_cbranch_scc1 {sk}')
    srd(8, P_DBG, 256)
    a('s_lshl_b64 s[32:33], s[32:33], 5')
    a('s_or_b32 s32, s32, 16')
    a('v_mov_b32 v10, s32\nv_mov_b32 v11, s33')
    a('s_mov_b64 exec, 1')
    a('buffer_store_dwordx2 v[10:11], off, s[8:11], 0 sc1')
    a('s_mov_b64 exec, -1')
    a.label(sk)
    a(f's_mov_b64 s[16:17], s[{P_X}:{P_X+1}]')
    a(f's_mov_b64 s[12:13], s[{P_WQKV}:{P_WQKV+1}]')
    T.stamp('p1.h_iss', slot=20)
    def issx(c):
        a(f's_add_u32 s33, s{S_RHO}, {c}')
        a('s_and_b32 s33, s33, 7')
        a('s_lshl_b32 s34, s33, 7')
        a('s_add_u32 s34, s34, s28')
        for j in range(2):
            a(f's_add_u32 m0, s29, {XL + c*8192 + j*4096}')
            if j: a('s_add_u32 s34, s34, 32768')
            a.vissue(f'buffer_load_dwordx4 v{VX}, s[16:19], s34 offen lds', ('x', c))
    def issw(c):
        a(f's_add_u32 s33, s{S_RHO}, {c}')
        a('s_and_b32 s33, s33, 7')
        a('s_mul_i32 s35, s33, 196608')
        a('s_add_u32 s35, s35, s31')
        for j in range(2):
            for sec in range(3):
                a(f's_add_u32 m0, s29, {WL + (c % NSLOT)*WSLOT + sec*8192 + j*4096}')
                a(f's_add_u32 s34, s35, {j*32*3072 + sec*1024}')
                a.vissue(f'buffer_load_dwordx4 v{VWQ}, s[12:15], s34 offen lds', ('w', c))
    issx(0); issw(0); issx(1)
    if 'ordA' not in opt: issw(1)
    else: issx(2); issx(3)
    common_consts()
    srd(8, P_WS, WS_USED)
    AWH, AXH, CSA, SXH, SQH, ONES, WFH, XFH = 14, 17, 20, 32, 36, 18, 64, 88
    a('v_and_b32 v10, 1, v7')
    a('v_lshrrev_b32 v11, 1, v8')
    a('v_lshl_add_u32 v11, v11, 1, v10')
    a('v_lshl_add_u32 v10, v7, 2, v8')
    a('v_lshlrev_b32 v10, 7, v10')
    a('v_lshl_add_u32 v10, v9, 3, v10')
    for j in range(3):
        a(f's_mul_i32 s26, s{S_Q}, 3')
        a(f's_add_u32 s26, s26, {j}')
        a('s_and_b32 s27, s26, 3')
        a('s_lshr_b32 s26, s26, 2')
        a('s_lshl_b32 s26, s26, 13')
        a(f's_add_u32 s26, s26, {WL}')
        a('v_xor_b32 v40, s27, v11')
        a('v_lshl_add_u32 v40, v40, 5, v10')
        a(f'v_add_u32 v{AWH+j}, s26, v40')
    a(f's_lshl_b32 s26, s{S_Q}, 11')
    a('v_lshlrev_b32 v10, 7, v6')
    a('v_bfe_u32 v11, v6, 1, 3')
    a('v_xor_b32 v11, v11, v7')
    a('v_lshl_add_u32 v10, v11, 4, v10')
    a(f'v_add_u32 v{AXH}, s26, v10')
    a(f'v_xor_b32 v41, 64, v{AXH}')
    a(f'v_mov_b32 v{ONES}, 0x3f803f80\nv_mov_b32 v{ONES+1}, 0x3f803f80')
    PA16, PA32, PROW, PUN = 44, 52, 54, 55
    def prep_addr():
        a('v_and_b32 v10, 1, v7')
        a('v_lshrrev_b32 v11, 1, v8')
        a('v_lshl_add_u32 v11, v11, 1, v10')
        a('v_lshl_add_u32 v56, v10, 2, v8')
        a('v_lshrrev_b32 v57, 1, v7')
        a('v_lshl_add_u32 v58, v57, 4, v56')
        a('v_lshl_add_u32 v59, v57, 3, v56')
        for ti, kreg in enumerate((58, 59)):
            for nt in range(4):
                a(f'v_xor_b32 v60, {nt}, v11')
                a('v_lshlrev_b32 v60, 5, v60')
                a('v_lshl_add_u32 v60, v9, 3, v60')
                a(f'v_lshl_add_u32 v{PA16+4*ti+nt}, v{kreg}, 7, v60')
        a('v_lshrrev_b32 v11, 1, v8')
        a('v_lshl_add_u32 v11, v11, 1, v5')
        a('v_lshl_add_u32 v56, v5, 2, v8')
        a('v_lshlrev_b32 v56, 7, v56')
        a('v_lshl_add_u32 v56, v9, 3, v56')
        for nt in range(2):
            a(f'v_add_u32 v60, {2*nt}, v10')
            a('v_xor_b32 v60, v60, v11')
            a(f'v_lshl_add_u32 v{PA32+nt}, v60, 5, v56')
        a(f'v_lshrrev_b32 v{PROW}, 3, v2')
    ONE4 = 96
    TCC = 5 if 'tc5' in opt else 6
    for i in range(4): a(f'v_mov_b32 v{ONE4+i}, 0x3f803f80')
    a(f's_mul_i32 s26, s{S_Q}, 192')
    a(f's_add_u32 s26, s26, {CSUM}')
    a('v_lshl_add_u32 v100, v7, 4, s26')
    a(f's_lshl_b32 s26, s{S_Q}, 6')
    a(f's_add_u32 s26, s26, {RST}')
    a('v_lshl_add_u32 v101, v6, 2, s26')
    a('v_cmp_eq_u32 s[42:43], 1, v9')
    a('v_cmp_eq_u32 s[6:7], 2, v9')
    def unit_idx(k):
        a(f's_mul_i32 s{S_U}, s2, 5')
        a(f's_add_u32 s{S_U}, s{S_U}, {k}')
        unit_decode(S_U)
    def stride_sel():
        a('s_cmp_eq_u32 s26, 2')
        a('s_movk_i32 s32, 0x400')
        a('s_cselect_b32 s32, 0xe00, s32')
        a(f'v_mad_u32_u24 v60, v{PROW}, s32, v{PUN}')
        a('s_lshl_b32 s32, s32, 3')
    def touch_addr():
        a('v_lshlrev_b32 v108, 16, v7')
        a(f's_mov_b32 s26, {HDS}')
        a('v_bfe_u32 v10, v2, 3, 1')
        a('v_mad_u32_u24 v108, v10, s26, v108')
        a('v_and_b32 v10, 7, v2')
        a('v_lshl_add_u32 v108, v10, 7, v108')
        a(f's_lshl_b32 s26, s{S_I}, 1')
        a(f's_lshr_b32 s27, s{S_Q}, 1')
        a('s_add_u32 s26, s26, s27')
        a('s_lshl_b32 s26, s26, 10')
        a(f's_and_b32 s27, s{S_Q}, 1')
        a(f's_mul_i32 s27, s27, {2*HDS}')
        a('s_add_u32 s26, s26, s27')
        a(f's_add_u32 s26, s26, s{S_QKV}')
        a('v_add_u32 v108, s26, v108')
        a(f's_add_u32 s26, s{S_GB}, {G_FQ}')
        a('v_and_b32 v10, 1, v2')
        a('v_lshl_add_u32 v10, v10, 7, s26')
        a('v_cmp_lt_u32 vcc, 47, v2')
        a('v_cndmask_b32 v108, v108, v10, vcc')
    def prep_load(k, rec):
        unit_idx(k)
        stride_sel()
        if isinstance(k, int): a(f's_mov_b32 s35, {k*4096}')
        else: a(f's_lshl_b32 s35, {k}, 12')
        for p in range(4):
            a(f's_add_u32 m0, s35, {PREP + p*1024}')
            if p: a('s_add_u32 s27, s27, s32')
            t = 'buffer_load_dwordx4 v60, s[12:15], s27 offen lds'
            a.vissue(t, 'pl') if rec else a(t)

    a(f's_mul_i32 s26, s{S_Q}, 192')
    a(f's_add_u32 s26, s26, {CSUM}')
    a('v_add_u32 v112, s26, v1')
    a(f's_lshl_b32 s75, s{S_X}, 16')
    a(f's_mul_i32 s26, s{S_Q}, 384')
    a('s_add_u32 s75, s75, s26')
    a(f's_add_u32 s75, s75, {CSX}')
    a(f's_lshl_b32 s26, s{S_I}, 11')
    a('s_add_u32 s74, s75, s26')
    a(f's_lshl_b32 s26, s{S_RB}, 14')
    a('s_add_u32 s75, s75, s26')
    a('v_lshrrev_b32 v111, 3, v2')
    a('v_lshlrev_b32 v111, 11, v111')
    a('v_and_b32 v10, 7, v2')
    a('v_lshl_add_u32 v111, v10, 4, v111')
    touch_addr()
    if 'ordA' not in opt:
        issx(2)
        if 'ordD' in opt: issw(2)
    else:
        issw(1)
        for c in range(4, 8): issx(c)
    srd(44, P_DBG, 256)
    def pls():
        prep_load(f's{S_Q}', True)
        sk = L('u4')
        a(f's_cmp_lg_u32 s{S_Q}, 3\ns_cbranch_scc1 {sk}')
        prep_load(4, False)
        a.label(sk)
    PE = int(OP.get('pe', -1))
    a(f'v_lshrrev_b32 v{PROW}, 3, v2')
    a.vissue('buffer_load_dwordx2 v[104:105], off, s[44:47], 0 sc1', 'n')
    a('s_load_dwordx4 s[44:47], s[0:1], 32')
    xsched = {0: [0], 1: [1], 2: [2, 3], 3: [4, 5], 4: [6, 7]}
    XFIN = 5
    if 'ordA' not in opt: xsched = {k: [k] for k in range(8)}; XFIN = 7
    GA = 64
    def mode_calc():
        sk, lp, ok = L('nw'), L('xr'), L('xo')
        a(f's_cmp_lg_u32 s{S_Q}, 0\ns_cbranch_scc1 {sk}')
        a(f's_mov_b32 s{S_SPIN}, 0')
        a('s_mov_b32 exec_hi, 0')
        a.label(lp)
        a('v_and_b32 v10, -16, v106')
        a('v_mov_b32 v11, v107')
        a(f'v_cmp_ne_u64 vcc, {sr(S_NON,2)}, v[10:11]')
        a(f's_cbranch_vccz {ok}')
        a(f's_add_u32 s{S_SPIN}, s{S_SPIN}, 1')
        a(f's_cmp_gt_u32 s{S_SPIN}, 64')
        a(f's_cbranch_scc1 {ok}')
        xcc_load(106, 109)
        a('s_waitcnt vmcnt(0)')
        a(f's_branch {lp}')
        a.label(ok)
        calc_mode(106)
        a('s_mov_b32 exec_hi, -1')
        a(f'v_mov_b32 v104, s{S_NON}\nv_mov_b32 v105, s{S_NON+1}\nv_mov_b32 v106, s{S_MODE}')
        a(f'v_mov_b32 v10, {NONL}')
        a('ds_write_b128 v10, v[104:107]')
        a.label(sk)
    def gather_issue(rec):
        for j in range(3):
            t = f'buffer_load_dwordx4 {vr(GA+4*j,4)}, v111, s[8:11], s75 offen offset:{128*j} sc1'
            a.vissue(t, 'ga') if rec else a(t)
    for c in range(8):
        a.vwait(('w', c))
        T.stamp(f'p1.h_w{c}', slot=2+2*c)
        a('s_barrier')
        T.stamp(f'p1.h_b{c}', slot=3+2*c)
        if c == 0:
            for j in range(3):
                for kk in range(4):
                    a(f'ds_read_b64_tr_b16 {vr(WFH+8*j+2*kk,2)}, v{AWH+j} offset:{kk*2048}')
        xs = xsched.get(c, [])
        XB = [XFH, 80]
        for k, xc in enumerate(xs):
            a(f'ds_read_b128 {vr(XB[k],4)}, v{AXH} offset:{XL + xc*8192}')
            a(f'ds_read_b128 {vr(XB[k]+4,4)}, v41 offset:{XL + xc*8192}')
        if c == 2:
            a(f'v_readfirstlane_b32 s{S_NON}, v104')
            a(f'v_readfirstlane_b32 s{S_NON+1}, v105')
            sk = L('gn')
            a(f's_cmp_lg_u32 s{S_NON}, 0\ns_cbranch_scc1 {sk}')
            keep = list(a.vm); get_nonce(); a.vm = keep
            srd(16, P_X, 0x200000)
            a.label(sk)
            a(f'v_mov_b32 v78, s{S_NON}\nv_mov_b32 v79, s{S_NON+1}')
            a('s_mov_b64 exec, 0xffffff')
            a.vissue('buffer_store_dwordx4 v[76:79], v3, s[8:11], s74 offen sc1', 'cp')
            a('s_mov_b64 exec, -1')
            sk = L('xp')
            a(f's_cmp_lg_u32 s{S_Q}, 0\ns_cbranch_scc1 {sk}')
            xcc_publish(104, 105)
            a.label(sk)
        if c == 5:
            a('s_mov_b32 exec_hi, 0')
            xcc_load(106, 109); a.vm.append('xt')
            a('s_mov_b32 exec_hi, -1')
        if c + 2 < 8 and not (c == 0 and 'ordD' in opt): issw(c + 2)
        if 'ordA' not in opt and c + 3 < 8: issx(c + 3)
        if c == 5:
            gather_issue(True)
        if xs: a('s_waitcnt lgkmcnt(0)')
        if c == 0:
            for kk in range(2):
                for j in range(3):
                    a(f'v_mfma_f32_16x16x32_bf16 {vr(CSA+4*j,4)}, {vr(WFH+8*j+4*kk,4)}, {vr(ONE4,4)}, {"0" if kk == 0 else vr(CSA+4*j,4)}')
        for k, xc in enumerate(xs):
            for kk in range(2):
                z = (xc == 0 and kk == 0)
                a(f'v_mfma_f32_16x16x32_bf16 {vr(SXH,4)}, {vr(ONE4,4)}, {vr(XB[k]+4*kk,4)}, {"0" if z else vr(SXH,4)}')
                a(f'v_mfma_f32_16x16x32_bf16 {vr(SQH,4)}, {vr(XB[k]+4*kk,4)}, {vr(XB[k]+4*kk,4)}, {"0" if z else vr(SQH,4)}')
        if c == 0:
            for j in range(3): a(f'ds_write_b128 v100, {vr(CSA+4*j,4)} offset:{64*j}')
            a('ds_read_b64 v[76:77], v112')
        if c == XFIN:
            a('v_cmp_eq_u32 vcc, 3, v9')
            a(f'v_mul_f32 v{SXH}, {H(-1/512)}, v{SXH}')
            a(f'v_cndmask_b32 v{SQH}, v{SQH}, v{SQH+1}, s[42:43]')
            a(f'v_cndmask_b32 v{SQH}, v{SQH}, v{SQH+2}, s[6:7]')
            a(f'v_cndmask_b32 v{SQH}, v{SQH}, v{SQH+3}, vcc')
            a(f'v_mul_f32 v{SQH}, {H(1/512)}, v{SQH}')
            a(f'v_fma_f32 v{SQH}, -v{SXH}, v{SXH}, v{SQH}')
            a(f'v_max_f32 v{SQH}, 0, v{SQH}')
            a(f'v_add_f32 v{SQH}, {H(1e-5)}, v{SQH}')
            a(f'v_rsq_f32 v{SQH}, v{SQH}')
            a('s_mov_b32 exec_lo, 0x00f0000f')
            a('s_mov_b32 exec_hi, 0xf0000f00')
            a(f'v_mul_f32 v{SXH}, v{SXH}, v{SQH}')
            a(f'ds_write_b32 v101, v{SQH} offset:256')
            a(f'ds_write_b32 v101, v{SXH}')
            a('s_mov_b64 exec, -1')
        if c == TCC:
            a.vissue('buffer_load_dword v110, v108, s[8:11], 0 offen sc1', 'tc')
        if c == PE:
            a.vwait(('w', 7))
            pls()
    a.vwait('ga')
    lp, ok = L('gr'), L('go')
    a(f's_mov_b32 s{S_SPIN}, 0')
    a.label(lp)
    a(f'v_cmp_ne_u64 vcc, {sr(S_NON,2)}, {vr(GA+2,2)}')
    a(f'v_cmp_ne_u64 s[32:33], {sr(S_NON,2)}, {vr(GA+6,2)}')
    a(f'v_cmp_ne_u64 s[34:35], {sr(S_NON,2)}, {vr(GA+10,2)}')
    a('s_or_b64 vcc, vcc, s[32:33]')
    a('s_or_b64 vcc, vcc, s[34:35]')
    a(f's_cbranch_vccz {ok}')
    a(f's_add_u32 s{S_SPIN}, s{S_SPIN}, 1')
    a(f's_cmp_gt_u32 s{S_SPIN}, 0x20000')
    a(f's_cbranch_scc1 {ok}')
    gather_issue(False)
    a('s_waitcnt vmcnt(0)')
    a(f's_branch {lp}')
    a.label(ok)
    vals = [GA+4*j+e for j in range(3) for e in range(2)]
    for r in vals: a(f'v_add_f32_dpp v{r}, v{r}, v{r} row_ror:8 row_mask:0xf bank_mask:0xf')
    for sw in ('v_permlane16_swap_b32', 'v_permlane32_swap_b32'):
        for r in vals: a(f'v_mov_b32 v{r+2}, v{r}')
        for r in vals: a(f'{sw} v{r}, v{r+2}')
        for r in vals: a(f'v_add_f32 v{r}, v{r}, v{r+2}')
    a('s_mov_b64 exec, 0xff')
    for j in range(3): a(f'ds_write_b64 v112, {vr(GA+4*j,2)} offset:{64*j}')
    a('s_mov_b64 exec, -1')
    mode_calc()
    a('s_waitcnt lgkmcnt(0)')
    a('s_barrier')
    T.stamp('h_p1done', slot=2)
    if PE == 8: pls()
    prep_addr()
    a(f'v_mov_b32 v10, {NONL}')
    a('ds_read_b32 v25, v10 offset:8')
    a('v_lshlrev_b32 v12, 7, v2')
    a(f's_lshr_b32 s26, s{S_Q}, 1')
    a('s_mul_i32 s26, s26, 114688')
    a(f's_mul_i32 s27, s{S_CT}, 14336')
    a('s_add_u32 s26, s26, s27')
    a(f's_and_b32 s27, s{S_Q}, 1')
    a('s_mul_i32 s27, s27, 7168')
    a('s_add_u32 s26, s26, s27')
    a(f's_add_u32 s26, s26, s{S_HD}')
    a(f'v_min_u32 v14, {55*128}, v12')
    a('v_add_u32 v14, s26, v14')
    a(f's_lshl_b32 s28, s{S_SLAB}, 14')
    a(f's_lshl_b32 s27, s{S_CT}, 11')
    a('s_add_u32 s28, s28, s27')
    a(f's_add_u32 s28, s28, s{S_GB}')
    a(f's_add_u32 s28, s28, {G_H}')
    a('v_add_u32 v17, s28, v12')
    a(f's_lshl_b32 s27, s{S_I}, 2')
    a(f's_add_u32 s27, s27, s{S_Q}')
    a('s_mul_i32 s27, s27, 384')
    a(f's_add_u32 s27, s27, s{S_GB}')
    a(f's_add_u32 s27, s27, {G_ST1 - 2048}')
    a('v_add_u32 v24, s27, v12')
    a('v_cmp_lt_u32 vcc, 15, v2')
    a('v_cndmask_b32 v17, v17, v24, vcc')
    for reg, k in ((15, 0), (24, 1), (16, 2)):
        a(f's_mul_i32 s26, s{S_SLAB}, 3')
        a(f's_add_u32 s26, s26, {k}')
        a('s_min_u32 s26, s26, 41')
        a('s_mul_hi_u32 s27, s26, 0x2aaaaaab')
        a('s_lshl_b32 s27, s27, 1')
        a('s_add_u32 s26, s26, s27')
        a('s_add_u32 s26, s26, 2')
        a('s_lshl_b32 s26, s26, 12')
        a(f's_mul_i32 s27, s{S_CT}, {7*32768}')
        a('s_add_u32 s26, s26, s27')
        a(f's_add_u32 s26, s26, {W3F}')
        a(f'v_lshl_add_u32 v{reg}, v4, 7, s26')
    a('v_cmp_lt_u32 vcc, 31, v2')
    a('v_cndmask_b32 v15, v15, v24, vcc')
    a(f's_mul_i32 s26, s{S_CT}, 229376')
    a(f's_mul_i32 s27, s{S_Q}, 28672')
    a('s_add_u32 s26, s26, s27')
    a(f's_lshl_b32 s27, s{S_RB}, 12')
    a('s_add_u32 s26, s26, s27')
    a(f's_add_u32 s26, s26, {W4F + 4096}')
    a('v_lshl_add_u32 v24, v4, 7, s26')
    a('v_cndmask_b32 v16, v16, v24, vcc')
    a('s_waitcnt lgkmcnt(0)')
    a(f'v_readfirstlane_b32 s{S_MODE}, v25')
    a('v_and_b32 v10, 23, v2')
    a('v_cmp_eq_u32 vcc, 0, v10')
    a('v_mov_b32 v10, 0x3f803f80')
    a('v_cndmask_b32 v20, 0, v10, vcc')
    a('v_mov_b32 v21, v20\nv_mov_b32 v22, v20\nv_mov_b32 v23, v20')
    a('v_add_u32 v24, s29, v3')
    a(f's_add_u32 s{S_A}, s{S_HD}, s29')
    a(f's_add_u32 s{S_A}, s{S_A}, 0x10000')
    a(f's_add_u32 s27, s{S_GB}, {G_FQ}')
    a('s_mov_b32 s30, -1\ns_mov_b32 s31, 0')
    a('s_barrier')
    a(f'ds_write_b128 v24, v[20:23] offset:{CONST}')
    poll('v1', 's27', 's[30:31]')
    T.stamp('h_kvflag', slot=3)
    def kv_issue(c):
        a(f's_add_u32 m0, s29, {KV + c*8192}')
        a(f's_add_u32 s30, s{S_A}, {c*4096}')
        a.vissue(f'buffer_load_dwordx4 v3, s[8:11], s30 offen sc1 {KVNT}lds', ('kv', c))
        a(f's_add_u32 m0, s29, {KV + c*8192 + 4096}')
        a(f's_add_u32 s30, s{S_A}, {c*4096 + 0x10000}')
        a.vissue(f'buffer_load_dwordx4 v3, s[8:11], s30 offen sc1 {KVNT}lds', ('kv', c))
    kv_issue(0); kv_issue(1)
    def prep_convert(k, record):
        unit_idx(k)
        if isinstance(k, int): a(f's_mov_b32 s32, {PREP + k*4096}')
        else:
            a(f's_lshl_b32 s32, {k}, 12')
            a(f's_add_u32 s32, s32, {PREP}')
        k1, k2, k3, dn = L('k1'), L('k2'), L('k3'), L('kd')
        F = 64
        a(f's_cmp_eq_u32 s26, 1\ns_cbranch_scc1 {k1}')
        a(f's_cmp_eq_u32 s26, 2\ns_cbranch_scc1 {k2}')
        a(f's_cmp_eq_u32 s26, 3\ns_cbranch_scc1 {k3}')
        for kind, lab in ((0, None), (1, k1)):
            if lab: a.label(lab)
            for nt in range(4): a(f'v_add_u32 v{60+nt}, s32, v{PA16+4*kind+nt}')
            for nt in range(4):
                for sec in range(2):
                    a(f'ds_read_b64_tr_b16 {vr(F+4*nt+2*sec,2)}, v{60+nt} offset:{sec*(1024 if kind==0 else 2048)}')
            a('s_add_u32 s35, s28, 2048')
            a(f's_branch {dn}')
        a.label(k2)
        for nt in range(2): a(f'v_add_u32 v{60+nt}, s32, v{PA32+nt}')
        for nt in range(2):
            for kk in range(2):
                for sec in range(2):
                    a(f'ds_read_b64_tr_b16 {vr(F+8*nt+4*kk+2*sec,2)}, v{60+nt} offset:{(8*kk+16*sec)*128}')
        a('s_add_u32 s35, s28, 32768')
        a('s_mul_i32 s33, s33, 7168')
        a('s_lshl_b32 s34, s34, 8')
        a('s_add_u32 s33, s33, s34')
        a(f's_add_u32 s33, s33, {C3P}')
        a('v_lshlrev_b32 v62, 2, v2')
        a('s_waitcnt lgkmcnt(0)')
        for i in range(4):
            for nt in range(2):
                c_ = '0' if i == 0 else vr(80+4*nt,4)
                a(f'v_mfma_f32_4x4x4_16b_bf16 {vr(80+4*nt,4)}, {vr(ONES,2)}, {vr(F+8*nt+2*i,2)}, {c_}')
        a('v_permlane32_swap_b32 v80, v84')
        a('v_add_f32 v80, v80, v84')
        a('buffer_store_dword v80, v62, s[8:11], s33 offen sc1')
        a(f's_branch {dn}')
        a.label(k3)
        for nt in range(2): a(f'v_add_u32 v{60+nt}, s32, v{PA32+nt}')
        for kk in range(2):
            for nt in range(2):
                for sec in range(2):
                    a(f'ds_read_b64_tr_b16 {vr(F+8*kk+4*nt+2*sec,2)}, v{60+nt} offset:{(16*kk+8*sec)*128}')
        a('s_add_u32 s35, s28, 2048')
        a.label(dn)
        a('s_waitcnt lgkmcnt(0)')
        iss = (lambda t: a.vissue(t, 'pp')) if record else a
        iss(f'buffer_store_dwordx4 {vr(F,4)}, v3, s[8:11], s28 offen sc1')
        iss(f'buffer_store_dwordx4 {vr(F+4,4)}, v3, s[8:11], s28 offen offset:1024 sc1')
        iss(f'buffer_store_dwordx4 {vr(F+8,4)}, v3, s[8:11], s35 offen sc1')
        iss(f'buffer_store_dwordx4 {vr(F+12,4)}, v3, s[8:11], s35 offen offset:1024 sc1')
        if 'rback' in opt:
            a('s_waitcnt vmcnt(0)')
            a('s_mov_b64 exec, 0xffff')
            a('buffer_load_dword v13, v12, s[8:11], s28 offen sc1')
            a('buffer_load_dword v13, v12, s[8:11], s35 offen sc1')
            a('s_mov_b64 exec, -1')

    HW2, HW1, HW3 = 24, 88, 92
    C3R = [116, 120, 124, 20]
    w3g = lambda g: [('w3', i) for i in range(8*g, 8*g+8)]
    flat = w3g(1) + [('c3', k) for k in range(4)] + [('wo', i) for i in range(16)] + w3g(2) + \
           [('w1', i) for i in range(15)] + [('r', HW1, W1F + 15*4096)] + w3g(3) + \
           [('r', HW2 + 4*i, W2F + i*4096) for i in range(16)] + w3g(0) + [('l3', t, f) for t in range(3) for f in range(2)]
    groups = [flat[12*i:12*i+12] for i in range(8)]
    strips = [(75, 8192), (74, WOF), (75, 2*8192), (74, W1F), (75, 3*8192), (74, W2F), (75, 0)]
    def job_setup():
        a(f's_lshl_b32 s31, s{S_CT}, 16')
        a('s_add_u32 s31, s31, s29')
        a(f's_mul_i32 s33, s{S_CT}, {7*32768}')
        a(f's_lshl_b32 s{S_B}, s{S_J}, 15')
        a(f's_add_u32 s{S_B}, s{S_B}, s33')
        a(f's_add_u32 s{S_B}, s{S_B}, {W3F}')
        a('s_add_u32 s33, s33, s29')
        a(f's_mul_i32 s32, s{S_CT}, 896')
        a(f's_mul_i32 s30, s{S_Q}, {4*7168}')
        a('s_add_u32 s32, s32, s30')
    def dma(lds, src):
        a(f's_add_u32 m0, s29, {lds}')
        a(f's_add_u32 s30, s31, {src}')
        a.vissue(f'buffer_load_dwordx4 v3, s[8:11], s30 offen {JF} lds', 'pf')
    def ldr(reg, sbase, off, imm=0):
        a(f's_add_u32 s30, s{sbase}, {off}')
        a.vissue(f'buffer_load_dwordx4 {vr(reg,4)}, v3, s[8:11], s30 offen offset:{imm} {JF}', 'pf')
    def job(j):
        kind = j[0]
        if kind == 'w3' and j[1] < 8: ldr(W3+4*j[1], S_B, (j[1] >> 2)*4096, (j[1] & 3)*1024)
        elif kind == 'w3': ldr(W3+4*j[1], S_W4, ((j[1] >> 2) - 1)*4096, (j[1] & 3)*1024)
        elif kind == 'wo': dma(WA + j[1]*4096, WOF + j[1]*4096)
        elif kind == 'w1': dma(WB + j[1]*4096 if j[1] < 8 else LOW + (j[1]-8)*4096, W1F + j[1]*4096)
        elif kind == 'r': ldr(j[1], 31, j[2])
        elif kind == 'l3': ldr(HW3 + 8*j[1] + 4*j[2], 33, W3F + j[1]*32768 + j[2]*4096)
        elif kind == 'c3': ldr(C3R[j[1]], 32, C3P + j[1]*7168)
    def touch(vreg, lo=0xffffffff, hi=0xffffffff):
        a(f's_mov_b32 exec_lo, {hex(lo)}\ns_mov_b32 exec_hi, {hex(hi)}')
        a(f'buffer_load_dword v13, v{vreg}, s[8:11], 0 offen sc1')
        a('s_mov_b64 exec, -1')
    def wait_prog(p):
        lp = L('wp')
        a(f'v_mov_b32 v10, {PRG}')
        a('v_lshl_add_u32 v10, v9, 2, v10')
        dn = L('wd')
        a.label(lp)
        a('ds_read_b32 v11, v10')
        a('s_waitcnt lgkmcnt(0)')
        a(f'v_cmp_gt_u32 vcc, {p}, v11')
        a(f's_cbranch_vccz {dn}')
        a('s_sleep 12')
        a(f's_branch {lp}')
        a.label(dn)
    def code_warm():
        sk, pc = L('cw'), L('pc')
        a(f's_cmp_lg_u32 s{S_Q}, 2\ns_cbranch_scc1 {sk}')
        a('s_getpc_b64 s[26:27]')
        a.label(pc)
        a(f's_sub_u32 s26, s26, {pc}-{name}')
        a('s_subb_u32 s27, s27, 0')
        a(f's_lshl_b32 s30, s{S_I}, 11')
        a('v_lshl_add_u32 v10, v2, 7, s30')
        a(f'v_min_u32 v10, {name}_end-{name}, v10')
        a('s_mov_b64 exec, 0xffff')
        a('global_load_dword v13, v10, s[26:27] sc1')
        a('s_mov_b64 exec, -1')
        a.label(sk)
    def jobs(l):
        if 'nojobs' in opt: return
        for j in l: job(j)
        a('s_waitcnt vmcnt(8)'); a.vm = []
    a.vwait(('kv', 1), 'lgkmcnt(0)')
    a('s_barrier')
    def kvc(off):
        a(f'v_mov_b32 v10, {KVC}\nv_mov_b32 v11, 1')
        a('s_mov_b64 exec, 1')
        a(f'ds_add_u32 v10, v11 offset:{off}')
        a('s_mov_b64 exec, -1')
    KS = int(OP.get('ks', 16))
    for c in range(2, KS): kv_issue(c)
    a.vwait(('kv', KS - 1))
    kvc(0)
    if KS < 16: pls()
    for c in range(KS, 16): kv_issue(c)
    a.vwait_all()
    kvc(4)
    if KS == 16 and PE < 0: pls()
    tch = (lambda *x: None) if 'notouch' in opt else touch
    a('s_setprio 2')
    a.vwait_all()
    prep_convert(f's{S_Q}', False)
    sk = L('u4')
    a(f's_cmp_lg_u32 s{S_Q}, 3\ns_cbranch_scc1 {sk}')
    prep_convert(4, False)
    a.label(sk)
    a('s_waitcnt vmcnt(0)')
    a(f'v_mov_b32 v10, {PCN}\nv_mov_b32 v11, 1')
    a('s_mov_b64 exec, 1')
    a('ds_add_rtn_u32 v18, v10, v11')
    a('s_mov_b64 exec, -1')
    a('s_waitcnt lgkmcnt(0)')
    a('v_readfirstlane_b32 s26, v18')
    sk = L('pf')
    a(f's_cmp_lg_u32 s26, 3\ns_cbranch_scc1 {sk}')
    a('s_lshl_b32 s26, s2, 7')
    a(f's_add_u32 s26, s26, {F_PREP}')
    flag_sc1('s26')
    srd(16, P_OUT, 0x200000)
    a('v_lshlrev_b32 v10, 21, v2')
    a(f's_mov_b32 s26, {GB + G_FHX}')
    a('s_mov_b64 exec, 0xff')
    a('buffer_load_dword v13, v10, s[8:11], s26 offen')
    a('buffer_load_dword v13, off, s[16:19], 0')
    a('s_mov_b64 exec, -1')
    a.label(sk)
    job_setup()
    if 'lowp' in opt: a('s_setprio 0')
    T.stamp('h_pub', slot=7)
    tch(17, 0x7ffff, 0)
    a(f's_lshl_b32 s26, s{S_CT}, 16')
    a(f's_lshl_b32 s27, s{S_SLAB}, 12')
    a('s_add_u32 s27, s27, s26')
    a(f's_add_u32 s27, s27, {WOF}')
    a('v_add_u32 v19, s27, v12')
    a(f's_lshl_b32 s27, s{S_SLAB}, 11')
    a('s_add_u32 s27, s27, s26')
    a(f's_add_u32 s27, s27, {W1F - 4096}')
    a('v_add_u32 v18, s27, v12')
    a('v_cmp_lt_u32 vcc, 31, v2')
    a('v_cndmask_b32 v19, v19, v18, vcc')
    a('s_waitcnt vmcnt(0)')
    lead, join = L('ld'), L('lj')
    a(f's_add_u32 s27, s{S_GB}, {G_RDY}')
    if 'flat' not in opt:
        a(f's_cmp_eq_u32 s{S_I}, 0\ns_cbranch_scc1 {lead}')
        poll('v1', 's27', '1', sleep=4)
        a(f's_branch {join}')
    a.label(lead)
    a(f's_lshl_b32 s28, s{S_Q}, 13')
    a(f's_add_u32 s28, s28, {F_PREP}')
    poll('v12', 's28', None, sleep=int(OP.get('ps', 2)))
    a.label(join)
    a(f'v_mov_b32 v10, {PCN}\nv_mov_b32 v11, 1')
    a('s_mov_b64 exec, 1')
    a('ds_add_u32 v10, v11')
    a('s_mov_b64 exec, -1')
    lp = L('hp')
    a.label(lp)
    a('s_sleep 2')
    a('ds_read_b32 v11, v10')
    a('s_waitcnt lgkmcnt(0)')
    a('v_cmp_gt_u32 vcc, 8, v11')
    a(f's_cbranch_vccnz {lp}')
    sk = L('rd')
    a(f's_or_b32 s26, s{S_I}, s{S_Q}')
    a(f's_cmp_lg_u32 s26, 0\ns_cbranch_scc1 {sk}')
    flag_prep()
    st2(flag_lines('s27'))
    a.label(sk)
    a.vm = []
    T.stamp('h_prep', slot=5)
    if 'do19' in opt: tch(19, 0xffffffff, 0xffff)
    G = [w3g(1) + w3g(2),
         [('w1', i) for i in range(8, 15)] + [('r', HW1, W1F + 15*4096)] + w3g(3),
         [('r', HW2 + 4*i, W2F + i*4096) for i in range(16)],
         w3g(0) + [('l3', t, f) for t in range(3) for f in range(2)] + [('c3', k) for k in range(4)]]
    DEPTH = int(OP.get('depth', 16))
    for k, j in enumerate(G[0] + G[1] + G[2] + G[3]):
        job(j)
        if k >= DEPTH and k % 2 == 0: a(f's_waitcnt vmcnt({DEPTH})')
    a.vm = []
    T.stamp('h_g', slot=8)
    QM = [(0xffff, 0), (0xffff0000, 0), (0, 0xffff), (0, 0xffff0000)]
    TD = int(OP.get('td', 1))
    def tq(reg, qs):
        for k in qs:
            tch(reg, *QM[k]); a(f's_waitcnt vmcnt({TD})')
    wait_prog(8)
    jobs([('wo', i) for i in range(16)])
    if 'w3w' in opt: tq(15, range(4))
    wait_prog(10)
    jobs([('w1', i) for i in range(4)])
    if 'w3w' in opt: tq(16, range(2))
    if 'noh2t' not in opt: tq(14, range(4))
    wait_prog(12)
    jobs([('w1', i) for i in range(4, 8)])
    tch(17, 0x7ffff, 0)
    code_warm()
    a('s_setprio 0')
    T.stamp('h_jobs', slot=6)
    a.vwait_all()
    a('v_add_u32 v12, s29, v3')
    a(f'v_add_u32 v13, {WB}, v12')
    a(f'v_add_u32 v14, {WA}, v12')
    a(f's_mul_i32 s26, s{S_Q}, 896')
    a('v_add_u32 v15, s26, v3')
    a('s_barrier')
    T.stamp('h_attn_end', slot=4)
    a(f'ds_write_b128 v13, {vr(HW1,4)} offset:{W1X - WB}')
    for i in range(NW2L): a(f'ds_write_b128 v13, {vr(HW2+4*i,4)} offset:{W2L - WB + i*4096}')
    for k in range(1, 4):
        for i in range(2): a(f'v_pk_add_f32 {vr(C3R[0]+2*i,2)}, {vr(C3R[0]+2*i,2)}, {vr(C3R[k]+2*i,2)}')
    a('s_mov_b32 exec_hi, 0xffffff')
    a(f'ds_write_b128 v15, {vr(C3R[0],4)} offset:{C3L}')
    a('s_mov_b32 exec_hi, -1')
    for i in range(4): a(f'v_mov_b32 v{20+i}, 0x3f803f80')
    a(f'v_mfma_f32_16x16x32_bf16 v[16:19], {vr(HW1,4)}, v[20:23], 0')
    a('s_waitcnt lgkmcnt(0)')
    for bt in range(3):
        for k in range(5):
            s_ = 5*bt + k
            a(f'ds_read_b128 {vr(HW2+4*k,4)}, v13 offset:{s_*4096}' if s_ < 8 else f'ds_read_b128 {vr(HW2+4*k,4)}, v12 offset:{LOW + (s_-8)*4096}')
        for k in range(5):
            a(f's_waitcnt lgkmcnt({4-k})')
            a(f'v_mfma_f32_16x16x32_bf16 v[16:19], {vr(HW2+4*k,4)}, v[20:23], v[16:19]')
    a(f's_lshl_b32 s26, s{S_Q}, 6')
    a(f's_add_u32 s26, s26, {CS1}')
    a('v_lshl_add_u32 v10, v7, 4, s26')
    a('ds_write_b128 v10, v[16:19]')
    sk = L('of')
    a(f's_cmp_lg_u32 s{S_Q}, 0\ns_cbranch_scc1 {sk}')
    a(f's_lshl_b32 s28, s{S_X}, 14')
    a(f's_lshl_b32 s27, s{S_RB}, 12')
    a('s_add_u32 s28, s28, s27')
    a(f's_add_u32 s28, s28, {F_O}')
    a('s_mov_b32 s30, -1\ns_mov_b32 s31, 0')
    a('v_lshlrev_b32 v20, 7, v2')
    poll('v20', 's28', 's[30:31]', sleep=1)
    a.label(sk)
    a('s_waitcnt lgkmcnt(0)')
    a('s_barrier')
    sk = L('c3w')
    a(f's_cmp_lg_u32 s{S_Q}, 3\ns_cbranch_scc1 {sk}')
    for k in range(4): a(f'ds_read_b128 {vr(HW2+4*k,4)}, v3 offset:{C3L + 896*k}')
    a('s_waitcnt lgkmcnt(0)')
    for k in range(1, 4):
        for i in range(2): a(f'v_pk_add_f32 {vr(HW2+2*i,2)}, {vr(HW2+2*i,2)}, {vr(HW2+4*k+2*i,2)}')
    a(f'ds_write_b128 v3, {vr(HW2,4)} offset:{C3L}')
    a.label(sk)
    a('s_barrier')
    for i in range(NW2L, 16): a(f'ds_write_b128 v14, {vr(HW2+4*i,4)} offset:{i*4096}')
    a('s_waitcnt lgkmcnt(0)')
    a('s_barrier')
    for t in range(3):
        for f in range(2): a(f'ds_write_b128 v13, {vr(HW3+8*t+4*f,4)} offset:{t*8192 + f*4096}')
    p4_prologue()
    a(f's_lshl_b32 s74, s{S_SLAB}, 6')
    a(f's_add_u32 s74, s74, s{S_GB}')
    a(f's_add_u32 s74, s74, {G_FX1}')
    a(f's_lshl_b32 s{S_A}, s{S_SLAB}, 14')
    a(f's_lshl_b32 s75, s{S_Q}, 14')
    a(f's_add_u32 s{S_A}, s{S_A}, s{S_GB}')
    a(f's_add_u32 s{S_A}, s{S_A}, {G_X1}')
    a('s_waitcnt lgkmcnt(0)')
    a('s_barrier')
    poll('v1', 's74', '0xff')
    def x1_lines(kh):
        l = []
        for hf in range(2):
            l += [f's_add_u32 m0, s75, {XT + kh*8192 + hf*4096}', f's_add_u32 s30, s{S_A}, {kh*8192 + hf*4096}']
            l += [f'buffer_load_dwordx4 v3, s[8:11], s30 offen offset:{i*1024} sc1 lds' for i in range(4)]
        return l
    for l in x1_lines(0): a(l)
    HJOIN = L('hjoin')
    a(f's_branch {HJOIN}')

    a.label(CW1)
    a.vm = []
    sk = L('cp')
    a(f's_cmp_lg_u32 s{S_WAVE}, 1\ns_cbranch_scc1 {sk}')
    a('s_getpc_b64 s[26:27]')
    a.label(f'{name}_pc')
    a(f's_sub_u32 s26, s26, {name}_pc-{name}')
    a('s_subb_u32 s27, s27, 0')
    a(f's_lshl_b32 s28, s{S_I}, 11')
    a('v_lshl_add_u32 v10, v2, 7, s28')
    a(f'v_min_u32 v10, {name}_end-{name}, v10')
    a('s_mov_b64 exec, 0xffff')
    a('global_load_dword v255, v10, s[26:27]')
    a('s_mov_b64 exec, -1')
    a.label(sk)
    common_consts()
    ACC = 16; FR = [64, 80, 96, 228]; AX = 112; AW = 116
    a(f's_lshr_b32 s30, s{S_Q}, 1')
    a(f's_and_b32 s31, s{S_Q}, 1')
    a('s_lshl_b32 s27, s30, 5')
    a('v_add_u32 v10, s27, v4')
    a('v_lshlrev_b32 v10, 7, v10')
    a('v_bfe_u32 v11, v4, 1, 3')
    for ks in range(4):
        a(f'v_add_u32 v12, {2*ks}, v5')
        a('v_xor_b32 v12, v12, v11')
        a(f'v_lshl_add_u32 v{AX+ks}, v12, 4, v10')
    a('v_lshl_add_u32 v10, v5, 3, v8')
    a('v_lshlrev_b32 v10, 7, v10')
    a('v_lshl_add_u32 v10, v9, 3, v10')
    a('v_and_b32 v11, 1, v7')
    a('s_lshl_b32 s27, s31, 1')
    a('v_add_u32 v11, s27, v11')
    a('v_and_b32 v12, 2, v8')
    a('v_xor_b32 v11, v11, v12')
    a(f'v_lshl_add_u32 v{AW}, v11, 5, v10')
    a(f'v_add_u32 v{AW}, {WL}, v{AW}')
    a(f'v_xor_b32 v{AW+1}, 32, v{AW}')
    a(f'v_add_u32 v{AW+1}, 512, v{AW+1}')
    a(f'v_add_u32 v{AW+2}, {2*WSLOT}, v{AW}')
    a(f'v_add_u32 v{AW+3}, {2*WSLOT}, v{AW+1}')
    a('s_waitcnt lgkmcnt(0)')
    if 'xs' in opt.split(','):
        srd(12, P_X, 0x200000)
        a(f's_lshl_b32 s26, s{S_I}, 16')
        a(f's_lshl_b32 s27, s{S_Q}, 14')
        a('s_add_u32 s26, s26, s27')
        a('v_lshlrev_b32 v10, 7, v2')
        a('buffer_load_dword v252, v10, s[12:15], s26 offen')
        a('s_add_u32 s26, s26, 8192')
        a('buffer_load_dword v252, v10, s[12:15], s26 offen')
    srd(16, P_DBG, 256)
    srd(8, P_WS, WS_USED)
    EA = 120
    a('s_lshl_b32 s27, s31, 7')
    a(f's_add_u32 s27, s27, {CSUM}')
    a(f'v_lshl_add_u32 v{EA}, v5, 4, s27')
    a(f'v_lshl_add_u32 v{EA+1}, v4, 2, s27')
    a('s_lshl_b32 s27, s30, 7')
    a(f's_add_u32 s27, s27, {RST}')
    a(f'v_lshl_add_u32 v{EA+2}, v4, 2, s27')
    a(f'v_lshl_add_u32 v{EA+3}, v5, 4, s27')
    a('v_lshrrev_b32 v10, 4, v4')
    a(f'v_mul_u32_u24 v10, {HDS}, v10')
    a('v_lshl_add_u32 v10, v5, 8, v10')
    a(f'v_lshl_add_u32 v{EA+4}, v6, 4, v10')
    a(f's_lshl_b32 s26, s{S_I}, 1')
    a('s_add_u32 s26, s26, s30')
    a('s_lshl_b32 s26, s26, 10')
    a(f's_mul_i32 s27, s31, {2*HDS}')
    a('s_add_u32 s26, s26, s27')
    a(f's_add_u32 s{S_A}, s26, s{S_QKV}')
    a(f'v_mov_b32 v{EA+5}, {NONL}')
    def rd_list(n):
        c, ks = n >> 2, n & 3; b = FR[n % 4]
        slot = c % NSLOT
        l = [f'ds_read_b128 {vr(b,4)}, v{AX+ks} offset:{XL + c*8192}']
        for j in range(3):
            for sec in range(2):
                l.append(f'ds_read_b64_tr_b16 {vr(b+4+4*j+2*sec,2)}, v{AW+sec+(2 if slot == 2 else 0)} offset:{(slot&1)*WSLOT + j*8192 + ks*2048}')
        return l
    T.stamp('p1.c_pre')
    fixwait('fixb0', 12)
    a('s_barrier')
    T.stamp('c_b0'); T.stamp('p1.c_b0')
    for l in rd_list(0): a(l)
    for l in rd_list(1): a(l)
    CV = 128; RV = 160; SC = 192
    for n in range(32):
        c, ks = n >> 2, n & 3
        b = FR[n % 4]
        z = lambda r, k: '0' if n == 0 else vr(r, k)
        if n == 30: a('s_waitcnt lgkmcnt(0)')
        elif ks == 2 or n == 31:
            a('s_waitcnt lgkmcnt(0)')
            T.stamp(f'p1.c_w{c+1}')
            a('s_barrier')
            T.stamp(f'p1.c_b{c+1}')
        elif ks == 0: a('s_waitcnt lgkmcnt(7)')
        elif ks == 1: a('s_waitcnt lgkmcnt(14)')
        rl = rd_list(n + 2) if n + 2 < 32 else []
        if ks == 0: rl = rl + rd_list(n + 3)
        if ks == 1: rl = []
        if n == 31:
            rl = [f'ds_read_b128 v[12:15], v{EA+5}', f'ds_read_b32 v{SC}, v{EA+2}', f'ds_read_b32 v224, v{EA+2} offset:256', f'ds_read_b32 v{SC+2}, v{EA+1} offset:512'] + \
                 [f'ds_read_b128 {vr(CV+16*j+4*q,4)}, v{EA} offset:{256*j+32*q}' for j in range(2) for q in range(4)]
        if n == 31:
            rl += [f'ds_read_b128 {vr(RV+16*j+4*q,4)}, v{EA+3} offset:{256*j+32*q}' for j in range(2) for q in range(4)]
        k = (len(rl) + 2) // 3
        a(f'v_mfma_f32_32x32x16_bf16 {vr(ACC,16)}, {vr(b+4,4)}, {vr(b,4)}, {z(ACC,16)}')
        for l in rl[0:k]: a(l)
        a(f'v_mfma_f32_32x32x16_bf16 {vr(ACC+16,16)}, {vr(b+8,4)}, {vr(b,4)}, {z(ACC+16,16)}')
        for l in rl[k:2*k]: a(l)
        a(f'v_mfma_f32_32x32x16_bf16 {vr(ACC+32,16)}, {vr(b,4)}, {vr(b+12,4)}, {z(ACC+32,16)}')
        for l in rl[2*k:]: a(l)
    T.stamp('c_gemm')
    a('s_waitcnt lgkmcnt(8)')
    a(f'v_readfirstlane_b32 s{S_MODE}, v14')
    a(f'v_readfirstlane_b32 s{S_NON}, v12')
    a(f'v_readfirstlane_b32 s{S_NON+1}, v13')
    a(f'v_mul_f32 v{SC+4}, {H(QSCALE)}, v{SC}')
    a(f'v_mul_f32 v226, {H(QSCALE)}, v224')
    PK = 200
    lines = []
    for j in range(2):
        sc = SC + 4 if j == 0 else SC
        for p in range(8):
            lines.append(f'v_pk_mul_f32 {vr(CV+16*j+2*p,2)}, {vr(CV+16*j+2*p,2)}, {vr(sc,2)} op_sel_hi:[1,0]')
        for o in range(2):
            for p in range(4*o, 4*o+4):
                A_ = ACC+16*j+2*p
                lines.append(f'v_pk_fma_f32 {vr(A_,2)}, {vr(A_,2)}, {vr(226 if j == 0 else 224,2)}, {vr(CV+16*j+2*p,2)} op_sel_hi:[1,0,1]')
            for p in range(4*o, 4*o+4):
                A_ = ACC+16*j+2*p
                lines.append(f'v_cvt_pk_bf16_f32 v{PK+8*j+p}, v{A_}, v{A_+1}')
            lines.append(f's_add_u32 s26, s{S_A}, {j*0x10000 + o*HDS}')
            lines.append(f'buffer_store_dwordx4 {vr(PK+8*j+4*o,4)}, v3, s[8:11], s26 offen')
    lines.append('s_waitcnt lgkmcnt(0)')
    lines.append(f's_add_u32 s26, s{S_A}, 0x20000')
    for p in range(8):
        lines.append(f'v_pk_mul_f32 {vr(RV+2*p,2)}, {vr(RV+2*p,2)}, {vr(SC+2,2)} op_sel_hi:[1,0]')
    for o in range(2):
        for p in range(4*o, 4*o+4):
            A_ = ACC+32+2*p
            lines.append(f'v_pk_fma_f32 {vr(A_,2)}, {vr(A_,2)}, {vr(RV+16+2*p,2)}, {vr(RV+2*p,2)}')
        for p in range(4*o, 4*o+4):
            A_ = ACC+32+2*p
            lines.append(f'v_cvt_pk_bf16_f32 v{PK+16+p}, v{A_}, v{A_+1}')
        lines.append(f'buffer_store_dwordx4 {vr(PK+16+4*o,4)}, v{EA+4}, s[8:11], s26 offen offset:{512*o}')
    st2(lines)
    T.stamp('p1.c_st')

    Q, SA, SB, O, P, KB, VB, AV = 12, 20, 36, 52, 84, 92, 100, 116
    XR = 120
    a('v_lshlrev_b32 v10, 8, v5')
    a('v_lshl_add_u32 v10, v6, 4, v10')
    a('v_and_b32 v11, 11, v6')
    a('v_cmp_eq_u32 vcc, 0, v11')
    a(f'v_mov_b32 v11, {CONST + 16}')
    a(f'v_mov_b32 v{SA}, {CONST}')
    a(f'v_cndmask_b32 v11, v11, v{SA}, vcc')
    a(f'v_add_u32 v{SA}, 4, v6')
    a(f'v_and_b32 v{SA}, 8, v{SA}')
    a(f'v_lshl_add_u32 v11, v{SA}, 4, v11')
    a('v_cmp_gt_u32 vcc, 16, v4')
    AK, AVI, PCV = AV + 1, AV + 2, AV + 3
    a(f'v_add_u32 v{SA}, {KV + 4096}, v10')
    a(f'v_cndmask_b32 v{AV}, v11, v{SA}, vcc')
    a(f'v_mov_b32 v{SA}, 0x2000')
    a(f'v_cndmask_b32 v{AVI}, 0, v{SA}, vcc')
    a(f'v_add_u32 v{AK}, {KV}, v3')
    a(f'v_mov_b32 v{PCV}, 0')
    a(f's_lshl_b32 s27, s{S_Q}, 2')
    a(f's_add_u32 s27, s27, {PRG}')
    a('v_mov_b32 v129, s27')
    a(f's_lshl_b32 s28, s{S_CT}, 13')
    a(f's_lshl_b32 s27, s{S_Q}, 11')
    a('s_add_u32 s28, s28, s27')
    a(f's_add_u32 s{S_U}, s28, s{S_HD}')
    a(f's_mul_i32 s{S_B}, s{S_CT}, 7')
    a(f's_add_u32 s{S_B}, s{S_B}, s{S_Q}')
    a(f's_lshl_b32 s{S_B}, s{S_B}, 15')
    a(f's_add_u32 s{S_B}, s{S_B}, {W3F}')
    flag_prep()
    a(f's_lshl_b32 s26, s{S_I}, 3')
    a(f's_add_u32 s26, s26, s{S_GB}')
    a(f's_add_u32 s26, s26, {G_FQ}')
    a('s_waitcnt vmcnt(0) lgkmcnt(0)')
    a('s_barrier')
    sk = L('qf')
    a(f's_cmp_lg_u32 s{S_WAVE}, 0\ns_cbranch_scc1 {sk}')
    st2(flag_lines('s26'))
    a.label(sk)
    T.stamp('c_pub')
    srd(16, P_X, 0x200000)
    a(f's_lshl_b32 s33, s{S_X}, 4')
    a(f's_add_u32 s33, s33, s{S_SLAB}')
    a('s_lshl_b32 s33, s33, 14')
    a(f's_lshl_b32 s27, s{S_CT}, 7')
    a('s_add_u32 s33, s33, s27')
    a('v_lshlrev_b32 v128, 10, v6')
    a('v_lshl_add_u32 v128, v7, 3, v128')
    def rdK(t): a(f'ds_read_b128 {vr(KB+4*(t&1),4)}, v{AK} offset:{(t>>2)*8192 + (t&3)*1024}')
    def rdV(t, f): a(f'ds_read_b128 {vr(VB+8*(t&1)+4*f,4)}, v{AV} offset:{(t&3)*1024+f*512}')
    def mfS(n):
        S = SA if (n & 1) == 0 else SB
        if 'noqk' in opt and n > 1: return
        a(f'v_mfma_f32_32x32x16_bf16 {vr(S,16)}, {vr(KB+4*((n>>1)&1),4)}, {vr(Q+4*(n&1),4)}, 0')
    def mfO(n, f):
        Ou = O + 16*(n & 1)
        if 'nopv' in opt and n > 1: return
        if 'pv16' in opt:
            a(f'v_mfma_f32_16x16x32_bf16 {vr(Ou+8,4)}, {vr(VB+8*((n>>1)&1)+4*f,4)}, {vr(P+4*f,4)}, {"0" if n < 2 and f == 0 else vr(Ou+8,4)}')
            return
        c_ = '0' if (n < 2 and f == 0) else vr(Ou,16)
        a(f'v_mfma_f32_32x32x16_bf16 {vr(Ou,16)}, {vr(VB+8*((n>>1)&1)+4*f,4)}, {vr(P+4*f,4)}, {c_}')
    a(f's_lshl_b32 s26, s{S_CT}, 5')
    a(f's_lshl_b32 s27, s{S_Q}, 3')
    a('s_add_u32 s26, s26, s27')
    a(f's_add_u32 s26, s26, s{S_GB}')
    a(f's_add_u32 s26, s26, {G_FQ}')
    poll('v1', 's26', '1')
    a(f'buffer_load_dwordx4 {vr(Q,4)}, v3, s[8:11], s{S_U} offen sc1')
    a(f'buffer_load_dwordx4 {vr(Q+4,4)}, v3, s[8:11], s{S_U} offen offset:1024 sc1')
    a('s_waitcnt vmcnt(0)')
    fixwait('fixa0', 20)
    a('s_barrier')
    T.stamp('c_kv0'); T.stamp('ap.A0'); T.stamp('att.c0'); T.stamp('att.r0', True)
    rdK(0); rdK(1); rdV(0, 0); rdV(0, 1)
    a('s_waitcnt lgkmcnt(3)')
    mfS(0)
    def att_step(n, head, tail=False):
        t = n >> 1; g = n if head else n + 16
        S = SA if (n & 1) == 0 else SB
        def ex2(i, extra=None):
            if extra: a(extra)
            a(f'v_exp_f32 v{S+i}, v{S+i}')
            a(f'v_exp_f32{"_e64" if extra else ""} v{S+i+1}, v{S+i+1}')
        cv = lambda j: a(f'v_cvt_pk_bf16_f32 v{P+j}, v{S+2*j}, v{S+2*j+1}')
        even = (n & 1) == 0
        loop = not head and not tail
        def cj():
            i = cjobs.pop(0)
            if i % 4 == 0: a(f's_add_u32 s30, s{S_W4}, {((i >> 2) - 1)*4096}')
            a(f'buffer_load_dwordx4 {vr(W3+4*i,4)}, v3, s[8:11], s30 offen offset:{(i&3)*1024} sc1')
        def xr(k): a(f'buffer_load_dwordx2 {vr(XR+2*k,2)}, v128, s[16:19], s33 offen offset:{32*k}')
        V = OP.get('dsv', 'b')
        if head and n == 0: a('s_waitcnt lgkmcnt(0)\ns_nop 0')
        if V == 'c' and not even: rdK(t + 2)
        mfS(g + 1)
        if V == 'a' and not even: rdK(t + 2)
        if head and n in (11, 15): a(f'ds_read_b32 v131, v130 offset:{0 if n == 11 else 4}')
        if tail and even: cj()
        ex2(0, 's_waitcnt lgkmcnt(0)' if even else None)
        if head and n == 12:
            lp, ok = L('kw'), L('ko')
            a.label(lp)
            a('v_cmp_gt_u32 vcc, 4, v131')
            a(f's_cbranch_vccz {ok}')
            a('ds_read_b32 v131, v130')
            a('s_waitcnt lgkmcnt(0)')
            a(f's_branch {lp}')
            a.label(ok)
        ex2(2)
        cv(0)
        ex2(4, f'v_add_u32 v{AV}, v{AVI}, v{AV}' if n % 8 == 5 else (f'v_add_u32 v{PCV}, 2, v{PCV}' if n == 15 and not tail else None))
        cv(1)
        if V == 'c' and even: rdV(t + 1, 0)
        if g > 0: mfO(g - 1, 1)
        if V in 'ab' and even: rdV(t + 1, 0)
        if V == 'b' and even: rdV(t + 1, 1); rdK(t + 2)
        if tail and not even: cj()
        if n == 1 and loop: a(f'ds_write_b32 v129, v{PCV}')
        ex2(6)
        cv(2); ex2(8); cv(3)
        if V == 'c' and even: rdV(t + 1, 1)
        if n == 15 and not tail: a(f'v_add_u32 v{AK}, 0x4000, v{AK}')
        ex2(10)
        mfO(g, 0)
        if V == 'a' and even: rdV(t + 1, 1)
        if tail and not even: cj()
        if tail and even and n < 8: xr(n // 2)
        if n == 15 and loop: a('s_add_u32 s34, s34, 1\ns_cmp_lt_u32 s34, 6')
        cv(4)
        ex2(12); cv(5); ex2(14); cv(6); cv(7)
    a(f'v_mov_b32 v130, {KVC}')
    a('.p2align 3')
    for n in range(16): att_step(n, True)
    lp, ok = L('kw'), L('ko')
    a('s_waitcnt lgkmcnt(0)')
    a.label(lp)
    a('v_cmp_gt_u32 vcc, 4, v131')
    a(f's_cbranch_vccz {ok}')
    a('ds_read_b32 v131, v130 offset:4')
    a('s_waitcnt lgkmcnt(0)')
    a(f's_branch {lp}')
    a.label(ok)
    a('s_mov_b32 s34, 0')
    T.stamp('ap.head')
    ALP = L('alp')
    a('.p2align 6')
    a.label(ALP)
    for n in range(16): att_step(n, False)
    a(f's_cbranch_scc1 {ALP}')
    T.stamp('ap.loop')
    lp = L('cpw')
    a(f'v_mov_b32 v130, {PCN}')
    a.label(lp)
    a('ds_read_b32 v131, v130')
    a('s_waitcnt lgkmcnt(0)')
    a('v_cmp_gt_u32 vcc, 8, v131')
    a(f's_cbranch_vccnz {lp}')
    cjobs = list(range(8, 32))
    a('.p2align 3')
    for n in range(16): att_step(n, False, True)
    a('s_waitcnt lgkmcnt(0)')
    mfO(127, 1)
    T.stamp('c_attn_end'); T.stamp('ap.end'); T.stamp('att.c1'); T.stamp('att.r1', True)
    a('s_barrier')
    if 'slowsafe' in opt:
        sk = L('ss')
        a(f's_cmp_lg_u32 s{S_MODE}, 0\ns_cbranch_scc1 {sk}')
        for i in range(6): a('s_sleep 127')
        a.label(sk)
    a(f's_xor_b32 s29, s{S_X}, {HGX}')
    a('s_lshl_b32 s29, s29, 2')
    a(f's_add_u32 s29, s29, s{S_RB}')
    a(f's_lshl_b32 s26, s{S_CT}, 21')
    a(f's_lshl_b32 s27, s{S_Q}, 16')
    a('s_add_u32 s26, s26, s27')
    a('s_lshl_b32 s27, s29, 9')
    a('s_add_u32 s26, s26, s27')
    a(f's_add_u32 s26, s26, {GB + G_O}')
    a('s_add_u32 s27, s26, 32768')
    a(f's_lshl_b32 s28, s{S_CT}, 14')
    a(f's_lshl_b32 s30, s{S_Q}, 12')
    a('s_add_u32 s28, s28, s30')
    a('s_lshl_b32 s30, s29, 7')
    a('s_add_u32 s28, s28, s30')
    a(f's_add_u32 s28, s28, {F_O}')
    a(f'v_lshrrev_b32 v{KB}, 4, v4')
    a(f'v_lshlrev_b32 v{KB}, 14, v{KB}')
    a(f'v_lshl_add_u32 v{KB}, v5, 8, v{KB}')
    a(f'v_lshl_add_u32 v{KB}, v6, 4, v{KB}')
    FB, FBR = L('fb'), L('fbr')
    for u in range(2):
        Ou = O + 16*u
        a(f'v_max3_f32 v{SA+u}, |v{Ou}|, |v{Ou+1}|, |v{Ou+2}|')
        a(f'v_max3_f32 v{SA+u}, |v{Ou+3}|, |v{Ou+4}|, v{SA+u}')
        a(f'v_max3_f32 v{SA+u}, |v{Ou+5}|, |v{Ou+6}|, v{SA+u}')
    a(f'v_max3_f32 v{SA}, |v{O+7}|, |v{O+23}|, v{SA}')
    a(f'v_max_f32 v{SA}, v{SA}, v{SA+1}')
    a(f'v_mul_f32 v{SA}, {H(2.0**-60)}, v{SA}')
    a(f'v_max3_f32 v{SA}, v{O+8}, v{O+24}, v{SA}')
    a(f'v_min_f32 v{SA+1}, v{O+8}, v{O+24}')
    a(f'v_cmp_nle_f32 vcc, v{SA}, v{SA+2}' if False else f'v_mov_b32 v{SA+2}, {H(2.0**60)}')
    a(f'v_cmp_nle_f32 vcc, v{SA}, v{SA+2}')
    a(f'v_cmp_u_f32 s[30:31], v{O+8}, v{O+24}')
    a(f'v_cmp_ngt_f32 s[32:33], v{SA+1}, v{SA+3}' if False else f'v_mov_b32 v{SA+3}, {H(2.0**-60)}')
    a(f'v_cmp_ngt_f32 s[32:33], v{SA+1}, v{SA+3}')
    a('s_or_b64 vcc, vcc, s[30:31]')
    a('s_or_b64 vcc, vcc, s[32:33]')
    if force_fallback: a('s_mov_b64 vcc, -1')
    if 'nofb' in opt: a('s_mov_b64 vcc, 0')
    a(f's_cbranch_vccnz {FB}')
    a.label(FBR)
    for u in range(2):
        Ou = O + 16*u
        a(f'v_rcp_f32 v{SA+2*u}, v{Ou+8}')
    for u in range(2):
        Ou = O + 16*u
        for p in range(4): a(f'v_pk_mul_f32 {vr(Ou+2*p,2)}, {vr(Ou+2*p,2)}, {vr(SA+2*u,2)} op_sel_hi:[1,0]')
        for j in range(4): a(f'v_cvt_pk_bf16_f32 v{P+4*u+j}, v{Ou+2*j}, v{Ou+2*j+1}')
    a(f'buffer_store_dwordx4 {vr(P,4)}, v{KB}, s[8:11], s26 offen sc1')
    a(f'buffer_store_dwordx4 {vr(P+4,4)}, v{KB}, s[8:11], s27 offen sc1')
    a('s_mov_b32 s39, s28')
    a('s_waitcnt vmcnt(2)')

    GC0 = 12; AWA, AWB = 14, 15; HB = 16; MU, R1 = 24, 25; TMP = 26
    ACC = 32; ACT = 48; WF = 128; NWS = 2; CV = 112; LEAD = int(OP.get('lead', 7)); LX = int(OP.get('lx', 4))
    S_TA, S_SA, S_FA = 33, 34, 35
    a(f'v_add_u32 v{AWA}, {WA}, v3')
    a(f'v_add_u32 v{AWB}, {WB}, v3')
    def wread(ph, s, nt):
        b = WF + 16*(s % NWS) + 4*nt
        if ph == 2 and s == 15: return f'ds_read_b128 {vr(b,4)}, v{AWB} offset:{W1X - WB + nt*1024}'
        if ph == 2 and s >= 8: return f'ds_read_b128 {vr(b,4)}, v3 offset:{LOW + (s-8)*4096 + nt*1024}'
        if ph == 3 and s < NW2L: return f'ds_read_b128 {vr(b,4)}, v{AWB} offset:{W2L - WB + s*4096 + nt*1024}'
        return f'ds_read_b128 {vr(b,4)}, v{AWB if ph == 2 else AWA} offset:{s*4096 + nt*1024}'
    def wpre(ph):
        for s in range(NWS):
            for nt in range(4): a(wread(ph, s, nt))
    def gemm64(ph, ld, fill=None, zero=False, bar=None):
        T.stamp(f'g.p{ph}_go')
        for s in range(LEAD): ld(s)
        fill = list(fill or [])
        nl = LEAD
        for s in range(16):
            b = WF + 16*(s % NWS)
            a.vwait(('a', s), f'lgkmcnt({4 if s < 15 else 0})')
            if s in (0, 8): T.stamp(f'g.p{ph}_s{s}')
            if s == bar: a('s_barrier')
            for nt in range(4):
                c_ = '0' if (s == 0 and zero) else vr(ACC+4*nt,4)
                a(f'v_mfma_f32_16x16x32_bf16 {vr(ACC+4*nt,4)}, {vr(b+4*nt,4)}, {vr(ACT+4*(s%12),4)}, {c_}')
                if s + NWS < 16: a(wread(ph, s + NWS, nt))
                if (nt == 1 or (nt == 3 and s < LX)) and nl < 16 and nl < s + 12: ld(nl); nl += 1
                if s >= 4 and fill: a(fill.pop(0))
        assert not fill
    def ld_plain(s):
        if s and s % 4 == 0: a('s_add_u32 s29, s29, 4096')
        a.vissue(f'buffer_load_dwordx4 {vr(ACT+4*(s%12),4)}, v3, s[8:11], s29 offen offset:{(s&3)*1024} sc1', ('a', s))
    def xsum_lines(r0, r1, t0, t1):
        l = []
        for sw in ('v_permlane16_swap_b32', 'v_permlane32_swap_b32'):
            l += [f'v_mov_b32 v{t0}, v{r0}', f'v_mov_b32 v{t1}, v{r1}', f'{sw} v{r0}, v{t0}', f'{sw} v{r1}, v{t1}',
                  f'v_add_f32 v{r0}, v{r0}, v{t0}', f'v_add_f32 v{r1}, v{r1}, v{t1}']
        return l
    def addrs(act, tile, stats, flag):
        a(f's_lshl_b32 s26, s{S_SLAB}, 14')
        a(f's_add_u32 s26, s26, s{S_GB}')
        if act is not None: a(f's_add_u32 s29, s26, {act}')
        a(f's_lshl_b32 s27, s{S_CT}, 11')
        a(f's_add_u32 s{S_TA}, s26, s27')
        a(f's_add_u32 s{S_TA}, s{S_TA}, {tile}')
        a(f's_lshl_b32 s27, s{S_CT}, 3')
        a(f's_add_u32 s27, s27, s{S_GB}')
        if stats is not None:
            a(f's_lshl_b32 s{S_SA}, s{S_SLAB}, 10')
            a(f's_add_u32 s{S_SA}, s{S_SA}, s27')
            a(f's_add_u32 s{S_SA}, s{S_SA}, {stats}')
        a(f's_lshl_b32 s{S_FA}, s{S_SLAB}, 6')
        a(f's_add_u32 s{S_FA}, s{S_FA}, s27')
        a(f's_add_u32 s{S_FA}, s{S_FA}, {flag}')
    def pack16(dst):
        for nt in range(4):
            a(f'v_cvt_pk_bf16_f32 v{dst+2*nt}, v{ACC+4*nt}, v{ACC+4*nt+1}')
            a(f'v_cvt_pk_bf16_f32 v{dst+2*nt+1}, v{ACC+4*nt+2}, v{ACC+4*nt+3}')
    def tile_st(src):
        return [f'buffer_store_dwordx4 {vr(src,4)}, v3, s[8:11], s{S_TA} offen', f'buffer_store_dwordx4 {vr(src+4,4)}, v3, s[8:11], s{S_TA} offen offset:1024']
    def stats_lines(t):
        l = [f'v_pk_add_f32 {vr(t,2)}, {vr(ACC,2)}, {vr(ACC+2,2)}', f'v_pk_mul_f32 {vr(t+2,2)}, {vr(ACC,2)}, {vr(ACC,2)}',
             f'v_pk_fma_f32 {vr(t+2,2)}, {vr(ACC+2,2)}, {vr(ACC+2,2)}, {vr(t+2,2)}']
        for p in range(2, 8):
            l += [f'v_pk_add_f32 {vr(t,2)}, {vr(t,2)}, {vr(ACC+2*p,2)}', f'v_pk_fma_f32 {vr(t+2,2)}, {vr(ACC+2*p,2)}, {vr(ACC+2*p,2)}, {vr(t+2,2)}']
        l += [f'v_add_f32 v{t}, v{t}, v{t+1}', f'v_add_f32 v{t+1}, v{t+2}, v{t+3}']
        l += xsum_lines(t, t+1, t+2, t+3)
        l += ['s_mov_b64 exec, 0xffff', f'buffer_store_dwordx2 {vr(t,2)}, v{TMP+5}, s[8:11], s{S_SA} offen']
        return l
    def gelu_pk(regs, tmp):
        n = len(regs)
        for i, r in enumerate(regs): a(f'v_pk_mul_f32 {vr(tmp+2*i,2)}, {vr(r,2)}, {vr(r,2)}')
        for i, r in enumerate(regs): a(f'v_pk_fma_f32 {vr(tmp+2*i,2)}, {vr(tmp+2*i,2)}, {sr(S_C1,2)}, {vr(GC0,2)}')
        for i, r in enumerate(regs): a(f'v_pk_mul_f32 {vr(tmp+2*i,2)}, {vr(tmp+2*i,2)}, {vr(r,2)}')
        for i in range(2*n): a(f'v_exp_f32 v{tmp+i}, v{tmp+i}')
        for i, r in enumerate(regs): a(f'v_pk_add_f32 {vr(tmp+2*i,2)}, {vr(tmp+2*i,2)}, {sr(S_ONE,2)}')
        for i in range(2*n): a(f'v_rcp_f32 v{tmp+i}, v{tmp+i}')
        for i, r in enumerate(regs): a(f'v_pk_mul_f32 {vr(r,2)}, {vr(r,2)}, {vr(tmp+2*i,2)}')

    SH, PF3, STV, CSA_ = 96, 100, 101, 102
    S_AB, S_P2, S_SL, S_M3 = 36, 37, 38, 40
    wpre(1)
    for nt in range(4):
        for p in range(2):
            a(f'v_lshlrev_b32 v{ACC+4*nt+2*p}, 16, v{XR+2*nt+p}')
            a(f'v_and_b32 v{ACC+4*nt+2*p+1}, 0xffff0000, v{XR+2*nt+p}')
    addrs(G_O, G_H, G_ST1, G_FH)
    a(f's_mov_b32 s{S_AB}, s26')
    a(f'v_lshlrev_b32 v{TMP+5}, 6, v6')
    a(f'v_lshl_add_u32 v{STV}, v7, 4, v{TMP+5}')
    a(f'v_lshlrev_b32 v{CSA_}, 4, v7')
    a(f'v_mov_b32 v{GC0}, {H(GELU_C0)}\nv_mov_b32 v{GC0+1}, {H(GELU_C0)}')
    a(f's_lshl_b32 s{S_P2}, s{S_SLAB}, 6')
    a(f's_add_u32 s{S_P2}, s{S_P2}, s{S_GB}')
    a(f's_add_u32 s{S_P2}, s{S_P2}, {G_FH}')
    a(f's_lshl_b32 s{S_SL}, s{S_SLAB}, 10')
    a(f's_add_u32 s{S_SL}, s{S_SL}, s{S_GB}')
    a(f's_add_u32 s{S_SL}, s{S_SL}, {G_ST1}')
    a(f's_lshl_b32 s27, s{S_X}, 4')
    a(f's_add_u32 s27, s27, s{S_SLAB}')
    a(f's_bfe_u32 s28, s{S_CT}, 0x10001')
    a('s_cmp_eq_u32 s28, 1')
    a('s_cselect_b32 s28, 0, 15')
    a(f's_cmp_eq_u32 s{S_SLAB}, s28')
    a(f's_cselect_b32 s{S_U+1}, 1, 0')
    a('s_add_u32 s28, s27, 1')
    a('s_and_b32 s28, s28, 126')
    a('s_cmp_eq_u32 s28, 0')
    a(f's_cselect_b32 s{S_U+1}, 0, s{S_U+1}')
    a(f's_cmp_eq_u32 s{S_U+1}, 1')
    a(f's_cselect_b32 s{S_M2}, 0, s{S_MODE}')
    a(f's_cmp_eq_u32 s{S_SLAB}, 0')
    a(f's_mov_b32 s{S_U+2}, {0x200000 + G_FHX}')
    a(f's_cselect_b32 s{S_U+2}, {(G_FHX + 1024 - 0x200000) & 0xffffffff}, s{S_U+2}')
    a(f's_add_u32 s{S_U+2}, s{S_U+2}, s{S_GB}')
    a(f's_lshl_b32 s28, s{S_CT}, 7')
    a(f's_add_u32 s{S_U+2}, s{S_U+2}, s28')
    a(f's_mov_b32 s{S_M3}, 0xccff33')
    a('s_cmp_eq_u32 s27, 0')
    a(f's_cselect_b32 s{S_M3}, 0xccff00, s{S_M3}')
    a('s_cmp_eq_u32 s27, 127')
    a(f's_cselect_b32 s{S_M3}, 0x00ff33, s{S_M3}')
    a(f's_mov_b32 s{S_M3+1}, 0')
    a('s_lshl_b32 s26, s27, 4')
    a(f's_lshl_b32 s28, s{S_SLAB}, 6')
    a(f's_add_u32 s28, s28, {G_FHH - 64}')
    a(f'v_add_u32 v{PF3}, s28, v1')
    a('v_lshrrev_b32 v10, 3, v2')
    a(f's_sub_u32 s27, s{S_SLAB}, 1')
    a('v_add_u32 v10, s27, v10')
    a('v_cmp_lt_u32 vcc, 15, v10')
    a('v_and_b32 v10, 7, v2')
    a('v_lshl_add_u32 v10, v7, 3, v10')
    a('v_lshlrev_b32 v10, 7, v10')
    a(f'v_add_u32 v10, {G_FHX}, v10')
    a(f'v_cndmask_b32 v{PF3}, v{PF3}, v10, vcc')
    for gi, d in enumerate((-1, 1, -2, 2)):
        a('v_add_u32 v10, s26, v6')
        a(f'v_add_u32 v10, {d}, v10')
        a('v_bfe_u32 v11, v10, 4, 4')
        a('v_lshlrev_b32 v11, 14, v11')
        a(f'v_lshrrev_b32 v{TMP}, 8, v10')
        a(f'v_lshl_add_u32 v11, v{TMP}, 21, v11')
        a(f'v_and_b32 v{TMP}, 15, v10')
        a(f'v_lshl_add_u32 v11, v{TMP}, 4, v11')
        a('v_lshl_add_u32 v11, v7, 8, v11')
        a('v_cmp_gt_u32 vcc, 0x800, v10')
        a(f'v_mov_b32 v{TMP}, 0x70000000')
        a(f'v_cndmask_b32 v{SH+gi}, v{TMP}, v11, vcc')
    NV = 104
    def fl(soff): return ['s_mov_b64 exec, 1', f'buffer_store_dwordx2 v[{NV}:{NV+1}], off, s[8:11], {soff}', 's_mov_b64 exec, -1']
    a(f'v_mov_b32 v{NV}, s{S_NON}\nv_mov_b32 v{NV+1}, s{S_NON+1}')
    a('s_waitcnt vmcnt(0)')
    for l in fl('s39'): a(l + (' sc1' if l.startswith('buffer') else ''))
    T.stamp('c_pub0'); T.stamp('ap.A16')
    fixwait('fixa17', 45)
    a('s_barrier')
    a.vm = ['fl']
    T.stamp('p1_poll'); T.stamp('ap.A17')
    gemm64(1, ld_plain)
    T.stamp('p1_gemm'); T.stamp('g.p1_gemm')
    pack16(HB)
    pre2 = [wread(2, s_, nt) for s_ in range(NWS) for nt in range(4)] + [f'ds_read_b128 {vr(CV+4*nt,4)}, v{CSA_} offset:{CS1 + 64*nt}' for nt in range(4)]
    st2(tile_st(HB) + stats_lines(ACT) + ['s_mov_b64 exec, -1', 's_barrier'] + pre2 + ['s_waitcnt vmcnt(0)'] + fl(f's{S_FA}'))
    T.stamp('pub1'); T.stamp('g.pub1')
    a(f's_add_u32 s29, s{S_AB}, {G_H}')
    a(f's_add_u32 s{S_TA}, s{S_TA}, {(G_HH - G_H) & 0xffffffff}')
    a(f's_add_u32 s{S_FA}, s{S_FA}, {G_FHH - G_FH}')
    poll('v1', f's{S_P2}', '0xff')
    T.stamp('p2_poll')
    a.vissue(f'buffer_load_dwordx4 {vr(TMP,4)}, v{STV}, s[8:11], s{S_SL} offen sc1', 'st')
    a('s_waitcnt lgkmcnt(0)')
    fill = [f'v_add_f32 v{TMP}, v{TMP}, v{TMP+2}', f'v_add_f32 v{TMP+1}, v{TMP+1}, v{TMP+3}'] + xsum_lines(TMP, TMP+1, TMP+2, TMP+3) + [
        f'v_mul_f32 v{MU}, {H(-1/512)}, v{TMP}', f'v_mul_f32 v{TMP+1}, {H(1/512)}, v{TMP+1}',
        f'v_fma_f32 v{TMP+1}, -v{MU}, v{MU}, v{TMP+1}', f'v_max_f32 v{TMP+1}, 0, v{TMP+1}',
        f'v_add_f32 v{TMP+2}, {H(1e-5)}, v{TMP+1}', f'v_rsq_f32 v{TMP}, v{TMP+2}', f'v_mul_f32 v{TMP+2}, v{TMP}, v{TMP}',
        f'v_fmaak_f32 v{TMP+2}, v{TMP+2}, v{TMP+1}, {H(1e-5)}', f'v_rsq_f32 v{TMP+2}, v{TMP+2}', f'v_mul_f32 v{TMP+2}, v{TMP+2}, v{TMP}',
        f'v_mul_f32 v{TMP+3}, v{TMP+2}, v{MU}', f'v_mul_f32 v{MU}, v{MU}, v{TMP}'] + [f'v_mul_f32 v{CV+i}, v{TMP+3}, v{CV+i}' for i in range(16)]
    gemm64(2, ld_plain, fill, zero=True)
    T.stamp('p2_gemm'); T.stamp('g.p2_gemm')
    for p in range(8): a(f'v_pk_fma_f32 {vr(ACC+2*p,2)}, {vr(ACC+2*p,2)}, {vr(TMP+2,2)}, {vr(CV+2*p,2)} op_sel_hi:[1,0,1]')
    gelu_pk([ACC+2*p for p in range(8)], ACT)
    pack16(ACT+16)
    st2(tile_st(ACT+16), S_M2)
    a('s_barrier')
    wpre(3)
    for nt in range(4):
        for p in range(2):
            a(f'v_lshlrev_b32 v{ACC+4*nt+2*p}, 16, v{HB+2*nt+p}')
            a(f'v_and_b32 v{ACC+4*nt+2*p+1}, 0xffff0000, v{HB+2*nt+p}')
    for p in range(8): a(f'v_pk_fma_f32 {vr(ACC+2*p,2)}, {vr(ACC+2*p,2)}, {vr(TMP,2)}, {vr(MU,2)} op_sel_hi:[1,0,0]')
    a('s_waitcnt vmcnt(0)')
    st2(fl(f's{S_FA}'))
    sk = L('hx')
    a(f's_cmp_eq_u32 s{S_U+1}, 0\ns_cbranch_scc1 {sk}')
    for l in fl(f's{S_U+2}'): a(l + (' sc1' if l.startswith('buffer') else ''))
    a.label(sk)
    T.stamp('pub2'); T.stamp('g.pub2')
    a(f's_add_u32 s{S_TA}, s{S_TA}, {G_X1 - G_HH}')
    a(f's_add_u32 s{S_SA}, s{S_SA}, {G_ST2 - G_ST1}')
    a(f's_add_u32 s{S_FA}, s{S_FA}, {G_FX1 - G_FHH}')
    poll(f'v{PF3}', f's{S_GB}', f's[{S_M3}:{S_M3+1}]')
    T.stamp('p3_poll')
    def ld_shift(s):
        if s % 4 == 0: a(f's_mov_b32 s29, {GB + G_HH + (s>>2)*4096}')
        a.vissue(f'buffer_load_dwordx4 {vr(ACT+4*(s%12),4)}, v{SH+(s>>2)}, s[8:11], s29 offen offset:{(s&3)*1024} sc1', ('a', s))
    gemm64(3, ld_shift)
    T.stamp('p3_gemm'); T.stamp('g.p3_gemm')
    pack16(ACT+16)
    st2(tile_st(ACT+16) + stats_lines(ACT) + ['s_barrier', 's_waitcnt vmcnt(0)'] + fl(f's{S_FA}'))
    a(f's_lshl_b32 s26, s{S_Q}, 13')
    a(f'v_add_u32 v{AWB}, s26, v{AWB}')
    for i in range(8): a(f'ds_read_b128 {vr(W3+4*i,4)}, v{AWB} offset:{i*1024}')
    for nt in range(4):
        for p in range(2):
            a(f'v_lshlrev_b32 v{ACT+4*nt+2*p}, 16, v{HB+2*nt+p}')
            a(f'v_and_b32 v{ACT+4*nt+2*p+1}, 0xffff0000, v{HB+2*nt+p}')
    for p in range(8): a(f'v_pk_add_f32 {vr(ACT+2*p,2)}, {vr(ACT+2*p,2)}, {vr(ACC+2*p,2)}')
    a(f's_add_u32 s26, s26, {W3L}')
    a(f's_cmp_eq_u32 s{S_Q}, 3')
    a(f's_cselect_b32 s26, {RES3}, s26')
    a('v_xor_b32 v10, v6, v7')
    a('v_lshlrev_b32 v10, 4, v10')
    a('v_lshl_add_u32 v10, v6, 8, v10')
    a('v_add_u32 v10, s26, v10')
    for nt in range(4):
        a(f'v_xor_b32 v{TMP+nt}, {64*nt}, v10')
        a(f'ds_write_b128 v{TMP+nt}, {vr(ACT+4*nt,4)}')
    a('s_waitcnt lgkmcnt(0)')
    T.stamp('pub3'); T.stamp('g.pub3')
    p4_prologue()

    a.label(HJOIN)
    a.vm = []
    A4 = 24; C3 = 56; XF = 72; T4 = 88; PKO = 120
    flag_prep()
    a('s_waitcnt vmcnt(0)')
    a('s_barrier')
    T.stamp('p4_go'); T.stamp('g.p4go'); T.stamp('p4.go')
    h4, j4 = L('help'), L('join')
    a(f's_cmp_eq_u32 s{S_WAVE}, 3')
    a(f's_cbranch_scc1 {h4}')
    WS_ = [128+4*k for k in range(8)] + [96+4*k for k in range(6)]
    def rdX(i):
        a(f'ds_read_b128 {vr(XF+4*(i&3),4)}, v14 offset:{(i&1)*32768 + (i>>1)*512}')
    def ldW4(f):
        a(f's_add_u32 s30, s{S_W4}, {(f >> 2)*4096}')
        a.vissue(f'buffer_load_dwordx4 {vr(W4+4*f,4)}, v3, s[8:11], s30 offen offset:{(f&3)*1024} sc1', 'w4')
    def ldW3(f):
        a(f's_add_u32 s30, s{S_B}, {(f >> 2)*4096}')
        a.vissue(f'buffer_load_dwordx4 {vr(WS_[f % 14],4)}, v3, s[8:11], s30 offen offset:{(f&3)*1024} sc1', ('w', f))
    def epi_scalar(mt, dst):
        b = T4 + 4*mt; A = A4 + 16*mt; t = T4 + 8
        l = []
        for g in range(4):
            R = [A+4*g+i for i in range(4)]; Tt = [t+4*(g&1)+i for i in range(4)]
            l += [f'v_fmac_f32 v{r}, v{b}, v{C3+4*g+i}' for i, r in enumerate(R)]
            l += [f'v_mul_f32 v{x}, v{r}, v{r}' for x, r in zip(Tt, R)]
            l += [f'v_fma_f32 v{x}, v{x}, v{b+2}, v{b+1}' for x in Tt]
            l += [f'v_mul_f32 v{x}, v{x}, v{r}' for x, r in zip(Tt, R)]
            l += [f'v_exp_f32 v{x}, v{x}' for x in Tt]
            l += [f'v_fma_f32 v{x}, v{x}, v{b+3}, v{b+3}' for x in Tt]
            l += [f'v_rcp_f32 v{x}, v{x}' for x in Tt]
            l += [f'v_mul_f32 v{r}, v{r}, v{x}' for x, r in zip(Tt, R)]
            l += [f'v_cvt_pk_bf16_f32 v{dst+2*g}, v{R[0]}, v{R[1]}', f'v_cvt_pk_bf16_f32 v{dst+2*g+1}, v{R[2]}, v{R[3]}']
        return l
    def only(kind, lines):
        sk = L('on')
        a(f's_cmp_lt_u32 s{S_WAVE}, 4')
        a(f's_cbranch_scc{1 if kind == "B" else 0} {sk}')
        for l in lines: a(l)
        a.label(sk)
    def flag_issue(sbase, tag, mask):
        a(f's_mov_b64 exec, {mask}')
        a.vissue(f'buffer_load_dwordx2 v[16:17], v1, s[8:11], {sbase} offen sc1', tag)
        a('s_mov_b64 exec, -1')
    def flag_check(sbase, tag, mask):
        a.vwait(tag)
        bk_ = L('bk')
        a(f's_mov_b64 exec, {mask}')
        a(f'v_cmp_ne_u64 vcc, {sr(S_NON,2)}, v[16:17]')
        a('s_mov_b64 exec, -1')
        a(f's_cbranch_vccz {bk_}')
        keep = list(a.vm)
        poll('v1', sbase, mask)
        a.vm = keep
        a.label(bk_)
    for i in range(3): rdX(i)
    a('s_setprio 2')
    only('B', ['s_setprio 1'] + x1_lines(1) + ['s_waitcnt vmcnt(0)', 's_barrier'])
    for i in range(64):
        ks, mt = i >> 1, i & 1
        if i == 28:
            only('A', ['s_barrier'])
        if i == 60:
            a(f'ds_read_b128 {vr(T4,4)}, v16 offset:{ST4}')
            a(f'ds_read_b128 {vr(T4+4,4)}, v16 offset:{ST4+512}')
        if i == 2: T.stamp('p4.first')
        if i == 32: T.stamp('p4.half')
        if i + 3 < 64: rdX(i + 3)
        lg = f'lgkmcnt({min(3, 63 - i) + (2 if i in (60, 61, 62) else 0)})'
        if mt == 0 and ks >= 8: a.vwait(('w', ks), lg)
        else: a(f's_waitcnt {lg}')
        c_ = '0' if ks == 0 else vr(A4+16*mt,16)
        a(f'v_mfma_f32_32x32x16_bf16 {vr(A4+16*mt,16)}, {vr(WS_[ks % 14],4)}, {vr(XF+4*(i&3),4)}, {c_}')
        if mt == 0 and 1 <= ks < 7: ldW3(7 + ks)
        if mt == 1 and 4 <= ks and ks + 10 < 32: ldW3(ks + 10)
        if mt == 1 and 22 <= ks < 26: ldW4(ks - 22)
    a('s_setprio 3')
    T.stamp('p4_gemm'); T.stamp('p4.pass1')
    def epi_packed(mt, dst):
        b = T4 + 4*mt; A = A4 + 16*mt; t = 128
        l = [f'v_mov_b32 v96, v{b+1}', f'v_mov_b32 v98, v{b+3}']
        l += [f'v_pk_fma_f32 {vr(A+2*p,2)}, {vr(C3+2*p,2)}, {vr(b,2)}, {vr(A+2*p,2)} op_sel_hi:[1,0,1]' for p in range(8)]
        l += [f'v_pk_mul_f32 {vr(t+2*p,2)}, {vr(A+2*p,2)}, {vr(A+2*p,2)}' for p in range(8)]
        l += [f'v_pk_fma_f32 {vr(t+2*p,2)}, {vr(t+2*p,2)}, {vr(b+2,2)}, v[96:97] op_sel_hi:[1,0,0]' for p in range(8)]
        l += [f'v_pk_mul_f32 {vr(t+2*p,2)}, {vr(t+2*p,2)}, {vr(A+2*p,2)}' for p in range(8)]
        l += [f'v_exp_f32 v{t+k}, v{t+k}' for k in range(16)]
        l += [f'v_pk_fma_f32 {vr(t+2*p,2)}, {vr(t+2*p,2)}, v[98:99], v[98:99] op_sel_hi:[1,0,0]' for p in range(8)]
        l += [f'v_rcp_f32 v{t+k}, v{t+k}' for k in range(16)]
        l += [f'v_pk_mul_f32 {vr(A+2*p,2)}, {vr(A+2*p,2)}, {vr(t+2*p,2)}' for p in range(8)]
        l += [f'v_cvt_pk_bf16_f32 v{dst+p}, v{A+2*p}, v{A+2*p+1}' for p in range(8)]
        return l
    a('s_nop 9')
    for mt, dst, sb in ((0, PKO, 's26'), (1, 104, 's27')):
        only('A', epi_scalar(mt, dst))
        only('B', epi_packed(mt, dst))
        st = [f'buffer_store_dwordx4 {vr(dst,4)}, v3, s[8:11], {sb} offen', f'buffer_store_dwordx4 {vr(dst+4,4)}, v3, s[8:11], {sb} offen offset:1024']
        if mt == 0:
            st2(st)
        else:
            T.stamp('p4.epi1')
            st2(st)
            flag_issue('s32', 'fA', '0x47')
            st2(['s_waitcnt vmcnt(0)'] + flag_lines('s35'))
    a('s_setprio 0')
    a(f's_branch {j4}')
    a.label(h4)
    for k in range(4): a(f'buffer_load_dwordx4 {vr(24+4*k,4)}, v3, s[8:11], s28 offen offset:{1024*k} sc1')
    a('v_lshrrev_b32 v40, 2, v2')
    a('v_lshl_add_u32 v40, v9, 4, v40')
    a('v_lshlrev_b32 v40, 4, v40')
    a('v_cmp_eq_u32 s[74:75], 1, v9')
    a(f'v_cmp_eq_u32 s[{S_A}:{S_B}], 2, v9')
    a('v_cmp_eq_u32 vcc, 3, v9')
    a('s_waitcnt vmcnt(0) lgkmcnt(0)')
    for k in range(4): a(f'v_pk_add_f32 {vr(24+4*k,2)}, {vr(24+4*k,2)}, {vr(26+4*k,2)}')
    for perm in ('[1,0,3,2]', '[2,3,0,1]'):
        for k in range(4):
            for e in range(2): a(f'v_add_f32_dpp v{24+4*k+e}, v{24+4*k+e}, v{24+4*k+e} quad_perm:{perm} row_mask:0xf bank_mask:0xf')
    for k, m in ((1, 's[74:75]'), (2, f's[{S_A}:{S_B}]'), (3, 'vcc')):
        a(f'v_cndmask_b32 v24, v24, v{24+4*k}, {m}')
        a(f'v_cndmask_b32 v25, v25, v{25+4*k}, {m}')
    a(f'v_mul_f32 v24, {H(-1/512)}, v24')
    a(f'v_mul_f32 v25, {H(1/512)}, v25')
    a('v_fma_f32 v25, -v24, v24, v25')
    a('v_max_f32 v25, 0, v25')
    a(f'v_add_f32 v28, {H(1e-5)}, v25')
    a('v_rsq_f32 v29, v28')
    a('v_sqrt_f32 v27, v28')
    a(f'v_mul_f32 v25, {H(GELU_C0)}, v29')
    a('v_mul_f32 v26, v29, v29')
    a('v_mul_f32 v26, v26, v29')
    a(f'v_mul_f32 v26, {H(GELU_C1)}, v26')
    a(f'ds_write_b128 v40, v[24:27] offset:{ST4}')
    a('s_waitcnt lgkmcnt(0)')
    a('s_barrier')
    for f in range(4): ldW4(f)
    poll('v1', 's32', '0x47', sleep=8)
    a(f'v_mov_b32 v16, s{S_NON}\nv_mov_b32 v17, s{S_NON+1}')
    a.label(j4)
    a.vm = []
    T.stamp('pub4'); T.stamp('p4.pub')

    RS_ = 120
    HAS = [56, 60, 64, 68, 128, 132, 136, 140, 72, 76, 80, 84]
    ACC5 = lambda nt, mt: (24 if mt == 0 else 88) + 16*nt
    early = [2, 3, 4, 5, 12, 13, 0, 1]; late = [6, 7, 8, 9, 10, 11]
    order = [(mt, ks) for ks in early for mt in range(2)] + [(0, ks) for ks in late] + [(1, ks) for ks in late]
    def ldA(i):
        mt, ks = order[i]
        a(f's_add_u32 s30, s31, {mt*114688 + (ks//4)*4096}')
        a.vissue(f'buffer_load_dwordx4 {vr(HAS[i % 12],4)}, v3, s[8:11], s30 offen offset:{(ks%4)*1024} sc1', ('h', i))
    flag_check('s32', 'none', '0x47')
    T.stamp('p5_poll'); T.stamp('p4.p5poll')
    for i in range(6): ldA(i)
    a(f'ds_read_b128 {vr(RS_,4)}, v20')
    a(f'ds_read_b128 {vr(RS_+4,4)}, v21')
    def wr_list(mt):
        l = []
        for nt in range(2):
            for q in range(4):
                oct_ = 4*nt + q
                l.append([f'v_xor_b32 v{18+(q&1)}, {oct_*32 + mt*65536}, v13',
                          f'ds_write_b128 v{18+(q&1)}, {vr(ACC5(nt,mt)+4*q,4)} offset:{RED + oct_*1024}'])
        return l
    wl = wr_list(0)
    nxt = 6
    for i, (mt, ks) in enumerate(order):
        a.vwait(('h', i), 'lgkmcnt(0)' if i in (0,) else '')
        if i == 23: a('s_barrier')
        if i in (0, 8, 16, 22): T.stamp(f'p4.p5_{i}')
        for nt in range(2):
            A = ACC5(nt, mt)
            c_ = '0' if i < 2 else vr(A,16)
            a(f'v_mfma_f32_32x32x16_bf16 {vr(A,16)}, {vr(W4+8*ks+4*nt,4)}, {vr(HAS[i % 12],4)}, {c_}')
        if i == 7: flag_issue('s32', 'fB', '0x38')
        if i == 10: flag_check('s32', 'fB', '0x38')
        lim = 16 if i < 10 else 28
        for _ in range(3 if i >= 10 else 2):
            if nxt < lim and nxt <= i + 11:
                ldA(nxt); nxt += 1
        if i >= 24 and wl:
            for g in (wl.pop(0), wl.pop(0)):
                for l in g: a(l)
    assert nxt == 28 and not wl
    T.stamp('p5_gemm'); T.stamp('p4.p5gemm')
    for g in wr_list(1):
        for l in g: a(l)
    RD = 144; SUM = RS_
    a('s_waitcnt lgkmcnt(0)')
    a('s_barrier')
    T.stamp('p4.E1')
    for mt in range(2):
        for src in range(8):
            a(f'ds_read_b128 {vr(RD+32*mt+4*src,4)}, v{22+mt} offset:{RED + src*8192}')
    for mt in range(2):
        for src in range(8):
            if src % 2 == 0: a(f's_waitcnt lgkmcnt({14-8*mt-src})')
            for p in range(2): a(f'v_pk_add_f32 {vr(SUM+4*mt+2*p,2)}, {vr(SUM+4*mt+2*p,2)}, {vr(RD+32*mt+4*src+2*p,2)}')
        for p in range(2): a(f'v_cvt_pk_bf16_f32 v{24+2*mt+p}, v{SUM+4*mt+2*p}, v{SUM+4*mt+2*p+1}')
        a(f'buffer_store_dwordx2 {vr(24+2*mt,2)}, v12, s[16:19], s{72+mt} offen')
    if diag: a('s_waitcnt vmcnt(0)')
    fixwait('fixend', 70)
    T.stamp('end'); T.stamp('end_rt', True)
    T.flush(P_WS, 0, S_WAVE, TS)
    if 'dbgout' in opt:
        sk = L('do')
        a(f's_lshl_b32 s26, s{S_WAVE}, 8')
        a('s_or_b32 s26, s26, s2')
        a(f's_cmp_lg_u32 s26, 77\ns_cbranch_scc1 {sk}')
        srd(16, P_DBG, 256)
        a('s_mov_b64 exec, 1')
        for k, nm in enumerate(['c_b0', 'c_gemm', 'c_pub', 'c_kv0', 'c_attn_end', 'p1_poll', 'pub1', 'pub2', 'pub3', 'p4_go', 'pub4', 'p5_poll', 'p5_gemm', 'end_rt']):
            a(f's_sub_u32 s26, s{76+T.names.index(nm)}, s76')
            a('v_mov_b32 v1, s26')
            a(f'buffer_store_dword v1, off, s[16:19], 0 offset:{8+4*k}')
        a.label(sk)
    a('s_endpgm')

    for (lab, lines, back) in a.cold:
        a.label(lab)
        a('s_nop 7')
        for l in lines: a(l)
        a('s_nop 7')
        a(f's_branch {back}')
    NM = 128
    a.label(FB)
    a('s_nop 15')
    a(f's_add_u32 s30, s{S_HD}, 0x10000')
    a(f's_add_u32 s31, s{S_HD}, 0x20000')
    a(f'v_mov_b32 v{NM}, 0xff800000\nv_mov_b32 v{NM+16}, 0xff800000')
    a('s_mov_b32 s32, 0')
    l1 = L('fb1')
    a.label(l1)
    a('s_add_u32 s33, s30, s32')
    a(f'buffer_load_dwordx4 {vr(KB+4,4)}, v3, s[8:11], s33 offen sc1')
    a('s_waitcnt vmcnt(0)')
    for u, S in ((0, SA), (1, SB)):
        a(f'v_mfma_f32_32x32x16_bf16 {vr(S,16)}, {vr(KB+4,4)}, {vr(Q+4*u,4)}, 0')
    for u, S in ((0, SA), (1, SB)):
        for i in range(8): a(f'v_max3_f32 v{NM+16*u}, v{S+2*i}, v{S+2*i+1}, v{NM+16*u}')
    a('s_add_u32 s32, s32, 1024')
    a('s_cmp_lt_u32 s32, 0x10000')
    a(f's_cbranch_scc1 {l1}')
    for u in range(2):
        m = NM + 16*u
        a(f'v_mov_b32 v{m+1}, v{m}')
        a(f'v_permlane32_swap_b32 v{m}, v{m+1}')
        a(f'v_max_f32 v{m}, v{m}, v{m+1}')
        a(f'v_sub_f32 v{m}, 0, v{m}')
        for i in range(1, 16): a(f'v_mov_b32 v{m+i}, v{m}')
    for i in range(32): a(f'v_mov_b32 v{O+i}, 0')
    a('v_and_b32 v10, 27, v4')
    a('v_cmp_eq_u32 vcc, 16, v10')
    a('v_mov_b32 v10, 0x3f803f80')
    for i in range(8): a(f'v_cndmask_b32 v{VB+i}, 0, v10, vcc')
    a('v_lshlrev_b32 v10, 8, v5')
    a('v_lshl_add_u32 v10, v6, 4, v10')
    a('s_mov_b32 s32, 0')
    a('s_mov_b32 s34, 0xffff\ns_mov_b32 s35, 0xffff')
    l2 = L('fb2')
    a.label(l2)
    a('s_add_u32 s33, s30, s32')
    a(f'buffer_load_dwordx4 {vr(KB+4,4)}, v3, s[8:11], s33 offen sc1')
    a('s_add_u32 s33, s31, s32')
    a('s_mov_b64 exec, s[34:35]')
    a(f'buffer_load_dwordx4 {vr(VB,4)}, v10, s[8:11], s33 offen sc1')
    a(f'buffer_load_dwordx4 {vr(VB+4,4)}, v10, s[8:11], s33 offen offset:512 sc1')
    a('s_mov_b64 exec, -1')
    a('s_waitcnt vmcnt(0)')
    for u, S in ((0, SA), (1, SB)):
        a(f'v_mfma_f32_32x32x16_bf16 {vr(S,16)}, {vr(KB+4,4)}, {vr(Q+4*u,4)}, {vr(NM+16*u,16)}')
    for u, S in ((0, SA), (1, SB)):
        for i in range(16): a(f'v_exp_f32 v{S+i}, v{S+i}')
        for j in range(8): a(f'v_cvt_pk_bf16_f32 v{P+j}, v{S+2*j}, v{S+2*j+1}')
        for f in range(2):
            a(f'v_mfma_f32_32x32x16_bf16 {vr(O+16*u,16)}, {vr(VB+4*f,4)}, {vr(P+4*f,4)}, {vr(O+16*u,16)}')
        a('s_nop 15')
    a('s_add_u32 s32, s32, 1024')
    a('s_cmp_lt_u32 s32, 0x10000')
    a(f's_cbranch_scc1 {l2}')
    a('s_nop 15')
    a(f's_branch {FBR}')
    a.label(END)
    a('s_endpgm')
    return a, LDS_SIZE
```

```python
from asmlib import *
from layout import *
import struct
def f2u(x): return struct.unpack('<I', struct.pack('<f', x))[0]
def H(x): return hex(f2u(x))

LDS_SIZE = 160 * 1024
XL = 0; WL = 65536; WSLOT = 24576; NSLOT = 3
CSUM = WL + NSLOT * WSLOT
RST = CSUM + 1024
LOW = 0; PREP = 0; CONST = 28672; KV = 32768; WA = 32768; WB = 98304
PRG = CONST + 64; PCN = CONST + 96; KVC = CONST + 100
W1X = WB + 32768; W2L = WB + 36864; NW2L = 7; CS1 = CONST; C3L = CONST + 256
W3L = WB; RES3 = W3L + 24576; NONL = RST + 512; ST4 = CONST + 2048; PKB = 0
XT = WA
RED = 0

GELU_C0 = -2.0 * 0.7978845608028654 * 1.4426950408889634
GELU_C1 = GELU_C0 * 0.044715

S_WAVE, S_X, S_I, S_RB, S_CT, S_R16 = 20, 21, 22, 23, 24, 25
P_X, P_WQKV, P_WO, P_W1, P_W2, P_W3, P_W4, P_OUT, P_DBG, P_WS = 36, 38, 40, 44, 46, 48, 50, 52, 54, 56
S_NON = 58; S_SPIN = 60; S_MODE = 61; S_C1 = 62; S_ONE = 64
S_QKV, S_HD, S_RHO, S_Q, S_SLAB, S_M2 = 66, 67, 68, 69, 70, 71
S_U = 72
S_GB = 3; S_J = 4; S_W4 = 5; S_A = 6; S_B = 7; S_C0 = 42
W3 = 128; W4 = 144

def gen_mega(name='mega_kernel', diag=False, force_safe=False, force_fallback=False, sel=None, opt=''):
    a = Asm()
    T = Stamper(a, 76, diag); a.T = T; T.sel = sel; T.rt = ('rt' in opt.split(','))
    uid = [0]
    def L(s): uid[0] += 1; return f'L_{s}{uid[0]}'
    def srd(base, p, size):
        a(f's_mov_b32 s{base}, s{p}\ns_mov_b32 s{base+1}, s{p+1}\ns_mov_b32 s{base+2}, {hex(size)}\ns_mov_b32 s{base+3}, 0x20000')
    END = f'{name}_end'
    OP = dict(kv.split('=') for kv in opt.split(',') if '=' in kv)
    HGX = int(OP.get('hgx', 5))
    HF_ = OP.get('hf', 'sc1').replace('+', ' '); WF_ = OP.get('wf', 'sc1').replace('+', ' ')
    NR3 = 20
    JF = '' if 'jplain' in opt else 'sc1'
    KVNT = 'nt ' if 'kvnt' in opt else ''

    a(f'.globl {name}\n.p2align 8\n.type {name},@function')
    a.label(name)
    a(f's_cmp_ge_u32 s2, 256\ns_cbranch_scc1 {END}')
    a('s_load_dwordx16 s[36:51], s[0:1], 0')
    a('s_load_dwordx4 s[52:55], s[0:1], 64')
    a('s_load_dwordx2 s[56:57], s[0:1], 80')
    a('v_lshrrev_b32 v1, 6, v0')
    a('v_and_b32 v2, 63, v0')
    a(f'v_readfirstlane_b32 s{S_WAVE}, v1')
    a(f's_and_b32 s{S_X}, s2, 7')
    a(f's_lshr_b32 s{S_I}, s2, 3')
    a(f's_lshr_b32 s{S_RB}, s{S_I}, 3')
    a(f's_and_b32 s{S_CT}, s{S_I}, 7')
    a(f's_and_b32 s{S_Q}, s{S_WAVE}, 3')
    if diag:
        for i in range(24): a(f's_mov_b32 s{76+i}, 0')
        T.stamp('start_rt', True); T.stamp('start')
    if 'fix' in opt:
        a('s_memrealtime s[98:99]')
    def fixwait(tag, us):
        if tag not in opt.split(','): return
        lp = L('fx')
        a.label(lp)
        a('s_memrealtime s[100:101]')
        a('s_waitcnt lgkmcnt(0)')
        a('s_sub_u32 s100, s100, s98')
        a(f's_cmp_lt_u32 s100, {us*100}')
        a(f's_cbranch_scc1 {lp}')
    CW1 = L('cw1')
    a(f's_cmp_lt_u32 s{S_WAVE}, 4')
    a(f's_cbranch_scc1 {CW1}')

    def common_consts():
        a('v_lshlrev_b32 v3, 4, v2')
        a('v_and_b32 v4, 31, v2')
        a('v_lshrrev_b32 v5, 5, v2')
        a('v_and_b32 v6, 15, v2')
        a('v_lshrrev_b32 v7, 4, v2')
        a('v_bfe_u32 v8, v2, 2, 2')
        a('v_and_b32 v9, 3, v2')
        a('v_lshlrev_b32 v1, 3, v2')
        a(f's_lshl_b32 s{S_R16}, s{S_RB}, 2')
        a(f's_add_u32 s{S_SLAB}, s{S_R16}, s{S_Q}')
        a(f's_lshl_b32 s{S_GB}, s{S_X}, 21')
        a(f's_add_u32 s{S_GB}, s{S_GB}, {GB}')
        a(f's_mul_i32 s{S_QKV}, s{S_X}, {QKVG}')
        a(f's_mul_i32 s{S_HD}, s{S_RB}, {HDS}')
        a(f's_add_u32 s{S_HD}, s{S_HD}, s{S_QKV}')
        a(f's_cmp_gt_u32 s{S_WAVE}, 3')
        a(f's_subb_u32 s{S_J}, s{S_WAVE}, 0')
        a(f's_mul_i32 s{S_W4}, s{S_CT}, 229376')
        a(f's_mul_i32 s26, s{S_WAVE}, 28672')
        a(f's_add_u32 s{S_W4}, s{S_W4}, s26')
        a(f's_add_u32 s{S_W4}, s{S_W4}, {W4F}')
        a(f's_mov_b32 s{S_C1}, {H(GELU_C1)}\ns_mov_b32 s{S_C1+1}, {H(GELU_C1)}')
        a(f's_mov_b32 s{S_ONE}, 1.0\ns_mov_b32 s{S_ONE+1}, 1.0')

    def get_nonce(sleep=0):
        lp, done = L('non'), L('nond')
        srd(16, P_DBG, 256)
        a(f's_mov_b32 s{S_SPIN}, 0')
        a.label(lp)
        if sleep: a(f's_sleep {sleep}')
        a('buffer_load_dwordx2 v[10:11], off, s[16:19], 0 sc1')
        a(f's_add_u32 s{S_SPIN}, s{S_SPIN}, 1')
        a('s_waitcnt vmcnt(0)')
        a(f'v_readfirstlane_b32 s{S_NON}, v10')
        a(f'v_readfirstlane_b32 s{S_NON+1}, v11')
        a(f's_cmp_gt_u32 s{S_SPIN}, 0x20000')
        a(f's_cbranch_scc1 {done}')
        a(f's_cmp_eq_u32 s{S_NON}, 0')
        a(f's_cbranch_scc1 {lp}')
        a.label(done)
        a.vm = []

    def get_nonce_s(sleep=0):
        lp, done = L('non'), L('nond')
        a(f's_mov_b32 s{S_SPIN}, 0')
        a.label(lp)
        if sleep: a(f's_sleep {sleep}')
        a(f's_load_dwordx2 s[{S_NON}:{S_NON+1}], s[{P_DBG}:{P_DBG+1}], 0 glc')
        a(f's_add_u32 s{S_SPIN}, s{S_SPIN}, 1')
        a(f's_cmp_gt_u32 s{S_SPIN}, 0x20000')
        a('s_waitcnt lgkmcnt(0)')
        a(f's_cbranch_scc1 {done}')
        a(f's_cmp_eq_u32 s{S_NON}, 0')
        a(f's_cbranch_scc1 {lp}')
        a.label(done)

    def poll(voff, soff, execmask=None, sleep=0):
        lp, done = L('poll'), L('polld')
        if execmask: a(f's_mov_b64 exec, {execmask}')
        a(f's_mov_b32 s{S_SPIN}, 0')
        a.label(lp)
        if sleep: a(f's_sleep {sleep}')
        a(f'buffer_load_dwordx2 v[10:11], {voff}, s[8:11], {soff} offen sc1')
        a(f's_add_u32 s{S_SPIN}, s{S_SPIN}, 1')
        a(f's_cmp_gt_u32 s{S_SPIN}, 0x20000')
        a('s_waitcnt vmcnt(0)')
        a(f's_cbranch_scc1 {done}')
        a(f'v_cmp_ne_u64 vcc, {sr(S_NON,2)}, v[10:11]')
        a(f's_cbranch_vccnz {lp}')
        a.label(done)
        if execmask: a('s_mov_b64 exec, -1')
        a.vm = []

    def st2(lines, mode=S_MODE):
        sk, dn = L('sf'), L('sd')
        a(f's_cmp_eq_u32 s{mode}, 0')
        a(f's_cbranch_scc1 {sk}')
        for l in lines: a(l)
        a.label(dn)
        a.cold.append((sk, [l + ' sc1' if l.startswith('buffer_store') else l for l in lines], dn))
        a.vm += ['st'] * sum(l.startswith('buffer_store') for l in lines)
    a.cold = []

    def flag_lines(soff):
        return ['s_mov_b64 exec, 1', f'buffer_store_dwordx2 v[10:11], off, s[8:11], {soff}', 's_mov_b64 exec, -1']
    def flag_prep():
        a(f'v_mov_b32 v10, s{S_NON}\nv_mov_b32 v11, s{S_NON+1}')
    def flag_sc1(soff):
        flag_prep()
        for l in flag_lines(soff): a(l + (' sc1' if l.startswith('buffer') else ''))
        a.vm.append('fl')

    def xcc_load(vreg, vt):
        a(f's_lshl_b32 s26, s{S_X}, 12')
        a(f's_add_u32 s26, s26, {F_XCC}')
        a(f'v_lshlrev_b32 v{vt}, 7, v4')
        a(f'buffer_load_dwordx2 {vr(vreg,2)}, v{vt}, s[8:11], s26 offen sc1')
    def calc_mode(vreg):
        a('s_getreg_b32 s34, hwreg(HW_REG_XCC_ID)')
        a('s_and_b32 s34, s34, 15')
        a(f's_or_b32 s34, s34, s{S_NON}')
        a(f's_mov_b32 s35, s{S_NON+1}')
        a(f'v_cmp_ne_u64 vcc, s[34:35], {vr(vreg,2)}')
        a('s_cmp_eq_u64 vcc, 0')
        a(f's_cselect_b32 s{S_MODE}, 1, 0')
        a(f's_cmp_eq_u32 s{S_NON}, 0')
        a(f's_cselect_b32 s{S_MODE}, 0, s{S_MODE}')
        if force_safe: a(f's_mov_b32 s{S_MODE}, 0')
    def xcc_publish(v0, v1):
        a('s_getreg_b32 s27, hwreg(HW_REG_XCC_ID)')
        a('s_and_b32 s27, s27, 15')
        a(f's_or_b32 s27, s27, s{S_NON}')
        a(f'v_mov_b32 v{v0}, s27\nv_mov_b32 v{v1}, s{S_NON+1}')
        a(f's_lshl_b32 s26, s{S_X}, 12')
        a(f's_lshl_b32 s27, s{S_I}, 7')
        a('s_add_u32 s26, s26, s27')
        a(f's_add_u32 s26, s26, {F_XCC}')
        a('s_mov_b64 exec, 1')
        a(f'buffer_store_dwordx2 v[{v0}:{v1}], off, s[8:11], s26 sc1')
        a('s_mov_b64 exec, -1')

    def unit_decode(su):
        l3, l4, dn = L('u3'), L('u4'), L('ud')
        a('s_mov_b32 s15, 0x20000')
        a(f's_cmp_ge_u32 s{su}, 832\ns_cbranch_scc1 {l4}')
        a(f's_cmp_ge_u32 s{su}, 384\ns_cbranch_scc1 {l3}')
        a(f's_lshr_b32 s32, s{su}, 7')
        a(f's_bfe_u32 s33, s{su}, 0x40003')
        a(f's_and_b32 s34, s{su}, 7')
        a('s_lshl_b32 s27, s33, 15')
        a('s_lshl_b32 s35, s34, 7')
        a('s_add_u32 s27, s27, s35')
        a('s_lshl_b32 s28, s32, 19')
        a('s_lshl_b32 s35, s34, 16')
        a('s_add_u32 s28, s28, s35')
        a('s_lshl_b32 s35, s33, 12')
        a('s_add_u32 s28, s28, s35')
        a(f's_add_u32 s28, s28, {WOF}')
        a('s_min_u32 s26, s32, 1')
        a('s_cmp_eq_u32 s32, 1')
        a(f's_cselect_b64 s[12:13], s[{P_W1}:{P_W1+1}], s[{P_W2}:{P_W2+1}]')
        a('s_cmp_eq_u32 s32, 0')
        a(f's_cselect_b64 s[12:13], s[{P_WO}:{P_WO+1}], s[12:13]')
        a('s_mov_b32 s14, 0x80000')
        a(f's_branch {dn}')
        a.label(l3)
        a(f's_sub_u32 s32, s{su}, 384')
        a('s_mul_hi_u32 s33, s32, 0x0924924a')
        a('s_mul_i32 s34, s33, 28')
        a('s_sub_u32 s34, s32, s34')
        a(f's_mul_i32 s27, s33, {32*3584}')
        a('s_lshl_b32 s35, s34, 7')
        a('s_add_u32 s27, s27, s35')
        a('s_lshl_b32 s28, s34, 16')
        a('s_lshl_b32 s35, s33, 11')
        a('s_add_u32 s28, s28, s35')
        a(f's_add_u32 s28, s28, {W3F}')
        a('s_mov_b32 s26, 2')
        a(f's_mov_b64 s[12:13], s[{P_W3}:{P_W3+1}]')
        a('s_mov_b32 s14, 0x1c0000')
        a(f's_branch {dn}')
        a.label(l4)
        a(f's_sub_u32 s32, s{su}, 832')
        a('s_lshr_b32 s33, s32, 3')
        a('s_and_b32 s34, s32, 7')
        a('s_lshl_b32 s27, s33, 15')
        a('s_lshl_b32 s35, s34, 7')
        a('s_add_u32 s27, s27, s35')
        a('s_mul_i32 s28, s34, 229376')
        a('s_lshl_b32 s35, s33, 12')
        a('s_add_u32 s28, s28, s35')
        a(f's_add_u32 s28, s28, {W4F}')
        a('s_mov_b32 s26, 3')
        a(f's_mov_b64 s[12:13], s[{P_W4}:{P_W4+1}]')
        a('s_mov_b32 s14, 0x1c0000')
        a.label(dn)

    def p4_prologue():
        C3 = 56
        a('v_lshrrev_b32 v15, 4, v4')
        a('v_lshlrev_b32 v14, 14, v15')
        a('v_lshl_add_u32 v14, v5, 8, v14')
        a('v_lshl_add_u32 v14, v6, 4, v14')
        a(f'v_add_u32 v14, {XT}, v14')
        a('v_mul_u32_u24 v15, 0xe000, v15')
        a('v_lshl_add_u32 v15, v5, 8, v15')
        a('v_lshl_add_u32 v15, v6, 4, v15')
        a('v_lshlrev_b32 v16, 4, v4')
        a(f's_lshl_b32 s26, s{S_J}, 7')
        a(f's_add_u32 s26, s26, {C3L}')
        a('v_lshl_add_u32 v17, v5, 4, s26')
        for q in range(4): a(f'ds_read_b128 {vr(C3+4*q,4)}, v17 offset:{32*q}')
        a(f's_lshl_b32 s26, s{S_J}, 12')
        a('v_add_u32 v18, s26, v3')
        a(f'v_add_u32 v19, {PKB}, v18')
        a(f's_lshl_b32 s28, s{S_R16}, 10')
        a(f's_add_u32 s28, s28, s{S_GB}')
        a(f's_add_u32 s28, s28, {G_ST2}')
        a(f's_mov_b32 s33, s{S_HD}')
        a(f's_lshl_b32 s34, s{S_RB}, 9')
        a(f's_add_u32 s34, s34, s{S_GB}')
        a(f's_add_u32 s34, s34, {G_FH2}')
        a(f's_lshl_b32 s35, s{S_CT}, 6')
        a('s_add_u32 s35, s35, s34')
        a(f's_lshl_b32 s29, s{S_J}, 3')
        a('s_add_u32 s35, s35, s29')
        a('s_add_u32 s29, s35, 2048')
        a(f's_lshl_b32 s32, s{S_WAVE}, 6')
        a('s_add_u32 s32, s32, s34')
        a(f's_mul_i32 s31, s{S_WAVE}, 14336')
        a('s_add_u32 s31, s31, s33')
        a(f's_lshl_b32 s27, s{S_Q}, 2')
        a('v_add_u32 v10, s27, v7')
        a('v_xor_b32 v12, v10, v6')
        a('v_lshlrev_b32 v12, 4, v12')
        a('v_lshl_add_u32 v12, v10, 8, v12')
        a(f's_cmp_gt_u32 s{S_WAVE}, 3')
        a('s_cselect_b32 s26, 8192, 0')
        a(f's_mov_b32 s27, {W3L + 16384}')
        a(f's_cselect_b32 s27, {RES3}, s27')
        a(f's_add_u32 s26, s26, {W3L}')
        a('v_add_u32 v20, s26, v12')
        a('v_add_u32 v21, s27, v12')
        a(f's_lshl_b32 s27, s{S_WAVE}, 13')
        a('v_lshlrev_b32 v13, 4, v5')
        a('v_xor_b32 v13, v13, v3')
        a('v_add_u32 v13, s27, v13')
        a(f's_lshl_b32 s27, s{S_WAVE}, 2')
        a('v_add_u32 v10, s27, v7')
        a('v_xor_b32 v10, v10, v6')
        a('v_lshlrev_b32 v10, 4, v10')
        a('v_and_b32 v11, 1, v2')
        a('v_lshl_add_u32 v10, v11, 9, v10')
        a('v_lshrrev_b32 v11, 1, v6')
        a('v_lshl_add_u32 v22, v11, 10, v10')
        a('v_add_u32 v23, 0x10000, v22')
        a('v_lshlrev_b32 v12, 10, v7')
        a('v_lshl_add_u32 v12, v6, 3, v12')
        srd(16, P_OUT, 0x200000)
        a(f's_lshl_b32 s72, s{S_X}, 4')
        a(f's_add_u32 s72, s72, s{S_R16}')
        a('s_lshl_b32 s72, s72, 14')
        a(f's_lshl_b32 s27, s{S_WAVE}, 12')
        a('s_add_u32 s72, s72, s27')
        a(f's_lshl_b32 s27, s{S_CT}, 7')
        a('s_add_u32 s72, s72, s27')
        a('s_add_u32 s73, s72, 32768')
        a(f's_mul_i32 s26, s{S_CT}, 14336')
        a('s_add_u32 s26, s26, s33')
        a(f's_lshl_b32 s27, s{S_J}, 11')
        a('s_add_u32 s26, s26, s27')
        a(f's_add_u32 s27, s26, {2*57344}')

    VX, VWQ = 12, 13
    a('s_setprio 3')
    a('s_memrealtime s[32:33]')
    a('v_lshrrev_b32 v3, 3, v2')
    a(f's_lshl_b32 s27, s{S_Q}, 3')
    a('v_add_u32 v6, s27, v3')
    a('v_lshrrev_b32 v4, 4, v2')
    a(f's_and_b32 s27, s{S_Q}, 1')
    a('s_lshl_b32 s27, s27, 2')
    a('v_add_u32 v4, s27, v4')
    a('v_and_b32 v5, 7, v2')
    a('v_xor_b32 v4, v4, v5')
    a('v_lshlrev_b32 v4, 4, v4')
    a(f'v_lshl_add_u32 v{VX}, v6, 10, v4')
    a('v_bfe_u32 v4, v3, 1, 1')
    a('v_lshlrev_b32 v4, 2, v4')
    a('v_bfe_u32 v7, v3, 2, 1')
    a('v_lshl_add_u32 v4, v7, 1, v4')
    a('v_xor_b32 v4, v4, v5')
    a('v_lshlrev_b32 v55, 4, v4')
    a('s_movk_i32 s27, 0xc00')
    a(f'v_mad_u32_u24 v{VWQ}, v6, s27, v55')
    a(f's_lshl_b32 s28, s{S_I}, 16')
    a(f's_lshl_b32 s29, s{S_Q}, 10')
    a(f's_xor_b32 s31, s{S_X}, {HGX}')
    a('s_lshl_b32 s31, s31, 7')
    a(f's_add_u32 s{S_RHO}, s{S_CT}, s{S_X}')
    a('s_mov_b32 s18, 0x200000\ns_mov_b32 s19, 0x20000\ns_mov_b32 s14, 0x180000\ns_mov_b32 s15, 0x20000')
    a('s_waitcnt lgkmcnt(0)')
    sk = L('nc')
    a(f's_or_b32 s27, s2, s{S_Q}')
    a(f's_cmp_lg_u32 s27, 0\ns_cbranch_scc1 {sk}')
    srd(8, P_DBG, 256)
    a('s_lshl_b64 s[32:33], s[32:33], 5')
    a('s_or_b32 s32, s32, 16')
    a('v_mov_b32 v10, s32\nv_mov_b32 v11, s33')
    a('s_mov_b64 exec, 1')
    a('buffer_store_dwordx2 v[10:11], off, s[8:11], 0 sc1')
    a('s_mov_b64 exec, -1')
    a.label(sk)
    a(f's_mov_b64 s[16:17], s[{P_X}:{P_X+1}]')
    a(f's_mov_b64 s[12:13], s[{P_WQKV}:{P_WQKV+1}]')
    T.stamp('p1.h_iss', slot=20)
    def issx(c):
        a(f's_add_u32 s33, s{S_RHO}, {c}')
        a('s_and_b32 s33, s33, 7')
        a('s_lshl_b32 s34, s33, 7')
        a('s_add_u32 s34, s34, s28')
        for j in range(2):
            a(f's_add_u32 m0, s29, {XL + c*8192 + j*4096}')
            if j: a('s_add_u32 s34, s34, 32768')
            a.vissue(f'buffer_load_dwordx4 v{VX}, s[16:19], s34 offen lds', ('x', c))
    def issw(c):
        a(f's_add_u32 s33, s{S_RHO}, {c}')
        a('s_and_b32 s33, s33, 7')
        a('s_mul_i32 s35, s33, 196608')
        a('s_add_u32 s35, s35, s31')
        for j in range(2):
            for sec in range(3):
                a(f's_add_u32 m0, s29, {WL + (c % NSLOT)*WSLOT + sec*8192 + j*4096}')
                a(f's_add_u32 s34, s35, {j*32*3072 + sec*1024}')
                a.vissue(f'buffer_load_dwordx4 v{VWQ}, s[12:15], s34 offen lds', ('w', c))
    issx(0); issw(0); issx(1)
    if 'ordA' not in opt: issw(1)
    else: issx(2); issx(3)
    common_consts()
    srd(8, P_WS, WS_USED)
    AWH, AXH, CSA, SXH, SQH, ONES, WFH, XFH = 14, 17, 20, 32, 36, 18, 64, 88
    a('v_and_b32 v10, 1, v7')
    a('v_lshrrev_b32 v11, 1, v8')
    a('v_lshl_add_u32 v11, v11, 1, v10')
    a('v_lshl_add_u32 v10, v7, 2, v8')
    a('v_lshlrev_b32 v10, 7, v10')
    a('v_lshl_add_u32 v10, v9, 3, v10')
    for j in range(3):
        a(f's_mul_i32 s26, s{S_Q}, 3')
        a(f's_add_u32 s26, s26, {j}')
        a('s_and_b32 s27, s26, 3')
        a('s_lshr_b32 s26, s26, 2')
        a('s_lshl_b32 s26, s26, 13')
        a(f's_add_u32 s26, s26, {WL}')
        a('v_xor_b32 v40, s27, v11')
        a('v_lshl_add_u32 v40, v40, 5, v10')
        a(f'v_add_u32 v{AWH+j}, s26, v40')
    a(f's_lshl_b32 s26, s{S_Q}, 11')
    a('v_lshlrev_b32 v10, 7, v6')
    a('v_bfe_u32 v11, v6, 1, 3')
    a('v_xor_b32 v11, v11, v7')
    a('v_lshl_add_u32 v10, v11, 4, v10')
    a(f'v_add_u32 v{AXH}, s26, v10')
    a(f'v_xor_b32 v41, 64, v{AXH}')
    a(f'v_mov_b32 v{ONES}, 0x3f803f80\nv_mov_b32 v{ONES+1}, 0x3f803f80')
    PA16, PA32, PROW, PUN = 44, 52, 54, 55
    def prep_addr():
        a('v_and_b32 v10, 1, v7')
        a('v_lshrrev_b32 v11, 1, v8')
        a('v_lshl_add_u32 v11, v11, 1, v10')
        a('v_lshl_add_u32 v56, v10, 2, v8')
        a('v_lshrrev_b32 v57, 1, v7')
        a('v_lshl_add_u32 v58, v57, 4, v56')
        a('v_lshl_add_u32 v59, v57, 3, v56')
        for ti, kreg in enumerate((58, 59)):
            for nt in range(4):
                a(f'v_xor_b32 v60, {nt}, v11')
                a('v_lshlrev_b32 v60, 5, v60')
                a('v_lshl_add_u32 v60, v9, 3, v60')
                a(f'v_lshl_add_u32 v{PA16+4*ti+nt}, v{kreg}, 7, v60')
        a('v_lshrrev_b32 v11, 1, v8')
        a('v_lshl_add_u32 v11, v11, 1, v5')
        a('v_lshl_add_u32 v56, v5, 2, v8')
        a('v_lshlrev_b32 v56, 7, v56')
        a('v_lshl_add_u32 v56, v9, 3, v56')
        for nt in range(2):
            a(f'v_add_u32 v60, {2*nt}, v10')
            a('v_xor_b32 v60, v60, v11')
            a(f'v_lshl_add_u32 v{PA32+nt}, v60, 5, v56')
        a(f'v_lshrrev_b32 v{PROW}, 3, v2')
    ONE4 = 96
    TCC = 5 if 'tc5' in opt else 6
    for i in range(4): a(f'v_mov_b32 v{ONE4+i}, 0x3f803f80')
    a(f's_mul_i32 s26, s{S_Q}, 192')
    a(f's_add_u32 s26, s26, {CSUM}')
    a('v_lshl_add_u32 v100, v7, 4, s26')
    a(f's_lshl_b32 s26, s{S_Q}, 6')
    a(f's_add_u32 s26, s26, {RST}')
    a('v_lshl_add_u32 v101, v6, 2, s26')
    a('v_cmp_eq_u32 s[42:43], 1, v9')
    a('v_cmp_eq_u32 s[6:7], 2, v9')
    def unit_idx(k):
        a(f's_mul_i32 s{S_U}, s2, 5')
        a(f's_add_u32 s{S_U}, s{S_U}, {k}')
        unit_decode(S_U)
    def stride_sel():
        a('s_cmp_eq_u32 s26, 2')
        a('s_movk_i32 s32, 0x400')
        a('s_cselect_b32 s32, 0xe00, s32')
        a(f'v_mad_u32_u24 v60, v{PROW}, s32, v{PUN}')
        a('s_lshl_b32 s32, s32, 3')
    def touch_addr():
        a('v_lshlrev_b32 v108, 16, v7')
        a(f's_mov_b32 s26, {HDS}')
        a('v_bfe_u32 v10, v2, 3, 1')
        a('v_mad_u32_u24 v108, v10, s26, v108')
        a('v_and_b32 v10, 7, v2')
        a('v_lshl_add_u32 v108, v10, 7, v108')
        a(f's_lshl_b32 s26, s{S_I}, 1')
        a(f's_lshr_b32 s27, s{S_Q}, 1')
        a('s_add_u32 s26, s26, s27')
        a('s_lshl_b32 s26, s26, 10')
        a(f's_and_b32 s27, s{S_Q}, 1')
        a(f's_mul_i32 s27, s27, {2*HDS}')
        a('s_add_u32 s26, s26, s27')
        a(f's_add_u32 s26, s26, s{S_QKV}')
        a('v_add_u32 v108, s26, v108')
        a(f's_add_u32 s26, s{S_GB}, {G_FQ}')
        a('v_and_b32 v10, 1, v2')
        a('v_lshl_add_u32 v10, v10, 7, s26')
        a('v_cmp_lt_u32 vcc, 47, v2')
        a('v_cndmask_b32 v108, v108, v10, vcc')
    def prep_load(k, rec):
        unit_idx(k)
        stride_sel()
        if isinstance(k, int): a(f's_mov_b32 s35, {k*4096}')
        else: a(f's_lshl_b32 s35, {k}, 12')
        for p in range(4):
            a(f's_add_u32 m0, s35, {PREP + p*1024}')
            if p: a('s_add_u32 s27, s27, s32')
            t = 'buffer_load_dwordx4 v60, s[12:15], s27 offen lds'
            a.vissue(t, 'pl') if rec else a(t)

    a(f's_mul_i32 s26, s{S_Q}, 192')
    a(f's_add_u32 s26, s26, {CSUM}')
    a('v_add_u32 v112, s26, v1')
    a(f's_lshl_b32 s75, s{S_X}, 16')
    a(f's_mul_i32 s26, s{S_Q}, 384')
    a('s_add_u32 s75, s75, s26')
    a(f's_add_u32 s75, s75, {CSX}')
    a(f's_lshl_b32 s26, s{S_I}, 11')
    a('s_add_u32 s74, s75, s26')
    a(f's_lshl_b32 s26, s{S_RB}, 14')
    a('s_add_u32 s75, s75, s26')
    a('v_lshrrev_b32 v111, 3, v2')
    a('v_lshlrev_b32 v111, 11, v111')
    a('v_and_b32 v10, 7, v2')
    a('v_lshl_add_u32 v111, v10, 4, v111')
    touch_addr()
    if 'ordA' not in opt:
        issx(2)
        if 'ordD' in opt: issw(2)
    else:
        issw(1)
        for c in range(4, 8): issx(c)
    srd(44, P_DBG, 256)
    def pls():
        prep_load(f's{S_Q}', True)
        sk = L('u4')
        a(f's_cmp_lg_u32 s{S_Q}, 3\ns_cbranch_scc1 {sk}')
        prep_load(4, False)
        a.label(sk)
    PE = int(OP.get('pe', -1))
    a(f'v_lshrrev_b32 v{PROW}, 3, v2')
    a.vissue('buffer_load_dwordx2 v[104:105], off, s[44:47], 0 sc1', 'n')
    a('s_load_dwordx4 s[44:47], s[0:1], 32')
    xsched = {0: [0], 1: [1], 2: [2, 3], 3: [4, 5], 4: [6, 7]}
    XFIN = 5
    if 'ordA' not in opt: xsched = {k: [k] for k in range(8)}; XFIN = 7
    GA = 64
    def mode_calc():
        sk, lp, ok = L('nw'), L('xr'), L('xo')
        a(f's_cmp_lg_u32 s{S_Q}, 0\ns_cbranch_scc1 {sk}')
        a(f's_mov_b32 s{S_SPIN}, 0')
        a('s_mov_b32 exec_hi, 0')
        a.label(lp)
        a('v_and_b32 v10, -16, v106')
        a('v_mov_b32 v11, v107')
        a(f'v_cmp_ne_u64 vcc, {sr(S_NON,2)}, v[10:11]')
        a(f's_cbranch_vccz {ok}')
        a(f's_add_u32 s{S_SPIN}, s{S_SPIN}, 1')
        a(f's_cmp_gt_u32 s{S_SPIN}, 64')
        a(f's_cbranch_scc1 {ok}')
        xcc_load(106, 109)
        a('s_waitcnt vmcnt(0)')
        a(f's_branch {lp}')
        a.label(ok)
        calc_mode(106)
        a('s_mov_b32 exec_hi, -1')
        a(f'v_mov_b32 v104, s{S_NON}\nv_mov_b32 v105, s{S_NON+1}\nv_mov_b32 v106, s{S_MODE}')
        a(f'v_mov_b32 v10, {NONL}')
        a('ds_write_b128 v10, v[104:107]')
        a.label(sk)
    def gather_issue(rec):
        for j in range(3):
            t = f'buffer_load_dwordx4 {vr(GA+4*j,4)}, v111, s[8:11], s75 offen offset:{128*j} sc1'
            a.vissue(t, 'ga') if rec else a(t)
    for c in range(8):
        a.vwait(('w', c))
        T.stamp(f'p1.h_w{c}', slot=2+2*c)
        a('s_barrier')
        T.stamp(f'p1.h_b{c}', slot=3+2*c)
        if c == 0:
            for j in range(3):
                for kk in range(4):
                    a(f'ds_read_b64_tr_b16 {vr(WFH+8*j+2*kk,2)}, v{AWH+j} offset:{kk*2048}')
        xs = xsched.get(c, [])
        XB = [XFH, 80]
        for k, xc in enumerate(xs):
            a(f'ds_read_b128 {vr(XB[k],4)}, v{AXH} offset:{XL + xc*8192}')
            a(f'ds_read_b128 {vr(XB[k]+4,4)}, v41 offset:{XL + xc*8192}')
        if c == 2:
            a(f'v_readfirstlane_b32 s{S_NON}, v104')
            a(f'v_readfirstlane_b32 s{S_NON+1}, v105')
            sk = L('gn')
            a(f's_cmp_lg_u32 s{S_NON}, 0\ns_cbranch_scc1 {sk}')
            keep = list(a.vm); get_nonce(); a.vm = keep
            srd(16, P_X, 0x200000)
            a.label(sk)
            a(f'v_mov_b32 v78, s{S_NON}\nv_mov_b32 v79, s{S_NON+1}')
            a('s_mov_b64 exec, 0xffffff')
            a.vissue('buffer_store_dwordx4 v[76:79], v3, s[8:11], s74 offen sc1', 'cp')
            a('s_mov_b64 exec, -1')
            sk = L('xp')
            a(f's_cmp_lg_u32 s{S_Q}, 0\ns_cbranch_scc1 {sk}')
            xcc_publish(104, 105)
            a.label(sk)
        if c == 5:
            a('s_mov_b32 exec_hi, 0')
            xcc_load(106, 109); a.vm.append('xt')
            a('s_mov_b32 exec_hi, -1')
        if c + 2 < 8 and not (c == 0 and 'ordD' in opt): issw(c + 2)
        if 'ordA' not in opt and c + 3 < 8: issx(c + 3)
        if c == 5:
            gather_issue(True)
        if xs: a('s_waitcnt lgkmcnt(0)')
        if c == 0:
            for kk in range(2):
                for j in range(3):
                    a(f'v_mfma_f32_16x16x32_bf16 {vr(CSA+4*j,4)}, {vr(WFH+8*j+4*kk,4)}, {vr(ONE4,4)}, {"0" if kk == 0 else vr(CSA+4*j,4)}')
        for k, xc in enumerate(xs):
            for kk in range(2):
                z = (xc == 0 and kk == 0)
                a(f'v_mfma_f32_16x16x32_bf16 {vr(SXH,4)}, {vr(ONE4,4)}, {vr(XB[k]+4*kk,4)}, {"0" if z else vr(SXH,4)}')
                a(f'v_mfma_f32_16x16x32_bf16 {vr(SQH,4)}, {vr(XB[k]+4*kk,4)}, {vr(XB[k]+4*kk,4)}, {"0" if z else vr(SQH,4)}')
        if c == 0:
            for j in range(3): a(f'ds_write_b128 v100, {vr(CSA+4*j,4)} offset:{64*j}')
            a('ds_read_b64 v[76:77], v112')
        if c == XFIN:
            a('v_cmp_eq_u32 vcc, 3, v9')
            a(f'v_mul_f32 v{SXH}, {H(-1/512)}, v{SXH}')
            a(f'v_cndmask_b32 v{SQH}, v{SQH}, v{SQH+1}, s[42:43]')
            a(f'v_cndmask_b32 v{SQH}, v{SQH}, v{SQH+2}, s[6:7]')
            a(f'v_cndmask_b32 v{SQH}, v{SQH}, v{SQH+3}, vcc')
            a(f'v_mul_f32 v{SQH}, {H(1/512)}, v{SQH}')
            a(f'v_fma_f32 v{SQH}, -v{SXH}, v{SXH}, v{SQH}')
            a(f'v_max_f32 v{SQH}, 0, v{SQH}')
            a(f'v_add_f32 v{SQH}, {H(1e-5)}, v{SQH}')
            a(f'v_rsq_f32 v{SQH}, v{SQH}')
            a('s_mov_b32 exec_lo, 0x00f0000f')
            a('s_mov_b32 exec_hi, 0xf0000f00')
            a(f'v_mul_f32 v{SXH}, v{SXH}, v{SQH}')
            a(f'ds_write_b32 v101, v{SQH} offset:256')
            a(f'ds_write_b32 v101, v{SXH}')
            a('s_mov_b64 exec, -1')
        if c == TCC:
            a.vissue('buffer_load_dword v110, v108, s[8:11], 0 offen sc1', 'tc')
        if c == PE:
            a.vwait(('w', 7))
            pls()
    a.vwait('ga')
    lp, ok = L('gr'), L('go')
    a(f's_mov_b32 s{S_SPIN}, 0')
    a.label(lp)
    a(f'v_cmp_ne_u64 vcc, {sr(S_NON,2)}, {vr(GA+2,2)}')
    a(f'v_cmp_ne_u64 s[32:33], {sr(S_NON,2)}, {vr(GA+6,2)}')
    a(f'v_cmp_ne_u64 s[34:35], {sr(S_NON,2)}, {vr(GA+10,2)}')
    a('s_or_b64 vcc, vcc, s[32:33]')
    a('s_or_b64 vcc, vcc, s[34:35]')
    a(f's_cbranch_vccz {ok}')
    a(f's_add_u32 s{S_SPIN}, s{S_SPIN}, 1')
    a(f's_cmp_gt_u32 s{S_SPIN}, 0x20000')
    a(f's_cbranch_scc1 {ok}')
    gather_issue(False)
    a('s_waitcnt vmcnt(0)')
    a(f's_branch {lp}')
    a.label(ok)
    vals = [GA+4*j+e for j in range(3) for e in range(2)]
    for r in vals: a(f'v_add_f32_dpp v{r}, v{r}, v{r} row_ror:8 row_mask:0xf bank_mask:0xf')
    for sw in ('v_permlane16_swap_b32', 'v_permlane32_swap_b32'):
        for r in vals: a(f'v_mov_b32 v{r+2}, v{r}')
        for r in vals: a(f'{sw} v{r}, v{r+2}')
        for r in vals: a(f'v_add_f32 v{r}, v{r}, v{r+2}')
    a('s_mov_b64 exec, 0xff')
    for j in range(3): a(f'ds_write_b64 v112, {vr(GA+4*j,2)} offset:{64*j}')
    a('s_mov_b64 exec, -1')
    mode_calc()
    a('s_waitcnt lgkmcnt(0)')
    a('s_barrier')
    T.stamp('h_p1done', slot=2)
    if PE == 8: pls()
    prep_addr()
    a(f'v_mov_b32 v10, {NONL}')
    a('ds_read_b32 v25, v10 offset:8')
    a('v_lshlrev_b32 v12, 7, v2')
    a(f's_lshr_b32 s26, s{S_Q}, 1')
    a('s_mul_i32 s26, s26, 114688')
    a(f's_mul_i32 s27, s{S_CT}, 14336')
    a('s_add_u32 s26, s26, s27')
    a(f's_and_b32 s27, s{S_Q}, 1')
    a('s_mul_i32 s27, s27, 7168')
    a('s_add_u32 s26, s26, s27')
    a(f's_add_u32 s26, s26, s{S_HD}')
    a(f'v_min_u32 v14, {55*128}, v12')
    a('v_add_u32 v14, s26, v14')
    a(f's_lshl_b32 s28, s{S_SLAB}, 14')
    a(f's_lshl_b32 s27, s{S_CT}, 11')
    a('s_add_u32 s28, s28, s27')
    a(f's_add_u32 s28, s28, s{S_GB}')
    a(f's_add_u32 s28, s28, {G_H}')
    a('v_add_u32 v17, s28, v12')
    a(f's_lshl_b32 s27, s{S_I}, 2')
    a(f's_add_u32 s27, s27, s{S_Q}')
    a('s_mul_i32 s27, s27, 384')
    a(f's_add_u32 s27, s27, s{S_GB}')
    a(f's_add_u32 s27, s27, {G_ST1 - 2048}')
    a('v_add_u32 v24, s27, v12')
    a('v_cmp_lt_u32 vcc, 15, v2')
    a('v_cndmask_b32 v17, v17, v24, vcc')
    for reg, k in ((15, 0), (24, 1), (16, 2)):
        a(f's_mul_i32 s26, s{S_SLAB}, 3')
        a(f's_add_u32 s26, s26, {k}')
        a('s_min_u32 s26, s26, 41')
        a('s_mul_hi_u32 s27, s26, 0x2aaaaaab')
        a('s_lshl_b32 s27, s27, 1')
        a('s_add_u32 s26, s26, s27')
        a('s_add_u32 s26, s26, 2')
        a('s_lshl_b32 s26, s26, 12')
        a(f's_mul_i32 s27, s{S_CT}, {7*32768}')
        a('s_add_u32 s26, s26, s27')
        a(f's_add_u32 s26, s26, {W3F}')
        a(f'v_lshl_add_u32 v{reg}, v4, 7, s26')
    a('v_cmp_lt_u32 vcc, 31, v2')
    a('v_cndmask_b32 v15, v15, v24, vcc')
    a(f's_mul_i32 s26, s{S_CT}, 229376')
    a(f's_mul_i32 s27, s{S_Q}, 28672')
    a('s_add_u32 s26, s26, s27')
    a(f's_lshl_b32 s27, s{S_RB}, 12')
    a('s_add_u32 s26, s26, s27')
    a(f's_add_u32 s26, s26, {W4F + 4096}')
    a('v_lshl_add_u32 v24, v4, 7, s26')
    a('v_cndmask_b32 v16, v16, v24, vcc')
    a('s_waitcnt lgkmcnt(0)')
    a(f'v_readfirstlane_b32 s{S_MODE}, v25')
    a('v_and_b32 v10, 23, v2')
    a('v_cmp_eq_u32 vcc, 0, v10')
    a('v_mov_b32 v10, 0x3f803f80')
    a('v_cndmask_b32 v20, 0, v10, vcc')
    a('v_mov_b32 v21, v20\nv_mov_b32 v22, v20\nv_mov_b32 v23, v20')
    a('v_add_u32 v24, s29, v3')
    a(f's_add_u32 s{S_A}, s{S_HD}, s29')
    a(f's_add_u32 s{S_A}, s{S_A}, 0x10000')
    a(f's_add_u32 s27, s{S_GB}, {G_FQ}')
    a('s_mov_b32 s30, -1\ns_mov_b32 s31, 0')
    a('s_barrier')
    a(f'ds_write_b128 v24, v[20:23] offset:{CONST}')
    poll('v1', 's27', 's[30:31]')
    T.stamp('h_kvflag', slot=3)
    def kv_issue(c):
        a(f's_add_u32 m0, s29, {KV + c*8192}')
        a(f's_add_u32 s30, s{S_A}, {c*4096}')
        a.vissue(f'buffer_load_dwordx4 v3, s[8:11], s30 offen sc1 {KVNT}lds', ('kv', c))
        a(f's_add_u32 m0, s29, {KV + c*8192 + 4096}')
        a(f's_add_u32 s30, s{S_A}, {c*4096 + 0x10000}')
        a.vissue(f'buffer_load_dwordx4 v3, s[8:11], s30 offen sc1 {KVNT}lds', ('kv', c))
    kv_issue(0); kv_issue(1)
    def prep_convert(k, record):
        unit_idx(k)
        if isinstance(k, int): a(f's_mov_b32 s32, {PREP + k*4096}')
        else:
            a(f's_lshl_b32 s32, {k}, 12')
            a(f's_add_u32 s32, s32, {PREP}')
        k1, k2, k3, dn = L('k1'), L('k2'), L('k3'), L('kd')
        F = 64
        a(f's_cmp_eq_u32 s26, 1\ns_cbranch_scc1 {k1}')
        a(f's_cmp_eq_u32 s26, 2\ns_cbranch_scc1 {k2}')
        a(f's_cmp_eq_u32 s26, 3\ns_cbranch_scc1 {k3}')
        for kind, lab in ((0, None), (1, k1)):
            if lab: a.label(lab)
            for nt in range(4): a(f'v_add_u32 v{60+nt}, s32, v{PA16+4*kind+nt}')
            for nt in range(4):
                for sec in range(2):
                    a(f'ds_read_b64_tr_b16 {vr(F+4*nt+2*sec,2)}, v{60+nt} offset:{sec*(1024 if kind==0 else 2048)}')
            a('s_add_u32 s35, s28, 2048')
            a(f's_branch {dn}')
        a.label(k2)
        for nt in range(2): a(f'v_add_u32 v{60+nt}, s32, v{PA32+nt}')
        for nt in range(2):
            for kk in range(2):
                for sec in range(2):
                    a(f'ds_read_b64_tr_b16 {vr(F+8*nt+4*kk+2*sec,2)}, v{60+nt} offset:{(8*kk+16*sec)*128}')
        a('s_add_u32 s35, s28, 32768')
        a('s_mul_i32 s33, s33, 7168')
        a('s_lshl_b32 s34, s34, 8')
        a('s_add_u32 s33, s33, s34')
        a(f's_add_u32 s33, s33, {C3P}')
        a('v_lshlrev_b32 v62, 2, v2')
        a('s_waitcnt lgkmcnt(0)')
        for i in range(4):
            for nt in range(2):
                c_ = '0' if i == 0 else vr(80+4*nt,4)
                a(f'v_mfma_f32_4x4x4_16b_bf16 {vr(80+4*nt,4)}, {vr(ONES,2)}, {vr(F+8*nt+2*i,2)}, {c_}')
        a('v_permlane32_swap_b32 v80, v84')
        a('v_add_f32 v80, v80, v84')
        a('buffer_store_dword v80, v62, s[8:11], s33 offen sc1')
        a(f's_branch {dn}')
        a.label(k3)
        for nt in range(2): a(f'v_add_u32 v{60+nt}, s32, v{PA32+nt}')
        for kk in range(2):
            for nt in range(2):
                for sec in range(2):
                    a(f'ds_read_b64_tr_b16 {vr(F+8*kk+4*nt+2*sec,2)}, v{60+nt} offset:{(16*kk+8*sec)*128}')
        a('s_add_u32 s35, s28, 2048')
        a.label(dn)
        a('s_waitcnt lgkmcnt(0)')
        iss = (lambda t: a.vissue(t, 'pp')) if record else a
        iss(f'buffer_store_dwordx4 {vr(F,4)}, v3, s[8:11], s28 offen sc1')
        iss(f'buffer_store_dwordx4 {vr(F+4,4)}, v3, s[8:11], s28 offen offset:1024 sc1')
        iss(f'buffer_store_dwordx4 {vr(F+8,4)}, v3, s[8:11], s35 offen sc1')
        iss(f'buffer_store_dwordx4 {vr(F+12,4)}, v3, s[8:11], s35 offen offset:1024 sc1')
        if 'rback' in opt:
            a('s_waitcnt vmcnt(0)')
            a('s_mov_b64 exec, 0xffff')
            a('buffer_load_dword v13, v12, s[8:11], s28 offen sc1')
            a('buffer_load_dword v13, v12, s[8:11], s35 offen sc1')
            a('s_mov_b64 exec, -1')

    HW2, HW1, HW3 = 24, 88, 92
    C3R = [116, 120, 124, 20]
    w3g = lambda g: [('w3', i) for i in range(8*g, 8*g+8)]
    flat = w3g(1) + [('c3', k) for k in range(4)] + [('wo', i) for i in range(16)] + w3g(2) + \
           [('w1', i) for i in range(15)] + [('r', HW1, W1F + 15*4096)] + w3g(3) + \
           [('r', HW2 + 4*i, W2F + i*4096) for i in range(16)] + w3g(0) + [('l3', t, f) for t in range(3) for f in range(2)]
    groups = [flat[12*i:12*i+12] for i in range(8)]
    strips = [(75, 8192), (74, WOF), (75, 2*8192), (74, W1F), (75, 3*8192), (74, W2F), (75, 0)]
    def job_setup():
        a(f's_lshl_b32 s31, s{S_CT}, 16')
        a('s_add_u32 s31, s31, s29')
        a(f's_mul_i32 s33, s{S_CT}, {7*32768}')
        a(f's_lshl_b32 s{S_B}, s{S_J}, 15')
        a(f's_add_u32 s{S_B}, s{S_B}, s33')
        a(f's_add_u32 s{S_B}, s{S_B}, {W3F}')
        a('s_add_u32 s33, s33, s29')
        a(f's_mul_i32 s32, s{S_CT}, 896')
        a(f's_mul_i32 s30, s{S_Q}, {4*7168}')
        a('s_add_u32 s32, s32, s30')
    def dma(lds, src):
        a(f's_add_u32 m0, s29, {lds}')
        a(f's_add_u32 s30, s31, {src}')
        a.vissue(f'buffer_load_dwordx4 v3, s[8:11], s30 offen {JF} lds', 'pf')
    def ldr(reg, sbase, off, imm=0):
        a(f's_add_u32 s30, s{sbase}, {off}')
        a.vissue(f'buffer_load_dwordx4 {vr(reg,4)}, v3, s[8:11], s30 offen offset:{imm} {JF}', 'pf')
    def job(j):
        kind = j[0]
        if kind == 'w3' and j[1] < NR3: ldr(W3+4*j[1], S_B, (j[1] >> 2)*4096, (j[1] & 3)*1024)
        elif kind == 'w3': ldr(W3+4*j[1], S_W4, ((j[1] >> 2) - 1)*4096, (j[1] & 3)*1024)
        elif kind == 'wo': dma(WA + j[1]*4096, WOF + j[1]*4096)
        elif kind == 'w1': dma(WB + j[1]*4096 if j[1] < 8 else LOW + (j[1]-8)*4096, W1F + j[1]*4096)
        elif kind == 'r': ldr(j[1], 31, j[2])
        elif kind == 'l3': ldr(HW3 + 8*j[1] + 4*j[2], 33, W3F + j[1]*32768 + j[2]*4096)
        elif kind == 'c3': ldr(C3R[j[1]], 32, C3P + j[1]*7168)
    def touch(vreg, lo=0xffffffff, hi=0xffffffff):
        a(f's_mov_b32 exec_lo, {hex(lo)}\ns_mov_b32 exec_hi, {hex(hi)}')
        a(f'buffer_load_dword v13, v{vreg}, s[8:11], 0 offen sc1')
        a('s_mov_b64 exec, -1')
    def wait_prog(p):
        lp = L('wp')
        a(f'v_mov_b32 v10, {PRG}')
        a('v_lshl_add_u32 v10, v9, 2, v10')
        dn = L('wd')
        a.label(lp)
        a('ds_read_b32 v11, v10')
        a('s_waitcnt lgkmcnt(0)')
        a(f'v_cmp_gt_u32 vcc, {p}, v11')
        a(f's_cbranch_vccz {dn}')
        a('s_sleep 12')
        a(f's_branch {lp}')
        a.label(dn)
    def code_warm():
        sk, pc = L('cw'), L('pc')
        a(f's_cmp_lg_u32 s{S_Q}, 2\ns_cbranch_scc1 {sk}')
        a('s_getpc_b64 s[26:27]')
        a.label(pc)
        a(f's_sub_u32 s26, s26, {pc}-{name}')
        a('s_subb_u32 s27, s27, 0')
        a(f's_lshl_b32 s30, s{S_I}, 11')
        a('v_lshl_add_u32 v10, v2, 7, s30')
        a(f'v_min_u32 v10, {name}_end-{name}, v10')
        a('s_mov_b64 exec, 0xffff')
        a('global_load_dword v13, v10, s[26:27] sc1')
        a('s_mov_b64 exec, -1')
        a.label(sk)
    def jobs(l):
        if 'nojobs' in opt: return
        for j in l: job(j)
        a('s_waitcnt vmcnt(8)'); a.vm = []
    a.vwait(('kv', 1), 'lgkmcnt(0)')
    a('s_barrier')
    def kvc(off):
        a(f'v_mov_b32 v10, {KVC}\nv_mov_b32 v11, 1')
        a('s_mov_b64 exec, 1')
        a(f'ds_add_u32 v10, v11 offset:{off}')
        a('s_mov_b64 exec, -1')
    KS = int(OP.get('ks', 4))
    for c in range(2, KS): kv_issue(c)
    a.vwait(('kv', KS - 1))
    kvc(0)
    if KS < 16: pls()
    for c in range(KS, 16): kv_issue(c)
    a.vwait_all()
    kvc(4)
    if KS == 16 and PE < 0: pls()
    tch = (lambda *x: None) if 'notouch' in opt else touch
    a('s_setprio 2')
    a.vwait_all()
    prep_convert(f's{S_Q}', False)
    a(f's_mov_b32 s{S_RHO}, s28\ns_mov_b32 s{S_M2}, s35')
    sk = L('u4')
    a(f's_cmp_lg_u32 s{S_Q}, 3\ns_cbranch_scc1 {sk}')
    prep_convert(4, False)
    a.label(sk)
    a('s_waitcnt vmcnt(0)')
    a(f'v_mov_b32 v10, {PCN}\nv_mov_b32 v11, 1')
    a('s_mov_b64 exec, 1')
    a('ds_add_rtn_u32 v18, v10, v11')
    a('s_mov_b64 exec, -1')
    a('s_waitcnt lgkmcnt(0)')
    a('v_readfirstlane_b32 s26, v18')
    sk = L('pf')
    a(f's_cmp_lg_u32 s26, 3\ns_cbranch_scc1 {sk}')
    a('s_lshl_b32 s26, s2, 7')
    a(f's_add_u32 s26, s26, {F_PREP}')
    flag_sc1('s26')
    srd(16, P_OUT, 0x200000)
    a('v_lshlrev_b32 v10, 21, v2')
    a(f's_mov_b32 s26, {GB + G_FHX}')
    a('s_mov_b64 exec, 0xff')
    a('buffer_load_dword v13, v10, s[8:11], s26 offen')
    a('buffer_load_dword v13, off, s[16:19], 0')
    a('s_mov_b64 exec, -1')
    a.label(sk)
    if 'rb2' in opt:
        a('s_mov_b64 exec, 0xffff')
        for r in (S_RHO, S_M2, 28, 35): a(f'buffer_load_dword v13, v12, s[8:11], s{r} offen sc1')
        a('s_mov_b64 exec, -1')
    job_setup()
    if 'lowp' in opt: a('s_setprio 0')
    T.stamp('h_pub', slot=7)
    lead, join = L('ld'), L('lj')
    a(f's_add_u32 s27, s{S_GB}, {G_RDY}')
    if 'flat' not in opt:
        a(f's_cmp_eq_u32 s{S_I}, 0\ns_cbranch_scc1 {lead}')
        poll('v1', 's27', '1', sleep=2)
        a(f's_branch {join}')
    a.label(lead)
    a(f's_lshl_b32 s28, s{S_Q}, 13')
    a(f's_add_u32 s28, s28, {F_PREP}')
    poll('v12', 's28', None, sleep=int(OP.get('ps', 1)))
    a.label(join)
    a(f'v_mov_b32 v10, {PCN}\nv_mov_b32 v11, 1')
    a('s_mov_b64 exec, 1')
    a('ds_add_u32 v10, v11')
    a('s_mov_b64 exec, -1')
    lp = L('hp')
    a.label(lp)
    a('s_sleep 2')
    a('ds_read_b32 v11, v10')
    a('s_waitcnt lgkmcnt(0)')
    a('v_cmp_gt_u32 vcc, 8, v11')
    a(f's_cbranch_vccnz {lp}')
    sk = L('rd')
    a(f's_or_b32 s26, s{S_I}, s{S_Q}')
    a(f's_cmp_lg_u32 s26, 0\ns_cbranch_scc1 {sk}')
    flag_prep()
    st2(flag_lines('s27'))
    a.label(sk)
    a.vm = []
    T.stamp('h_prep', slot=5)
    G = [w3g(1) + w3g(2),
         [('w1', i) for i in range(8, 15)] + [('r', HW1, W1F + 15*4096)] + w3g(3),
         [('r', HW2 + 4*i, W2F + i*4096) for i in range(16)],
         w3g(0) + [('l3', t, f) for t in range(3) for f in range(2)] + [('c3', k) for k in range(4)]]
    DEPTH = int(OP.get('depth', 16))
    for k, j in enumerate(G[0] + G[1] + G[2] + G[3]):
        job(j)
        if k >= DEPTH and k % 2 == 0: a(f's_waitcnt vmcnt({DEPTH})')
    a.vm = []
    T.stamp('h_g', slot=8)
    tch(17, 0x7ffff, 0)
    QM = [(0xffff, 0), (0xffff0000, 0), (0, 0xffff), (0, 0xffff0000)]
    TD = int(OP.get('td', 1))
    def tq(reg, qs):
        for k in qs:
            tch(reg, *QM[k]); a(f's_waitcnt vmcnt({TD})')
    wait_prog(8)
    jobs([('wo', i) for i in range(16)])
    if 'w3w' in opt: tq(15, range(4))
    wait_prog(10)
    jobs([('w1', i) for i in range(4)])
    wait_prog(12)
    jobs([('w1', i) for i in range(4, 8)])
    sk = L('h2s')
    for k in range(4):
        a('ds_read_b32 v11, v10')
        a('s_waitcnt lgkmcnt(0)')
        a('v_cmp_gt_u32 vcc, 13, v11')
        a(f's_cbranch_vccz {sk}')
        if 'noh2t' not in opt: tq(14, [k])
    a.label(sk)
    code_warm()
    a('s_setprio 0')
    T.stamp('h_jobs', slot=6)
    a.vwait_all()
    a('v_add_u32 v12, s29, v3')
    a(f'v_add_u32 v13, {WB}, v12')
    a(f'v_add_u32 v14, {WA}, v12')
    a(f's_mul_i32 s26, s{S_Q}, 896')
    a('v_add_u32 v15, s26, v3')
    a('s_barrier')
    T.stamp('h_attn_end', slot=4)
    a(f'ds_write_b128 v13, {vr(HW1,4)} offset:{W1X - WB}')
    for i in range(NW2L): a(f'ds_write_b128 v13, {vr(HW2+4*i,4)} offset:{W2L - WB + i*4096}')
    for k in range(1, 4):
        for i in range(2): a(f'v_pk_add_f32 {vr(C3R[0]+2*i,2)}, {vr(C3R[0]+2*i,2)}, {vr(C3R[k]+2*i,2)}')
    a('s_mov_b32 exec_hi, 0xffffff')
    a(f'ds_write_b128 v15, {vr(C3R[0],4)} offset:{C3L}')
    a('s_mov_b32 exec_hi, -1')
    for i in range(4): a(f'v_mov_b32 v{20+i}, 0x3f803f80')
    a(f'v_mfma_f32_16x16x32_bf16 v[16:19], {vr(HW1,4)}, v[20:23], 0')
    a('s_waitcnt lgkmcnt(0)')
    for bt in range(3):
        for k in range(5):
            s_ = 5*bt + k
            a(f'ds_read_b128 {vr(HW2+4*k,4)}, v13 offset:{s_*4096}' if s_ < 8 else f'ds_read_b128 {vr(HW2+4*k,4)}, v12 offset:{LOW + (s_-8)*4096}')
        for k in range(5):
            a(f's_waitcnt lgkmcnt({4-k})')
            a(f'v_mfma_f32_16x16x32_bf16 v[16:19], {vr(HW2+4*k,4)}, v[20:23], v[16:19]')
    a(f's_lshl_b32 s26, s{S_Q}, 6')
    a(f's_add_u32 s26, s26, {CS1}')
    a('v_lshl_add_u32 v10, v7, 4, s26')
    a('ds_write_b128 v10, v[16:19]')
    sk = L('of')
    a(f's_cmp_lg_u32 s{S_Q}, 0\ns_cbranch_scc1 {sk}')
    a(f's_lshl_b32 s28, s{S_X}, 14')
    a(f's_lshl_b32 s27, s{S_RB}, 12')
    a('s_add_u32 s28, s28, s27')
    a(f's_add_u32 s28, s28, {F_O}')
    a('s_mov_b32 s30, -1\ns_mov_b32 s31, 0')
    a('v_lshlrev_b32 v20, 7, v2')
    poll('v20', 's28', 's[30:31]', sleep=int(OP.get('os', 1)))
    a.label(sk)
    a('s_waitcnt lgkmcnt(0)')
    a('s_barrier')
    sk = L('c3w')
    a(f's_cmp_lg_u32 s{S_Q}, 3\ns_cbranch_scc1 {sk}')
    for k in range(4): a(f'ds_read_b128 {vr(HW2+4*k,4)}, v3 offset:{C3L + 896*k}')
    a('s_waitcnt lgkmcnt(0)')
    for k in range(1, 4):
        for i in range(2): a(f'v_pk_add_f32 {vr(HW2+2*i,2)}, {vr(HW2+2*i,2)}, {vr(HW2+4*k+2*i,2)}')
    a(f'ds_write_b128 v3, {vr(HW2,4)} offset:{C3L}')
    a.label(sk)
    a('s_barrier')
    for i in range(NW2L, 16): a(f'ds_write_b128 v14, {vr(HW2+4*i,4)} offset:{i*4096}')
    a('s_waitcnt lgkmcnt(0)')
    a('s_barrier')
    for t in range(3):
        for f in range(2): a(f'ds_write_b128 v13, {vr(HW3+8*t+4*f,4)} offset:{t*8192 + f*4096}')
    p4_prologue()
    a(f's_lshl_b32 s74, s{S_SLAB}, 6')
    a(f's_add_u32 s74, s74, s{S_GB}')
    a(f's_add_u32 s74, s74, {G_FX1}')
    a(f's_lshl_b32 s{S_A}, s{S_SLAB}, 14')
    a(f's_lshl_b32 s75, s{S_Q}, 14')
    a(f's_add_u32 s{S_A}, s{S_A}, s{S_GB}')
    a(f's_add_u32 s{S_A}, s{S_A}, {G_X1}')
    a('s_waitcnt lgkmcnt(0)')
    a('s_barrier')
    poll('v1', 's74', '0xff')
    def x1_lines(kh):
        l = []
        for hf in range(2):
            l += [f's_add_u32 m0, s75, {XT + kh*8192 + hf*4096}', f's_add_u32 s30, s{S_A}, {kh*8192 + hf*4096}']
            l += [f'buffer_load_dwordx4 v3, s[8:11], s30 offen offset:{i*1024} sc1 lds' for i in range(4)]
        return l
    for l in x1_lines(0): a(l)
    HJOIN = L('hjoin')
    a(f's_branch {HJOIN}')

    a.label(CW1)
    a.vm = []
    sk = L('cp')
    a(f's_cmp_lg_u32 s{S_WAVE}, 1\ns_cbranch_scc1 {sk}')
    a('s_getpc_b64 s[26:27]')
    a.label(f'{name}_pc')
    a(f's_sub_u32 s26, s26, {name}_pc-{name}')
    a('s_subb_u32 s27, s27, 0')
    a(f's_lshl_b32 s28, s{S_I}, 11')
    a('v_lshl_add_u32 v10, v2, 7, s28')
    a(f'v_min_u32 v10, {name}_end-{name}, v10')
    a('s_mov_b64 exec, 0xffff')
    a('global_load_dword v255, v10, s[26:27]')
    a('s_mov_b64 exec, -1')
    a.label(sk)
    common_consts()
    ACC = 16; FR = [64, 80, 96, 228]; AX = 112; AW = 116
    a(f's_lshr_b32 s30, s{S_Q}, 1')
    a(f's_and_b32 s31, s{S_Q}, 1')
    a('s_lshl_b32 s27, s30, 5')
    a('v_add_u32 v10, s27, v4')
    a('v_lshlrev_b32 v10, 7, v10')
    a('v_bfe_u32 v11, v4, 1, 3')
    for ks in range(4):
        a(f'v_add_u32 v12, {2*ks}, v5')
        a('v_xor_b32 v12, v12, v11')
        a(f'v_lshl_add_u32 v{AX+ks}, v12, 4, v10')
    a('v_lshl_add_u32 v10, v5, 3, v8')
    a('v_lshlrev_b32 v10, 7, v10')
    a('v_lshl_add_u32 v10, v9, 3, v10')
    a('v_and_b32 v11, 1, v7')
    a('s_lshl_b32 s27, s31, 1')
    a('v_add_u32 v11, s27, v11')
    a('v_and_b32 v12, 2, v8')
    a('v_xor_b32 v11, v11, v12')
    a(f'v_lshl_add_u32 v{AW}, v11, 5, v10')
    a(f'v_add_u32 v{AW}, {WL}, v{AW}')
    a(f'v_xor_b32 v{AW+1}, 32, v{AW}')
    a(f'v_add_u32 v{AW+1}, 512, v{AW+1}')
    a(f'v_add_u32 v{AW+2}, {2*WSLOT}, v{AW}')
    a(f'v_add_u32 v{AW+3}, {2*WSLOT}, v{AW+1}')
    a('s_waitcnt lgkmcnt(0)')
    if 'xs' in opt.split(','):
        srd(12, P_X, 0x200000)
        a(f's_lshl_b32 s26, s{S_I}, 16')
        a(f's_lshl_b32 s27, s{S_Q}, 14')
        a('s_add_u32 s26, s26, s27')
        a('v_lshlrev_b32 v10, 7, v2')
        a('buffer_load_dword v252, v10, s[12:15], s26 offen')
        a('s_add_u32 s26, s26, 8192')
        a('buffer_load_dword v252, v10, s[12:15], s26 offen')
    srd(16, P_DBG, 256)
    srd(8, P_WS, WS_USED)
    EA = 120
    a('s_lshl_b32 s27, s31, 7')
    a(f's_add_u32 s27, s27, {CSUM}')
    a(f'v_lshl_add_u32 v{EA}, v5, 4, s27')
    a(f'v_lshl_add_u32 v{EA+1}, v4, 2, s27')
    a('s_lshl_b32 s27, s30, 7')
    a(f's_add_u32 s27, s27, {RST}')
    a(f'v_lshl_add_u32 v{EA+2}, v4, 2, s27')
    a(f'v_lshl_add_u32 v{EA+3}, v5, 4, s27')
    a('v_lshrrev_b32 v10, 4, v4')
    a(f'v_mul_u32_u24 v10, {HDS}, v10')
    a('v_lshl_add_u32 v10, v5, 8, v10')
    a(f'v_lshl_add_u32 v{EA+4}, v6, 4, v10')
    a(f's_lshl_b32 s26, s{S_I}, 1')
    a('s_add_u32 s26, s26, s30')
    a('s_lshl_b32 s26, s26, 10')
    a(f's_mul_i32 s27, s31, {2*HDS}')
    a('s_add_u32 s26, s26, s27')
    a(f's_add_u32 s{S_A}, s26, s{S_QKV}')
    a(f'v_mov_b32 v{EA+5}, {NONL}')
    def rd_list(n):
        c, ks = n >> 2, n & 3; b = FR[n % 4]
        slot = c % NSLOT
        l = [f'ds_read_b128 {vr(b,4)}, v{AX+ks} offset:{XL + c*8192}']
        for j in range(3):
            for sec in range(2):
                l.append(f'ds_read_b64_tr_b16 {vr(b+4+4*j+2*sec,2)}, v{AW+sec+(2 if slot == 2 else 0)} offset:{(slot&1)*WSLOT + j*8192 + ks*2048}')
        return l
    T.stamp('p1.c_pre')
    fixwait('fixb0', 12)
    a('s_barrier')
    T.stamp('c_b0'); T.stamp('p1.c_b0')
    for l in rd_list(0): a(l)
    for l in rd_list(1): a(l)
    CV = 128; RV = 160; SC = 192
    for n in range(32):
        c, ks = n >> 2, n & 3
        b = FR[n % 4]
        z = lambda r, k: '0' if n == 0 else vr(r, k)
        if n == 30: a('s_waitcnt lgkmcnt(0)')
        elif ks == 2 or n == 31:
            a('s_waitcnt lgkmcnt(0)')
            T.stamp(f'p1.c_w{c+1}')
            a('s_barrier')
            T.stamp(f'p1.c_b{c+1}')
        elif ks == 0: a('s_waitcnt lgkmcnt(7)')
        elif ks == 1: a('s_waitcnt lgkmcnt(14)')
        rl = rd_list(n + 2) if n + 2 < 32 else []
        if ks == 0: rl = rl + rd_list(n + 3)
        if ks == 1: rl = []
        if n == 31:
            rl = [f'ds_read_b128 v[12:15], v{EA+5}', f'ds_read_b32 v{SC}, v{EA+2}', f'ds_read_b32 v224, v{EA+2} offset:256', f'ds_read_b32 v{SC+2}, v{EA+1} offset:512'] + \
                 [f'ds_read_b128 {vr(CV+16*j+4*q,4)}, v{EA} offset:{256*j+32*q}' for j in range(2) for q in range(4)]
        if n == 31:
            rl += [f'ds_read_b128 {vr(RV+16*j+4*q,4)}, v{EA+3} offset:{256*j+32*q}' for j in range(2) for q in range(4)]
        k = (len(rl) + 2) // 3
        a(f'v_mfma_f32_32x32x16_bf16 {vr(ACC,16)}, {vr(b+4,4)}, {vr(b,4)}, {z(ACC,16)}')
        for l in rl[0:k]: a(l)
        a(f'v_mfma_f32_32x32x16_bf16 {vr(ACC+16,16)}, {vr(b+8,4)}, {vr(b,4)}, {z(ACC+16,16)}')
        for l in rl[k:2*k]: a(l)
        a(f'v_mfma_f32_32x32x16_bf16 {vr(ACC+32,16)}, {vr(b,4)}, {vr(b+12,4)}, {z(ACC+32,16)}')
        for l in rl[2*k:]: a(l)
    T.stamp('c_gemm')
    a('s_waitcnt lgkmcnt(8)')
    a(f'v_readfirstlane_b32 s{S_MODE}, v14')
    a(f'v_readfirstlane_b32 s{S_NON}, v12')
    a(f'v_readfirstlane_b32 s{S_NON+1}, v13')
    a(f'v_mul_f32 v{SC+4}, {H(QSCALE)}, v{SC}')
    a(f'v_mul_f32 v226, {H(QSCALE)}, v224')
    PK = 200
    lines = []
    for j in range(2):
        sc = SC + 4 if j == 0 else SC
        for p in range(8):
            lines.append(f'v_pk_mul_f32 {vr(CV+16*j+2*p,2)}, {vr(CV+16*j+2*p,2)}, {vr(sc,2)} op_sel_hi:[1,0]')
        for o in range(2):
            for p in range(4*o, 4*o+4):
                A_ = ACC+16*j+2*p
                lines.append(f'v_pk_fma_f32 {vr(A_,2)}, {vr(A_,2)}, {vr(226 if j == 0 else 224,2)}, {vr(CV+16*j+2*p,2)} op_sel_hi:[1,0,1]')
            for p in range(4*o, 4*o+4):
                A_ = ACC+16*j+2*p
                lines.append(f'v_cvt_pk_bf16_f32 v{PK+8*j+p}, v{A_}, v{A_+1}')
            lines.append(f's_add_u32 s26, s{S_A}, {j*0x10000 + o*HDS}')
            lines.append(f'buffer_store_dwordx4 {vr(PK+8*j+4*o,4)}, v3, s[8:11], s26 offen')
    lines.append('s_waitcnt lgkmcnt(0)')
    lines.append(f's_add_u32 s26, s{S_A}, 0x20000')
    for p in range(8):
        lines.append(f'v_pk_mul_f32 {vr(RV+2*p,2)}, {vr(RV+2*p,2)}, {vr(SC+2,2)} op_sel_hi:[1,0]')
    for o in range(2):
        for p in range(4*o, 4*o+4):
            A_ = ACC+32+2*p
            lines.append(f'v_pk_fma_f32 {vr(A_,2)}, {vr(A_,2)}, {vr(RV+16+2*p,2)}, {vr(RV+2*p,2)}')
        for p in range(4*o, 4*o+4):
            A_ = ACC+32+2*p
            lines.append(f'v_cvt_pk_bf16_f32 v{PK+16+p}, v{A_}, v{A_+1}')
        lines.append(f'buffer_store_dwordx4 {vr(PK+16+4*o,4)}, v{EA+4}, s[8:11], s26 offen offset:{512*o}')
    st2(lines)
    T.stamp('p1.c_st')

    Q, SA, SB, O, P, KB, VB, AV = 12, 20, 36, 52, 84, 92, 100, 116
    XR = 120
    a('v_lshlrev_b32 v10, 8, v5')
    a('v_lshl_add_u32 v10, v6, 4, v10')
    a('v_and_b32 v11, 11, v6')
    a('v_cmp_eq_u32 vcc, 0, v11')
    a(f'v_mov_b32 v11, {CONST + 16}')
    a(f'v_mov_b32 v{SA}, {CONST}')
    a(f'v_cndmask_b32 v11, v11, v{SA}, vcc')
    a(f'v_add_u32 v{SA}, 4, v6')
    a(f'v_and_b32 v{SA}, 8, v{SA}')
    a(f'v_lshl_add_u32 v11, v{SA}, 4, v11')
    a('v_cmp_gt_u32 vcc, 16, v4')
    AK, AVI, PCV = AV + 1, AV + 2, AV + 3
    a(f'v_add_u32 v{SA}, {KV + 4096}, v10')
    a(f'v_cndmask_b32 v{AV}, v11, v{SA}, vcc')
    a(f'v_mov_b32 v{SA}, 0x2000')
    a(f'v_cndmask_b32 v{AVI}, 0, v{SA}, vcc')
    a(f'v_add_u32 v{AK}, {KV}, v3')
    a(f'v_mov_b32 v{PCV}, 0')
    a(f's_lshl_b32 s27, s{S_Q}, 2')
    a(f's_add_u32 s27, s27, {PRG}')
    a('v_mov_b32 v129, s27')
    a(f's_lshl_b32 s28, s{S_CT}, 13')
    a(f's_lshl_b32 s27, s{S_Q}, 11')
    a('s_add_u32 s28, s28, s27')
    a(f's_add_u32 s{S_U}, s28, s{S_HD}')
    a(f's_mul_i32 s{S_B}, s{S_CT}, 7')
    a(f's_add_u32 s{S_B}, s{S_B}, s{S_Q}')
    a(f's_lshl_b32 s{S_B}, s{S_B}, 15')
    a(f's_add_u32 s{S_B}, s{S_B}, {W3F}')
    flag_prep()
    a(f's_lshl_b32 s26, s{S_I}, 3')
    a(f's_add_u32 s26, s26, s{S_GB}')
    a(f's_add_u32 s26, s26, {G_FQ}')
    a('s_waitcnt vmcnt(0) lgkmcnt(0)')
    a('s_barrier')
    sk = L('qf')
    a(f's_cmp_lg_u32 s{S_WAVE}, 0\ns_cbranch_scc1 {sk}')
    st2(flag_lines('s26'))
    a.label(sk)
    T.stamp('c_pub')
    srd(16, P_X, 0x200000)
    a(f's_lshl_b32 s33, s{S_X}, 4')
    a(f's_add_u32 s33, s33, s{S_SLAB}')
    a('s_lshl_b32 s33, s33, 14')
    a(f's_lshl_b32 s27, s{S_CT}, 7')
    a('s_add_u32 s33, s33, s27')
    a('v_lshlrev_b32 v128, 10, v6')
    a('v_lshl_add_u32 v128, v7, 3, v128')
    def rdK(t): a(f'ds_read_b128 {vr(KB+4*(t&1),4)}, v{AK} offset:{(t>>2)*8192 + (t&3)*1024}')
    def rdV(t, f): a(f'ds_read_b128 {vr(VB+8*(t&1)+4*f,4)}, v{AV} offset:{(t&3)*1024+f*512}')
    def mfS(n):
        S = SA if (n & 1) == 0 else SB
        if 'noqk' in opt and n > 1: return
        a(f'v_mfma_f32_32x32x16_bf16 {vr(S,16)}, {vr(KB+4*((n>>1)&1),4)}, {vr(Q+4*(n&1),4)}, 0')
    def mfO(n, f):
        Ou = O + 16*(n & 1)
        if 'nopv' in opt and n > 1: return
        if 'pv16' in opt:
            a(f'v_mfma_f32_16x16x32_bf16 {vr(Ou+8,4)}, {vr(VB+8*((n>>1)&1)+4*f,4)}, {vr(P+4*f,4)}, {"0" if n < 2 and f == 0 else vr(Ou+8,4)}')
            return
        c_ = '0' if (n < 2 and f == 0) else vr(Ou,16)
        a(f'v_mfma_f32_32x32x16_bf16 {vr(Ou,16)}, {vr(VB+8*((n>>1)&1)+4*f,4)}, {vr(P+4*f,4)}, {c_}')
    a(f's_lshl_b32 s26, s{S_CT}, 5')
    a(f's_lshl_b32 s27, s{S_Q}, 3')
    a('s_add_u32 s26, s26, s27')
    a(f's_add_u32 s26, s26, s{S_GB}')
    a(f's_add_u32 s26, s26, {G_FQ}')
    poll('v1', 's26', '1')
    a(f'buffer_load_dwordx4 {vr(Q,4)}, v3, s[8:11], s{S_U} offen sc1')
    a(f'buffer_load_dwordx4 {vr(Q+4,4)}, v3, s[8:11], s{S_U} offen offset:1024 sc1')
    a('s_waitcnt vmcnt(0)')
    fixwait('fixa0', 20)
    a('s_barrier')
    T.stamp('c_kv0'); T.stamp('ap.A0'); T.stamp('att.c0'); T.stamp('att.r0', True)
    rdK(0); rdK(1); rdV(0, 0); rdV(0, 1)
    a('s_waitcnt lgkmcnt(3)')
    mfS(0)
    def att_step(n, head, tail=False, head2=False):
        t = n >> 1; g = n if head else n + 16
        S = SA if (n & 1) == 0 else SB
        def ex2(i, extra=None):
            if extra: a(extra)
            a(f'v_exp_f32 v{S+i}, v{S+i}')
            a(f'v_exp_f32{"_e64" if extra else ""} v{S+i+1}, v{S+i+1}')
        cv = lambda j: a(f'v_cvt_pk_bf16_f32 v{P+j}, v{S+2*j}, v{S+2*j+1}')
        even = (n & 1) == 0
        loop = not head and not tail and not head2
        def cj():
            i = cjobs.pop(0)
            if i % 4 == 0: a(f's_add_u32 s30, s{S_W4}, {((i >> 2) - 1)*4096}' if i >= NR3 else f's_add_u32 s30, s35, {(i >> 2)*4096}')
            a(f'buffer_load_dwordx4 {vr(W3+4*i,4)}, v3, s[8:11], s30 offen offset:{(i&3)*1024} sc1')
        def xr(k): a(f'buffer_load_dwordx2 {vr(XR+2*k,2)}, v128, s[16:19], s33 offen offset:{32*k}')
        V = OP.get('dsv', 'b')
        if head and n == 0: a('s_waitcnt lgkmcnt(0)\ns_nop 0')
        if V == 'c' and not even: rdK(t + 2)
        mfS(g + 1)
        if V == 'a' and not even: rdK(t + 2)
        if (head or head2) and n == 11: a(f'ds_read_b32 v131, v130 offset:{0 if head else 4}')
        if tail and even: cj()
        ex2(0, 's_waitcnt lgkmcnt(0)' if even else None)
        if (head or head2) and n == 12:
            lp, ok = L('kw'), L('ko')
            a.label(lp)
            a('v_cmp_gt_u32 vcc, 4, v131')
            a(f's_cbranch_vccz {ok}')
            a(f'ds_read_b32 v131, v130 offset:{0 if head else 4}')
            a('s_waitcnt lgkmcnt(0)')
            a(f's_branch {lp}')
            a.label(ok)
        ex2(2)
        cv(0)
        ex2(4, f'v_add_u32 v{AV}, v{AVI}, v{AV}' if n % 8 == 5 else (f'v_add_u32 v{PCV}, 1, v{PCV}' if n in (7, 15) and not tail else None))
        cv(1)
        if V == 'c' and even: rdV(t + 1, 0)
        if g > 0: mfO(g - 1, 1)
        if V in 'ab' and even: rdV(t + 1, 0)
        if V == 'b' and even: rdV(t + 1, 1); rdK(t + 2)
        if tail and not even: cj()
        if n in (1, 9) and loop: a(f'ds_write_b32 v129, v{PCV}')
        ex2(6)
        cv(2); ex2(8); cv(3)
        if V == 'c' and even: rdV(t + 1, 1)
        if n == 15 and not tail: a(f'v_add_u32 v{AK}, 0x4000, v{AK}')
        ex2(10)
        mfO(g, 0)
        if V == 'a' and even: rdV(t + 1, 1)
        if tail and not even: cj()
        if tail and even and n < 8: xr(n // 2)
        if n == 15 and loop: a('s_add_u32 s34, s34, 1\ns_cmp_lt_u32 s34, 5')
        cv(4)
        ex2(12); cv(5); ex2(14); cv(6); cv(7)
    a(f'v_mov_b32 v130, {KVC}')
    a(f's_sub_u32 s35, s{S_W4}, 4096')
    a(f's_cmp_eq_u32 s{S_Q}, 3')
    a(f's_cselect_b32 s35, s35, s{S_B}')
    a('.p2align 3')
    for n in range(16): att_step(n, True)
    for n in range(16): att_step(n, False, False, True)
    a('s_mov_b32 s34, 0')
    T.stamp('ap.head')
    ALP = L('alp')
    a('.p2align 6')
    a.label(ALP)
    for n in range(16): att_step(n, False)
    a(f's_cbranch_scc1 {ALP}')
    T.stamp('ap.loop')
    lp = L('cpw')
    a(f'v_mov_b32 v130, {PCN}')
    a.label(lp)
    a('ds_read_b32 v131, v130')
    a('s_waitcnt lgkmcnt(0)')
    a('v_cmp_gt_u32 vcc, 8, v131')
    a(f's_cbranch_vccnz {lp}')
    cjobs = list(range(8, 32))
    a('.p2align 3')
    for n in range(16): att_step(n, False, True)
    a('s_waitcnt lgkmcnt(0)')
    mfO(127, 1)
    T.stamp('c_attn_end'); T.stamp('ap.end'); T.stamp('att.c1'); T.stamp('att.r1', True)
    a('s_barrier')
    if 'slowsafe' in opt:
        sk = L('ss')
        a(f's_cmp_lg_u32 s{S_MODE}, 0\ns_cbranch_scc1 {sk}')
        for i in range(6): a('s_sleep 127')
        a.label(sk)
    a(f's_xor_b32 s29, s{S_X}, {HGX}')
    a('s_lshl_b32 s29, s29, 2')
    a(f's_add_u32 s29, s29, s{S_RB}')
    a(f's_lshl_b32 s26, s{S_CT}, 21')
    a(f's_lshl_b32 s27, s{S_Q}, 16')
    a('s_add_u32 s26, s26, s27')
    a('s_lshl_b32 s27, s29, 9')
    a('s_add_u32 s26, s26, s27')
    a(f's_add_u32 s26, s26, {GB + G_O}')
    a('s_add_u32 s27, s26, 32768')
    a(f's_lshl_b32 s28, s{S_CT}, 14')
    a(f's_lshl_b32 s30, s{S_Q}, 12')
    a('s_add_u32 s28, s28, s30')
    a('s_lshl_b32 s30, s29, 7')
    a('s_add_u32 s28, s28, s30')
    a(f's_add_u32 s28, s28, {F_O}')
    a(f'v_lshrrev_b32 v{KB}, 4, v4')
    a(f'v_lshlrev_b32 v{KB}, 14, v{KB}')
    a(f'v_lshl_add_u32 v{KB}, v5, 8, v{KB}')
    a(f'v_lshl_add_u32 v{KB}, v6, 4, v{KB}')
    FB, FBR = L('fb'), L('fbr')
    for u in range(2):
        Ou = O + 16*u
        a(f'v_max3_f32 v{SA+u}, |v{Ou}|, |v{Ou+1}|, |v{Ou+2}|')
        a(f'v_max3_f32 v{SA+u}, |v{Ou+3}|, |v{Ou+4}|, v{SA+u}')
        a(f'v_max3_f32 v{SA+u}, |v{Ou+5}|, |v{Ou+6}|, v{SA+u}')
    a(f'v_max3_f32 v{SA}, |v{O+7}|, |v{O+23}|, v{SA}')
    a(f'v_max_f32 v{SA}, v{SA}, v{SA+1}')
    a(f'v_mul_f32 v{SA}, {H(2.0**-60)}, v{SA}')
    a(f'v_max3_f32 v{SA}, v{O+8}, v{O+24}, v{SA}')
    a(f'v_min_f32 v{SA+1}, v{O+8}, v{O+24}')
    a(f'v_cmp_nle_f32 vcc, v{SA}, v{SA+2}' if False else f'v_mov_b32 v{SA+2}, {H(2.0**60)}')
    a(f'v_cmp_nle_f32 vcc, v{SA}, v{SA+2}')
    a(f'v_cmp_u_f32 s[30:31], v{O+8}, v{O+24}')
    a(f'v_cmp_ngt_f32 s[32:33], v{SA+1}, v{SA+3}' if False else f'v_mov_b32 v{SA+3}, {H(2.0**-60)}')
    a(f'v_cmp_ngt_f32 s[32:33], v{SA+1}, v{SA+3}')
    a('s_or_b64 vcc, vcc, s[30:31]')
    a('s_or_b64 vcc, vcc, s[32:33]')
    if force_fallback: a('s_mov_b64 vcc, -1')
    if 'nofb' in opt: a('s_mov_b64 vcc, 0')
    a(f's_cbranch_vccnz {FB}')
    a.label(FBR)
    for u in range(2):
        Ou = O + 16*u
        a(f'v_rcp_f32 v{SA+2*u}, v{Ou+8}')
    for u in range(2):
        Ou = O + 16*u
        for p in range(4): a(f'v_pk_mul_f32 {vr(Ou+2*p,2)}, {vr(Ou+2*p,2)}, {vr(SA+2*u,2)} op_sel_hi:[1,0]')
        for j in range(4): a(f'v_cvt_pk_bf16_f32 v{P+4*u+j}, v{Ou+2*j}, v{Ou+2*j+1}')
    a(f'buffer_store_dwordx4 {vr(P,4)}, v{KB}, s[8:11], s26 offen sc1')
    a(f'buffer_store_dwordx4 {vr(P+4,4)}, v{KB}, s[8:11], s27 offen sc1')
    a('s_mov_b32 s39, s28')
    a('s_waitcnt vmcnt(2)')

    GC0 = 12; AWA, AWB = 14, 15; HB = 16; MU, R1 = 24, 25; TMP = 26
    ACC = 32; ACT = 48; WF = 128; NWS = 2; CV = 112; LEAD = int(OP.get('lead', 7)); LX = int(OP.get('lx', 4))
    S_TA, S_SA, S_FA = 33, 34, 35
    a(f'v_add_u32 v{AWA}, {WA}, v3')
    a(f'v_add_u32 v{AWB}, {WB}, v3')
    def wread(ph, s, nt):
        b = WF + 16*(s % NWS) + 4*nt
        if ph == 2 and s == 15: return f'ds_read_b128 {vr(b,4)}, v{AWB} offset:{W1X - WB + nt*1024}'
        if ph == 2 and s >= 8: return f'ds_read_b128 {vr(b,4)}, v3 offset:{LOW + (s-8)*4096 + nt*1024}'
        if ph == 3 and s < NW2L: return f'ds_read_b128 {vr(b,4)}, v{AWB} offset:{W2L - WB + s*4096 + nt*1024}'
        return f'ds_read_b128 {vr(b,4)}, v{AWB if ph == 2 else AWA} offset:{s*4096 + nt*1024}'
    def wpre(ph):
        for s in range(NWS):
            for nt in range(4): a(wread(ph, s, nt))
    def gemm64(ph, ld, fill=None, zero=False, bar=None):
        T.stamp(f'g.p{ph}_go')
        for s in range(LEAD): ld(s)
        fill = list(fill or [])
        nl = LEAD
        for s in range(16):
            b = WF + 16*(s % NWS)
            a.vwait(('a', s), f'lgkmcnt({4 if s < 15 else 0})')
            if s in (0, 8): T.stamp(f'g.p{ph}_s{s}')
            if s == bar: a('s_barrier')
            for nt in range(4):
                c_ = '0' if (s == 0 and zero) else vr(ACC+4*nt,4)
                a(f'v_mfma_f32_16x16x32_bf16 {vr(ACC+4*nt,4)}, {vr(b+4*nt,4)}, {vr(ACT+4*(s%12),4)}, {c_}')
                if s + NWS < 16: a(wread(ph, s + NWS, nt))
                if (nt == 1 or (nt == 3 and s < LX)) and nl < 16 and nl < s + 12: ld(nl); nl += 1
                if s >= 4 and fill: a(fill.pop(0))
        assert not fill
    def ld_plain(s):
        if s and s % 4 == 0: a('s_add_u32 s29, s29, 4096')
        a.vissue(f'buffer_load_dwordx4 {vr(ACT+4*(s%12),4)}, v3, s[8:11], s29 offen offset:{(s&3)*1024} sc1', ('a', s))
    def xsum_lines(r0, r1, t0, t1):
        l = []
        for sw in ('v_permlane16_swap_b32', 'v_permlane32_swap_b32'):
            l += [f'v_mov_b32 v{t0}, v{r0}', f'v_mov_b32 v{t1}, v{r1}', f'{sw} v{r0}, v{t0}', f'{sw} v{r1}, v{t1}',
                  f'v_add_f32 v{r0}, v{r0}, v{t0}', f'v_add_f32 v{r1}, v{r1}, v{t1}']
        return l
    def addrs(act, tile, stats, flag):
        a(f's_lshl_b32 s26, s{S_SLAB}, 14')
        a(f's_add_u32 s26, s26, s{S_GB}')
        if act is not None: a(f's_add_u32 s29, s26, {act}')
        a(f's_lshl_b32 s27, s{S_CT}, 11')
        a(f's_add_u32 s{S_TA}, s26, s27')
        a(f's_add_u32 s{S_TA}, s{S_TA}, {tile}')
        a(f's_lshl_b32 s27, s{S_CT}, 3')
        a(f's_add_u32 s27, s27, s{S_GB}')
        if stats is not None:
            a(f's_lshl_b32 s{S_SA}, s{S_SLAB}, 10')
            a(f's_add_u32 s{S_SA}, s{S_SA}, s27')
            a(f's_add_u32 s{S_SA}, s{S_SA}, {stats}')
        a(f's_lshl_b32 s{S_FA}, s{S_SLAB}, 6')
        a(f's_add_u32 s{S_FA}, s{S_FA}, s27')
        a(f's_add_u32 s{S_FA}, s{S_FA}, {flag}')
    def pack16(dst):
        for nt in range(4):
            a(f'v_cvt_pk_bf16_f32 v{dst+2*nt}, v{ACC+4*nt}, v{ACC+4*nt+1}')
            a(f'v_cvt_pk_bf16_f32 v{dst+2*nt+1}, v{ACC+4*nt+2}, v{ACC+4*nt+3}')
    def tile_st(src):
        return [f'buffer_store_dwordx4 {vr(src,4)}, v3, s[8:11], s{S_TA} offen', f'buffer_store_dwordx4 {vr(src+4,4)}, v3, s[8:11], s{S_TA} offen offset:1024']
    def stats_lines(t):
        l = [f'v_pk_add_f32 {vr(t,2)}, {vr(ACC,2)}, {vr(ACC+2,2)}', f'v_pk_mul_f32 {vr(t+2,2)}, {vr(ACC,2)}, {vr(ACC,2)}',
             f'v_pk_fma_f32 {vr(t+2,2)}, {vr(ACC+2,2)}, {vr(ACC+2,2)}, {vr(t+2,2)}']
        for p in range(2, 8):
            l += [f'v_pk_add_f32 {vr(t,2)}, {vr(t,2)}, {vr(ACC+2*p,2)}', f'v_pk_fma_f32 {vr(t+2,2)}, {vr(ACC+2*p,2)}, {vr(ACC+2*p,2)}, {vr(t+2,2)}']
        l += [f'v_add_f32 v{t}, v{t}, v{t+1}', f'v_add_f32 v{t+1}, v{t+2}, v{t+3}']
        l += xsum_lines(t, t+1, t+2, t+3)
        l += ['s_mov_b64 exec, 0xffff', f'buffer_store_dwordx2 {vr(t,2)}, v{TMP+5}, s[8:11], s{S_SA} offen']
        return l
    def gelu_pk(regs, tmp):
        n = len(regs)
        for i, r in enumerate(regs): a(f'v_pk_mul_f32 {vr(tmp+2*i,2)}, {vr(r,2)}, {vr(r,2)}')
        for i, r in enumerate(regs): a(f'v_pk_fma_f32 {vr(tmp+2*i,2)}, {vr(tmp+2*i,2)}, {sr(S_C1,2)}, {vr(GC0,2)}')
        for i, r in enumerate(regs): a(f'v_pk_mul_f32 {vr(tmp+2*i,2)}, {vr(tmp+2*i,2)}, {vr(r,2)}')
        for i in range(2*n): a(f'v_exp_f32 v{tmp+i}, v{tmp+i}')
        for i, r in enumerate(regs): a(f'v_pk_add_f32 {vr(tmp+2*i,2)}, {vr(tmp+2*i,2)}, {sr(S_ONE,2)}')
        for i in range(2*n): a(f'v_rcp_f32 v{tmp+i}, v{tmp+i}')
        for i, r in enumerate(regs): a(f'v_pk_mul_f32 {vr(r,2)}, {vr(r,2)}, {vr(tmp+2*i,2)}')

    SH, PF3, STV, CSA_ = 96, 100, 101, 102
    S_AB, S_P2, S_SL, S_M3 = 36, 37, 38, 40
    wpre(1)
    for nt in range(4):
        for p in range(2):
            a(f'v_lshlrev_b32 v{ACC+4*nt+2*p}, 16, v{XR+2*nt+p}')
            a(f'v_and_b32 v{ACC+4*nt+2*p+1}, 0xffff0000, v{XR+2*nt+p}')
    addrs(G_O, G_H, G_ST1, G_FH)
    a(f's_mov_b32 s{S_AB}, s26')
    a(f'v_lshlrev_b32 v{TMP+5}, 6, v6')
    a(f'v_lshl_add_u32 v{STV}, v7, 4, v{TMP+5}')
    a(f'v_lshlrev_b32 v{CSA_}, 4, v7')
    a(f'v_mov_b32 v{GC0}, {H(GELU_C0)}\nv_mov_b32 v{GC0+1}, {H(GELU_C0)}')
    a(f's_lshl_b32 s{S_P2}, s{S_SLAB}, 6')
    a(f's_add_u32 s{S_P2}, s{S_P2}, s{S_GB}')
    a(f's_add_u32 s{S_P2}, s{S_P2}, {G_FH}')
    a(f's_lshl_b32 s{S_SL}, s{S_SLAB}, 10')
    a(f's_add_u32 s{S_SL}, s{S_SL}, s{S_GB}')
    a(f's_add_u32 s{S_SL}, s{S_SL}, {G_ST1}')
    a(f's_lshl_b32 s27, s{S_X}, 4')
    a(f's_add_u32 s27, s27, s{S_SLAB}')
    a(f's_bfe_u32 s28, s{S_CT}, 0x10001')
    a('s_cmp_eq_u32 s28, 1')
    a('s_cselect_b32 s28, 0, 15')
    a(f's_cmp_eq_u32 s{S_SLAB}, s28')
    a(f's_cselect_b32 s{S_U+1}, 1, 0')
    a('s_add_u32 s28, s27, 1')
    a('s_and_b32 s28, s28, 126')
    a('s_cmp_eq_u32 s28, 0')
    a(f's_cselect_b32 s{S_U+1}, 0, s{S_U+1}')
    a(f's_cmp_eq_u32 s{S_U+1}, 1')
    a(f's_cselect_b32 s{S_M2}, 0, s{S_MODE}')
    a(f's_cmp_eq_u32 s{S_SLAB}, 0')
    a(f's_mov_b32 s{S_U+2}, {0x200000 + G_FHX}')
    a(f's_cselect_b32 s{S_U+2}, {(G_FHX + 1024 - 0x200000) & 0xffffffff}, s{S_U+2}')
    a(f's_add_u32 s{S_U+2}, s{S_U+2}, s{S_GB}')
    a(f's_lshl_b32 s28, s{S_CT}, 7')
    a(f's_add_u32 s{S_U+2}, s{S_U+2}, s28')
    a(f's_mov_b32 s{S_M3}, 0xccff33')
    a('s_cmp_eq_u32 s27, 0')
    a(f's_cselect_b32 s{S_M3}, 0xccff00, s{S_M3}')
    a('s_cmp_eq_u32 s27, 127')
    a(f's_cselect_b32 s{S_M3}, 0x00ff33, s{S_M3}')
    a(f's_mov_b32 s{S_M3+1}, 0')
    a('s_lshl_b32 s26, s27, 4')
    a(f's_lshl_b32 s28, s{S_SLAB}, 6')
    a(f's_add_u32 s28, s28, {G_FHH - 64}')
    a(f'v_add_u32 v{PF3}, s28, v1')
    a('v_lshrrev_b32 v10, 3, v2')
    a(f's_sub_u32 s27, s{S_SLAB}, 1')
    a('v_add_u32 v10, s27, v10')
    a('v_cmp_lt_u32 vcc, 15, v10')
    a('v_and_b32 v10, 7, v2')
    a('v_lshl_add_u32 v10, v7, 3, v10')
    a('v_lshlrev_b32 v10, 7, v10')
    a(f'v_add_u32 v10, {G_FHX}, v10')
    a(f'v_cndmask_b32 v{PF3}, v{PF3}, v10, vcc')
    for gi, d in enumerate((-1, 1, -2, 2)):
        a('v_add_u32 v10, s26, v6')
        a(f'v_add_u32 v10, {d}, v10')
        a('v_bfe_u32 v11, v10, 4, 4')
        a('v_lshlrev_b32 v11, 14, v11')
        a(f'v_lshrrev_b32 v{TMP}, 8, v10')
        a(f'v_lshl_add_u32 v11, v{TMP}, 21, v11')
        a(f'v_and_b32 v{TMP}, 15, v10')
        a(f'v_lshl_add_u32 v11, v{TMP}, 4, v11')
        a('v_lshl_add_u32 v11, v7, 8, v11')
        a('v_cmp_gt_u32 vcc, 0x800, v10')
        a(f'v_mov_b32 v{TMP}, 0x70000000')
        a(f'v_cndmask_b32 v{SH+gi}, v{TMP}, v11, vcc')
    NV = 104
    def fl(soff): return ['s_mov_b64 exec, 1', f'buffer_store_dwordx2 v[{NV}:{NV+1}], off, s[8:11], {soff}', 's_mov_b64 exec, -1']
    a(f'v_mov_b32 v{NV}, s{S_NON}\nv_mov_b32 v{NV+1}, s{S_NON+1}')
    a('s_waitcnt vmcnt(0)')
    for l in fl('s39'): a(l + (' sc1' if l.startswith('buffer') else ''))
    T.stamp('c_pub0'); T.stamp('ap.A16')
    fixwait('fixa17', 45)
    a('s_barrier')
    a.vm = ['fl']
    T.stamp('p1_poll'); T.stamp('ap.A17')
    gemm64(1, ld_plain)
    T.stamp('p1_gemm'); T.stamp('g.p1_gemm')
    pack16(HB)
    pre2 = [wread(2, s_, nt) for s_ in range(NWS) for nt in range(4)] + [f'ds_read_b128 {vr(CV+4*nt,4)}, v{CSA_} offset:{CS1 + 64*nt}' for nt in range(4)]
    st2(tile_st(HB) + stats_lines(ACT) + ['s_mov_b64 exec, -1', 's_barrier'] + pre2 + ['s_waitcnt vmcnt(0)'] + fl(f's{S_FA}'))
    T.stamp('pub1'); T.stamp('g.pub1')
    a(f's_add_u32 s29, s{S_AB}, {G_H}')
    a(f's_add_u32 s{S_TA}, s{S_TA}, {(G_HH - G_H) & 0xffffffff}')
    a(f's_add_u32 s{S_FA}, s{S_FA}, {G_FHH - G_FH}')
    poll('v1', f's{S_P2}', '0xff')
    T.stamp('p2_poll')
    a.vissue(f'buffer_load_dwordx4 {vr(TMP,4)}, v{STV}, s[8:11], s{S_SL} offen sc1', 'st')
    a('s_waitcnt lgkmcnt(0)')
    fill = [f'v_add_f32 v{TMP}, v{TMP}, v{TMP+2}', f'v_add_f32 v{TMP+1}, v{TMP+1}, v{TMP+3}'] + xsum_lines(TMP, TMP+1, TMP+2, TMP+3) + [
        f'v_mul_f32 v{MU}, {H(-1/512)}, v{TMP}', f'v_mul_f32 v{TMP+1}, {H(1/512)}, v{TMP+1}',
        f'v_fma_f32 v{TMP+1}, -v{MU}, v{MU}, v{TMP+1}', f'v_max_f32 v{TMP+1}, 0, v{TMP+1}',
        f'v_add_f32 v{TMP+2}, {H(1e-5)}, v{TMP+1}', f'v_rsq_f32 v{TMP}, v{TMP+2}', f'v_mul_f32 v{TMP+2}, v{TMP}, v{TMP}',
        f'v_fmaak_f32 v{TMP+2}, v{TMP+2}, v{TMP+1}, {H(1e-5)}', f'v_rsq_f32 v{TMP+2}, v{TMP+2}', f'v_mul_f32 v{TMP+2}, v{TMP+2}, v{TMP}',
        f'v_mul_f32 v{TMP+3}, v{TMP+2}, v{MU}', f'v_mul_f32 v{MU}, v{MU}, v{TMP}'] + [f'v_mul_f32 v{CV+i}, v{TMP+3}, v{CV+i}' for i in range(16)]
    gemm64(2, ld_plain, fill, zero=True)
    T.stamp('p2_gemm'); T.stamp('g.p2_gemm')
    for p in range(8): a(f'v_pk_fma_f32 {vr(ACC+2*p,2)}, {vr(ACC+2*p,2)}, {vr(TMP+2,2)}, {vr(CV+2*p,2)} op_sel_hi:[1,0,1]')
    gelu_pk([ACC+2*p for p in range(8)], ACT)
    pack16(ACT+16)
    st2(tile_st(ACT+16), S_M2)
    a('s_barrier')
    wpre(3)
    for nt in range(4):
        for p in range(2):
            a(f'v_lshlrev_b32 v{ACC+4*nt+2*p}, 16, v{HB+2*nt+p}')
            a(f'v_and_b32 v{ACC+4*nt+2*p+1}, 0xffff0000, v{HB+2*nt+p}')
    for p in range(8): a(f'v_pk_fma_f32 {vr(ACC+2*p,2)}, {vr(ACC+2*p,2)}, {vr(TMP,2)}, {vr(MU,2)} op_sel_hi:[1,0,0]')
    a('s_waitcnt vmcnt(0)')
    st2(fl(f's{S_FA}'))
    sk = L('hx')
    a(f's_cmp_eq_u32 s{S_U+1}, 0\ns_cbranch_scc1 {sk}')
    for l in fl(f's{S_U+2}'): a(l + (' sc1' if l.startswith('buffer') else ''))
    a.label(sk)
    T.stamp('pub2'); T.stamp('g.pub2')
    a(f's_add_u32 s{S_TA}, s{S_TA}, {G_X1 - G_HH}')
    a(f's_add_u32 s{S_SA}, s{S_SA}, {G_ST2 - G_ST1}')
    a(f's_add_u32 s{S_FA}, s{S_FA}, {G_FX1 - G_FHH}')
    poll(f'v{PF3}', f's{S_GB}', f's[{S_M3}:{S_M3+1}]')
    T.stamp('p3_poll')
    def ld_shift(s):
        if s % 4 == 0: a(f's_mov_b32 s29, {GB + G_HH + (s>>2)*4096}')
        a.vissue(f'buffer_load_dwordx4 {vr(ACT+4*(s%12),4)}, v{SH+(s>>2)}, s[8:11], s29 offen offset:{(s&3)*1024} sc1', ('a', s))
    gemm64(3, ld_shift)
    T.stamp('p3_gemm'); T.stamp('g.p3_gemm')
    pack16(ACT+16)
    st2(tile_st(ACT+16) + stats_lines(ACT) + ['s_barrier', 's_waitcnt vmcnt(0)'] + fl(f's{S_FA}'))
    a(f's_lshl_b32 s26, s{S_Q}, 13')
    a(f'v_add_u32 v{AWB}, s26, v{AWB}')
    for i in range(8): a(f'ds_read_b128 {vr(W3+4*i,4)}, v{AWB} offset:{i*1024}')
    for nt in range(4):
        for p in range(2):
            a(f'v_lshlrev_b32 v{ACT+4*nt+2*p}, 16, v{HB+2*nt+p}')
            a(f'v_and_b32 v{ACT+4*nt+2*p+1}, 0xffff0000, v{HB+2*nt+p}')
    for p in range(8): a(f'v_pk_add_f32 {vr(ACT+2*p,2)}, {vr(ACT+2*p,2)}, {vr(ACC+2*p,2)}')
    a(f's_add_u32 s26, s26, {W3L}')
    a(f's_cmp_eq_u32 s{S_Q}, 3')
    a(f's_cselect_b32 s26, {RES3}, s26')
    a('v_xor_b32 v10, v6, v7')
    a('v_lshlrev_b32 v10, 4, v10')
    a('v_lshl_add_u32 v10, v6, 8, v10')
    a('v_add_u32 v10, s26, v10')
    for nt in range(4):
        a(f'v_xor_b32 v{TMP+nt}, {64*nt}, v10')
        a(f'ds_write_b128 v{TMP+nt}, {vr(ACT+4*nt,4)}')
    a('s_waitcnt lgkmcnt(0)')
    T.stamp('pub3'); T.stamp('g.pub3')
    p4_prologue()

    a.label(HJOIN)
    a.vm = []
    A4 = 24; C3 = 56; XF = 72; T4 = 88; PKO = 120
    flag_prep()
    a('s_waitcnt vmcnt(0)')
    a('s_barrier')
    T.stamp('p4_go'); T.stamp('g.p4go'); T.stamp('p4.go')
    h4, j4 = L('help'), L('join')
    a(f's_cmp_eq_u32 s{S_WAVE}, 3')
    a(f's_cbranch_scc1 {h4}')
    WS_ = [128+4*k for k in range(20)] + [96+4*k for k in range(6)] + [128+4*k for k in range(4)] + [96, 100]
    def rdX(i):
        a(f'ds_read_b128 {vr(XF+4*(i&3),4)}, v14 offset:{(i&1)*32768 + (i>>1)*512}')
    def ldW4(f):
        a(f's_add_u32 s30, s{S_W4}, {(f >> 2)*4096}')
        a.vissue(f'buffer_load_dwordx4 {vr(W4+4*f,4)}, v3, s[8:11], s30 offen offset:{(f&3)*1024} sc1', 'w4')
    def ldW3(f):
        a(f's_add_u32 s30, s{S_B}, {(f >> 2)*4096}')
        a.vissue(f'buffer_load_dwordx4 {vr(WS_[f],4)}, v3, s[8:11], s30 offen offset:{(f&3)*1024} {WF_}', ('w', f))
    def epi_scalar(mt, dst):
        b = T4 + 4*mt; A = A4 + 16*mt; t = T4 + 8
        l = []
        for g in range(4):
            R = [A+4*g+i for i in range(4)]; Tt = [t+4*(g&1)+i for i in range(4)]
            l += [f'v_fmac_f32 v{r}, v{b}, v{C3+4*g+i}' for i, r in enumerate(R)]
            l += [f'v_mul_f32 v{x}, v{r}, v{r}' for x, r in zip(Tt, R)]
            l += [f'v_fma_f32 v{x}, v{x}, v{b+2}, v{b+1}' for x in Tt]
            l += [f'v_mul_f32 v{x}, v{x}, v{r}' for x, r in zip(Tt, R)]
            l += [f'v_exp_f32 v{x}, v{x}' for x in Tt]
            l += [f'v_fma_f32 v{x}, v{x}, v{b+3}, v{b+3}' for x in Tt]
            l += [f'v_rcp_f32 v{x}, v{x}' for x in Tt]
            l += [f'v_mul_f32 v{r}, v{r}, v{x}' for x, r in zip(Tt, R)]
            l += [f'v_cvt_pk_bf16_f32 v{dst+2*g}, v{R[0]}, v{R[1]}', f'v_cvt_pk_bf16_f32 v{dst+2*g+1}, v{R[2]}, v{R[3]}']
        return l
    def only(kind, lines):
        sk = L('on')
        a(f's_cmp_lt_u32 s{S_WAVE}, 4')
        a(f's_cbranch_scc{1 if kind == "B" else 0} {sk}')
        for l in lines: a(l)
        a.label(sk)
    def flag_issue(sbase, tag, mask):
        a(f's_mov_b64 exec, {mask}')
        a.vissue(f'buffer_load_dwordx2 v[16:17], v1, s[8:11], {sbase} offen sc1', tag)
        a('s_mov_b64 exec, -1')
    def flag_check(sbase, tag, mask):
        a.vwait(tag)
        bk_ = L('bk')
        a(f's_mov_b64 exec, {mask}')
        a(f'v_cmp_ne_u64 vcc, {sr(S_NON,2)}, v[16:17]')
        a('s_mov_b64 exec, -1')
        a(f's_cbranch_vccz {bk_}')
        keep = list(a.vm)
        poll('v1', sbase, mask)
        a.vm = keep
        a.label(bk_)
    for i in range(3): rdX(i)
    a('s_setprio 2')
    only('B', ['s_setprio 1'] + x1_lines(1))
    for i in range(64):
        ks, mt = i >> 1, i & 1
        if i == 28:
            a.vwait(('w', 20))
            a('s_barrier')
        if i == 60:
            a(f'ds_read_b128 {vr(T4,4)}, v16 offset:{ST4}')
            a(f'ds_read_b128 {vr(T4+4,4)}, v16 offset:{ST4+512}')
        if i == 2: T.stamp('p4.first')
        if i == 32: T.stamp('p4.half')
        if i + 3 < 64: rdX(i + 3)
        lg = f'lgkmcnt({min(3, 63 - i) + (2 if i in (60, 61, 62) else 0)})'
        if mt == 0 and ks >= 20: a.vwait(('w', ks), lg)
        else: a(f's_waitcnt {lg}')
        c_ = '0' if ks == 0 else vr(A4+16*mt,16)
        a(f'v_mfma_f32_32x32x16_bf16 {vr(A4+16*mt,16)}, {vr(WS_[ks],4)}, {vr(XF+4*(i&3),4)}, {c_}')
        if mt == 1 and 4 <= ks < 14: ldW3(16 + ks)
        if mt == 1 and 14 <= ks < 20: ldW4(ks - 14)
        if mt == 1 and ks in (20, 21): ldW3(10 + ks)
    a('s_setprio 3')
    T.stamp('p4_gemm'); T.stamp('p4.pass1')
    def epi_packed(mt, dst):
        b = T4 + 4*mt; A = A4 + 16*mt; t = 128
        l = [f'v_mov_b32 v96, v{b+1}', f'v_mov_b32 v98, v{b+3}']
        l += [f'v_pk_fma_f32 {vr(A+2*p,2)}, {vr(C3+2*p,2)}, {vr(b,2)}, {vr(A+2*p,2)} op_sel_hi:[1,0,1]' for p in range(8)]
        l += [f'v_pk_mul_f32 {vr(t+2*p,2)}, {vr(A+2*p,2)}, {vr(A+2*p,2)}' for p in range(8)]
        l += [f'v_pk_fma_f32 {vr(t+2*p,2)}, {vr(t+2*p,2)}, {vr(b+2,2)}, v[96:97] op_sel_hi:[1,0,0]' for p in range(8)]
        l += [f'v_pk_mul_f32 {vr(t+2*p,2)}, {vr(t+2*p,2)}, {vr(A+2*p,2)}' for p in range(8)]
        l += [f'v_exp_f32 v{t+k}, v{t+k}' for k in range(16)]
        l += [f'v_pk_fma_f32 {vr(t+2*p,2)}, {vr(t+2*p,2)}, v[98:99], v[98:99] op_sel_hi:[1,0,0]' for p in range(8)]
        l += [f'v_rcp_f32 v{t+k}, v{t+k}' for k in range(16)]
        l += [f'v_pk_mul_f32 {vr(A+2*p,2)}, {vr(A+2*p,2)}, {vr(t+2*p,2)}' for p in range(8)]
        l += [f'v_cvt_pk_bf16_f32 v{dst+p}, v{A+2*p}, v{A+2*p+1}' for p in range(8)]
        return l
    a('s_nop 9')
    stl = lambda dst, sb: [f'buffer_store_dwordx4 {vr(dst,4)}, v3, s[8:11], {sb} offen', f'buffer_store_dwordx4 {vr(dst+4,4)}, v3, s[8:11], {sb} offen offset:1024']
    def with_w4(lines):
        out = []; step = len(lines) // 11; f = 6
        for k, l in enumerate(lines):
            out.append(l)
            if k % step == step - 1 and f < 16:
                out += [f's_add_u32 s30, s{S_W4}, {(f >> 2)*4096}', f'buffer_load_dwordx4 {vr(W4+4*f,4)}, v3, s[8:11], s30 offen offset:{(f&3)*1024} sc1']
                f += 1
        assert f == 16
        return out
    only('A', with_w4(epi_scalar(0, PKO)))
    only('B', with_w4(epi_packed(0, PKO)))
    st2(stl(PKO, 's26'))
    T.stamp('p4.epi0')
    a('s_setprio 2')
    ep = epi_packed(1, 104)
    for l in ep[:58]: a(l)
    st2(['s_waitcnt vmcnt(0)'] + flag_lines('s35'))
    for l in ep[58:]: a(l)
    T.stamp('p4.epi1')
    st2(stl(104, 's27'))
    flag_issue('s32', 'fA', '0x7f')
    st2(['s_waitcnt vmcnt(0)'] + flag_lines('s29'))
    a('s_setprio 0')
    a(f's_branch {j4}')
    a.label(h4)
    for k in range(4): a(f'buffer_load_dwordx4 {vr(24+4*k,4)}, v3, s[8:11], s28 offen offset:{1024*k} sc1')
    a('v_lshrrev_b32 v40, 2, v2')
    a('v_lshl_add_u32 v40, v9, 4, v40')
    a('v_lshlrev_b32 v40, 4, v40')
    a('v_cmp_eq_u32 s[74:75], 1, v9')
    a(f'v_cmp_eq_u32 s[{S_A}:{S_B}], 2, v9')
    a('v_cmp_eq_u32 vcc, 3, v9')
    a('s_waitcnt vmcnt(0) lgkmcnt(0)')
    for k in range(4): a(f'v_pk_add_f32 {vr(24+4*k,2)}, {vr(24+4*k,2)}, {vr(26+4*k,2)}')
    for perm in ('[1,0,3,2]', '[2,3,0,1]'):
        for k in range(4):
            for e in range(2): a(f'v_add_f32_dpp v{24+4*k+e}, v{24+4*k+e}, v{24+4*k+e} quad_perm:{perm} row_mask:0xf bank_mask:0xf')
    for k, m in ((1, 's[74:75]'), (2, f's[{S_A}:{S_B}]'), (3, 'vcc')):
        a(f'v_cndmask_b32 v24, v24, v{24+4*k}, {m}')
        a(f'v_cndmask_b32 v25, v25, v{25+4*k}, {m}')
    a(f'v_mul_f32 v24, {H(-1/512)}, v24')
    a(f'v_mul_f32 v25, {H(1/512)}, v25')
    a('v_fma_f32 v25, -v24, v24, v25')
    a('v_max_f32 v25, 0, v25')
    a(f'v_add_f32 v28, {H(1e-5)}, v25')
    a('v_rsq_f32 v29, v28')
    a('v_sqrt_f32 v27, v28')
    a(f'v_mul_f32 v25, {H(GELU_C0)}, v29')
    a('v_mul_f32 v26, v29, v29')
    a('v_mul_f32 v26, v26, v29')
    a(f'v_mul_f32 v26, {H(GELU_C1)}, v26')
    a(f'ds_write_b128 v40, v[24:27] offset:{ST4}')
    a('s_waitcnt lgkmcnt(0)')
    a('s_barrier')
    for f in range(4): ldW4(f)
    poll('v1', 's32', '0x7f', sleep=8)
    a(f'v_mov_b32 v16, s{S_NON}\nv_mov_b32 v17, s{S_NON+1}')
    a.label(j4)
    a.vm = []
    T.stamp('pub4'); T.stamp('p4.pub')

    RS_ = 120
    HAS = [56, 60, 64, 68, 128, 132, 136, 140, 72, 76, 80, 84]
    ACC5 = lambda nt, mt: (24 if mt == 0 else 88) + 16*nt
    order = [(mt, ks) for mt in range(2) for ks in range(14)]
    def ldA(i):
        mt, ks = order[i]
        a(f's_add_u32 s30, s31, {mt*114688 + (ks//4)*4096}')
        a.vissue(f'buffer_load_dwordx4 {vr(HAS[i % 12],4)}, v3, s[8:11], s30 offen offset:{(ks%4)*1024} {HF_}', ('h', i))
    flag_check('s32', 'none', '0x7f')
    a('s_add_u32 s32, s32, 2048')
    T.stamp('p5_poll'); T.stamp('p4.p5poll')
    for i in range(6): ldA(i)
    a(f'ds_read_b128 {vr(RS_,4)}, v20')
    a(f'ds_read_b128 {vr(RS_+4,4)}, v21')
    def wr_list(mt):
        l = []
        for nt in range(2):
            for q in range(4):
                oct_ = 4*nt + q
                l.append([f'v_xor_b32 v{18+(q&1)}, {oct_*32 + mt*65536}, v13',
                          f'ds_write_b128 v{18+(q&1)}, {vr(ACC5(nt,mt)+4*q,4)} offset:{RED + oct_*1024}'])
        return l
    wl = wr_list(0)
    nxt = 6
    RD = 144; SUM = RS_
    L5 = int(OP.get('l5', 5))
    for i, (mt, ks) in enumerate(order):
        a.vwait(('h', i), 'lgkmcnt(0)' if i in (0,) else '')
        if i == 14: a('s_barrier')
        if i in (0, 7, 14, 21): T.stamp(f'p4.p5_{i}')
        for nt in range(2):
            A = ACC5(nt, mt)
            c_ = '0' if ks == 0 else vr(A,16)
            a(f'v_mfma_f32_32x32x16_bf16 {vr(A,16)}, {vr(W4+8*ks+4*nt,4)}, {vr(HAS[i % 12],4)}, {c_}')
        if i == 3: flag_issue('s32', 'fB', '0x7f')
        if i == 6: flag_check('s32', 'fB', '0x7f')
        lim = 14 if i < 6 else 28
        for _ in range(2):
            if nxt < lim and nxt <= i + L5:
                ldA(nxt); nxt += 1
        if i >= 15 and wl:
            for l in wl.pop(0): a(l)
    assert nxt == 28 and not wl
    T.stamp('p5_gemm'); T.stamp('p4.p5gemm')
    for g in wr_list(1):
        for l in g: a(l)
    a('s_waitcnt lgkmcnt(0)')
    a('s_barrier')
    T.stamp('p4.E1')
    for mt in range(2):
        for src in range(8):
            a(f'ds_read_b128 {vr(RD+32*mt+4*src,4)}, v{22+mt} offset:{RED + src*8192}')
    for mt in range(2):
        for src in range(8):
            if src % 2 == 0: a(f's_waitcnt lgkmcnt({14-8*mt-src})')
            for p in range(2): a(f'v_pk_add_f32 {vr(SUM+4*mt+2*p,2)}, {vr(SUM+4*mt+2*p,2)}, {vr(RD+32*mt+4*src+2*p,2)}')
        for p in range(2): a(f'v_cvt_pk_bf16_f32 v{24+2*mt+p}, v{SUM+4*mt+2*p}, v{SUM+4*mt+2*p+1}')
        a(f'buffer_store_dwordx2 {vr(24+2*mt,2)}, v12, s[16:19], s{72+mt} offen')
    if diag: a('s_waitcnt vmcnt(0)')
    fixwait('fixend', 70)
    T.stamp('end'); T.stamp('end_rt', True)
    T.flush(P_WS, 0, S_WAVE, TS)
    if 'dbgout' in opt:
        sk = L('do')
        a(f's_lshl_b32 s26, s{S_WAVE}, 8')
        a('s_or_b32 s26, s26, s2')
        a(f's_cmp_lg_u32 s26, 77\ns_cbranch_scc1 {sk}')
        srd(16, P_DBG, 256)
        a('s_mov_b64 exec, 1')
        for k, nm in enumerate(['c_b0', 'c_gemm', 'c_pub', 'c_kv0', 'c_attn_end', 'p1_poll', 'pub1', 'pub2', 'pub3', 'p4_go', 'pub4', 'p5_poll', 'p5_gemm', 'end_rt']):
            a(f's_sub_u32 s26, s{76+T.names.index(nm)}, s76')
            a('v_mov_b32 v1, s26')
            a(f'buffer_store_dword v1, off, s[16:19], 0 offset:{8+4*k}')
        a.label(sk)
    a('s_endpgm')

    for (lab, lines, back) in a.cold:
        a.label(lab)
        a('s_nop 7')
        for l in lines: a(l)
        a('s_nop 7')
        a(f's_branch {back}')
    NM = 128
    a.label(FB)
    a('s_nop 15')
    a(f's_add_u32 s30, s{S_HD}, 0x10000')
    a(f's_add_u32 s31, s{S_HD}, 0x20000')
    a(f'v_mov_b32 v{NM}, 0xff800000\nv_mov_b32 v{NM+16}, 0xff800000')
    a('s_mov_b32 s32, 0')
    l1 = L('fb1')
    a.label(l1)
    a('s_add_u32 s33, s30, s32')
    a(f'buffer_load_dwordx4 {vr(KB+4,4)}, v3, s[8:11], s33 offen sc1')
    a('s_waitcnt vmcnt(0)')
    for u, S in ((0, SA), (1, SB)):
        a(f'v_mfma_f32_32x32x16_bf16 {vr(S,16)}, {vr(KB+4,4)}, {vr(Q+4*u,4)}, 0')
    for u, S in ((0, SA), (1, SB)):
        for i in range(8): a(f'v_max3_f32 v{NM+16*u}, v{S+2*i}, v{S+2*i+1}, v{NM+16*u}')
    a('s_add_u32 s32, s32, 1024')
    a('s_cmp_lt_u32 s32, 0x10000')
    a(f's_cbranch_scc1 {l1}')
    for u in range(2):
        m = NM + 16*u
        a(f'v_mov_b32 v{m+1}, v{m}')
        a(f'v_permlane32_swap_b32 v{m}, v{m+1}')
        a(f'v_max_f32 v{m}, v{m}, v{m+1}')
        a(f'v_sub_f32 v{m}, 0, v{m}')
        for i in range(1, 16): a(f'v_mov_b32 v{m+i}, v{m}')
    for i in range(32): a(f'v_mov_b32 v{O+i}, 0')
    a('v_and_b32 v10, 27, v4')
    a('v_cmp_eq_u32 vcc, 16, v10')
    a('v_mov_b32 v10, 0x3f803f80')
    for i in range(8): a(f'v_cndmask_b32 v{VB+i}, 0, v10, vcc')
    a('v_lshlrev_b32 v10, 8, v5')
    a('v_lshl_add_u32 v10, v6, 4, v10')
    a('s_mov_b32 s32, 0')
    a('s_mov_b32 s34, 0xffff\ns_mov_b32 s35, 0xffff')
    l2 = L('fb2')
    a.label(l2)
    a('s_add_u32 s33, s30, s32')
    a(f'buffer_load_dwordx4 {vr(KB+4,4)}, v3, s[8:11], s33 offen sc1')
    a('s_add_u32 s33, s31, s32')
    a('s_mov_b64 exec, s[34:35]')
    a(f'buffer_load_dwordx4 {vr(VB,4)}, v10, s[8:11], s33 offen sc1')
    a(f'buffer_load_dwordx4 {vr(VB+4,4)}, v10, s[8:11], s33 offen offset:512 sc1')
    a('s_mov_b64 exec, -1')
    a('s_waitcnt vmcnt(0)')
    for u, S in ((0, SA), (1, SB)):
        a(f'v_mfma_f32_32x32x16_bf16 {vr(S,16)}, {vr(KB+4,4)}, {vr(Q+4*u,4)}, {vr(NM+16*u,16)}')
    for u, S in ((0, SA), (1, SB)):
        for i in range(16): a(f'v_exp_f32 v{S+i}, v{S+i}')
        for j in range(8): a(f'v_cvt_pk_bf16_f32 v{P+j}, v{S+2*j}, v{S+2*j+1}')
        for f in range(2):
            a(f'v_mfma_f32_32x32x16_bf16 {vr(O+16*u,16)}, {vr(VB+4*f,4)}, {vr(P+4*f,4)}, {vr(O+16*u,16)}')
        a('s_nop 15')
    a('s_add_u32 s32, s32, 1024')
    a('s_cmp_lt_u32 s32, 0x10000')
    a(f's_cbranch_scc1 {l2}')
    a('s_nop 15')
    a(f's_branch {FBR}')
    a.label(END)
    a('s_endpgm')
    return a, LDS_SIZE
```

```python
from asmlib import *
from layout import *
import struct
def f2u(x): return struct.unpack('<I', struct.pack('<f', x))[0]
def H(x): return hex(f2u(x))

LDS_SIZE = 160 * 1024
XL = 0; WL = 65536; WSLOT = 24576; NSLOT = 3
CSUM = WL + NSLOT * WSLOT
RST = CSUM + 1024
LOW = 0; PREP = 0; CONST = 28672; KV = 32768; WA = 32768; WB = 98304
PRG = CONST + 64; PCN = CONST + 96; KVC = CONST + 100
W1X = WB + 32768; W2L = WB + 36864; NW2L = 7; CS1 = CONST; C3L = CONST + 256
W3L = WB; RES3 = W3L + 24576; NONL = RST + 512; ST4 = CONST + 2048; PKB = 0
XT = WA
RED = 0

GELU_C0 = -2.0 * 0.7978845608028654 * 1.4426950408889634
GELU_C1 = GELU_C0 * 0.044715

S_WAVE, S_X, S_I, S_RB, S_CT, S_R16 = 20, 21, 22, 23, 24, 25
P_X, P_WQKV, P_WO, P_W1, P_W2, P_W3, P_W4, P_OUT, P_DBG, P_WS = 36, 38, 40, 44, 46, 48, 50, 52, 54, 56
S_NON = 58; S_SPIN = 60; S_MODE = 61; S_C1 = 62; S_ONE = 64
S_QKV, S_HD, S_RHO, S_Q, S_SLAB, S_M2 = 66, 67, 68, 69, 70, 71
S_U = 72
S_GB = 3; S_J = 4; S_W4 = 5; S_A = 6; S_B = 7; S_C0 = 42
W3 = 128; W4 = 144

def gen_mega(name='mega_kernel', diag=False, force_safe=False, force_fallback=False, sel=None, opt=''):
    a = Asm()
    T = Stamper(a, 76, diag); a.T = T; T.sel = sel; T.rt = ('rt' in opt.split(','))
    uid = [0]
    def L(s): uid[0] += 1; return f'L_{s}{uid[0]}'
    def srd(base, p, size):
        a(f's_mov_b32 s{base}, s{p}\ns_mov_b32 s{base+1}, s{p+1}\ns_mov_b32 s{base+2}, {hex(size)}\ns_mov_b32 s{base+3}, 0x20000')
    END = f'{name}_end'
    OP = dict(kv.split('=') for kv in opt.split(',') if '=' in kv)
    HGX = int(OP.get('hgx', 5))
    HF_ = OP.get('hf', 'sc1').replace('+', ' '); WF_ = OP.get('wf', 'sc1').replace('+', ' ')
    NR3 = 20
    JF = '' if 'jplain' in opt else 'sc1'
    KVNT = 'nt ' if 'kvnt' in opt else ''

    a(f'.globl {name}\n.p2align 8\n.type {name},@function')
    a.label(name)
    a(f's_cmp_ge_u32 s2, 256\ns_cbranch_scc1 {END}')
    a('s_load_dwordx16 s[36:51], s[0:1], 0')
    a('s_load_dwordx4 s[52:55], s[0:1], 64')
    a('s_load_dwordx2 s[56:57], s[0:1], 80')
    a('v_lshrrev_b32 v1, 6, v0')
    a('v_and_b32 v2, 63, v0')
    a(f'v_readfirstlane_b32 s{S_WAVE}, v1')
    a(f's_and_b32 s{S_X}, s2, 7')
    a(f's_lshr_b32 s{S_I}, s2, 3')
    a(f's_lshr_b32 s{S_RB}, s{S_I}, 3')
    a(f's_and_b32 s{S_CT}, s{S_I}, 7')
    a(f's_and_b32 s{S_Q}, s{S_WAVE}, 3')
    if diag:
        for i in range(24): a(f's_mov_b32 s{76+i}, 0')
        T.stamp('start_rt', True); T.stamp('start')
    if 'fix' in opt:
        a('s_memrealtime s[98:99]')
    def fixwait(tag, us):
        if tag not in opt.split(','): return
        lp = L('fx')
        a.label(lp)
        a('s_memrealtime s[100:101]')
        a('s_waitcnt lgkmcnt(0)')
        a('s_sub_u32 s100, s100, s98')
        a(f's_cmp_lt_u32 s100, {us*100}')
        a(f's_cbranch_scc1 {lp}')
    CW1 = L('cw1')
    a(f's_cmp_lt_u32 s{S_WAVE}, 4')
    a(f's_cbranch_scc1 {CW1}')

    def common_consts():
        a('v_lshlrev_b32 v3, 4, v2')
        a('v_and_b32 v4, 31, v2')
        a('v_lshrrev_b32 v5, 5, v2')
        a('v_and_b32 v6, 15, v2')
        a('v_lshrrev_b32 v7, 4, v2')
        a('v_bfe_u32 v8, v2, 2, 2')
        a('v_and_b32 v9, 3, v2')
        a('v_lshlrev_b32 v1, 3, v2')
        a(f's_lshl_b32 s{S_R16}, s{S_RB}, 2')
        a(f's_add_u32 s{S_SLAB}, s{S_R16}, s{S_Q}')
        a(f's_lshl_b32 s{S_GB}, s{S_X}, 21')
        a(f's_add_u32 s{S_GB}, s{S_GB}, {GB}')
        a(f's_mul_i32 s{S_QKV}, s{S_X}, {QKVG}')
        a(f's_mul_i32 s{S_HD}, s{S_RB}, {HDS}')
        a(f's_add_u32 s{S_HD}, s{S_HD}, s{S_QKV}')
        a(f's_cmp_gt_u32 s{S_WAVE}, 3')
        a(f's_subb_u32 s{S_J}, s{S_WAVE}, 0')
        a(f's_mul_i32 s{S_W4}, s{S_CT}, 229376')
        a(f's_mul_i32 s26, s{S_WAVE}, 28672')
        a(f's_add_u32 s{S_W4}, s{S_W4}, s26')
        a(f's_add_u32 s{S_W4}, s{S_W4}, {W4F}')
        a(f's_mov_b32 s{S_C1}, {H(GELU_C1)}\ns_mov_b32 s{S_C1+1}, {H(GELU_C1)}')
        a(f's_mov_b32 s{S_ONE}, 1.0\ns_mov_b32 s{S_ONE+1}, 1.0')

    def get_nonce(sleep=0):
        lp, done = L('non'), L('nond')
        srd(16, P_DBG, 256)
        a(f's_mov_b32 s{S_SPIN}, 0')
        a.label(lp)
        if sleep: a(f's_sleep {sleep}')
        a('buffer_load_dwordx2 v[10:11], off, s[16:19], 0 sc1')
        a(f's_add_u32 s{S_SPIN}, s{S_SPIN}, 1')
        a('s_waitcnt vmcnt(0)')
        a(f'v_readfirstlane_b32 s{S_NON}, v10')
        a(f'v_readfirstlane_b32 s{S_NON+1}, v11')
        a(f's_cmp_gt_u32 s{S_SPIN}, 0x20000')
        a(f's_cbranch_scc1 {done}')
        a(f's_cmp_eq_u32 s{S_NON}, 0')
        a(f's_cbranch_scc1 {lp}')
        a.label(done)
        a.vm = []

    def get_nonce_s(sleep=0):
        lp, done = L('non'), L('nond')
        a(f's_mov_b32 s{S_SPIN}, 0')
        a.label(lp)
        if sleep: a(f's_sleep {sleep}')
        a(f's_load_dwordx2 s[{S_NON}:{S_NON+1}], s[{P_DBG}:{P_DBG+1}], 0 glc')
        a(f's_add_u32 s{S_SPIN}, s{S_SPIN}, 1')
        a(f's_cmp_gt_u32 s{S_SPIN}, 0x20000')
        a('s_waitcnt lgkmcnt(0)')
        a(f's_cbranch_scc1 {done}')
        a(f's_cmp_eq_u32 s{S_NON}, 0')
        a(f's_cbranch_scc1 {lp}')
        a.label(done)

    def poll(voff, soff, execmask=None, sleep=0):
        lp, done = L('poll'), L('polld')
        if execmask: a(f's_mov_b64 exec, {execmask}')
        a(f's_mov_b32 s{S_SPIN}, 0')
        a.label(lp)
        if sleep: a(f's_sleep {sleep}')
        a(f'buffer_load_dwordx2 v[10:11], {voff}, s[8:11], {soff} offen sc1')
        a(f's_add_u32 s{S_SPIN}, s{S_SPIN}, 1')
        a(f's_cmp_gt_u32 s{S_SPIN}, 0x20000')
        a('s_waitcnt vmcnt(0)')
        a(f's_cbranch_scc1 {done}')
        a(f'v_cmp_ne_u64 vcc, {sr(S_NON,2)}, v[10:11]')
        a(f's_cbranch_vccnz {lp}')
        a.label(done)
        if execmask: a('s_mov_b64 exec, -1')
        a.vm = []

    def st2(lines, mode=S_MODE):
        sk, dn = L('sf'), L('sd')
        a(f's_cmp_eq_u32 s{mode}, 0')
        a(f's_cbranch_scc1 {sk}')
        for l in lines: a(l)
        a.label(dn)
        a.cold.append((sk, [l + ' sc1' if l.startswith('buffer_store') else l for l in lines], dn))
        a.vm += ['st'] * sum(l.startswith('buffer_store') for l in lines)
    a.cold = []

    def flag_lines(soff):
        return ['s_mov_b64 exec, 1', f'buffer_store_dwordx2 v[10:11], off, s[8:11], {soff}', 's_mov_b64 exec, -1']
    def flag_prep():
        a(f'v_mov_b32 v10, s{S_NON}\nv_mov_b32 v11, s{S_NON+1}')
    def flag_sc1(soff):
        flag_prep()
        for l in flag_lines(soff): a(l + (' sc1' if l.startswith('buffer') else ''))
        a.vm.append('fl')

    def xcc_load(vreg, vt):
        a(f's_lshl_b32 s26, s{S_X}, 12')
        a(f's_add_u32 s26, s26, {F_XCC}')
        a(f'v_lshlrev_b32 v{vt}, 7, v4')
        a(f'buffer_load_dwordx2 {vr(vreg,2)}, v{vt}, s[8:11], s26 offen sc1')
    def calc_mode(vreg):
        a('s_getreg_b32 s34, hwreg(HW_REG_XCC_ID)')
        a('s_and_b32 s34, s34, 15')
        a(f's_or_b32 s34, s34, s{S_NON}')
        a(f's_mov_b32 s35, s{S_NON+1}')
        a(f'v_cmp_ne_u64 vcc, s[34:35], {vr(vreg,2)}')
        a('s_cmp_eq_u64 vcc, 0')
        a(f's_cselect_b32 s{S_MODE}, 1, 0')
        a(f's_cmp_eq_u32 s{S_NON}, 0')
        a(f's_cselect_b32 s{S_MODE}, 0, s{S_MODE}')
        if force_safe: a(f's_mov_b32 s{S_MODE}, 0')
    def xcc_publish(v0, v1):
        a('s_getreg_b32 s27, hwreg(HW_REG_XCC_ID)')
        a('s_and_b32 s27, s27, 15')
        a(f's_or_b32 s27, s27, s{S_NON}')
        a(f'v_mov_b32 v{v0}, s27\nv_mov_b32 v{v1}, s{S_NON+1}')
        a(f's_lshl_b32 s26, s{S_X}, 12')
        a(f's_lshl_b32 s27, s{S_I}, 7')
        a('s_add_u32 s26, s26, s27')
        a(f's_add_u32 s26, s26, {F_XCC}')
        a('s_mov_b64 exec, 1')
        a(f'buffer_store_dwordx2 v[{v0}:{v1}], off, s[8:11], s26 sc1')
        a('s_mov_b64 exec, -1')

    def unit_decode(su):
        l3, l4, dn = L('u3'), L('u4'), L('ud')
        a('s_mov_b32 s15, 0x20000')
        a(f's_cmp_ge_u32 s{su}, 832\ns_cbranch_scc1 {l4}')
        a(f's_cmp_ge_u32 s{su}, 384\ns_cbranch_scc1 {l3}')
        a(f's_lshr_b32 s32, s{su}, 7')
        a(f's_bfe_u32 s33, s{su}, 0x40003')
        a(f's_and_b32 s34, s{su}, 7')
        a('s_lshl_b32 s27, s33, 15')
        a('s_lshl_b32 s35, s34, 7')
        a('s_add_u32 s27, s27, s35')
        a('s_lshl_b32 s28, s32, 19')
        a('s_lshl_b32 s35, s34, 16')
        a('s_add_u32 s28, s28, s35')
        a('s_lshl_b32 s35, s33, 12')
        a('s_add_u32 s28, s28, s35')
        a(f's_add_u32 s28, s28, {WOF}')
        a('s_min_u32 s26, s32, 1')
        a('s_cmp_eq_u32 s32, 1')
        a(f's_cselect_b64 s[12:13], s[{P_W1}:{P_W1+1}], s[{P_W2}:{P_W2+1}]')
        a('s_cmp_eq_u32 s32, 0')
        a(f's_cselect_b64 s[12:13], s[{P_WO}:{P_WO+1}], s[12:13]')
        a('s_mov_b32 s14, 0x80000')
        a(f's_branch {dn}')
        a.label(l3)
        a(f's_sub_u32 s32, s{su}, 384')
        a('s_mul_hi_u32 s33, s32, 0x0924924a')
        a('s_mul_i32 s34, s33, 28')
        a('s_sub_u32 s34, s32, s34')
        a(f's_mul_i32 s27, s33, {32*3584}')
        a('s_lshl_b32 s35, s34, 7')
        a('s_add_u32 s27, s27, s35')
        a('s_lshl_b32 s28, s34, 16')
        a('s_lshl_b32 s35, s33, 11')
        a('s_add_u32 s28, s28, s35')
        a(f's_add_u32 s28, s28, {W3F}')
        a('s_mov_b32 s26, 2')
        a(f's_mov_b64 s[12:13], s[{P_W3}:{P_W3+1}]')
        a('s_mov_b32 s14, 0x1c0000')
        a(f's_branch {dn}')
        a.label(l4)
        a(f's_sub_u32 s32, s{su}, 832')
        a('s_lshr_b32 s33, s32, 3')
        a('s_and_b32 s34, s32, 7')
        a('s_lshl_b32 s27, s33, 15')
        a('s_lshl_b32 s35, s34, 7')
        a('s_add_u32 s27, s27, s35')
        a('s_mul_i32 s28, s34, 229376')
        a('s_lshl_b32 s35, s33, 12')
        a('s_add_u32 s28, s28, s35')
        a(f's_add_u32 s28, s28, {W4F}')
        a('s_mov_b32 s26, 3')
        a(f's_mov_b64 s[12:13], s[{P_W4}:{P_W4+1}]')
        a('s_mov_b32 s14, 0x1c0000')
        a.label(dn)

    def p4_prologue():
        C3 = 56
        a('v_lshrrev_b32 v15, 4, v4')
        a('v_lshlrev_b32 v14, 14, v15')
        a('v_lshl_add_u32 v14, v5, 8, v14')
        a('v_lshl_add_u32 v14, v6, 4, v14')
        a(f'v_add_u32 v14, {XT}, v14')
        a('v_mul_u32_u24 v15, 0xe000, v15')
        a('v_lshl_add_u32 v15, v5, 8, v15')
        a('v_lshl_add_u32 v15, v6, 4, v15')
        a('v_lshlrev_b32 v16, 4, v4')
        a(f's_lshl_b32 s26, s{S_J}, 7')
        a(f's_add_u32 s26, s26, {C3L}')
        a('v_lshl_add_u32 v17, v5, 4, s26')
        for q in range(4): a(f'ds_read_b128 {vr(C3+4*q,4)}, v17 offset:{32*q}')
        a(f's_lshl_b32 s26, s{S_J}, 12')
        a('v_add_u32 v18, s26, v3')
        a(f'v_add_u32 v19, {PKB}, v18')
        a(f's_lshl_b32 s28, s{S_R16}, 10')
        a(f's_add_u32 s28, s28, s{S_GB}')
        a(f's_add_u32 s28, s28, {G_ST2}')
        a(f's_mov_b32 s33, s{S_HD}')
        a(f's_lshl_b32 s34, s{S_RB}, 9')
        a(f's_add_u32 s34, s34, s{S_GB}')
        a(f's_add_u32 s34, s34, {G_FH2}')
        a(f's_lshl_b32 s35, s{S_CT}, 6')
        a('s_add_u32 s35, s35, s34')
        a(f's_lshl_b32 s29, s{S_J}, 3')
        a('s_add_u32 s35, s35, s29')
        a('s_add_u32 s29, s35, 2048')
        a(f's_lshl_b32 s32, s{S_WAVE}, 6')
        a('s_add_u32 s32, s32, s34')
        a(f's_mul_i32 s31, s{S_WAVE}, 14336')
        a('s_add_u32 s31, s31, s33')
        a(f's_lshl_b32 s27, s{S_Q}, 2')
        a('v_add_u32 v10, s27, v7')
        a('v_xor_b32 v12, v10, v6')
        a('v_lshlrev_b32 v12, 4, v12')
        a('v_lshl_add_u32 v12, v10, 8, v12')
        a(f's_cmp_gt_u32 s{S_WAVE}, 3')
        a('s_cselect_b32 s26, 8192, 0')
        a(f's_mov_b32 s27, {W3L + 16384}')
        a(f's_cselect_b32 s27, {RES3}, s27')
        a(f's_add_u32 s26, s26, {W3L}')
        a('v_add_u32 v20, s26, v12')
        a('v_add_u32 v21, s27, v12')
        a(f's_lshl_b32 s27, s{S_WAVE}, 13')
        a('v_lshlrev_b32 v13, 4, v5')
        a('v_xor_b32 v13, v13, v3')
        a('v_add_u32 v13, s27, v13')
        a(f's_lshl_b32 s27, s{S_WAVE}, 2')
        a('v_add_u32 v10, s27, v7')
        a('v_xor_b32 v10, v10, v6')
        a('v_lshlrev_b32 v10, 4, v10')
        a('v_and_b32 v11, 1, v2')
        a('v_lshl_add_u32 v10, v11, 9, v10')
        a('v_lshrrev_b32 v11, 1, v6')
        a('v_lshl_add_u32 v22, v11, 10, v10')
        a('v_add_u32 v23, 0x10000, v22')
        a('v_lshlrev_b32 v12, 10, v7')
        a('v_lshl_add_u32 v12, v6, 3, v12')
        srd(16, P_OUT, 0x200000)
        a(f's_lshl_b32 s72, s{S_X}, 4')
        a(f's_add_u32 s72, s72, s{S_R16}')
        a('s_lshl_b32 s72, s72, 14')
        a(f's_lshl_b32 s27, s{S_WAVE}, 12')
        a('s_add_u32 s72, s72, s27')
        a(f's_lshl_b32 s27, s{S_CT}, 7')
        a('s_add_u32 s72, s72, s27')
        a('s_add_u32 s73, s72, 32768')
        a(f's_mul_i32 s26, s{S_CT}, 14336')
        a('s_add_u32 s26, s26, s33')
        a(f's_lshl_b32 s27, s{S_J}, 11')
        a('s_add_u32 s26, s26, s27')
        a(f's_add_u32 s27, s26, {2*57344}')

    VX, VWQ = 12, 13
    a('s_setprio 3')
    a('s_memrealtime s[32:33]')
    a('v_lshrrev_b32 v3, 3, v2')
    a(f's_lshl_b32 s27, s{S_Q}, 3')
    a('v_add_u32 v6, s27, v3')
    a('v_lshrrev_b32 v4, 4, v2')
    a(f's_and_b32 s27, s{S_Q}, 1')
    a('s_lshl_b32 s27, s27, 2')
    a('v_add_u32 v4, s27, v4')
    a('v_and_b32 v5, 7, v2')
    a('v_xor_b32 v4, v4, v5')
    a('v_lshlrev_b32 v4, 4, v4')
    a(f'v_lshl_add_u32 v{VX}, v6, 10, v4')
    a('v_bfe_u32 v4, v3, 1, 1')
    a('v_lshlrev_b32 v4, 2, v4')
    a('v_bfe_u32 v7, v3, 2, 1')
    a('v_lshl_add_u32 v4, v7, 1, v4')
    a('v_xor_b32 v4, v4, v5')
    a('v_lshlrev_b32 v55, 4, v4')
    a('s_movk_i32 s27, 0xc00')
    a(f'v_mad_u32_u24 v{VWQ}, v6, s27, v55')
    a(f's_lshl_b32 s28, s{S_I}, 16')
    a(f's_lshl_b32 s29, s{S_Q}, 10')
    a(f's_xor_b32 s31, s{S_X}, {HGX}')
    a('s_lshl_b32 s31, s31, 7')
    a(f's_add_u32 s{S_RHO}, s{S_CT}, s{S_X}')
    a('s_mov_b32 s18, 0x200000\ns_mov_b32 s19, 0x20000\ns_mov_b32 s14, 0x180000\ns_mov_b32 s15, 0x20000')
    a('s_waitcnt lgkmcnt(0)')
    sk = L('nc')
    a(f's_or_b32 s27, s2, s{S_Q}')
    a(f's_cmp_lg_u32 s27, 0\ns_cbranch_scc1 {sk}')
    srd(8, P_DBG, 256)
    a('s_lshl_b64 s[32:33], s[32:33], 5')
    a('s_or_b32 s32, s32, 16')
    a('v_mov_b32 v10, s32\nv_mov_b32 v11, s33')
    a('s_mov_b64 exec, 1')
    a('buffer_store_dwordx2 v[10:11], off, s[8:11], 0 sc1')
    a('s_mov_b64 exec, -1')
    a.label(sk)
    a(f's_mov_b64 s[16:17], s[{P_X}:{P_X+1}]')
    a(f's_mov_b64 s[12:13], s[{P_WQKV}:{P_WQKV+1}]')
    T.stamp('p1.h_iss', slot=20)
    def issx(c):
        a(f's_add_u32 s33, s{S_RHO}, {c}')
        a('s_and_b32 s33, s33, 7')
        a('s_lshl_b32 s34, s33, 7')
        a('s_add_u32 s34, s34, s28')
        for j in range(2):
            a(f's_add_u32 m0, s29, {XL + c*8192 + j*4096}')
            if j: a('s_add_u32 s34, s34, 32768')
            a.vissue(f'buffer_load_dwordx4 v{VX}, s[16:19], s34 offen lds', ('x', c))
    def issw(c):
        a(f's_add_u32 s33, s{S_RHO}, {c}')
        a('s_and_b32 s33, s33, 7')
        a('s_mul_i32 s35, s33, 196608')
        a('s_add_u32 s35, s35, s31')
        for j in range(2):
            for sec in range(3):
                a(f's_add_u32 m0, s29, {WL + (c % NSLOT)*WSLOT + sec*8192 + j*4096}')
                a(f's_add_u32 s34, s35, {j*32*3072 + sec*1024}')
                a.vissue(f'buffer_load_dwordx4 v{VWQ}, s[12:15], s34 offen lds', ('w', c))
    issx(0); issw(0); issx(1)
    if 'ordA' not in opt: issw(1)
    else: issx(2); issx(3)
    common_consts()
    srd(8, P_WS, WS_USED)
    AWH, AXH, CSA, SXH, SQH, ONES, WFH, XFH = 14, 17, 20, 32, 36, 18, 64, 88
    a('v_and_b32 v10, 1, v7')
    a('v_lshrrev_b32 v11, 1, v8')
    a('v_lshl_add_u32 v11, v11, 1, v10')
    a('v_lshl_add_u32 v10, v7, 2, v8')
    a('v_lshlrev_b32 v10, 7, v10')
    a('v_lshl_add_u32 v10, v9, 3, v10')
    for j in range(3):
        a(f's_mul_i32 s26, s{S_Q}, 3')
        a(f's_add_u32 s26, s26, {j}')
        a('s_and_b32 s27, s26, 3')
        a('s_lshr_b32 s26, s26, 2')
        a('s_lshl_b32 s26, s26, 13')
        a(f's_add_u32 s26, s26, {WL}')
        a('v_xor_b32 v40, s27, v11')
        a('v_lshl_add_u32 v40, v40, 5, v10')
        a(f'v_add_u32 v{AWH+j}, s26, v40')
    a(f's_lshl_b32 s26, s{S_Q}, 11')
    a('v_lshlrev_b32 v10, 7, v6')
    a('v_bfe_u32 v11, v6, 1, 3')
    a('v_xor_b32 v11, v11, v7')
    a('v_lshl_add_u32 v10, v11, 4, v10')
    a(f'v_add_u32 v{AXH}, s26, v10')
    a(f'v_xor_b32 v41, 64, v{AXH}')
    a(f'v_mov_b32 v{ONES}, 0x3f803f80\nv_mov_b32 v{ONES+1}, 0x3f803f80')
    PA16, PA32, PROW, PUN = 44, 52, 54, 55
    def prep_addr():
        a('v_and_b32 v10, 1, v7')
        a('v_lshrrev_b32 v11, 1, v8')
        a('v_lshl_add_u32 v11, v11, 1, v10')
        a('v_lshl_add_u32 v56, v10, 2, v8')
        a('v_lshrrev_b32 v57, 1, v7')
        a('v_lshl_add_u32 v58, v57, 4, v56')
        a('v_lshl_add_u32 v59, v57, 3, v56')
        for ti, kreg in enumerate((58, 59)):
            for nt in range(4):
                a(f'v_xor_b32 v60, {nt}, v11')
                a('v_lshlrev_b32 v60, 5, v60')
                a('v_lshl_add_u32 v60, v9, 3, v60')
                a(f'v_lshl_add_u32 v{PA16+4*ti+nt}, v{kreg}, 7, v60')
        a('v_lshrrev_b32 v11, 1, v8')
        a('v_lshl_add_u32 v11, v11, 1, v5')
        a('v_lshl_add_u32 v56, v5, 2, v8')
        a('v_lshlrev_b32 v56, 7, v56')
        a('v_lshl_add_u32 v56, v9, 3, v56')
        for nt in range(2):
            a(f'v_add_u32 v60, {2*nt}, v10')
            a('v_xor_b32 v60, v60, v11')
            a(f'v_lshl_add_u32 v{PA32+nt}, v60, 5, v56')
        a(f'v_lshrrev_b32 v{PROW}, 3, v2')
    ONE4 = 96
    TCC = 5 if 'tc5' in opt else 6
    for i in range(4): a(f'v_mov_b32 v{ONE4+i}, 0x3f803f80')
    a(f's_mul_i32 s26, s{S_Q}, 192')
    a(f's_add_u32 s26, s26, {CSUM}')
    a('v_lshl_add_u32 v100, v7, 4, s26')
    a(f's_lshl_b32 s26, s{S_Q}, 6')
    a(f's_add_u32 s26, s26, {RST}')
    a('v_lshl_add_u32 v101, v6, 2, s26')
    a('v_cmp_eq_u32 s[42:43], 1, v9')
    a('v_cmp_eq_u32 s[6:7], 2, v9')
    def unit_idx(k):
        a(f's_mul_i32 s{S_U}, s2, 5')
        a(f's_add_u32 s{S_U}, s{S_U}, {k}')
        unit_decode(S_U)
    def stride_sel():
        a('s_cmp_eq_u32 s26, 2')
        a('s_movk_i32 s32, 0x400')
        a('s_cselect_b32 s32, 0xe00, s32')
        a(f'v_mad_u32_u24 v60, v{PROW}, s32, v{PUN}')
        a('s_lshl_b32 s32, s32, 3')
    def touch_addr():
        a('v_lshlrev_b32 v108, 16, v7')
        a(f's_mov_b32 s26, {HDS}')
        a('v_bfe_u32 v10, v2, 3, 1')
        a('v_mad_u32_u24 v108, v10, s26, v108')
        a('v_and_b32 v10, 7, v2')
        a('v_lshl_add_u32 v108, v10, 7, v108')
        a(f's_lshl_b32 s26, s{S_I}, 1')
        a(f's_lshr_b32 s27, s{S_Q}, 1')
        a('s_add_u32 s26, s26, s27')
        a('s_lshl_b32 s26, s26, 10')
        a(f's_and_b32 s27, s{S_Q}, 1')
        a(f's_mul_i32 s27, s27, {2*HDS}')
        a('s_add_u32 s26, s26, s27')
        a(f's_add_u32 s26, s26, s{S_QKV}')
        a('v_add_u32 v108, s26, v108')
        a(f's_add_u32 s26, s{S_GB}, {G_FQ}')
        a('v_and_b32 v10, 1, v2')
        a('v_lshl_add_u32 v10, v10, 7, s26')
        a('v_cmp_lt_u32 vcc, 47, v2')
        a('v_cndmask_b32 v108, v108, v10, vcc')
    def prep_load(k, rec):
        unit_idx(k)
        stride_sel()
        if isinstance(k, int): a(f's_mov_b32 s35, {k*4096}')
        else: a(f's_lshl_b32 s35, {k}, 12')
        for p in range(4):
            a(f's_add_u32 m0, s35, {PREP + p*1024}')
            if p: a('s_add_u32 s27, s27, s32')
            t = 'buffer_load_dwordx4 v60, s[12:15], s27 offen lds'
            a.vissue(t, 'pl') if rec else a(t)

    a(f's_mul_i32 s26, s{S_Q}, 192')
    a(f's_add_u32 s26, s26, {CSUM}')
    a('v_add_u32 v112, s26, v1')
    a(f's_lshl_b32 s75, s{S_X}, 16')
    a(f's_mul_i32 s26, s{S_Q}, 384')
    a('s_add_u32 s75, s75, s26')
    a(f's_add_u32 s75, s75, {CSX}')
    a(f's_lshl_b32 s26, s{S_I}, 11')
    a('s_add_u32 s74, s75, s26')
    a(f's_lshl_b32 s26, s{S_RB}, 14')
    a('s_add_u32 s75, s75, s26')
    a('v_lshrrev_b32 v111, 3, v2')
    a('v_lshlrev_b32 v111, 11, v111')
    a('v_and_b32 v10, 7, v2')
    a('v_lshl_add_u32 v111, v10, 4, v111')
    touch_addr()
    if 'ordA' not in opt:
        issx(2)
        if 'ordD' in opt: issw(2)
    else:
        issw(1)
        for c in range(4, 8): issx(c)
    srd(44, P_DBG, 256)
    def pls():
        prep_load(f's{S_Q}', True)
        sk = L('u4')
        a(f's_cmp_lg_u32 s{S_Q}, 3\ns_cbranch_scc1 {sk}')
        prep_load(4, False)
        a.label(sk)
    PE = int(OP.get('pe', -1))
    a(f'v_lshrrev_b32 v{PROW}, 3, v2')
    a.vissue('buffer_load_dwordx2 v[104:105], off, s[44:47], 0 sc1', 'n')
    a('s_load_dwordx4 s[44:47], s[0:1], 32')
    xsched = {0: [0], 1: [1], 2: [2, 3], 3: [4, 5], 4: [6, 7]}
    XFIN = 5
    if 'ordA' not in opt: xsched = {k: [k] for k in range(8)}; XFIN = 7
    GA = 64
    def mode_calc():
        sk, lp, ok = L('nw'), L('xr'), L('xo')
        a(f's_cmp_lg_u32 s{S_Q}, 0\ns_cbranch_scc1 {sk}')
        a(f's_mov_b32 s{S_SPIN}, 0')
        a('s_mov_b32 exec_hi, 0')
        a.label(lp)
        a('v_and_b32 v10, -16, v106')
        a('v_mov_b32 v11, v107')
        a(f'v_cmp_ne_u64 vcc, {sr(S_NON,2)}, v[10:11]')
        a(f's_cbranch_vccz {ok}')
        a(f's_add_u32 s{S_SPIN}, s{S_SPIN}, 1')
        a(f's_cmp_gt_u32 s{S_SPIN}, 64')
        a(f's_cbranch_scc1 {ok}')
        xcc_load(106, 109)
        a('s_waitcnt vmcnt(0)')
        a(f's_branch {lp}')
        a.label(ok)
        calc_mode(106)
        a('s_mov_b32 exec_hi, -1')
        a(f'v_mov_b32 v104, s{S_NON}\nv_mov_b32 v105, s{S_NON+1}\nv_mov_b32 v106, s{S_MODE}')
        a(f'v_mov_b32 v10, {NONL}')
        a('ds_write_b128 v10, v[104:107]')
        a.label(sk)
    def gather_issue(rec):
        for j in range(3):
            t = f'buffer_load_dwordx4 {vr(GA+4*j,4)}, v111, s[8:11], s75 offen offset:{128*j} sc1'
            a.vissue(t, 'ga') if rec else a(t)
    for c in range(8):
        a.vwait(('w', c))
        T.stamp(f'p1.h_w{c}', slot=2+2*c)
        a('s_barrier')
        T.stamp(f'p1.h_b{c}', slot=3+2*c)
        if c == 0:
            for j in range(3):
                for kk in range(4):
                    a(f'ds_read_b64_tr_b16 {vr(WFH+8*j+2*kk,2)}, v{AWH+j} offset:{kk*2048}')
        xs = xsched.get(c, [])
        XB = [XFH, 80]
        for k, xc in enumerate(xs):
            a(f'ds_read_b128 {vr(XB[k],4)}, v{AXH} offset:{XL + xc*8192}')
            a(f'ds_read_b128 {vr(XB[k]+4,4)}, v41 offset:{XL + xc*8192}')
        if c == 2:
            a(f'v_readfirstlane_b32 s{S_NON}, v104')
            a(f'v_readfirstlane_b32 s{S_NON+1}, v105')
            sk = L('gn')
            a(f's_cmp_lg_u32 s{S_NON}, 0\ns_cbranch_scc1 {sk}')
            keep = list(a.vm); get_nonce(); a.vm = keep
            srd(16, P_X, 0x200000)
            a.label(sk)
            a(f'v_mov_b32 v78, s{S_NON}\nv_mov_b32 v79, s{S_NON+1}')
            a('s_mov_b64 exec, 0xffffff')
            a.vissue('buffer_store_dwordx4 v[76:79], v3, s[8:11], s74 offen sc1', 'cp')
            a('s_mov_b64 exec, -1')
            sk = L('xp')
            a(f's_cmp_lg_u32 s{S_Q}, 0\ns_cbranch_scc1 {sk}')
            xcc_publish(104, 105)
            a.label(sk)
        if c == 5:
            a('s_mov_b32 exec_hi, 0')
            xcc_load(106, 109); a.vm.append('xt')
            a('s_mov_b32 exec_hi, -1')
        if c + 2 < 8 and not (c == 0 and 'ordD' in opt): issw(c + 2)
        if 'ordA' not in opt and c + 3 < 8: issx(c + 3)
        if c == 5:
            gather_issue(True)
        if xs: a('s_waitcnt lgkmcnt(0)')
        if c == 0:
            for kk in range(2):
                for j in range(3):
                    a(f'v_mfma_f32_16x16x32_bf16 {vr(CSA+4*j,4)}, {vr(WFH+8*j+4*kk,4)}, {vr(ONE4,4)}, {"0" if kk == 0 else vr(CSA+4*j,4)}')
        for k, xc in enumerate(xs):
            for kk in range(2):
                z = (xc == 0 and kk == 0)
                a(f'v_mfma_f32_16x16x32_bf16 {vr(SXH,4)}, {vr(ONE4,4)}, {vr(XB[k]+4*kk,4)}, {"0" if z else vr(SXH,4)}')
                a(f'v_mfma_f32_16x16x32_bf16 {vr(SQH,4)}, {vr(XB[k]+4*kk,4)}, {vr(XB[k]+4*kk,4)}, {"0" if z else vr(SQH,4)}')
        if c == 0:
            for j in range(3): a(f'ds_write_b128 v100, {vr(CSA+4*j,4)} offset:{64*j}')
            a('ds_read_b64 v[76:77], v112')
        if c == XFIN:
            a('v_cmp_eq_u32 vcc, 3, v9')
            a(f'v_mul_f32 v{SXH}, {H(-1/512)}, v{SXH}')
            a(f'v_cndmask_b32 v{SQH}, v{SQH}, v{SQH+1}, s[42:43]')
            a(f'v_cndmask_b32 v{SQH}, v{SQH}, v{SQH+2}, s[6:7]')
            a(f'v_cndmask_b32 v{SQH}, v{SQH}, v{SQH+3}, vcc')
            a(f'v_mul_f32 v{SQH}, {H(1/512)}, v{SQH}')
            a(f'v_fma_f32 v{SQH}, -v{SXH}, v{SXH}, v{SQH}')
            a(f'v_max_f32 v{SQH}, 0, v{SQH}')
            a(f'v_add_f32 v{SQH}, {H(1e-5)}, v{SQH}')
            a(f'v_rsq_f32 v{SQH}, v{SQH}')
            a('s_mov_b32 exec_lo, 0x00f0000f')
            a('s_mov_b32 exec_hi, 0xf0000f00')
            a(f'v_mul_f32 v{SXH}, v{SXH}, v{SQH}')
            a(f'ds_write_b32 v101, v{SQH} offset:256')
            a(f'ds_write_b32 v101, v{SXH}')
            a('s_mov_b64 exec, -1')
        if c == TCC:
            a.vissue('buffer_load_dword v110, v108, s[8:11], 0 offen sc1', 'tc')
        if c == PE:
            a.vwait(('w', 7))
            pls()
    a.vwait('ga')
    lp, ok = L('gr'), L('go')
    a(f's_mov_b32 s{S_SPIN}, 0')
    a.label(lp)
    a(f'v_cmp_ne_u64 vcc, {sr(S_NON,2)}, {vr(GA+2,2)}')
    a(f'v_cmp_ne_u64 s[32:33], {sr(S_NON,2)}, {vr(GA+6,2)}')
    a(f'v_cmp_ne_u64 s[34:35], {sr(S_NON,2)}, {vr(GA+10,2)}')
    a('s_or_b64 vcc, vcc, s[32:33]')
    a('s_or_b64 vcc, vcc, s[34:35]')
    a(f's_cbranch_vccz {ok}')
    a(f's_add_u32 s{S_SPIN}, s{S_SPIN}, 1')
    a(f's_cmp_gt_u32 s{S_SPIN}, 0x20000')
    a(f's_cbranch_scc1 {ok}')
    gather_issue(False)
    a('s_waitcnt vmcnt(0)')
    a(f's_branch {lp}')
    a.label(ok)
    vals = [GA+4*j+e for j in range(3) for e in range(2)]
    for r in vals: a(f'v_add_f32_dpp v{r}, v{r}, v{r} row_ror:8 row_mask:0xf bank_mask:0xf')
    for sw in ('v_permlane16_swap_b32', 'v_permlane32_swap_b32'):
        for r in vals: a(f'v_mov_b32 v{r+2}, v{r}')
        for r in vals: a(f'{sw} v{r}, v{r+2}')
        for r in vals: a(f'v_add_f32 v{r}, v{r}, v{r+2}')
    a('s_mov_b64 exec, 0xff')
    for j in range(3): a(f'ds_write_b64 v112, {vr(GA+4*j,2)} offset:{64*j}')
    a('s_mov_b64 exec, -1')
    mode_calc()
    a('s_waitcnt lgkmcnt(0)')
    a('s_barrier')
    T.stamp('h_p1done', slot=2)
    if PE == 8: pls()
    prep_addr()
    a(f'v_mov_b32 v10, {NONL}')
    a('ds_read_b32 v25, v10 offset:8')
    a('v_lshlrev_b32 v12, 7, v2')
    a(f's_lshr_b32 s26, s{S_Q}, 1')
    a('s_mul_i32 s26, s26, 114688')
    a(f's_mul_i32 s27, s{S_CT}, 14336')
    a('s_add_u32 s26, s26, s27')
    a(f's_and_b32 s27, s{S_Q}, 1')
    a('s_mul_i32 s27, s27, 7168')
    a('s_add_u32 s26, s26, s27')
    a(f's_add_u32 s26, s26, s{S_HD}')
    a(f'v_min_u32 v14, {55*128}, v12')
    a('v_add_u32 v14, s26, v14')
    a(f's_lshl_b32 s28, s{S_SLAB}, 14')
    a(f's_lshl_b32 s27, s{S_CT}, 11')
    a('s_add_u32 s28, s28, s27')
    a(f's_add_u32 s28, s28, s{S_GB}')
    a(f's_add_u32 s28, s28, {G_H}')
    a('v_add_u32 v17, s28, v12')
    a(f's_lshl_b32 s27, s{S_I}, 2')
    a(f's_add_u32 s27, s27, s{S_Q}')
    a('s_mul_i32 s27, s27, 384')
    a(f's_add_u32 s27, s27, s{S_GB}')
    a(f's_add_u32 s27, s27, {G_ST1 - 2048}')
    a('v_add_u32 v24, s27, v12')
    a('v_cmp_lt_u32 vcc, 15, v2')
    a('v_cndmask_b32 v17, v17, v24, vcc')
    for reg, k in ((15, 0), (24, 1), (16, 2)):
        a(f's_mul_i32 s26, s{S_SLAB}, 3')
        a(f's_add_u32 s26, s26, {k}')
        a('s_min_u32 s26, s26, 41')
        a('s_mul_hi_u32 s27, s26, 0x2aaaaaab')
        a('s_lshl_b32 s27, s27, 1')
        a('s_add_u32 s26, s26, s27')
        a('s_add_u32 s26, s26, 2')
        a('s_lshl_b32 s26, s26, 12')
        a(f's_mul_i32 s27, s{S_CT}, {7*32768}')
        a('s_add_u32 s26, s26, s27')
        a(f's_add_u32 s26, s26, {W3F}')
        a(f'v_lshl_add_u32 v{reg}, v4, 7, s26')
    a('v_cmp_lt_u32 vcc, 31, v2')
    a('v_cndmask_b32 v15, v15, v24, vcc')
    a(f's_mul_i32 s26, s{S_CT}, 229376')
    a(f's_mul_i32 s27, s{S_Q}, 28672')
    a('s_add_u32 s26, s26, s27')
    a(f's_lshl_b32 s27, s{S_RB}, 12')
    a('s_add_u32 s26, s26, s27')
    a(f's_add_u32 s26, s26, {W4F + 4096}')
    a('v_lshl_add_u32 v24, v4, 7, s26')
    a('v_cndmask_b32 v16, v16, v24, vcc')
    a('s_waitcnt lgkmcnt(0)')
    a(f'v_readfirstlane_b32 s{S_MODE}, v25')
    a('v_and_b32 v10, 23, v2')
    a('v_cmp_eq_u32 vcc, 0, v10')
    a('v_mov_b32 v10, 0x3f803f80')
    a('v_cndmask_b32 v20, 0, v10, vcc')
    a('v_mov_b32 v21, v20\nv_mov_b32 v22, v20\nv_mov_b32 v23, v20')
    a('v_add_u32 v24, s29, v3')
    a(f's_add_u32 s{S_A}, s{S_HD}, s29')
    a(f's_add_u32 s{S_A}, s{S_A}, 0x10000')
    a(f's_add_u32 s27, s{S_GB}, {G_FQ}')
    a('s_mov_b32 s30, -1\ns_mov_b32 s31, 0')
    a('s_barrier')
    a(f'ds_write_b128 v24, v[20:23] offset:{CONST}')
    poll('v1', 's27', 's[30:31]')
    T.stamp('h_kvflag', slot=3)
    def kv_issue(c):
        a(f's_add_u32 m0, s29, {KV + c*8192}')
        a(f's_add_u32 s30, s{S_A}, {c*4096}')
        a.vissue(f'buffer_load_dwordx4 v3, s[8:11], s30 offen sc1 {KVNT}lds', ('kv', c))
        a(f's_add_u32 m0, s29, {KV + c*8192 + 4096}')
        a(f's_add_u32 s30, s{S_A}, {c*4096 + 0x10000}')
        a.vissue(f'buffer_load_dwordx4 v3, s[8:11], s30 offen sc1 {KVNT}lds', ('kv', c))
    kv_issue(0); kv_issue(1)
    def prep_convert(k, record):
        unit_idx(k)
        if isinstance(k, int): a(f's_mov_b32 s32, {PREP + k*4096}')
        else:
            a(f's_lshl_b32 s32, {k}, 12')
            a(f's_add_u32 s32, s32, {PREP}')
        k1, k2, k3, dn = L('k1'), L('k2'), L('k3'), L('kd')
        F = 64
        a(f's_cmp_eq_u32 s26, 1\ns_cbranch_scc1 {k1}')
        a(f's_cmp_eq_u32 s26, 2\ns_cbranch_scc1 {k2}')
        a(f's_cmp_eq_u32 s26, 3\ns_cbranch_scc1 {k3}')
        for kind, lab in ((0, None), (1, k1)):
            if lab: a.label(lab)
            for nt in range(4): a(f'v_add_u32 v{60+nt}, s32, v{PA16+4*kind+nt}')
            for nt in range(4):
                for sec in range(2):
                    a(f'ds_read_b64_tr_b16 {vr(F+4*nt+2*sec,2)}, v{60+nt} offset:{sec*(1024 if kind==0 else 2048)}')
            a('s_add_u32 s35, s28, 2048')
            a(f's_branch {dn}')
        a.label(k2)
        for nt in range(2): a(f'v_add_u32 v{60+nt}, s32, v{PA32+nt}')
        for nt in range(2):
            for kk in range(2):
                for sec in range(2):
                    a(f'ds_read_b64_tr_b16 {vr(F+8*nt+4*kk+2*sec,2)}, v{60+nt} offset:{(8*kk+16*sec)*128}')
        a('s_add_u32 s35, s28, 32768')
        a('s_mul_i32 s33, s33, 7168')
        a('s_lshl_b32 s34, s34, 8')
        a('s_add_u32 s33, s33, s34')
        a(f's_add_u32 s33, s33, {C3P}')
        a('v_lshlrev_b32 v62, 2, v2')
        a('s_waitcnt lgkmcnt(0)')
        for i in range(4):
            for nt in range(2):
                c_ = '0' if i == 0 else vr(80+4*nt,4)
                a(f'v_mfma_f32_4x4x4_16b_bf16 {vr(80+4*nt,4)}, {vr(ONES,2)}, {vr(F+8*nt+2*i,2)}, {c_}')
        a('v_permlane32_swap_b32 v80, v84')
        a('v_add_f32 v80, v80, v84')
        a('buffer_store_dword v80, v62, s[8:11], s33 offen sc1')
        a(f's_branch {dn}')
        a.label(k3)
        for nt in range(2): a(f'v_add_u32 v{60+nt}, s32, v{PA32+nt}')
        for kk in range(2):
            for nt in range(2):
                for sec in range(2):
                    a(f'ds_read_b64_tr_b16 {vr(F+8*kk+4*nt+2*sec,2)}, v{60+nt} offset:{(16*kk+8*sec)*128}')
        a('s_add_u32 s35, s28, 2048')
        a.label(dn)
        a('s_waitcnt lgkmcnt(0)')
        iss = (lambda t: a.vissue(t, 'pp')) if record else a
        iss(f'buffer_store_dwordx4 {vr(F,4)}, v3, s[8:11], s28 offen sc1')
        iss(f'buffer_store_dwordx4 {vr(F+4,4)}, v3, s[8:11], s28 offen offset:1024 sc1')
        iss(f'buffer_store_dwordx4 {vr(F+8,4)}, v3, s[8:11], s35 offen sc1')
        iss(f'buffer_store_dwordx4 {vr(F+12,4)}, v3, s[8:11], s35 offen offset:1024 sc1')
        if 'rback' in opt:
            a('s_waitcnt vmcnt(0)')
            a('s_mov_b64 exec, 0xffff')
            a('buffer_load_dword v13, v12, s[8:11], s28 offen sc1')
            a('buffer_load_dword v13, v12, s[8:11], s35 offen sc1')
            a('s_mov_b64 exec, -1')

    HW2, HW1, HW3 = 24, 88, 92
    C3R = [116, 120, 124, 20]
    w3g = lambda g: [('w3', i) for i in range(8*g, 8*g+8)]
    flat = w3g(1) + [('c3', k) for k in range(4)] + [('wo', i) for i in range(16)] + w3g(2) + \
           [('w1', i) for i in range(15)] + [('r', HW1, W1F + 15*4096)] + w3g(3) + \
           [('r', HW2 + 4*i, W2F + i*4096) for i in range(16)] + w3g(0) + [('l3', t, f) for t in range(3) for f in range(2)]
    groups = [flat[12*i:12*i+12] for i in range(8)]
    strips = [(75, 8192), (74, WOF), (75, 2*8192), (74, W1F), (75, 3*8192), (74, W2F), (75, 0)]
    def job_setup():
        a(f's_lshl_b32 s31, s{S_CT}, 16')
        a('s_add_u32 s31, s31, s29')
        a(f's_mul_i32 s33, s{S_CT}, {7*32768}')
        a(f's_lshl_b32 s{S_B}, s{S_J}, 15')
        a(f's_add_u32 s{S_B}, s{S_B}, s33')
        a(f's_add_u32 s{S_B}, s{S_B}, {W3F}')
        a('s_add_u32 s33, s33, s29')
        a(f's_mul_i32 s32, s{S_CT}, 896')
        a(f's_mul_i32 s30, s{S_Q}, {4*7168}')
        a('s_add_u32 s32, s32, s30')
    def dma(lds, src):
        a(f's_add_u32 m0, s29, {lds}')
        a(f's_add_u32 s30, s31, {src}')
        a.vissue(f'buffer_load_dwordx4 v3, s[8:11], s30 offen {JF} lds', 'pf')
    def ldr(reg, sbase, off, imm=0):
        a(f's_add_u32 s30, s{sbase}, {off}')
        a.vissue(f'buffer_load_dwordx4 {vr(reg,4)}, v3, s[8:11], s30 offen offset:{imm} {JF}', 'pf')
    def job(j):
        kind = j[0]
        if kind == 'w3' and j[1] < NR3: ldr(W3+4*j[1], S_B, (j[1] >> 2)*4096, (j[1] & 3)*1024)
        elif kind == 'w3': ldr(W3+4*j[1], S_W4, ((j[1] >> 2) - 1)*4096, (j[1] & 3)*1024)
        elif kind == 'wo': dma(WA + j[1]*4096, WOF + j[1]*4096)
        elif kind == 'w1': dma(WB + j[1]*4096 if j[1] < 8 else LOW + (j[1]-8)*4096, W1F + j[1]*4096)
        elif kind == 'r': ldr(j[1], 31, j[2])
        elif kind == 'l3': ldr(HW3 + 8*j[1] + 4*j[2], 33, W3F + j[1]*32768 + j[2]*4096)
        elif kind == 'c3': ldr(C3R[j[1]], 32, C3P + j[1]*7168)
    def touch(vreg, lo=0xffffffff, hi=0xffffffff):
        a(f's_mov_b32 exec_lo, {hex(lo)}\ns_mov_b32 exec_hi, {hex(hi)}')
        a(f'buffer_load_dword v13, v{vreg}, s[8:11], 0 offen sc1')
        a('s_mov_b64 exec, -1')
    def wait_prog(p):
        lp = L('wp')
        a(f'v_mov_b32 v10, {PRG}')
        a('v_lshl_add_u32 v10, v9, 2, v10')
        dn = L('wd')
        a.label(lp)
        a('ds_read_b32 v11, v10')
        a('s_waitcnt lgkmcnt(0)')
        a(f'v_cmp_gt_u32 vcc, {p}, v11')
        a(f's_cbranch_vccz {dn}')
        a('s_sleep 12')
        a(f's_branch {lp}')
        a.label(dn)
    def code_warm():
        sk, pc = L('cw'), L('pc')
        a(f's_cmp_lg_u32 s{S_Q}, 2\ns_cbranch_scc1 {sk}')
        a('s_getpc_b64 s[26:27]')
        a.label(pc)
        a(f's_sub_u32 s26, s26, {pc}-{name}')
        a('s_subb_u32 s27, s27, 0')
        a(f's_lshl_b32 s30, s{S_I}, 11')
        a('v_lshl_add_u32 v10, v2, 7, s30')
        a(f'v_min_u32 v10, {name}_end-{name}, v10')
        a('s_mov_b64 exec, 0xffff')
        a('global_load_dword v13, v10, s[26:27] sc1')
        a('s_mov_b64 exec, -1')
        a.label(sk)
    def jobs(l):
        if 'nojobs' in opt: return
        for j in l: job(j)
        a('s_waitcnt vmcnt(8)'); a.vm = []
    a.vwait(('kv', 1), 'lgkmcnt(0)')
    a('s_barrier')
    def kvc(off):
        a(f'v_mov_b32 v10, {KVC}\nv_mov_b32 v11, 1')
        a('s_mov_b64 exec, 1')
        a(f'ds_add_u32 v10, v11 offset:{off}')
        a('s_mov_b64 exec, -1')
    KS = int(OP.get('ks', 4))
    for c in range(2, KS): kv_issue(c)
    a.vwait(('kv', KS - 1))
    kvc(0)
    if KS < 16: pls()
    for c in range(KS, 16): kv_issue(c)
    a.vwait_all()
    kvc(4)
    if KS == 16 and PE < 0: pls()
    tch = (lambda *x: None) if 'notouch' in opt else touch
    a('s_setprio 2')
    a.vwait_all()
    prep_convert(f's{S_Q}', False)
    a(f's_mov_b32 s{S_RHO}, s28\ns_mov_b32 s{S_M2}, s35')
    sk = L('u4')
    a(f's_cmp_lg_u32 s{S_Q}, 3\ns_cbranch_scc1 {sk}')
    prep_convert(4, False)
    a.label(sk)
    a('s_waitcnt vmcnt(0)')
    a(f'v_mov_b32 v10, {PCN}\nv_mov_b32 v11, 1')
    a('s_mov_b64 exec, 1')
    a('ds_add_rtn_u32 v18, v10, v11')
    a('s_mov_b64 exec, -1')
    a('s_waitcnt lgkmcnt(0)')
    a('v_readfirstlane_b32 s26, v18')
    sk = L('pf')
    a(f's_cmp_lg_u32 s26, 3\ns_cbranch_scc1 {sk}')
    a('s_lshl_b32 s26, s2, 7')
    a(f's_add_u32 s26, s26, {F_PREP}')
    flag_sc1('s26')
    srd(16, P_OUT, 0x200000)
    a('v_lshlrev_b32 v10, 21, v2')
    a(f's_mov_b32 s26, {GB + G_FHX}')
    a('s_mov_b64 exec, 0xff')
    a('buffer_load_dword v13, v10, s[8:11], s26 offen')
    a('buffer_load_dword v13, off, s[16:19], 0')
    a('s_mov_b64 exec, -1')
    a.label(sk)
    if 'rb2' in opt:
        a('s_mov_b64 exec, 0xffff')
        for r in (S_RHO, S_M2, 28, 35): a(f'buffer_load_dword v13, v12, s[8:11], s{r} offen sc1')
        a('s_mov_b64 exec, -1')
    job_setup()
    if 'lowp' in opt: a('s_setprio 0')
    T.stamp('h_pub', slot=7)
    lead, join = L('ld'), L('lj')
    a(f's_add_u32 s27, s{S_GB}, {G_RDY}')
    if 'flat' not in opt:
        a(f's_cmp_eq_u32 s{S_I}, 0\ns_cbranch_scc1 {lead}')
        poll('v1', 's27', '1', sleep=2)
        a(f's_branch {join}')
    a.label(lead)
    a(f's_lshl_b32 s28, s{S_Q}, 13')
    a(f's_add_u32 s28, s28, {F_PREP}')
    poll('v12', 's28', None, sleep=int(OP.get('ps', 1)))
    a.label(join)
    a(f'v_mov_b32 v10, {PCN}\nv_mov_b32 v11, 1')
    a('s_mov_b64 exec, 1')
    a('ds_add_u32 v10, v11')
    a('s_mov_b64 exec, -1')
    lp = L('hp')
    a.label(lp)
    a('s_sleep 2')
    a('ds_read_b32 v11, v10')
    a('s_waitcnt lgkmcnt(0)')
    a('v_cmp_gt_u32 vcc, 8, v11')
    a(f's_cbranch_vccnz {lp}')
    sk = L('rd')
    a(f's_or_b32 s26, s{S_I}, s{S_Q}')
    a(f's_cmp_lg_u32 s26, 0\ns_cbranch_scc1 {sk}')
    flag_prep()
    st2(flag_lines('s27'))
    a.label(sk)
    a.vm = []
    T.stamp('h_prep', slot=5)
    G = [w3g(1) + w3g(2),
         [('w1', i) for i in range(8, 15)] + [('r', HW1, W1F + 15*4096)] + w3g(3),
         [('r', HW2 + 4*i, W2F + i*4096) for i in range(16)],
         w3g(0) + [('l3', t, f) for t in range(3) for f in range(2)] + [('c3', k) for k in range(4)]]
    DEPTH = int(OP.get('depth', 16))
    for k, j in enumerate(G[0] + G[1] + G[2] + G[3]):
        job(j)
        if k >= DEPTH and k % 2 == 0: a(f's_waitcnt vmcnt({DEPTH})')
    a.vm = []
    T.stamp('h_g', slot=8)
    tch(17, 0x7ffff, 0)
    QM = [(0xffff, 0), (0xffff0000, 0), (0, 0xffff), (0, 0xffff0000)]
    TD = int(OP.get('td', 1))
    def tq(reg, qs):
        for k in qs:
            tch(reg, *QM[k]); a(f's_waitcnt vmcnt({TD})')
    wait_prog(8)
    jobs([('wo', i) for i in range(16)])
    if 'w3w' in opt: tq(15, range(4))
    wait_prog(10)
    jobs([('w1', i) for i in range(4)])
    wait_prog(12)
    jobs([('w1', i) for i in range(4, 8)])
    sk = L('h2s')
    for k in range(4):
        a('ds_read_b32 v11, v10')
        a('s_waitcnt lgkmcnt(0)')
        a('v_cmp_gt_u32 vcc, 13, v11')
        a(f's_cbranch_vccz {sk}')
        if 'noh2t' not in opt: tq(14, [k])
    a.label(sk)
    code_warm()
    a('s_setprio 0')
    T.stamp('h_jobs', slot=6)
    a.vwait_all()
    a('v_add_u32 v12, s29, v3')
    a(f'v_add_u32 v13, {WB}, v12')
    a(f'v_add_u32 v14, {WA}, v12')
    a(f's_mul_i32 s26, s{S_Q}, 896')
    a('v_add_u32 v15, s26, v3')
    a('s_barrier')
    T.stamp('h_attn_end', slot=4)
    a(f'ds_write_b128 v13, {vr(HW1,4)} offset:{W1X - WB}')
    for i in range(NW2L): a(f'ds_write_b128 v13, {vr(HW2+4*i,4)} offset:{W2L - WB + i*4096}')
    for k in range(1, 4):
        for i in range(2): a(f'v_pk_add_f32 {vr(C3R[0]+2*i,2)}, {vr(C3R[0]+2*i,2)}, {vr(C3R[k]+2*i,2)}')
    a('s_mov_b32 exec_hi, 0xffffff')
    a(f'ds_write_b128 v15, {vr(C3R[0],4)} offset:{C3L}')
    a('s_mov_b32 exec_hi, -1')
    for i in range(4): a(f'v_mov_b32 v{20+i}, 0x3f803f80')
    a(f'v_mfma_f32_16x16x32_bf16 v[16:19], {vr(HW1,4)}, v[20:23], 0')
    a('s_waitcnt lgkmcnt(0)')
    for bt in range(3):
        for k in range(5):
            s_ = 5*bt + k
            a(f'ds_read_b128 {vr(HW2+4*k,4)}, v13 offset:{s_*4096}' if s_ < 8 else f'ds_read_b128 {vr(HW2+4*k,4)}, v12 offset:{LOW + (s_-8)*4096}')
        for k in range(5):
            a(f's_waitcnt lgkmcnt({4-k})')
            a(f'v_mfma_f32_16x16x32_bf16 v[16:19], {vr(HW2+4*k,4)}, v[20:23], v[16:19]')
    a(f's_lshl_b32 s26, s{S_Q}, 6')
    a(f's_add_u32 s26, s26, {CS1}')
    a('v_lshl_add_u32 v10, v7, 4, s26')
    a('ds_write_b128 v10, v[16:19]')
    sk = L('of')
    a(f's_cmp_lg_u32 s{S_Q}, 0\ns_cbranch_scc1 {sk}')
    a(f's_lshl_b32 s28, s{S_X}, 14')
    a(f's_lshl_b32 s27, s{S_RB}, 12')
    a('s_add_u32 s28, s28, s27')
    a(f's_add_u32 s28, s28, {F_O}')
    a('s_mov_b32 s30, -1\ns_mov_b32 s31, 0')
    a('v_lshlrev_b32 v20, 7, v2')
    poll('v20', 's28', 's[30:31]', sleep=int(OP.get('os', 1)))
    a.label(sk)
    a('s_waitcnt lgkmcnt(0)')
    a('s_barrier')
    sk = L('c3w')
    a(f's_cmp_lg_u32 s{S_Q}, 3\ns_cbranch_scc1 {sk}')
    for k in range(4): a(f'ds_read_b128 {vr(HW2+4*k,4)}, v3 offset:{C3L + 896*k}')
    a('s_waitcnt lgkmcnt(0)')
    for k in range(1, 4):
        for i in range(2): a(f'v_pk_add_f32 {vr(HW2+2*i,2)}, {vr(HW2+2*i,2)}, {vr(HW2+4*k+2*i,2)}')
    a(f'ds_write_b128 v3, {vr(HW2,4)} offset:{C3L}')
    a.label(sk)
    a('s_barrier')
    for i in range(NW2L, 16): a(f'ds_write_b128 v14, {vr(HW2+4*i,4)} offset:{i*4096}')
    a('s_waitcnt lgkmcnt(0)')
    a('s_barrier')
    for t in range(3):
        for f in range(2): a(f'ds_write_b128 v13, {vr(HW3+8*t+4*f,4)} offset:{t*8192 + f*4096}')
    p4_prologue()
    a(f's_lshl_b32 s74, s{S_SLAB}, 6')
    a(f's_add_u32 s74, s74, s{S_GB}')
    a(f's_add_u32 s74, s74, {G_FX1}')
    a(f's_lshl_b32 s{S_A}, s{S_SLAB}, 14')
    a(f's_lshl_b32 s75, s{S_Q}, 14')
    a(f's_add_u32 s{S_A}, s{S_A}, s{S_GB}')
    a(f's_add_u32 s{S_A}, s{S_A}, {G_X1}')
    a('s_waitcnt lgkmcnt(0)')
    a('s_barrier')
    poll('v1', 's74', '0xff')
    def x1_lines(kh):
        l = []
        for hf in range(2):
            l += [f's_add_u32 m0, s75, {XT + kh*8192 + hf*4096}', f's_add_u32 s30, s{S_A}, {kh*8192 + hf*4096}']
            l += [f'buffer_load_dwordx4 v3, s[8:11], s30 offen offset:{i*1024} sc1 lds' for i in range(4)]
        return l
    for l in x1_lines(0): a(l)
    HJOIN = L('hjoin')
    a(f's_branch {HJOIN}')

    a.label(CW1)
    a.vm = []
    sk = L('cp')
    a(f's_cmp_lg_u32 s{S_WAVE}, 1\ns_cbranch_scc1 {sk}')
    a('s_getpc_b64 s[26:27]')
    a.label(f'{name}_pc')
    a(f's_sub_u32 s26, s26, {name}_pc-{name}')
    a('s_subb_u32 s27, s27, 0')
    a(f's_lshl_b32 s28, s{S_I}, 11')
    a('v_lshl_add_u32 v10, v2, 7, s28')
    a(f'v_min_u32 v10, {name}_end-{name}, v10')
    a('s_mov_b64 exec, 0xffff')
    a('global_load_dword v255, v10, s[26:27]')
    a('s_mov_b64 exec, -1')
    a.label(sk)
    common_consts()
    ACC = 16; FR = [64, 80, 96, 228]; AX = 112; AW = 116
    a(f's_lshr_b32 s30, s{S_Q}, 1')
    a(f's_and_b32 s31, s{S_Q}, 1')
    a('s_lshl_b32 s27, s30, 5')
    a('v_add_u32 v10, s27, v4')
    a('v_lshlrev_b32 v10, 7, v10')
    a('v_bfe_u32 v11, v4, 1, 3')
    for ks in range(4):
        a(f'v_add_u32 v12, {2*ks}, v5')
        a('v_xor_b32 v12, v12, v11')
        a(f'v_lshl_add_u32 v{AX+ks}, v12, 4, v10')
    a('v_lshl_add_u32 v10, v5, 3, v8')
    a('v_lshlrev_b32 v10, 7, v10')
    a('v_lshl_add_u32 v10, v9, 3, v10')
    a('v_and_b32 v11, 1, v7')
    a('s_lshl_b32 s27, s31, 1')
    a('v_add_u32 v11, s27, v11')
    a('v_and_b32 v12, 2, v8')
    a('v_xor_b32 v11, v11, v12')
    a(f'v_lshl_add_u32 v{AW}, v11, 5, v10')
    a(f'v_add_u32 v{AW}, {WL}, v{AW}')
    a(f'v_xor_b32 v{AW+1}, 32, v{AW}')
    a(f'v_add_u32 v{AW+1}, 512, v{AW+1}')
    a(f'v_add_u32 v{AW+2}, {2*WSLOT}, v{AW}')
    a(f'v_add_u32 v{AW+3}, {2*WSLOT}, v{AW+1}')
    a('s_waitcnt lgkmcnt(0)')
    if 'xs' in opt.split(','):
        srd(12, P_X, 0x200000)
        a(f's_lshl_b32 s26, s{S_I}, 16')
        a(f's_lshl_b32 s27, s{S_Q}, 14')
        a('s_add_u32 s26, s26, s27')
        a('v_lshlrev_b32 v10, 7, v2')
        a('buffer_load_dword v252, v10, s[12:15], s26 offen')
        a('s_add_u32 s26, s26, 8192')
        a('buffer_load_dword v252, v10, s[12:15], s26 offen')
    srd(16, P_DBG, 256)
    srd(8, P_WS, WS_USED)
    EA = 120
    a('s_lshl_b32 s27, s31, 7')
    a(f's_add_u32 s27, s27, {CSUM}')
    a(f'v_lshl_add_u32 v{EA}, v5, 4, s27')
    a(f'v_lshl_add_u32 v{EA+1}, v4, 2, s27')
    a('s_lshl_b32 s27, s30, 7')
    a(f's_add_u32 s27, s27, {RST}')
    a(f'v_lshl_add_u32 v{EA+2}, v4, 2, s27')
    a(f'v_lshl_add_u32 v{EA+3}, v5, 4, s27')
    a('v_lshrrev_b32 v10, 4, v4')
    a(f'v_mul_u32_u24 v10, {HDS}, v10')
    a('v_lshl_add_u32 v10, v5, 8, v10')
    a(f'v_lshl_add_u32 v{EA+4}, v6, 4, v10')
    a(f's_lshl_b32 s26, s{S_I}, 1')
    a('s_add_u32 s26, s26, s30')
    a('s_lshl_b32 s26, s26, 10')
    a(f's_mul_i32 s27, s31, {2*HDS}')
    a('s_add_u32 s26, s26, s27')
    a(f's_add_u32 s{S_A}, s26, s{S_QKV}')
    a(f'v_mov_b32 v{EA+5}, {NONL}')
    def rd_list(n):
        c, ks = n >> 2, n & 3; b = FR[n % 4]
        slot = c % NSLOT
        l = [f'ds_read_b128 {vr(b,4)}, v{AX+ks} offset:{XL + c*8192}']
        for j in range(3):
            for sec in range(2):
                l.append(f'ds_read_b64_tr_b16 {vr(b+4+4*j+2*sec,2)}, v{AW+sec+(2 if slot == 2 else 0)} offset:{(slot&1)*WSLOT + j*8192 + ks*2048}')
        return l
    T.stamp('p1.c_pre')
    fixwait('fixb0', 12)
    a('s_barrier')
    T.stamp('c_b0'); T.stamp('p1.c_b0')
    for l in rd_list(0): a(l)
    for l in rd_list(1): a(l)
    CV = 128; RV = 160; SC = 192
    for n in range(32):
        c, ks = n >> 2, n & 3
        b = FR[n % 4]
        z = lambda r, k: '0' if n == 0 else vr(r, k)
        if n == 30: a('s_waitcnt lgkmcnt(0)')
        elif ks == 2 or n == 31:
            a('s_waitcnt lgkmcnt(0)')
            T.stamp(f'p1.c_w{c+1}')
            a('s_barrier')
            T.stamp(f'p1.c_b{c+1}')
        elif ks == 0: a('s_waitcnt lgkmcnt(7)')
        elif ks == 1: a('s_waitcnt lgkmcnt(14)')
        rl = rd_list(n + 2) if n + 2 < 32 else []
        if ks == 0: rl = rl + rd_list(n + 3)
        if ks == 1: rl = []
        if n == 31:
            rl = [f'ds_read_b128 v[12:15], v{EA+5}', f'ds_read_b32 v{SC}, v{EA+2}', f'ds_read_b32 v224, v{EA+2} offset:256', f'ds_read_b32 v{SC+2}, v{EA+1} offset:512'] + \
                 [f'ds_read_b128 {vr(CV+16*j+4*q,4)}, v{EA} offset:{256*j+32*q}' for j in range(2) for q in range(4)]
        if n == 31:
            rl += [f'ds_read_b128 {vr(RV+16*j+4*q,4)}, v{EA+3} offset:{256*j+32*q}' for j in range(2) for q in range(4)]
        k = (len(rl) + 2) // 3
        a(f'v_mfma_f32_32x32x16_bf16 {vr(ACC,16)}, {vr(b+4,4)}, {vr(b,4)}, {z(ACC,16)}')
        for l in rl[0:k]: a(l)
        a(f'v_mfma_f32_32x32x16_bf16 {vr(ACC+16,16)}, {vr(b+8,4)}, {vr(b,4)}, {z(ACC+16,16)}')
        for l in rl[k:2*k]: a(l)
        a(f'v_mfma_f32_32x32x16_bf16 {vr(ACC+32,16)}, {vr(b,4)}, {vr(b+12,4)}, {z(ACC+32,16)}')
        for l in rl[2*k:]: a(l)
    T.stamp('c_gemm')
    a('s_waitcnt lgkmcnt(8)')
    a(f'v_readfirstlane_b32 s{S_MODE}, v14')
    a(f'v_readfirstlane_b32 s{S_NON}, v12')
    a(f'v_readfirstlane_b32 s{S_NON+1}, v13')
    a(f'v_mul_f32 v{SC+4}, {H(QSCALE)}, v{SC}')
    a(f'v_mul_f32 v226, {H(QSCALE)}, v224')
    PK = 200
    lines = []
    for j in range(2):
        sc = SC + 4 if j == 0 else SC
        for p in range(8):
            lines.append(f'v_pk_mul_f32 {vr(CV+16*j+2*p,2)}, {vr(CV+16*j+2*p,2)}, {vr(sc,2)} op_sel_hi:[1,0]')
        for o in range(2):
            for p in range(4*o, 4*o+4):
                A_ = ACC+16*j+2*p
                lines.append(f'v_pk_fma_f32 {vr(A_,2)}, {vr(A_,2)}, {vr(226 if j == 0 else 224,2)}, {vr(CV+16*j+2*p,2)} op_sel_hi:[1,0,1]')
            for p in range(4*o, 4*o+4):
                A_ = ACC+16*j+2*p
                lines.append(f'v_cvt_pk_bf16_f32 v{PK+8*j+p}, v{A_}, v{A_+1}')
            lines.append(f's_add_u32 s26, s{S_A}, {j*0x10000 + o*HDS}')
            lines.append(f'buffer_store_dwordx4 {vr(PK+8*j+4*o,4)}, v3, s[8:11], s26 offen')
    lines.append('s_waitcnt lgkmcnt(0)')
    lines.append(f's_add_u32 s26, s{S_A}, 0x20000')
    for p in range(8):
        lines.append(f'v_pk_mul_f32 {vr(RV+2*p,2)}, {vr(RV+2*p,2)}, {vr(SC+2,2)} op_sel_hi:[1,0]')
    for o in range(2):
        for p in range(4*o, 4*o+4):
            A_ = ACC+32+2*p
            lines.append(f'v_pk_fma_f32 {vr(A_,2)}, {vr(A_,2)}, {vr(RV+16+2*p,2)}, {vr(RV+2*p,2)}')
        for p in range(4*o, 4*o+4):
            A_ = ACC+32+2*p
            lines.append(f'v_cvt_pk_bf16_f32 v{PK+16+p}, v{A_}, v{A_+1}')
        lines.append(f'buffer_store_dwordx4 {vr(PK+16+4*o,4)}, v{EA+4}, s[8:11], s26 offen offset:{512*o}')
    st2(lines)
    T.stamp('p1.c_st')

    Q, SA, SB, O, P, KB, VB, AV = 12, 20, 36, 52, 84, 92, 100, 116
    XR = 120
    a('v_lshlrev_b32 v10, 8, v5')
    a('v_lshl_add_u32 v10, v6, 4, v10')
    a('v_and_b32 v11, 11, v6')
    a('v_cmp_eq_u32 vcc, 0, v11')
    a(f'v_mov_b32 v11, {CONST + 16}')
    a(f'v_mov_b32 v{SA}, {CONST}')
    a(f'v_cndmask_b32 v11, v11, v{SA}, vcc')
    a(f'v_add_u32 v{SA}, 4, v6')
    a(f'v_and_b32 v{SA}, 8, v{SA}')
    a(f'v_lshl_add_u32 v11, v{SA}, 4, v11')
    a('v_cmp_gt_u32 vcc, 16, v4')
    AK, AVI, PCV = AV + 1, AV + 2, AV + 3
    a(f'v_add_u32 v{SA}, {KV + 4096}, v10')
    a(f'v_cndmask_b32 v{AV}, v11, v{SA}, vcc')
    a(f'v_mov_b32 v{SA}, 0x2000')
    a(f'v_cndmask_b32 v{AVI}, 0, v{SA}, vcc')
    a(f'v_add_u32 v{AK}, {KV}, v3')
    a(f'v_mov_b32 v{PCV}, 0')
    a(f's_lshl_b32 s27, s{S_Q}, 2')
    a(f's_add_u32 s27, s27, {PRG}')
    a('v_mov_b32 v129, s27')
    a(f's_lshl_b32 s28, s{S_CT}, 13')
    a(f's_lshl_b32 s27, s{S_Q}, 11')
    a('s_add_u32 s28, s28, s27')
    a(f's_add_u32 s{S_U}, s28, s{S_HD}')
    a(f's_mul_i32 s{S_B}, s{S_CT}, 7')
    a(f's_add_u32 s{S_B}, s{S_B}, s{S_Q}')
    a(f's_lshl_b32 s{S_B}, s{S_B}, 15')
    a(f's_add_u32 s{S_B}, s{S_B}, {W3F}')
    flag_prep()
    a(f's_lshl_b32 s26, s{S_I}, 3')
    a(f's_add_u32 s26, s26, s{S_GB}')
    a(f's_add_u32 s26, s26, {G_FQ}')
    a('s_waitcnt vmcnt(0) lgkmcnt(0)')
    a('s_barrier')
    sk = L('qf')
    a(f's_cmp_lg_u32 s{S_WAVE}, 0\ns_cbranch_scc1 {sk}')
    st2(flag_lines('s26'))
    a.label(sk)
    T.stamp('c_pub')
    srd(16, P_X, 0x200000)
    a(f's_lshl_b32 s33, s{S_X}, 4')
    a(f's_add_u32 s33, s33, s{S_SLAB}')
    a('s_lshl_b32 s33, s33, 14')
    a(f's_lshl_b32 s27, s{S_CT}, 7')
    a('s_add_u32 s33, s33, s27')
    a('v_lshlrev_b32 v128, 10, v6')
    a('v_lshl_add_u32 v128, v7, 3, v128')
    def rdK(t): a(f'ds_read_b128 {vr(KB+4*(t&1),4)}, v{AK} offset:{(t>>2)*8192 + (t&3)*1024}')
    def rdV(t, f): a(f'ds_read_b128 {vr(VB+8*(t&1)+4*f,4)}, v{AV} offset:{(t&3)*1024+f*512}')
    def mfS(n):
        S = SA if (n & 1) == 0 else SB
        if 'noqk' in opt and n > 1: return
        a(f'v_mfma_f32_32x32x16_bf16 {vr(S,16)}, {vr(KB+4*((n>>1)&1),4)}, {vr(Q+4*(n&1),4)}, 0')
    def mfO(n, f):
        Ou = O + 16*(n & 1)
        if 'nopv' in opt and n > 1: return
        if 'pv16' in opt:
            a(f'v_mfma_f32_16x16x32_bf16 {vr(Ou+8,4)}, {vr(VB+8*((n>>1)&1)+4*f,4)}, {vr(P+4*f,4)}, {"0" if n < 2 and f == 0 else vr(Ou+8,4)}')
            return
        c_ = '0' if (n < 2 and f == 0) else vr(Ou,16)
        a(f'v_mfma_f32_32x32x16_bf16 {vr(Ou,16)}, {vr(VB+8*((n>>1)&1)+4*f,4)}, {vr(P+4*f,4)}, {c_}')
    a(f's_lshl_b32 s26, s{S_CT}, 5')
    a(f's_lshl_b32 s27, s{S_Q}, 3')
    a('s_add_u32 s26, s26, s27')
    a(f's_add_u32 s26, s26, s{S_GB}')
    a(f's_add_u32 s26, s26, {G_FQ}')
    poll('v1', 's26', '1')
    a(f'buffer_load_dwordx4 {vr(Q,4)}, v3, s[8:11], s{S_U} offen sc1')
    a(f'buffer_load_dwordx4 {vr(Q+4,4)}, v3, s[8:11], s{S_U} offen offset:1024 sc1')
    a('s_waitcnt vmcnt(0)')
    fixwait('fixa0', 20)
    a('s_barrier')
    T.stamp('c_kv0'); T.stamp('ap.A0'); T.stamp('att.c0'); T.stamp('att.r0', True)
    rdK(0); rdK(1); rdV(0, 0); rdV(0, 1)
    a('s_waitcnt lgkmcnt(3)')
    mfS(0)
    def att_step(n, head, tail=False, head2=False):
        t = n >> 1; g = n if head else n + 16
        S = SA if (n & 1) == 0 else SB
        def ex2(i, extra=None):
            if extra: a(extra)
            a(f'v_exp_f32 v{S+i}, v{S+i}')
            a(f'v_exp_f32{"_e64" if extra else ""} v{S+i+1}, v{S+i+1}')
        cv = lambda j: a(f'v_cvt_pk_bf16_f32 v{P+j}, v{S+2*j}, v{S+2*j+1}')
        even = (n & 1) == 0
        loop = not head and not tail and not head2
        def cj():
            i = cjobs.pop(0)
            if i % 4 == 0: a(f's_add_u32 s30, s{S_W4}, {((i >> 2) - 1)*4096}' if i >= NR3 else f's_add_u32 s30, s35, {(i >> 2)*4096}')
            a(f'buffer_load_dwordx4 {vr(W3+4*i,4)}, v3, s[8:11], s30 offen offset:{(i&3)*1024} sc1')
        def xr(k): a(f'buffer_load_dwordx2 {vr(XR+2*k,2)}, v128, s[16:19], s33 offen offset:{32*k}')
        V = OP.get('dsv', 'b')
        if head and n == 0: a('s_waitcnt lgkmcnt(0)\ns_nop 0')
        if V == 'c' and not even: rdK(t + 2)
        mfS(g + 1)
        if V == 'a' and not even: rdK(t + 2)
        if (head or head2) and n == 11: a(f'ds_read_b32 v131, v130 offset:{0 if head else 4}')
        if tail and cjobs: cj()
        ex2(0, 's_waitcnt lgkmcnt(0)' if even else None)
        if (head or head2) and n == 12:
            lp, ok = L('kw'), L('ko')
            a.label(lp)
            a('v_cmp_gt_u32 vcc, 4, v131')
            a(f's_cbranch_vccz {ok}')
            a(f'ds_read_b32 v131, v130 offset:{0 if head else 4}')
            a('s_waitcnt lgkmcnt(0)')
            a(f's_branch {lp}')
            a.label(ok)
        ex2(2)
        cv(0)
        ex2(4, f'v_add_u32 v{AV}, v{AVI}, v{AV}' if n % 8 == 5 else (f'v_add_u32 v{PCV}, 1, v{PCV}' if n in (7, 15) and not tail else None))
        cv(1)
        if V == 'c' and even: rdV(t + 1, 0)
        if g > 0: mfO(g - 1, 1)
        if V in 'ab' and even: rdV(t + 1, 0)
        if V == 'b' and even: rdV(t + 1, 1); rdK(t + 2)
        if tail and cjobs and not even: cj()
        if n in (1, 9) and loop: a(f'ds_write_b32 v129, v{PCV}')
        ex2(6)
        cv(2); ex2(8); cv(3)
        if V == 'c' and even: rdV(t + 1, 1)
        if n == 15 and not tail: a(f'v_add_u32 v{AK}, 0x4000, v{AK}')
        ex2(10)
        mfO(g, 0)
        if V == 'a' and even: rdV(t + 1, 1)
        if tail and cjobs: cj()
        if tail and 10 <= n < 14: xr(n - 10)
        if n == 15 and loop: a('s_add_u32 s34, s34, 1\ns_cmp_lt_u32 s34, 5')
        cv(4)
        ex2(12); cv(5); ex2(14); cv(6); cv(7)
    a(f'v_mov_b32 v130, {KVC}')
    a(f's_sub_u32 s35, s{S_W4}, 4096')
    a(f's_cmp_eq_u32 s{S_Q}, 3')
    a(f's_cselect_b32 s35, s35, s{S_B}')
    a('.p2align 3')
    for n in range(16): att_step(n, True)
    for n in range(16): att_step(n, False, False, True)
    a('s_mov_b32 s34, 0')
    T.stamp('ap.head')
    ALP = L('alp')
    a('.p2align 6')
    a.label(ALP)
    for n in range(16): att_step(n, False)
    a(f's_cbranch_scc1 {ALP}')
    T.stamp('ap.loop')
    lp = L('cpw')
    a(f'v_mov_b32 v130, {PCN}')
    a.label(lp)
    a('ds_read_b32 v131, v130')
    a('s_waitcnt lgkmcnt(0)')
    a('v_cmp_gt_u32 vcc, 8, v131')
    a(f's_cbranch_vccnz {lp}')
    cjobs = list(range(8, 32))
    a('.p2align 3')
    for n in range(16): att_step(n, False, True)
    a('s_waitcnt lgkmcnt(0)')
    mfO(127, 1)
    T.stamp('c_attn_end'); T.stamp('ap.end'); T.stamp('att.c1'); T.stamp('att.r1', True)
    a('s_barrier')
    if 'slowsafe' in opt:
        sk = L('ss')
        a(f's_cmp_lg_u32 s{S_MODE}, 0\ns_cbranch_scc1 {sk}')
        for i in range(6): a('s_sleep 127')
        a.label(sk)
    a(f's_xor_b32 s29, s{S_X}, {HGX}')
    a('s_lshl_b32 s29, s29, 2')
    a(f's_add_u32 s29, s29, s{S_RB}')
    a(f's_lshl_b32 s26, s{S_CT}, 21')
    a(f's_lshl_b32 s27, s{S_Q}, 16')
    a('s_add_u32 s26, s26, s27')
    a('s_lshl_b32 s27, s29, 9')
    a('s_add_u32 s26, s26, s27')
    a(f's_add_u32 s26, s26, {GB + G_O}')
    a('s_add_u32 s27, s26, 32768')
    a(f's_lshl_b32 s28, s{S_CT}, 14')
    a(f's_lshl_b32 s30, s{S_Q}, 12')
    a('s_add_u32 s28, s28, s30')
    a('s_lshl_b32 s30, s29, 7')
    a('s_add_u32 s28, s28, s30')
    a(f's_add_u32 s28, s28, {F_O}')
    a(f'v_lshrrev_b32 v{KB}, 4, v4')
    a(f'v_lshlrev_b32 v{KB}, 14, v{KB}')
    a(f'v_lshl_add_u32 v{KB}, v5, 8, v{KB}')
    a(f'v_lshl_add_u32 v{KB}, v6, 4, v{KB}')
    FB, FBR = L('fb'), L('fbr')
    for u in range(2):
        Ou = O + 16*u
        a(f'v_max3_f32 v{SA+u}, |v{Ou}|, |v{Ou+1}|, |v{Ou+2}|')
        a(f'v_max3_f32 v{SA+u}, |v{Ou+3}|, |v{Ou+4}|, v{SA+u}')
        a(f'v_max3_f32 v{SA+u}, |v{Ou+5}|, |v{Ou+6}|, v{SA+u}')
    a(f'v_max3_f32 v{SA}, |v{O+7}|, |v{O+23}|, v{SA}')
    a(f'v_max_f32 v{SA}, v{SA}, v{SA+1}')
    a(f'v_mul_f32 v{SA}, {H(2.0**-60)}, v{SA}')
    a(f'v_max3_f32 v{SA}, v{O+8}, v{O+24}, v{SA}')
    a(f'v_min_f32 v{SA+1}, v{O+8}, v{O+24}')
    a(f'v_cmp_nle_f32 vcc, v{SA}, v{SA+2}' if False else f'v_mov_b32 v{SA+2}, {H(2.0**60)}')
    a(f'v_cmp_nle_f32 vcc, v{SA}, v{SA+2}')
    a(f'v_cmp_u_f32 s[30:31], v{O+8}, v{O+24}')
    a(f'v_cmp_ngt_f32 s[32:33], v{SA+1}, v{SA+3}' if False else f'v_mov_b32 v{SA+3}, {H(2.0**-60)}')
    a(f'v_cmp_ngt_f32 s[32:33], v{SA+1}, v{SA+3}')
    a('s_or_b64 vcc, vcc, s[30:31]')
    a('s_or_b64 vcc, vcc, s[32:33]')
    if force_fallback: a('s_mov_b64 vcc, -1')
    if 'nofb' in opt: a('s_mov_b64 vcc, 0')
    a(f's_cbranch_vccnz {FB}')
    a.label(FBR)
    for u in range(2):
        Ou = O + 16*u
        a(f'v_rcp_f32 v{SA+2*u}, v{Ou+8}')
    for u in range(2):
        Ou = O + 16*u
        for p in range(4): a(f'v_pk_mul_f32 {vr(Ou+2*p,2)}, {vr(Ou+2*p,2)}, {vr(SA+2*u,2)} op_sel_hi:[1,0]')
        for j in range(4): a(f'v_cvt_pk_bf16_f32 v{P+4*u+j}, v{Ou+2*j}, v{Ou+2*j+1}')
    a(f'buffer_store_dwordx4 {vr(P,4)}, v{KB}, s[8:11], s26 offen sc1')
    a(f'buffer_store_dwordx4 {vr(P+4,4)}, v{KB}, s[8:11], s27 offen sc1')
    a('s_mov_b32 s39, s28')
    a('s_waitcnt vmcnt(2)')

    GC0 = 12; AWA, AWB = 14, 15; HB = 16; MU, R1 = 24, 25; TMP = 26
    ACC = 32; ACT = 48; WF = 128; NWS = 2; CV = 112; LEAD = int(OP.get('lead', 7)); LX = int(OP.get('lx', 4))
    S_TA, S_SA, S_FA = 33, 34, 35
    a(f'v_add_u32 v{AWA}, {WA}, v3')
    a(f'v_add_u32 v{AWB}, {WB}, v3')
    def wread(ph, s, nt):
        b = WF + 16*(s % NWS) + 4*nt
        if ph == 2 and s == 15: return f'ds_read_b128 {vr(b,4)}, v{AWB} offset:{W1X - WB + nt*1024}'
        if ph == 2 and s >= 8: return f'ds_read_b128 {vr(b,4)}, v3 offset:{LOW + (s-8)*4096 + nt*1024}'
        if ph == 3 and s < NW2L: return f'ds_read_b128 {vr(b,4)}, v{AWB} offset:{W2L - WB + s*4096 + nt*1024}'
        return f'ds_read_b128 {vr(b,4)}, v{AWB if ph == 2 else AWA} offset:{s*4096 + nt*1024}'
    def wpre(ph):
        for s in range(NWS):
            for nt in range(4): a(wread(ph, s, nt))
    def gemm64(ph, ld, fill=None, zero=False, bar=None):
        T.stamp(f'g.p{ph}_go')
        for s in range(LEAD): ld(s)
        fill = list(fill or [])
        nl = LEAD
        for s in range(16):
            b = WF + 16*(s % NWS)
            a.vwait(('a', s), f'lgkmcnt({4 if s < 15 else 0})')
            if s in (0, 8): T.stamp(f'g.p{ph}_s{s}')
            if s == bar: a('s_barrier')
            for nt in range(4):
                c_ = '0' if (s == 0 and zero) else vr(ACC+4*nt,4)
                a(f'v_mfma_f32_16x16x32_bf16 {vr(ACC+4*nt,4)}, {vr(b+4*nt,4)}, {vr(ACT+4*(s%12),4)}, {c_}')
                if s + NWS < 16: a(wread(ph, s + NWS, nt))
                if (nt == 1 or (nt == 3 and s < LX)) and nl < 16 and nl < s + 12: ld(nl); nl += 1
                if s >= 4 and fill: a(fill.pop(0))
        assert not fill
    def ld_plain(s):
        if s and s % 4 == 0: a('s_add_u32 s29, s29, 4096')
        a.vissue(f'buffer_load_dwordx4 {vr(ACT+4*(s%12),4)}, v3, s[8:11], s29 offen offset:{(s&3)*1024} sc1', ('a', s))
    def xsum_lines(r0, r1, t0, t1):
        l = []
        for sw in ('v_permlane16_swap_b32', 'v_permlane32_swap_b32'):
            l += [f'v_mov_b32 v{t0}, v{r0}', f'v_mov_b32 v{t1}, v{r1}', f'{sw} v{r0}, v{t0}', f'{sw} v{r1}, v{t1}',
                  f'v_add_f32 v{r0}, v{r0}, v{t0}', f'v_add_f32 v{r1}, v{r1}, v{t1}']
        return l
    def addrs(act, tile, stats, flag):
        a(f's_lshl_b32 s26, s{S_SLAB}, 14')
        a(f's_add_u32 s26, s26, s{S_GB}')
        if act is not None: a(f's_add_u32 s29, s26, {act}')
        a(f's_lshl_b32 s27, s{S_CT}, 11')
        a(f's_add_u32 s{S_TA}, s26, s27')
        a(f's_add_u32 s{S_TA}, s{S_TA}, {tile}')
        a(f's_lshl_b32 s27, s{S_CT}, 3')
        a(f's_add_u32 s27, s27, s{S_GB}')
        if stats is not None:
            a(f's_lshl_b32 s{S_SA}, s{S_SLAB}, 10')
            a(f's_add_u32 s{S_SA}, s{S_SA}, s27')
            a(f's_add_u32 s{S_SA}, s{S_SA}, {stats}')
        a(f's_lshl_b32 s{S_FA}, s{S_SLAB}, 6')
        a(f's_add_u32 s{S_FA}, s{S_FA}, s27')
        a(f's_add_u32 s{S_FA}, s{S_FA}, {flag}')
    def pack16(dst):
        for nt in range(4):
            a(f'v_cvt_pk_bf16_f32 v{dst+2*nt}, v{ACC+4*nt}, v{ACC+4*nt+1}')
            a(f'v_cvt_pk_bf16_f32 v{dst+2*nt+1}, v{ACC+4*nt+2}, v{ACC+4*nt+3}')
    def tile_st(src):
        return [f'buffer_store_dwordx4 {vr(src,4)}, v3, s[8:11], s{S_TA} offen', f'buffer_store_dwordx4 {vr(src+4,4)}, v3, s[8:11], s{S_TA} offen offset:1024']
    def stats_lines(t):
        l = [f'v_pk_add_f32 {vr(t,2)}, {vr(ACC,2)}, {vr(ACC+2,2)}', f'v_pk_mul_f32 {vr(t+2,2)}, {vr(ACC,2)}, {vr(ACC,2)}',
             f'v_pk_fma_f32 {vr(t+2,2)}, {vr(ACC+2,2)}, {vr(ACC+2,2)}, {vr(t+2,2)}']
        for p in range(2, 8):
            l += [f'v_pk_add_f32 {vr(t,2)}, {vr(t,2)}, {vr(ACC+2*p,2)}', f'v_pk_fma_f32 {vr(t+2,2)}, {vr(ACC+2*p,2)}, {vr(ACC+2*p,2)}, {vr(t+2,2)}']
        l += [f'v_add_f32 v{t}, v{t}, v{t+1}', f'v_add_f32 v{t+1}, v{t+2}, v{t+3}']
        l += xsum_lines(t, t+1, t+2, t+3)
        l += ['s_mov_b64 exec, 0xffff', f'buffer_store_dwordx2 {vr(t,2)}, v{TMP+5}, s[8:11], s{S_SA} offen']
        return l
    def gelu_pk(regs, tmp):
        n = len(regs)
        for i, r in enumerate(regs): a(f'v_pk_mul_f32 {vr(tmp+2*i,2)}, {vr(r,2)}, {vr(r,2)}')
        for i, r in enumerate(regs): a(f'v_pk_fma_f32 {vr(tmp+2*i,2)}, {vr(tmp+2*i,2)}, {sr(S_C1,2)}, {vr(GC0,2)}')
        for i, r in enumerate(regs): a(f'v_pk_mul_f32 {vr(tmp+2*i,2)}, {vr(tmp+2*i,2)}, {vr(r,2)}')
        for i in range(2*n): a(f'v_exp_f32 v{tmp+i}, v{tmp+i}')
        for i, r in enumerate(regs): a(f'v_pk_add_f32 {vr(tmp+2*i,2)}, {vr(tmp+2*i,2)}, {sr(S_ONE,2)}')
        for i in range(2*n): a(f'v_rcp_f32 v{tmp+i}, v{tmp+i}')
        for i, r in enumerate(regs): a(f'v_pk_mul_f32 {vr(r,2)}, {vr(r,2)}, {vr(tmp+2*i,2)}')

    SH, PF3, STV, CSA_ = 96, 100, 101, 102
    S_AB, S_P2, S_SL, S_M3 = 36, 37, 38, 40
    wpre(1)
    for nt in range(4):
        for p in range(2):
            a(f'v_lshlrev_b32 v{ACC+4*nt+2*p}, 16, v{XR+2*nt+p}')
            a(f'v_and_b32 v{ACC+4*nt+2*p+1}, 0xffff0000, v{XR+2*nt+p}')
    addrs(G_O, G_H, G_ST1, G_FH)
    a(f's_mov_b32 s{S_AB}, s26')
    a(f'v_lshlrev_b32 v{TMP+5}, 6, v6')
    a(f'v_lshl_add_u32 v{STV}, v7, 4, v{TMP+5}')
    a(f'v_lshlrev_b32 v{CSA_}, 4, v7')
    a(f'v_mov_b32 v{GC0}, {H(GELU_C0)}\nv_mov_b32 v{GC0+1}, {H(GELU_C0)}')
    a(f's_lshl_b32 s{S_P2}, s{S_SLAB}, 6')
    a(f's_add_u32 s{S_P2}, s{S_P2}, s{S_GB}')
    a(f's_add_u32 s{S_P2}, s{S_P2}, {G_FH}')
    a(f's_lshl_b32 s{S_SL}, s{S_SLAB}, 10')
    a(f's_add_u32 s{S_SL}, s{S_SL}, s{S_GB}')
    a(f's_add_u32 s{S_SL}, s{S_SL}, {G_ST1}')
    NV = 104
    def fl(soff): return ['s_mov_b64 exec, 1', f'buffer_store_dwordx2 v[{NV}:{NV+1}], off, s[8:11], {soff}', 's_mov_b64 exec, -1']
    a(f'v_mov_b32 v{NV}, s{S_NON}\nv_mov_b32 v{NV+1}, s{S_NON+1}')
    a('s_waitcnt vmcnt(0)')
    for l in fl('s39'): a(l + (' sc1' if l.startswith('buffer') else ''))
    T.stamp('c_pub0'); T.stamp('ap.A16')
    a(f's_lshl_b32 s27, s{S_X}, 4')
    a(f's_add_u32 s27, s27, s{S_SLAB}')
    a(f's_bfe_u32 s28, s{S_CT}, 0x10001')
    a('s_cmp_eq_u32 s28, 1')
    a('s_cselect_b32 s28, 0, 15')
    a(f's_cmp_eq_u32 s{S_SLAB}, s28')
    a(f's_cselect_b32 s{S_U+1}, 1, 0')
    a('s_add_u32 s28, s27, 1')
    a('s_and_b32 s28, s28, 126')
    a('s_cmp_eq_u32 s28, 0')
    a(f's_cselect_b32 s{S_U+1}, 0, s{S_U+1}')
    a(f's_cmp_eq_u32 s{S_U+1}, 1')
    a(f's_cselect_b32 s{S_M2}, 0, s{S_MODE}')
    a(f's_cmp_eq_u32 s{S_SLAB}, 0')
    a(f's_mov_b32 s{S_U+2}, {0x200000 + G_FHX}')
    a(f's_cselect_b32 s{S_U+2}, {(G_FHX + 1024 - 0x200000) & 0xffffffff}, s{S_U+2}')
    a(f's_add_u32 s{S_U+2}, s{S_U+2}, s{S_GB}')
    a(f's_lshl_b32 s28, s{S_CT}, 7')
    a(f's_add_u32 s{S_U+2}, s{S_U+2}, s28')
    a(f's_mov_b32 s{S_M3}, 0xccff33')
    a('s_cmp_eq_u32 s27, 0')
    a(f's_cselect_b32 s{S_M3}, 0xccff00, s{S_M3}')
    a('s_cmp_eq_u32 s27, 127')
    a(f's_cselect_b32 s{S_M3}, 0x00ff33, s{S_M3}')
    a(f's_mov_b32 s{S_M3+1}, 0')
    a('s_lshl_b32 s26, s27, 4')
    a(f's_lshl_b32 s28, s{S_SLAB}, 6')
    a(f's_add_u32 s28, s28, {G_FHH - 64}')
    a(f'v_add_u32 v{PF3}, s28, v1')
    a('v_lshrrev_b32 v10, 3, v2')
    a(f's_sub_u32 s27, s{S_SLAB}, 1')
    a('v_add_u32 v10, s27, v10')
    a('v_cmp_lt_u32 vcc, 15, v10')
    a('v_and_b32 v10, 7, v2')
    a('v_lshl_add_u32 v10, v7, 3, v10')
    a('v_lshlrev_b32 v10, 7, v10')
    a(f'v_add_u32 v10, {G_FHX}, v10')
    a(f'v_cndmask_b32 v{PF3}, v{PF3}, v10, vcc')
    for gi, d in enumerate((-1, 1, -2, 2)):
        a('v_add_u32 v10, s26, v6')
        a(f'v_add_u32 v10, {d}, v10')
        a('v_bfe_u32 v11, v10, 4, 4')
        a('v_lshlrev_b32 v11, 14, v11')
        a(f'v_lshrrev_b32 v{TMP}, 8, v10')
        a(f'v_lshl_add_u32 v11, v{TMP}, 21, v11')
        a(f'v_and_b32 v{TMP}, 15, v10')
        a(f'v_lshl_add_u32 v11, v{TMP}, 4, v11')
        a('v_lshl_add_u32 v11, v7, 8, v11')
        a('v_cmp_gt_u32 vcc, 0x800, v10')
        a(f'v_mov_b32 v{TMP}, 0x70000000')
        a(f'v_cndmask_b32 v{SH+gi}, v{TMP}, v11, vcc')
    fixwait('fixa17', 45)
    a('s_barrier')
    a.vm = ['fl']
    T.stamp('p1_poll'); T.stamp('ap.A17')
    gemm64(1, ld_plain)
    T.stamp('p1_gemm'); T.stamp('g.p1_gemm')
    pack16(HB)
    pre2 = [wread(2, s_, nt) for s_ in range(NWS) for nt in range(4)] + [f'ds_read_b128 {vr(CV+4*nt,4)}, v{CSA_} offset:{CS1 + 64*nt}' for nt in range(4)]
    st2(tile_st(HB) + stats_lines(ACT) + ['s_mov_b64 exec, -1', 's_barrier'] + pre2 + ['s_waitcnt vmcnt(0)'] + fl(f's{S_FA}'))
    T.stamp('pub1'); T.stamp('g.pub1')
    a(f's_add_u32 s29, s{S_AB}, {G_H}')
    a(f's_add_u32 s{S_TA}, s{S_TA}, {(G_HH - G_H) & 0xffffffff}')
    a(f's_add_u32 s{S_FA}, s{S_FA}, {G_FHH - G_FH}')
    poll('v1', f's{S_P2}', '0xff')
    T.stamp('p2_poll')
    a.vissue(f'buffer_load_dwordx4 {vr(TMP,4)}, v{STV}, s[8:11], s{S_SL} offen sc1', 'st')
    a('s_waitcnt lgkmcnt(0)')
    fill = [f'v_add_f32 v{TMP}, v{TMP}, v{TMP+2}', f'v_add_f32 v{TMP+1}, v{TMP+1}, v{TMP+3}'] + xsum_lines(TMP, TMP+1, TMP+2, TMP+3) + [
        f'v_mul_f32 v{MU}, {H(-1/512)}, v{TMP}', f'v_mul_f32 v{TMP+1}, {H(1/512)}, v{TMP+1}',
        f'v_fma_f32 v{TMP+1}, -v{MU}, v{MU}, v{TMP+1}', f'v_max_f32 v{TMP+1}, 0, v{TMP+1}',
        f'v_add_f32 v{TMP+2}, {H(1e-5)}, v{TMP+1}', f'v_rsq_f32 v{TMP}, v{TMP+2}', f'v_mul_f32 v{TMP+2}, v{TMP}, v{TMP}',
        f'v_fmaak_f32 v{TMP+2}, v{TMP+2}, v{TMP+1}, {H(1e-5)}', f'v_rsq_f32 v{TMP+2}, v{TMP+2}', f'v_mul_f32 v{TMP+2}, v{TMP+2}, v{TMP}',
        f'v_mul_f32 v{TMP+3}, v{TMP+2}, v{MU}', f'v_mul_f32 v{MU}, v{MU}, v{TMP}'] + [f'v_mul_f32 v{CV+i}, v{TMP+3}, v{CV+i}' for i in range(16)]
    gemm64(2, ld_plain, fill, zero=True)
    T.stamp('p2_gemm'); T.stamp('g.p2_gemm')
    for p in range(8): a(f'v_pk_fma_f32 {vr(ACC+2*p,2)}, {vr(ACC+2*p,2)}, {vr(TMP+2,2)}, {vr(CV+2*p,2)} op_sel_hi:[1,0,1]')
    gelu_pk([ACC+2*p for p in range(8)], ACT)
    pack16(ACT+16)
    st2(tile_st(ACT+16), S_M2)
    a('s_barrier')
    wpre(3)
    for nt in range(4):
        for p in range(2):
            a(f'v_lshlrev_b32 v{ACC+4*nt+2*p}, 16, v{HB+2*nt+p}')
            a(f'v_and_b32 v{ACC+4*nt+2*p+1}, 0xffff0000, v{HB+2*nt+p}')
    for p in range(8): a(f'v_pk_fma_f32 {vr(ACC+2*p,2)}, {vr(ACC+2*p,2)}, {vr(TMP,2)}, {vr(MU,2)} op_sel_hi:[1,0,0]')
    a('s_waitcnt vmcnt(0)')
    st2(fl(f's{S_FA}'))
    sk = L('hx')
    a(f's_cmp_eq_u32 s{S_U+1}, 0\ns_cbranch_scc1 {sk}')
    for l in fl(f's{S_U+2}'): a(l + (' sc1' if l.startswith('buffer') else ''))
    a.label(sk)
    T.stamp('pub2'); T.stamp('g.pub2')
    a(f's_add_u32 s{S_TA}, s{S_TA}, {G_X1 - G_HH}')
    a(f's_add_u32 s{S_SA}, s{S_SA}, {G_ST2 - G_ST1}')
    a(f's_add_u32 s{S_FA}, s{S_FA}, {G_FX1 - G_FHH}')
    poll(f'v{PF3}', f's{S_GB}', f's[{S_M3}:{S_M3+1}]')
    T.stamp('p3_poll')
    def ld_shift(s):
        if s % 4 == 0: a(f's_mov_b32 s29, {GB + G_HH + (s>>2)*4096}')
        a.vissue(f'buffer_load_dwordx4 {vr(ACT+4*(s%12),4)}, v{SH+(s>>2)}, s[8:11], s29 offen offset:{(s&3)*1024} sc1', ('a', s))
    gemm64(3, ld_shift)
    T.stamp('p3_gemm'); T.stamp('g.p3_gemm')
    pack16(ACT+16)
    st2(tile_st(ACT+16) + stats_lines(ACT) + ['s_barrier', 's_waitcnt vmcnt(0)'] + fl(f's{S_FA}'))
    a(f's_lshl_b32 s26, s{S_Q}, 13')
    a(f'v_add_u32 v{AWB}, s26, v{AWB}')
    for i in range(8): a(f'ds_read_b128 {vr(W3+4*i,4)}, v{AWB} offset:{i*1024}')
    for nt in range(4):
        for p in range(2):
            a(f'v_lshlrev_b32 v{ACT+4*nt+2*p}, 16, v{HB+2*nt+p}')
            a(f'v_and_b32 v{ACT+4*nt+2*p+1}, 0xffff0000, v{HB+2*nt+p}')
    for p in range(8): a(f'v_pk_add_f32 {vr(ACT+2*p,2)}, {vr(ACT+2*p,2)}, {vr(ACC+2*p,2)}')
    a(f's_add_u32 s26, s26, {W3L}')
    a(f's_cmp_eq_u32 s{S_Q}, 3')
    a(f's_cselect_b32 s26, {RES3}, s26')
    a('v_xor_b32 v10, v6, v7')
    a('v_lshlrev_b32 v10, 4, v10')
    a('v_lshl_add_u32 v10, v6, 8, v10')
    a('v_add_u32 v10, s26, v10')
    for nt in range(4):
        a(f'v_xor_b32 v{TMP+nt}, {64*nt}, v10')
        a(f'ds_write_b128 v{TMP+nt}, {vr(ACT+4*nt,4)}')
    a('s_waitcnt lgkmcnt(0)')
    T.stamp('pub3'); T.stamp('g.pub3')
    p4_prologue()

    a.label(HJOIN)
    a.vm = []
    A4 = 24; C3 = 56; XF = 72; T4 = 88; PKO = 120
    flag_prep()
    a('s_waitcnt vmcnt(0)')
    a('s_barrier')
    T.stamp('p4_go'); T.stamp('g.p4go'); T.stamp('p4.go')
    h4, j4 = L('help'), L('join')
    a(f's_cmp_eq_u32 s{S_WAVE}, 3')
    a(f's_cbranch_scc1 {h4}')
    WS_ = [128+4*k for k in range(20)] + [96+4*k for k in range(6)] + [128+4*k for k in range(4)] + [96, 100]
    def rdX(i):
        a(f'ds_read_b128 {vr(XF+4*(i&3),4)}, v14 offset:{(i&1)*32768 + (i>>1)*512}')
    def ldW4(f):
        a(f's_add_u32 s30, s{S_W4}, {(f >> 2)*4096}')
        a.vissue(f'buffer_load_dwordx4 {vr(W4+4*f,4)}, v3, s[8:11], s30 offen offset:{(f&3)*1024} sc1', 'w4')
    def ldW3(f):
        a(f's_add_u32 s30, s{S_B}, {(f >> 2)*4096}')
        a.vissue(f'buffer_load_dwordx4 {vr(WS_[f],4)}, v3, s[8:11], s30 offen offset:{(f&3)*1024} {WF_}', ('w', f))
    def epi_scalar(mt, dst):
        b = T4 + 4*mt; A = A4 + 16*mt; t = T4 + 8
        l = []
        for g in range(4):
            R = [A+4*g+i for i in range(4)]; Tt = [t+4*(g&1)+i for i in range(4)]
            l += [f'v_fmac_f32 v{r}, v{b}, v{C3+4*g+i}' for i, r in enumerate(R)]
            l += [f'v_mul_f32 v{x}, v{r}, v{r}' for x, r in zip(Tt, R)]
            l += [f'v_fma_f32 v{x}, v{x}, v{b+2}, v{b+1}' for x in Tt]
            l += [f'v_mul_f32 v{x}, v{x}, v{r}' for x, r in zip(Tt, R)]
            l += [f'v_exp_f32 v{x}, v{x}' for x in Tt]
            l += [f'v_fma_f32 v{x}, v{x}, v{b+3}, v{b+3}' for x in Tt]
            l += [f'v_rcp_f32 v{x}, v{x}' for x in Tt]
            l += [f'v_mul_f32 v{r}, v{r}, v{x}' for x, r in zip(Tt, R)]
            l += [f'v_cvt_pk_bf16_f32 v{dst+2*g}, v{R[0]}, v{R[1]}', f'v_cvt_pk_bf16_f32 v{dst+2*g+1}, v{R[2]}, v{R[3]}']
        return l
    def only(kind, lines):
        sk = L('on')
        a(f's_cmp_lt_u32 s{S_WAVE}, 4')
        a(f's_cbranch_scc{1 if kind == "B" else 0} {sk}')
        for l in lines: a(l)
        a.label(sk)
    def flag_issue(sbase, tag, mask):
        a(f's_mov_b64 exec, {mask}')
        a.vissue(f'buffer_load_dwordx2 v[16:17], v1, s[8:11], {sbase} offen sc1', tag)
        a('s_mov_b64 exec, -1')
    def flag_check(sbase, tag, mask):
        a.vwait(tag)
        bk_ = L('bk')
        a(f's_mov_b64 exec, {mask}')
        a(f'v_cmp_ne_u64 vcc, {sr(S_NON,2)}, v[16:17]')
        a('s_mov_b64 exec, -1')
        a(f's_cbranch_vccz {bk_}')
        keep = list(a.vm)
        poll('v1', sbase, mask)
        a.vm = keep
        a.label(bk_)
    for i in range(3): rdX(i)
    a('s_setprio 2')
    only('B', ['s_setprio 1'] + x1_lines(1))
    for i in range(64):
        ks, mt = i >> 1, i & 1
        if i == 28:
            a.vwait(('w', 20))
            a('s_barrier')
        if i == 60:
            a(f'ds_read_b128 {vr(T4,4)}, v16 offset:{ST4}')
            a(f'ds_read_b128 {vr(T4+4,4)}, v16 offset:{ST4+512}')
        if i == 2: T.stamp('p4.first')
        if i == 32: T.stamp('p4.half')
        if i + 3 < 64: rdX(i + 3)
        lg = f'lgkmcnt({min(3, 63 - i) + (2 if i in (60, 61, 62) else 0)})'
        if mt == 0 and ks >= 20: a.vwait(('w', ks), lg)
        else: a(f's_waitcnt {lg}')
        c_ = '0' if ks == 0 else vr(A4+16*mt,16)
        a(f'v_mfma_f32_32x32x16_bf16 {vr(A4+16*mt,16)}, {vr(WS_[ks],4)}, {vr(XF+4*(i&3),4)}, {c_}')
        if mt == 1 and 4 <= ks < 14: ldW3(16 + ks)
        if mt == 1 and 14 <= ks < 20: ldW4(ks - 14)
        if mt == 1 and ks in (20, 21): ldW3(10 + ks)
    a('s_setprio 3')
    T.stamp('p4_gemm'); T.stamp('p4.pass1')
    def epi_packed(mt, dst):
        b = T4 + 4*mt; A = A4 + 16*mt; t = 128
        l = [f'v_mov_b32 v96, v{b+1}', f'v_mov_b32 v98, v{b+3}']
        l += [f'v_pk_fma_f32 {vr(A+2*p,2)}, {vr(C3+2*p,2)}, {vr(b,2)}, {vr(A+2*p,2)} op_sel_hi:[1,0,1]' for p in range(8)]
        l += [f'v_pk_mul_f32 {vr(t+2*p,2)}, {vr(A+2*p,2)}, {vr(A+2*p,2)}' for p in range(8)]
        l += [f'v_pk_fma_f32 {vr(t+2*p,2)}, {vr(t+2*p,2)}, {vr(b+2,2)}, v[96:97] op_sel_hi:[1,0,0]' for p in range(8)]
        l += [f'v_pk_mul_f32 {vr(t+2*p,2)}, {vr(t+2*p,2)}, {vr(A+2*p,2)}' for p in range(8)]
        l += [f'v_exp_f32 v{t+k}, v{t+k}' for k in range(16)]
        l += [f'v_pk_fma_f32 {vr(t+2*p,2)}, {vr(t+2*p,2)}, v[98:99], v[98:99] op_sel_hi:[1,0,0]' for p in range(8)]
        l += [f'v_rcp_f32 v{t+k}, v{t+k}' for k in range(16)]
        l += [f'v_pk_mul_f32 {vr(A+2*p,2)}, {vr(A+2*p,2)}, {vr(t+2*p,2)}' for p in range(8)]
        l += [f'v_cvt_pk_bf16_f32 v{dst+p}, v{A+2*p}, v{A+2*p+1}' for p in range(8)]
        return l
    a('s_nop 9')
    stl = lambda dst, sb: [f'buffer_store_dwordx4 {vr(dst,4)}, v3, s[8:11], {sb} offen', f'buffer_store_dwordx4 {vr(dst+4,4)}, v3, s[8:11], {sb} offen offset:1024']
    def with_w4(lines):
        out = []; step = len(lines) // 11; f = 6
        for k, l in enumerate(lines):
            out.append(l)
            if k % step == step - 1 and f < 16:
                out += [f's_add_u32 s30, s{S_W4}, {(f >> 2)*4096}', f'buffer_load_dwordx4 {vr(W4+4*f,4)}, v3, s[8:11], s30 offen offset:{(f&3)*1024} sc1']
                f += 1
        assert f == 16
        return out
    only('A', with_w4(epi_scalar(0, PKO)))
    only('B', with_w4(epi_packed(0, PKO)))
    st2(stl(PKO, 's26'))
    T.stamp('p4.epi0')
    a('s_setprio 2')
    ep = epi_packed(1, 104)
    for l in ep[:58]: a(l)
    st2(['s_waitcnt vmcnt(0)'] + flag_lines('s35'))
    for l in ep[58:]: a(l)
    T.stamp('p4.epi1')
    st2(stl(104, 's27'))
    flag_issue('s32', 'fA', '0x7f')
    st2(['s_waitcnt vmcnt(0)'] + flag_lines('s29'))
    a('s_setprio 0')
    a(f's_branch {j4}')
    a.label(h4)
    for k in range(4): a(f'buffer_load_dwordx4 {vr(24+4*k,4)}, v3, s[8:11], s28 offen offset:{1024*k} sc1')
    a('v_lshrrev_b32 v40, 2, v2')
    a('v_lshl_add_u32 v40, v9, 4, v40')
    a('v_lshlrev_b32 v40, 4, v40')
    a('v_cmp_eq_u32 s[74:75], 1, v9')
    a(f'v_cmp_eq_u32 s[{S_A}:{S_B}], 2, v9')
    a('v_cmp_eq_u32 vcc, 3, v9')
    a('s_waitcnt vmcnt(0) lgkmcnt(0)')
    for k in range(4): a(f'v_pk_add_f32 {vr(24+4*k,2)}, {vr(24+4*k,2)}, {vr(26+4*k,2)}')
    for perm in ('[1,0,3,2]', '[2,3,0,1]'):
        for k in range(4):
            for e in range(2): a(f'v_add_f32_dpp v{24+4*k+e}, v{24+4*k+e}, v{24+4*k+e} quad_perm:{perm} row_mask:0xf bank_mask:0xf')
    for k, m in ((1, 's[74:75]'), (2, f's[{S_A}:{S_B}]'), (3, 'vcc')):
        a(f'v_cndmask_b32 v24, v24, v{24+4*k}, {m}')
        a(f'v_cndmask_b32 v25, v25, v{25+4*k}, {m}')
    a(f'v_mul_f32 v24, {H(-1/512)}, v24')
    a(f'v_mul_f32 v25, {H(1/512)}, v25')
    a('v_fma_f32 v25, -v24, v24, v25')
    a('v_max_f32 v25, 0, v25')
    a(f'v_add_f32 v28, {H(1e-5)}, v25')
    a('v_rsq_f32 v29, v28')
    a('v_sqrt_f32 v27, v28')
    a(f'v_mul_f32 v25, {H(GELU_C0)}, v29')
    a('v_mul_f32 v26, v29, v29')
    a('v_mul_f32 v26, v26, v29')
    a(f'v_mul_f32 v26, {H(GELU_C1)}, v26')
    a(f'ds_write_b128 v40, v[24:27] offset:{ST4}')
    a('s_waitcnt lgkmcnt(0)')
    a('s_barrier')
    for f in range(4): ldW4(f)
    if 'wb1' in opt:
        sk = L('wb')
        a(f's_cmp_lg_u32 s{S_I}, 5\ns_cbranch_scc1 {sk}')
        a('buffer_wbl2 sc1')
        a.label(sk)
    poll('v1', 's32', '0x7f', sleep=8)
    a(f'v_mov_b32 v16, s{S_NON}\nv_mov_b32 v17, s{S_NON+1}')
    a.label(j4)
    a.vm = []
    T.stamp('pub4'); T.stamp('p4.pub')

    RS_ = 120
    HAS = [56, 60, 64, 68, 128, 132, 136, 140, 72, 76, 80, 84]
    ACC5 = lambda nt, mt: (24 if mt == 0 else 88) + 16*nt
    order = [(mt, ks) for mt in range(2) for ks in range(14)]
    def ldA(i):
        mt, ks = order[i]
        a(f's_add_u32 s30, s31, {mt*114688 + (ks//4)*4096}')
        a.vissue(f'buffer_load_dwordx4 {vr(HAS[i % 12],4)}, v3, s[8:11], s30 offen offset:{(ks%4)*1024} {HF_}', ('h', i))
    flag_check('s32', 'none', '0x7f')
    a('s_add_u32 s32, s32, 2048')
    T.stamp('p5_poll'); T.stamp('p4.p5poll')
    for i in range(6): ldA(i)
    a(f'ds_read_b128 {vr(RS_,4)}, v20')
    a(f'ds_read_b128 {vr(RS_+4,4)}, v21')
    def wr_list(mt):
        l = []
        for nt in range(2):
            for q in range(4):
                oct_ = 4*nt + q
                l.append([f'v_xor_b32 v{18+(q&1)}, {oct_*32 + mt*65536}, v13',
                          f'ds_write_b128 v{18+(q&1)}, {vr(ACC5(nt,mt)+4*q,4)} offset:{RED + oct_*1024}'])
        return l
    wl = wr_list(0)
    nxt = 6
    RD = 144; SUM = RS_
    L5 = int(OP.get('l5', 5))
    for i, (mt, ks) in enumerate(order):
        a.vwait(('h', i), 'lgkmcnt(0)' if i in (0,) else '')
        if i == 14: a('s_barrier')
        if i in (0, 7, 14, 21): T.stamp(f'p4.p5_{i}')
        for nt in range(2):
            A = ACC5(nt, mt)
            c_ = '0' if ks == 0 else vr(A,16)
            a(f'v_mfma_f32_32x32x16_bf16 {vr(A,16)}, {vr(W4+8*ks+4*nt,4)}, {vr(HAS[i % 12],4)}, {c_}')
        if i == 3: flag_issue('s32', 'fB', '0x7f')
        if i == 6: flag_check('s32', 'fB', '0x7f')
        lim = 14 if i < 6 else 28
        for _ in range(2):
            if nxt < lim and nxt <= i + L5:
                ldA(nxt); nxt += 1
        if i >= 15 and wl:
            for l in wl.pop(0): a(l)
    assert nxt == 28 and not wl
    if 'wb2' in opt:
        sk = L('wb')
        a(f's_lshl_b32 s30, s{S_I}, 3')
        a(f's_or_b32 s30, s30, s{S_WAVE}')
        a(f's_cmp_lg_u32 s30, 40\ns_cbranch_scc1 {sk}')
        a('buffer_wbl2 sc1')
        a.label(sk)
    T.stamp('p5_gemm'); T.stamp('p4.p5gemm')
    for g in wr_list(1):
        for l in g: a(l)
    a('s_waitcnt lgkmcnt(0)')
    a('s_barrier')
    T.stamp('p4.E1')
    for mt in range(2):
        for src in range(8):
            a(f'ds_read_b128 {vr(RD+32*mt+4*src,4)}, v{22+mt} offset:{RED + src*8192}')
    for mt in range(2):
        for src in range(8):
            if src % 2 == 0: a(f's_waitcnt lgkmcnt({14-8*mt-src})')
            for p in range(2): a(f'v_pk_add_f32 {vr(SUM+4*mt+2*p,2)}, {vr(SUM+4*mt+2*p,2)}, {vr(RD+32*mt+4*src+2*p,2)}')
        for p in range(2): a(f'v_cvt_pk_bf16_f32 v{24+2*mt+p}, v{SUM+4*mt+2*p}, v{SUM+4*mt+2*p+1}')
        a(f'buffer_store_dwordx2 {vr(24+2*mt,2)}, v12, s[16:19], s{72+mt} offen {OP.get("of", "")}')
    if diag: a('s_waitcnt vmcnt(0)')
    fixwait('fixend', 70)
    T.stamp('end'); T.stamp('end_rt', True)
    T.flush(P_WS, 0, S_WAVE, TS)
    if 'dbgout' in opt:
        sk = L('do')
        a(f's_lshl_b32 s26, s{S_WAVE}, 8')
        a('s_or_b32 s26, s26, s2')
        a(f's_cmp_lg_u32 s26, 77\ns_cbranch_scc1 {sk}')
        srd(16, P_DBG, 256)
        a('s_mov_b64 exec, 1')
        for k, nm in enumerate(['c_b0', 'c_gemm', 'c_pub', 'c_kv0', 'c_attn_end', 'p1_poll', 'pub1', 'pub2', 'pub3', 'p4_go', 'pub4', 'p5_poll', 'p5_gemm', 'end_rt']):
            a(f's_sub_u32 s26, s{76+T.names.index(nm)}, s76')
            a('v_mov_b32 v1, s26')
            a(f'buffer_store_dword v1, off, s[16:19], 0 offset:{8+4*k}')
        a.label(sk)
    a('s_endpgm')

    for (lab, lines, back) in a.cold:
        a.label(lab)
        a('s_nop 7')
        for l in lines: a(l)
        a('s_nop 7')
        a(f's_branch {back}')
    NM = 128
    a.label(FB)
    a('s_nop 15')
    a(f's_add_u32 s30, s{S_HD}, 0x10000')
    a(f's_add_u32 s31, s{S_HD}, 0x20000')
    a(f'v_mov_b32 v{NM}, 0xff800000\nv_mov_b32 v{NM+16}, 0xff800000')
    a('s_mov_b32 s32, 0')
    l1 = L('fb1')
    a.label(l1)
    a('s_add_u32 s33, s30, s32')
    a(f'buffer_load_dwordx4 {vr(KB+4,4)}, v3, s[8:11], s33 offen sc1')
    a('s_waitcnt vmcnt(0)')
    for u, S in ((0, SA), (1, SB)):
        a(f'v_mfma_f32_32x32x16_bf16 {vr(S,16)}, {vr(KB+4,4)}, {vr(Q+4*u,4)}, 0')
    for u, S in ((0, SA), (1, SB)):
        for i in range(8): a(f'v_max3_f32 v{NM+16*u}, v{S+2*i}, v{S+2*i+1}, v{NM+16*u}')
    a('s_add_u32 s32, s32, 1024')
    a('s_cmp_lt_u32 s32, 0x10000')
    a(f's_cbranch_scc1 {l1}')
    for u in range(2):
        m = NM + 16*u
        a(f'v_mov_b32 v{m+1}, v{m}')
        a(f'v_permlane32_swap_b32 v{m}, v{m+1}')
        a(f'v_max_f32 v{m}, v{m}, v{m+1}')
        a(f'v_sub_f32 v{m}, 0, v{m}')
        for i in range(1, 16): a(f'v_mov_b32 v{m+i}, v{m}')
    for i in range(32): a(f'v_mov_b32 v{O+i}, 0')
    a('v_and_b32 v10, 27, v4')
    a('v_cmp_eq_u32 vcc, 16, v10')
    a('v_mov_b32 v10, 0x3f803f80')
    for i in range(8): a(f'v_cndmask_b32 v{VB+i}, 0, v10, vcc')
    a('v_lshlrev_b32 v10, 8, v5')
    a('v_lshl_add_u32 v10, v6, 4, v10')
    a('s_mov_b32 s32, 0')
    a('s_mov_b32 s34, 0xffff\ns_mov_b32 s35, 0xffff')
    l2 = L('fb2')
    a.label(l2)
    a('s_add_u32 s33, s30, s32')
    a(f'buffer_load_dwordx4 {vr(KB+4,4)}, v3, s[8:11], s33 offen sc1')
    a('s_add_u32 s33, s31, s32')
    a('s_mov_b64 exec, s[34:35]')
    a(f'buffer_load_dwordx4 {vr(VB,4)}, v10, s[8:11], s33 offen sc1')
    a(f'buffer_load_dwordx4 {vr(VB+4,4)}, v10, s[8:11], s33 offen offset:512 sc1')
    a('s_mov_b64 exec, -1')
    a('s_waitcnt vmcnt(0)')
    for u, S in ((0, SA), (1, SB)):
        a(f'v_mfma_f32_32x32x16_bf16 {vr(S,16)}, {vr(KB+4,4)}, {vr(Q+4*u,4)}, {vr(NM+16*u,16)}')
    for u, S in ((0, SA), (1, SB)):
        for i in range(16): a(f'v_exp_f32 v{S+i}, v{S+i}')
        for j in range(8): a(f'v_cvt_pk_bf16_f32 v{P+j}, v{S+2*j}, v{S+2*j+1}')
        for f in range(2):
            a(f'v_mfma_f32_32x32x16_bf16 {vr(O+16*u,16)}, {vr(VB+4*f,4)}, {vr(P+4*f,4)}, {vr(O+16*u,16)}')
        a('s_nop 15')
    a('s_add_u32 s32, s32, 1024')
    a('s_cmp_lt_u32 s32, 0x10000')
    a(f's_cbranch_scc1 {l2}')
    a('s_nop 15')
    a(f's_branch {FBR}')
    a.label(END)
    a('s_endpgm')
    return a, LDS_SIZE
```

```python
from asmlib import *
from layout import *
import struct
def f2u(x): return struct.unpack('<I', struct.pack('<f', x))[0]
def H(x): return hex(f2u(x))

LDS_SIZE = 160 * 1024
XL = 0; WL = 65536; WSLOT = 24576; NSLOT = 3
CSUM = WL + NSLOT * WSLOT
RST = CSUM + 1024
LOW = 0; PREP = 0; CONST = 28672; KV = 32768; WA = 32768; WB = 98304
PRG = CONST + 64; PCN = CONST + 96; KVC = CONST + 100
W1X = WB + 32768; W2L = WB + 36864; NW2L = 7; CS1 = CONST; C3L = CONST + 256
W3L = WB; RES3 = W3L + 24576; NONL = RST + 512; ST4 = CONST + 2048; PKB = 0
XT = WA
RED = 0

GELU_C0 = -2.0 * 0.7978845608028654 * 1.4426950408889634
GELU_C1 = GELU_C0 * 0.044715

S_WAVE, S_X, S_I, S_RB, S_CT, S_R16 = 20, 21, 22, 23, 24, 25
P_X, P_WQKV, P_WO, P_W1, P_W2, P_W3, P_W4, P_OUT, P_DBG, P_WS = 36, 38, 40, 44, 46, 48, 50, 52, 54, 56
S_NON = 58; S_SPIN = 60; S_MODE = 61; S_C1 = 62; S_ONE = 64
S_QKV, S_HD, S_RHO, S_Q, S_SLAB, S_M2 = 66, 67, 68, 69, 70, 71
S_U = 72
S_GB = 3; S_J = 4; S_W4 = 5; S_A = 6; S_B = 7; S_C0 = 42
W3 = 128; W4 = 144

def gen_mega(name='mega_kernel', diag=False, force_safe=False, force_fallback=False, sel=None, opt=''):
    a = Asm()
    T = Stamper(a, 76, diag); a.T = T; T.sel = sel; T.rt = ('rt' in opt.split(','))
    uid = [0]
    def L(s): uid[0] += 1; return f'L_{s}{uid[0]}'
    def srd(base, p, size):
        a(f's_mov_b32 s{base}, s{p}\ns_mov_b32 s{base+1}, s{p+1}\ns_mov_b32 s{base+2}, {hex(size)}\ns_mov_b32 s{base+3}, 0x20000')
    END = f'{name}_end'
    OP = dict(kv.split('=') for kv in opt.split(',') if '=' in kv)
    HGX = int(OP.get('hgx', 5))
    HF_ = OP.get('hf', 'sc1').replace('+', ' '); WF_ = OP.get('wf', 'sc1').replace('+', ' ')
    NR3 = 20
    JF = '' if 'jplain' in opt else 'sc1'
    KVNT = 'nt ' if 'kvnt' in opt else ''

    a(f'.globl {name}\n.p2align 8\n.type {name},@function')
    a.label(name)
    a(f's_cmp_ge_u32 s2, 256\ns_cbranch_scc1 {END}')
    a('s_load_dwordx16 s[36:51], s[0:1], 0')
    a('s_load_dwordx4 s[52:55], s[0:1], 64')
    a('s_load_dwordx2 s[56:57], s[0:1], 80')
    a('v_lshrrev_b32 v1, 6, v0')
    a('v_and_b32 v2, 63, v0')
    a(f'v_readfirstlane_b32 s{S_WAVE}, v1')
    a(f's_and_b32 s{S_X}, s2, 7')
    a(f's_lshr_b32 s{S_I}, s2, 3')
    a(f's_lshr_b32 s{S_RB}, s{S_I}, 3')
    a(f's_and_b32 s{S_CT}, s{S_I}, 7')
    a(f's_and_b32 s{S_Q}, s{S_WAVE}, 3')
    if diag:
        for i in range(24): a(f's_mov_b32 s{76+i}, 0')
        T.stamp('start_rt', True); T.stamp('start')
    if 'fix' in opt:
        a('s_memrealtime s[98:99]')
    def fixwait(tag, us):
        if tag not in opt.split(','): return
        lp = L('fx')
        a.label(lp)
        a('s_memrealtime s[100:101]')
        a('s_waitcnt lgkmcnt(0)')
        a('s_sub_u32 s100, s100, s98')
        a(f's_cmp_lt_u32 s100, {us*100}')
        a(f's_cbranch_scc1 {lp}')
    CW1 = L('cw1')
    a(f's_cmp_lt_u32 s{S_WAVE}, 4')
    a(f's_cbranch_scc1 {CW1}')

    def common_consts():
        a('v_lshlrev_b32 v3, 4, v2')
        a('v_and_b32 v4, 31, v2')
        a('v_lshrrev_b32 v5, 5, v2')
        a('v_and_b32 v6, 15, v2')
        a('v_lshrrev_b32 v7, 4, v2')
        a('v_bfe_u32 v8, v2, 2, 2')
        a('v_and_b32 v9, 3, v2')
        a('v_lshlrev_b32 v1, 3, v2')
        a(f's_lshl_b32 s{S_R16}, s{S_RB}, 2')
        a(f's_add_u32 s{S_SLAB}, s{S_R16}, s{S_Q}')
        a(f's_lshl_b32 s{S_GB}, s{S_X}, 21')
        a(f's_add_u32 s{S_GB}, s{S_GB}, {GB}')
        a(f's_mul_i32 s{S_QKV}, s{S_X}, {QKVG}')
        a(f's_mul_i32 s{S_HD}, s{S_RB}, {HDS}')
        a(f's_add_u32 s{S_HD}, s{S_HD}, s{S_QKV}')
        a(f's_cmp_gt_u32 s{S_WAVE}, 3')
        a(f's_subb_u32 s{S_J}, s{S_WAVE}, 0')
        a(f's_mul_i32 s{S_W4}, s{S_CT}, 229376')
        a(f's_mul_i32 s26, s{S_WAVE}, 28672')
        a(f's_add_u32 s{S_W4}, s{S_W4}, s26')
        a(f's_add_u32 s{S_W4}, s{S_W4}, {W4F}')
        a(f's_mov_b32 s{S_C1}, {H(GELU_C1)}\ns_mov_b32 s{S_C1+1}, {H(GELU_C1)}')
        a(f's_mov_b32 s{S_ONE}, 1.0\ns_mov_b32 s{S_ONE+1}, 1.0')

    def get_nonce(sleep=0):
        lp, done = L('non'), L('nond')
        srd(16, P_DBG, 256)
        a(f's_mov_b32 s{S_SPIN}, 0')
        a.label(lp)
        if sleep: a(f's_sleep {sleep}')
        a('buffer_load_dwordx2 v[10:11], off, s[16:19], 0 sc1')
        a(f's_add_u32 s{S_SPIN}, s{S_SPIN}, 1')
        a('s_waitcnt vmcnt(0)')
        a(f'v_readfirstlane_b32 s{S_NON}, v10')
        a(f'v_readfirstlane_b32 s{S_NON+1}, v11')
        a(f's_cmp_gt_u32 s{S_SPIN}, 0x20000')
        a(f's_cbranch_scc1 {done}')
        a(f's_cmp_eq_u32 s{S_NON}, 0')
        a(f's_cbranch_scc1 {lp}')
        a.label(done)
        a.vm = []

    def get_nonce_s(sleep=0):
        lp, done = L('non'), L('nond')
        a(f's_mov_b32 s{S_SPIN}, 0')
        a.label(lp)
        if sleep: a(f's_sleep {sleep}')
        a(f's_load_dwordx2 s[{S_NON}:{S_NON+1}], s[{P_DBG}:{P_DBG+1}], 0 glc')
        a(f's_add_u32 s{S_SPIN}, s{S_SPIN}, 1')
        a(f's_cmp_gt_u32 s{S_SPIN}, 0x20000')
        a('s_waitcnt lgkmcnt(0)')
        a(f's_cbranch_scc1 {done}')
        a(f's_cmp_eq_u32 s{S_NON}, 0')
        a(f's_cbranch_scc1 {lp}')
        a.label(done)

    def poll(voff, soff, execmask=None, sleep=0):
        lp, done = L('poll'), L('polld')
        if execmask: a(f's_mov_b64 exec, {execmask}')
        a(f's_mov_b32 s{S_SPIN}, 0')
        a.label(lp)
        if sleep: a(f's_sleep {sleep}')
        a(f'buffer_load_dwordx2 v[10:11], {voff}, s[8:11], {soff} offen sc1')
        a(f's_add_u32 s{S_SPIN}, s{S_SPIN}, 1')
        a(f's_cmp_gt_u32 s{S_SPIN}, 0x20000')
        a('s_waitcnt vmcnt(0)')
        a(f's_cbranch_scc1 {done}')
        a(f'v_cmp_ne_u64 vcc, {sr(S_NON,2)}, v[10:11]')
        a(f's_cbranch_vccnz {lp}')
        a.label(done)
        if execmask: a('s_mov_b64 exec, -1')
        a.vm = []

    def st2(lines, mode=S_MODE):
        sk, dn = L('sf'), L('sd')
        a(f's_cmp_eq_u32 s{mode}, 0')
        a(f's_cbranch_scc1 {sk}')
        for l in lines: a(l)
        a.label(dn)
        a.cold.append((sk, [l + ' sc1' if l.startswith('buffer_store') else l for l in lines], dn))
        a.vm += ['st'] * sum(l.startswith('buffer_store') for l in lines)
    a.cold = []; a.cold2 = []

    def flag_lines(soff):
        return ['s_mov_b64 exec, 1', f'buffer_store_dwordx2 v[10:11], off, s[8:11], {soff}', 's_mov_b64 exec, -1']
    def flag_prep():
        a(f'v_mov_b32 v10, s{S_NON}\nv_mov_b32 v11, s{S_NON+1}')
    def flag_sc1(soff):
        flag_prep()
        for l in flag_lines(soff): a(l + (' sc1' if l.startswith('buffer') else ''))
        a.vm.append('fl')

    def xcc_load(vreg, vt):
        a(f's_lshl_b32 s26, s{S_X}, 12')
        a(f's_add_u32 s26, s26, {F_XCC}')
        a(f'v_lshlrev_b32 v{vt}, 7, v4')
        a(f'buffer_load_dwordx2 {vr(vreg,2)}, v{vt}, s[8:11], s26 offen sc1')
    def calc_mode(vreg):
        a('s_getreg_b32 s34, hwreg(HW_REG_XCC_ID)')
        a('s_and_b32 s34, s34, 15')
        a(f's_or_b32 s34, s34, s{S_NON}')
        a(f's_mov_b32 s35, s{S_NON+1}')
        a(f'v_cmp_ne_u64 vcc, s[34:35], {vr(vreg,2)}')
        a('s_cmp_eq_u64 vcc, 0')
        a(f's_cselect_b32 s{S_MODE}, 1, 0')
        a(f's_cmp_eq_u32 s{S_NON}, 0')
        a(f's_cselect_b32 s{S_MODE}, 0, s{S_MODE}')
        if force_safe: a(f's_mov_b32 s{S_MODE}, 0')
    def xcc_publish(v0, v1):
        a('s_getreg_b32 s27, hwreg(HW_REG_XCC_ID)')
        a('s_and_b32 s27, s27, 15')
        a(f's_or_b32 s27, s27, s{S_NON}')
        a(f'v_mov_b32 v{v0}, s27\nv_mov_b32 v{v1}, s{S_NON+1}')
        a(f's_lshl_b32 s26, s{S_X}, 12')
        a(f's_lshl_b32 s27, s{S_I}, 7')
        a('s_add_u32 s26, s26, s27')
        a(f's_add_u32 s26, s26, {F_XCC}')
        a('s_mov_b64 exec, 1')
        a(f'buffer_store_dwordx2 v[{v0}:{v1}], off, s[8:11], s26 sc1')
        a('s_mov_b64 exec, -1')

    def unit_decode(su):
        l3, l4, dn = L('u3'), L('u4'), L('ud')
        a('s_mov_b32 s15, 0x20000')
        a(f's_cmp_ge_u32 s{su}, 832\ns_cbranch_scc1 {l4}')
        a(f's_cmp_ge_u32 s{su}, 384\ns_cbranch_scc1 {l3}')
        a(f's_lshr_b32 s32, s{su}, 7')
        a(f's_bfe_u32 s33, s{su}, 0x40003')
        a(f's_and_b32 s34, s{su}, 7')
        a('s_lshl_b32 s27, s33, 15')
        a('s_lshl_b32 s35, s34, 7')
        a('s_add_u32 s27, s27, s35')
        a('s_lshl_b32 s28, s32, 19')
        a('s_lshl_b32 s35, s34, 16')
        a('s_add_u32 s28, s28, s35')
        a('s_lshl_b32 s35, s33, 12')
        a('s_add_u32 s28, s28, s35')
        a(f's_add_u32 s28, s28, {WOF}')
        a('s_min_u32 s26, s32, 1')
        a('s_cmp_eq_u32 s32, 1')
        a(f's_cselect_b64 s[12:13], s[{P_W1}:{P_W1+1}], s[{P_W2}:{P_W2+1}]')
        a('s_cmp_eq_u32 s32, 0')
        a(f's_cselect_b64 s[12:13], s[{P_WO}:{P_WO+1}], s[12:13]')
        a('s_mov_b32 s14, 0x80000')
        a(f's_branch {dn}')
        a.label(l3)
        a(f's_sub_u32 s32, s{su}, 384')
        a('s_mul_hi_u32 s33, s32, 0x0924924a')
        a('s_mul_i32 s34, s33, 28')
        a('s_sub_u32 s34, s32, s34')
        a(f's_mul_i32 s27, s33, {32*3584}')
        a('s_lshl_b32 s35, s34, 7')
        a('s_add_u32 s27, s27, s35')
        a('s_lshl_b32 s28, s34, 16')
        a('s_lshl_b32 s35, s33, 11')
        a('s_add_u32 s28, s28, s35')
        a(f's_add_u32 s28, s28, {W3F}')
        a('s_mov_b32 s26, 2')
        a(f's_mov_b64 s[12:13], s[{P_W3}:{P_W3+1}]')
        a('s_mov_b32 s14, 0x1c0000')
        a(f's_branch {dn}')
        a.label(l4)
        a(f's_sub_u32 s32, s{su}, 832')
        a('s_lshr_b32 s33, s32, 3')
        a('s_and_b32 s34, s32, 7')
        a('s_lshl_b32 s27, s33, 15')
        a('s_lshl_b32 s35, s34, 7')
        a('s_add_u32 s27, s27, s35')
        a('s_mul_i32 s28, s34, 229376')
        a('s_lshl_b32 s35, s33, 12')
        a('s_add_u32 s28, s28, s35')
        a(f's_add_u32 s28, s28, {W4F}')
        a('s_mov_b32 s26, 3')
        a(f's_mov_b64 s[12:13], s[{P_W4}:{P_W4+1}]')
        a('s_mov_b32 s14, 0x1c0000')
        a.label(dn)

    def p4_prologue():
        C3 = 56
        a('v_lshrrev_b32 v15, 4, v4')
        a('v_lshlrev_b32 v14, 14, v15')
        a('v_lshl_add_u32 v14, v5, 8, v14')
        a('v_lshl_add_u32 v14, v6, 4, v14')
        a(f'v_add_u32 v14, {XT}, v14')
        a('v_mul_u32_u24 v15, 0xe000, v15')
        a('v_lshl_add_u32 v15, v5, 8, v15')
        a('v_lshl_add_u32 v15, v6, 4, v15')
        a('v_lshlrev_b32 v16, 4, v4')
        a(f's_lshl_b32 s26, s{S_J}, 7')
        a(f's_add_u32 s26, s26, {C3L}')
        a('v_lshl_add_u32 v17, v5, 4, s26')
        for q in range(4): a(f'ds_read_b128 {vr(C3+4*q,4)}, v17 offset:{32*q}')
        a(f's_lshl_b32 s26, s{S_J}, 12')
        a('v_add_u32 v18, s26, v3')
        a(f'v_add_u32 v19, {PKB}, v18')
        a(f's_lshl_b32 s28, s{S_R16}, 10')
        a(f's_add_u32 s28, s28, s{S_GB}')
        a(f's_add_u32 s28, s28, {G_ST2}')
        a(f's_mov_b32 s33, s{S_HD}')
        a(f's_lshl_b32 s34, s{S_RB}, 9')
        a(f's_add_u32 s34, s34, s{S_GB}')
        a(f's_add_u32 s34, s34, {G_FH2}')
        a(f's_lshl_b32 s35, s{S_CT}, 6')
        a('s_add_u32 s35, s35, s34')
        a(f's_lshl_b32 s29, s{S_J}, 3')
        a('s_add_u32 s35, s35, s29')
        a('s_add_u32 s29, s35, 2048')
        a(f's_lshl_b32 s32, s{S_WAVE}, 6')
        a('s_add_u32 s32, s32, s34')
        a(f's_mul_i32 s31, s{S_WAVE}, 14336')
        a('s_add_u32 s31, s31, s33')
        a(f's_lshl_b32 s27, s{S_Q}, 2')
        a('v_add_u32 v10, s27, v7')
        a('v_xor_b32 v12, v10, v6')
        a('v_lshlrev_b32 v12, 4, v12')
        a('v_lshl_add_u32 v12, v10, 8, v12')
        a(f's_cmp_gt_u32 s{S_WAVE}, 3')
        a('s_cselect_b32 s26, 8192, 0')
        a(f's_mov_b32 s27, {W3L + 16384}')
        a(f's_cselect_b32 s27, {RES3}, s27')
        a(f's_add_u32 s26, s26, {W3L}')
        a('v_add_u32 v20, s26, v12')
        a('v_add_u32 v21, s27, v12')
        a(f's_lshl_b32 s27, s{S_WAVE}, 13')
        a('v_lshlrev_b32 v13, 4, v5')
        a('v_xor_b32 v13, v13, v3')
        a('v_add_u32 v13, s27, v13')
        a(f's_lshl_b32 s27, s{S_WAVE}, 2')
        a('v_add_u32 v10, s27, v7')
        a('v_xor_b32 v10, v10, v6')
        a('v_lshlrev_b32 v10, 4, v10')
        a('v_and_b32 v11, 1, v2')
        a('v_lshl_add_u32 v10, v11, 9, v10')
        a('v_lshrrev_b32 v11, 1, v6')
        a('v_lshl_add_u32 v22, v11, 10, v10')
        a('v_add_u32 v23, 0x10000, v22')
        a('v_lshlrev_b32 v12, 10, v7')
        a('v_lshl_add_u32 v12, v6, 3, v12')
        srd(16, P_OUT, 0x200000)
        a(f's_lshl_b32 s72, s{S_X}, 4')
        a(f's_add_u32 s72, s72, s{S_R16}')
        a('s_lshl_b32 s72, s72, 14')
        a(f's_lshl_b32 s27, s{S_WAVE}, 12')
        a('s_add_u32 s72, s72, s27')
        a(f's_lshl_b32 s27, s{S_CT}, 7')
        a('s_add_u32 s72, s72, s27')
        a('s_add_u32 s73, s72, 32768')
        a(f's_mul_i32 s26, s{S_CT}, 14336')
        a('s_add_u32 s26, s26, s33')
        a(f's_lshl_b32 s27, s{S_J}, 11')
        a('s_add_u32 s26, s26, s27')
        a(f's_add_u32 s27, s26, {2*57344}')

    VX, VWQ = 12, 13
    a('s_setprio 3')
    a('s_memrealtime s[32:33]')
    a('v_lshrrev_b32 v3, 3, v2')
    a(f's_lshl_b32 s27, s{S_Q}, 3')
    a('v_add_u32 v6, s27, v3')
    a('v_lshrrev_b32 v4, 4, v2')
    a(f's_and_b32 s27, s{S_Q}, 1')
    a('s_lshl_b32 s27, s27, 2')
    a('v_add_u32 v4, s27, v4')
    a('v_and_b32 v5, 7, v2')
    a('v_xor_b32 v4, v4, v5')
    a('v_lshlrev_b32 v4, 4, v4')
    a(f'v_lshl_add_u32 v{VX}, v6, 10, v4')
    a('v_bfe_u32 v4, v3, 1, 1')
    a('v_lshlrev_b32 v4, 2, v4')
    a('v_bfe_u32 v7, v3, 2, 1')
    a('v_lshl_add_u32 v4, v7, 1, v4')
    a('v_xor_b32 v4, v4, v5')
    a('v_lshlrev_b32 v55, 4, v4')
    a('s_movk_i32 s27, 0xc00')
    a(f'v_mad_u32_u24 v{VWQ}, v6, s27, v55')
    a(f's_lshl_b32 s28, s{S_I}, 16')
    a(f's_lshl_b32 s29, s{S_Q}, 10')
    a(f's_xor_b32 s31, s{S_X}, {HGX}')
    a('s_lshl_b32 s31, s31, 7')
    a(f's_add_u32 s{S_RHO}, s{S_CT}, s{S_X}')
    a('s_mov_b32 s18, 0x200000\ns_mov_b32 s19, 0x20000\ns_mov_b32 s14, 0x180000\ns_mov_b32 s15, 0x20000')
    a('s_waitcnt lgkmcnt(0)')
    sk = L('nc')
    a(f's_or_b32 s27, s2, s{S_Q}')
    a(f's_cmp_lg_u32 s27, 0\ns_cbranch_scc1 {sk}')
    srd(8, P_DBG, 256)
    a('s_lshl_b64 s[32:33], s[32:33], 5')
    a('s_or_b32 s32, s32, 16')
    a('v_mov_b32 v10, s32\nv_mov_b32 v11, s33')
    a('s_mov_b64 exec, 1')
    a('buffer_store_dwordx2 v[10:11], off, s[8:11], 0 sc1')
    a('s_mov_b64 exec, -1')
    a.label(sk)
    a(f's_mov_b64 s[16:17], s[{P_X}:{P_X+1}]')
    a(f's_mov_b64 s[12:13], s[{P_WQKV}:{P_WQKV+1}]')
    T.stamp('p1.h_iss', slot=20)
    def issx(c):
        a(f's_add_u32 s33, s{S_RHO}, {c}')
        a('s_and_b32 s33, s33, 7')
        a('s_lshl_b32 s34, s33, 7')
        a('s_add_u32 s34, s34, s28')
        for j in range(2):
            a(f's_add_u32 m0, s29, {XL + c*8192 + j*4096}')
            if j: a('s_add_u32 s34, s34, 32768')
            a.vissue(f'buffer_load_dwordx4 v{VX}, s[16:19], s34 offen lds', ('x', c))
    def issw(c):
        a(f's_add_u32 s33, s{S_RHO}, {c}')
        a('s_and_b32 s33, s33, 7')
        a('s_mul_i32 s35, s33, 196608')
        a('s_add_u32 s35, s35, s31')
        for j in range(2):
            for sec in range(3):
                a(f's_add_u32 m0, s29, {WL + (c % NSLOT)*WSLOT + sec*8192 + j*4096}')
                a(f's_add_u32 s34, s35, {j*32*3072 + sec*1024}')
                a.vissue(f'buffer_load_dwordx4 v{VWQ}, s[12:15], s34 offen lds', ('w', c))
    issx(0); issw(0); issx(1)
    if 'ordA' not in opt: issw(1)
    else: issx(2); issx(3)
    common_consts()
    srd(8, P_WS, WS_USED)
    AWH, AXH, CSA, SXH, SQH, ONES, WFH, XFH = 14, 17, 20, 32, 36, 18, 64, 88
    a('v_and_b32 v10, 1, v7')
    a('v_lshrrev_b32 v11, 1, v8')
    a('v_lshl_add_u32 v11, v11, 1, v10')
    a('v_lshl_add_u32 v10, v7, 2, v8')
    a('v_lshlrev_b32 v10, 7, v10')
    a('v_lshl_add_u32 v10, v9, 3, v10')
    for j in range(3):
        a(f's_mul_i32 s26, s{S_Q}, 3')
        a(f's_add_u32 s26, s26, {j}')
        a('s_and_b32 s27, s26, 3')
        a('s_lshr_b32 s26, s26, 2')
        a('s_lshl_b32 s26, s26, 13')
        a(f's_add_u32 s26, s26, {WL}')
        a('v_xor_b32 v40, s27, v11')
        a('v_lshl_add_u32 v40, v40, 5, v10')
        a(f'v_add_u32 v{AWH+j}, s26, v40')
    a(f's_lshl_b32 s26, s{S_Q}, 11')
    a('v_lshlrev_b32 v10, 7, v6')
    a('v_bfe_u32 v11, v6, 1, 3')
    a('v_xor_b32 v11, v11, v7')
    a('v_lshl_add_u32 v10, v11, 4, v10')
    a(f'v_add_u32 v{AXH}, s26, v10')
    a(f'v_xor_b32 v41, 64, v{AXH}')
    a(f'v_mov_b32 v{ONES}, 0x3f803f80\nv_mov_b32 v{ONES+1}, 0x3f803f80')
    PA16, PA32, PROW, PUN = 44, 52, 54, 55
    def prep_addr():
        a('v_and_b32 v10, 1, v7')
        a('v_lshrrev_b32 v11, 1, v8')
        a('v_lshl_add_u32 v11, v11, 1, v10')
        a('v_lshl_add_u32 v56, v10, 2, v8')
        a('v_lshrrev_b32 v57, 1, v7')
        a('v_lshl_add_u32 v58, v57, 4, v56')
        a('v_lshl_add_u32 v59, v57, 3, v56')
        for ti, kreg in enumerate((58, 59)):
            for nt in range(4):
                a(f'v_xor_b32 v60, {nt}, v11')
                a('v_lshlrev_b32 v60, 5, v60')
                a('v_lshl_add_u32 v60, v9, 3, v60')
                a(f'v_lshl_add_u32 v{PA16+4*ti+nt}, v{kreg}, 7, v60')
        a('v_lshrrev_b32 v11, 1, v8')
        a('v_lshl_add_u32 v11, v11, 1, v5')
        a('v_lshl_add_u32 v56, v5, 2, v8')
        a('v_lshlrev_b32 v56, 7, v56')
        a('v_lshl_add_u32 v56, v9, 3, v56')
        for nt in range(2):
            a(f'v_add_u32 v60, {2*nt}, v10')
            a('v_xor_b32 v60, v60, v11')
            a(f'v_lshl_add_u32 v{PA32+nt}, v60, 5, v56')
        a(f'v_lshrrev_b32 v{PROW}, 3, v2')
    ONE4 = 96
    TCC = 5 if 'tc5' in opt else 6
    for i in range(4): a(f'v_mov_b32 v{ONE4+i}, 0x3f803f80')
    a(f's_mul_i32 s26, s{S_Q}, 192')
    a(f's_add_u32 s26, s26, {CSUM}')
    a('v_lshl_add_u32 v100, v7, 4, s26')
    a(f's_lshl_b32 s26, s{S_Q}, 6')
    a(f's_add_u32 s26, s26, {RST}')
    a('v_lshl_add_u32 v101, v6, 2, s26')
    a('v_cmp_eq_u32 s[42:43], 1, v9')
    a('v_cmp_eq_u32 s[6:7], 2, v9')
    def unit_idx(k):
        a(f's_mul_i32 s{S_U}, s2, 5')
        a(f's_add_u32 s{S_U}, s{S_U}, {k}')
        unit_decode(S_U)
    def stride_sel():
        a('s_cmp_eq_u32 s26, 2')
        a('s_movk_i32 s32, 0x400')
        a('s_cselect_b32 s32, 0xe00, s32')
        a(f'v_mad_u32_u24 v60, v{PROW}, s32, v{PUN}')
        a('s_lshl_b32 s32, s32, 3')
    def touch_addr():
        a('v_lshlrev_b32 v108, 16, v7')
        a(f's_mov_b32 s26, {HDS}')
        a('v_bfe_u32 v10, v2, 3, 1')
        a('v_mad_u32_u24 v108, v10, s26, v108')
        a('v_and_b32 v10, 7, v2')
        a('v_lshl_add_u32 v108, v10, 7, v108')
        a(f's_lshl_b32 s26, s{S_I}, 1')
        a(f's_lshr_b32 s27, s{S_Q}, 1')
        a('s_add_u32 s26, s26, s27')
        a('s_lshl_b32 s26, s26, 10')
        a(f's_and_b32 s27, s{S_Q}, 1')
        a(f's_mul_i32 s27, s27, {2*HDS}')
        a('s_add_u32 s26, s26, s27')
        a(f's_add_u32 s26, s26, s{S_QKV}')
        a('v_add_u32 v108, s26, v108')
        a(f's_add_u32 s26, s{S_GB}, {G_FQ}')
        a('v_and_b32 v10, 1, v2')
        a('v_lshl_add_u32 v10, v10, 7, s26')
        a('v_cmp_lt_u32 vcc, 47, v2')
        a('v_cndmask_b32 v108, v108, v10, vcc')
    def prep_load(k, rec):
        unit_idx(k)
        stride_sel()
        if isinstance(k, int): a(f's_mov_b32 s35, {k*4096}')
        else: a(f's_lshl_b32 s35, {k}, 12')
        for p in range(4):
            a(f's_add_u32 m0, s35, {PREP + p*1024}')
            if p: a('s_add_u32 s27, s27, s32')
            t = 'buffer_load_dwordx4 v60, s[12:15], s27 offen lds'
            a.vissue(t, 'pl') if rec else a(t)

    a(f's_mul_i32 s26, s{S_Q}, 192')
    a(f's_add_u32 s26, s26, {CSUM}')
    a('v_add_u32 v112, s26, v1')
    a(f's_lshl_b32 s75, s{S_X}, 16')
    a(f's_mul_i32 s26, s{S_Q}, 384')
    a('s_add_u32 s75, s75, s26')
    a(f's_add_u32 s75, s75, {CSX}')
    a(f's_lshl_b32 s26, s{S_I}, 11')
    a('s_add_u32 s74, s75, s26')
    a(f's_lshl_b32 s26, s{S_RB}, 14')
    a('s_add_u32 s75, s75, s26')
    a('v_lshrrev_b32 v111, 3, v2')
    a('v_lshlrev_b32 v111, 11, v111')
    a('v_and_b32 v10, 7, v2')
    a('v_lshl_add_u32 v111, v10, 4, v111')
    touch_addr()
    if 'ordA' not in opt:
        issx(2)
        if 'ordD' in opt: issw(2)
    else:
        issw(1)
        for c in range(4, 8): issx(c)
    srd(44, P_DBG, 256)
    def pls():
        prep_load(f's{S_Q}', True)
        sk = L('u4')
        a(f's_cmp_lg_u32 s{S_Q}, 3\ns_cbranch_scc1 {sk}')
        prep_load(4, False)
        a.label(sk)
    PE = int(OP.get('pe', -1))
    a(f'v_lshrrev_b32 v{PROW}, 3, v2')
    a.vissue('buffer_load_dwordx2 v[104:105], off, s[44:47], 0 sc1', 'n')
    a('s_load_dwordx4 s[44:47], s[0:1], 32')
    xsched = {0: [0], 1: [1], 2: [2, 3], 3: [4, 5], 4: [6, 7]}
    XFIN = 5
    if 'ordA' not in opt: xsched = {k: [k] for k in range(8)}; XFIN = 7
    GA = 64
    def mode_calc():
        sk, lp, ok = L('nw'), L('xr'), L('xo')
        a(f's_cmp_lg_u32 s{S_Q}, 0\ns_cbranch_scc1 {sk}')
        a(f's_mov_b32 s{S_SPIN}, 0')
        a('s_mov_b32 exec_hi, 0')
        a.label(lp)
        a('v_and_b32 v10, -16, v106')
        a('v_mov_b32 v11, v107')
        a(f'v_cmp_ne_u64 vcc, {sr(S_NON,2)}, v[10:11]')
        a(f's_cbranch_vccz {ok}')
        a(f's_add_u32 s{S_SPIN}, s{S_SPIN}, 1')
        a(f's_cmp_gt_u32 s{S_SPIN}, 64')
        a(f's_cbranch_scc1 {ok}')
        xcc_load(106, 109)
        a('s_waitcnt vmcnt(0)')
        a(f's_branch {lp}')
        a.label(ok)
        calc_mode(106)
        a('s_mov_b32 exec_hi, -1')
        a(f'v_mov_b32 v104, s{S_NON}\nv_mov_b32 v105, s{S_NON+1}\nv_mov_b32 v106, s{S_MODE}')
        a(f'v_mov_b32 v10, {NONL}')
        a('ds_write_b128 v10, v[104:107]')
        a.label(sk)
    def gather_issue(rec):
        for j in range(3):
            t = f'buffer_load_dwordx4 {vr(GA+4*j,4)}, v111, s[8:11], s75 offen offset:{128*j} sc1'
            a.vissue(t, 'ga') if rec else a(t)
    for c in range(8):
        a.vwait(('w', c))
        T.stamp(f'p1.h_w{c}', slot=2+2*c)
        a('s_barrier')
        T.stamp(f'p1.h_b{c}', slot=3+2*c)
        if c == 0:
            for j in range(3):
                for kk in range(4):
                    a(f'ds_read_b64_tr_b16 {vr(WFH+8*j+2*kk,2)}, v{AWH+j} offset:{kk*2048}')
        xs = xsched.get(c, [])
        XB = [XFH, 80]
        for k, xc in enumerate(xs):
            a(f'ds_read_b128 {vr(XB[k],4)}, v{AXH} offset:{XL + xc*8192}')
            a(f'ds_read_b128 {vr(XB[k]+4,4)}, v41 offset:{XL + xc*8192}')
        if c == 2:
            a(f'v_readfirstlane_b32 s{S_NON}, v104')
            a(f'v_readfirstlane_b32 s{S_NON+1}, v105')
            sk = L('gn')
            a(f's_cmp_lg_u32 s{S_NON}, 0\ns_cbranch_scc1 {sk}')
            keep = list(a.vm); get_nonce(); a.vm = keep
            srd(16, P_X, 0x200000)
            a.label(sk)
            a(f'v_mov_b32 v78, s{S_NON}\nv_mov_b32 v79, s{S_NON+1}')
            a('s_mov_b64 exec, 0xffffff')
            a.vissue('buffer_store_dwordx4 v[76:79], v3, s[8:11], s74 offen sc1', 'cp')
            a('s_mov_b64 exec, -1')
            sk = L('xp')
            a(f's_cmp_lg_u32 s{S_Q}, 0\ns_cbranch_scc1 {sk}')
            xcc_publish(104, 105)
            a.label(sk)
        if c == 5:
            a('s_mov_b32 exec_hi, 0')
            xcc_load(106, 109); a.vm.append('xt')
            a('s_mov_b32 exec_hi, -1')
        if c + 2 < 8 and not (c == 0 and 'ordD' in opt): issw(c + 2)
        if 'ordA' not in opt and c + 3 < 8: issx(c + 3)
        if c == 5:
            gather_issue(True)
        if xs: a('s_waitcnt lgkmcnt(0)')
        if c == 0:
            for kk in range(2):
                for j in range(3):
                    a(f'v_mfma_f32_16x16x32_bf16 {vr(CSA+4*j,4)}, {vr(WFH+8*j+4*kk,4)}, {vr(ONE4,4)}, {"0" if kk == 0 else vr(CSA+4*j,4)}')
        for k, xc in enumerate(xs):
            for kk in range(2):
                z = (xc == 0 and kk == 0)
                a(f'v_mfma_f32_16x16x32_bf16 {vr(SXH,4)}, {vr(ONE4,4)}, {vr(XB[k]+4*kk,4)}, {"0" if z else vr(SXH,4)}')
                a(f'v_mfma_f32_16x16x32_bf16 {vr(SQH,4)}, {vr(XB[k]+4*kk,4)}, {vr(XB[k]+4*kk,4)}, {"0" if z else vr(SQH,4)}')
        if c == 0:
            for j in range(3): a(f'ds_write_b128 v100, {vr(CSA+4*j,4)} offset:{64*j}')
            a('ds_read_b64 v[76:77], v112')
        if c == XFIN:
            a('v_cmp_eq_u32 vcc, 3, v9')
            a(f'v_mul_f32 v{SXH}, {H(-1/512)}, v{SXH}')
            a(f'v_cndmask_b32 v{SQH}, v{SQH}, v{SQH+1}, s[42:43]')
            a(f'v_cndmask_b32 v{SQH}, v{SQH}, v{SQH+2}, s[6:7]')
            a(f'v_cndmask_b32 v{SQH}, v{SQH}, v{SQH+3}, vcc')
            a(f'v_mul_f32 v{SQH}, {H(1/512)}, v{SQH}')
            a(f'v_fma_f32 v{SQH}, -v{SXH}, v{SXH}, v{SQH}')
            a(f'v_max_f32 v{SQH}, 0, v{SQH}')
            a(f'v_add_f32 v{SQH}, {H(1e-5)}, v{SQH}')
            a(f'v_rsq_f32 v{SQH}, v{SQH}')
            a('s_mov_b32 exec_lo, 0x00f0000f')
            a('s_mov_b32 exec_hi, 0xf0000f00')
            a(f'v_mul_f32 v{SXH}, v{SXH}, v{SQH}')
            a(f'ds_write_b32 v101, v{SQH} offset:256')
            a(f'ds_write_b32 v101, v{SXH}')
            a('s_mov_b64 exec, -1')
        if c == TCC:
            a.vissue('buffer_load_dword v110, v108, s[8:11], 0 offen sc1', 'tc')
        if c == PE:
            a.vwait(('w', 7))
            pls()
    a.vwait('ga')
    lp, ok = L('gr'), L('go')
    a(f's_mov_b32 s{S_SPIN}, 0')
    a.label(lp)
    a(f'v_cmp_ne_u64 vcc, {sr(S_NON,2)}, {vr(GA+2,2)}')
    a(f'v_cmp_ne_u64 s[32:33], {sr(S_NON,2)}, {vr(GA+6,2)}')
    a(f'v_cmp_ne_u64 s[34:35], {sr(S_NON,2)}, {vr(GA+10,2)}')
    a('s_or_b64 vcc, vcc, s[32:33]')
    a('s_or_b64 vcc, vcc, s[34:35]')
    a(f's_cbranch_vccz {ok}')
    a(f's_add_u32 s{S_SPIN}, s{S_SPIN}, 1')
    a(f's_cmp_gt_u32 s{S_SPIN}, 0x20000')
    a(f's_cbranch_scc1 {ok}')
    gather_issue(False)
    a('s_waitcnt vmcnt(0)')
    a(f's_branch {lp}')
    a.label(ok)
    vals = [GA+4*j+e for j in range(3) for e in range(2)]
    for r in vals: a(f'v_add_f32_dpp v{r}, v{r}, v{r} row_ror:8 row_mask:0xf bank_mask:0xf')
    for sw in ('v_permlane16_swap_b32', 'v_permlane32_swap_b32'):
        for r in vals: a(f'v_mov_b32 v{r+2}, v{r}')
        for r in vals: a(f'{sw} v{r}, v{r+2}')
        for r in vals: a(f'v_add_f32 v{r}, v{r}, v{r+2}')
    a('s_mov_b64 exec, 0xff')
    for j in range(3): a(f'ds_write_b64 v112, {vr(GA+4*j,2)} offset:{64*j}')
    a('s_mov_b64 exec, -1')
    mode_calc()
    a('s_waitcnt lgkmcnt(0)')
    a('s_barrier')
    T.stamp('h_p1done', slot=2)
    if PE == 8: pls()
    prep_addr()
    a(f'v_mov_b32 v10, {NONL}')
    a('ds_read_b32 v25, v10 offset:8')
    a('v_lshlrev_b32 v12, 7, v2')
    a(f's_lshr_b32 s26, s{S_Q}, 1')
    a('s_mul_i32 s26, s26, 114688')
    a(f's_mul_i32 s27, s{S_CT}, 14336')
    a('s_add_u32 s26, s26, s27')
    a(f's_and_b32 s27, s{S_Q}, 1')
    a('s_mul_i32 s27, s27, 7168')
    a('s_add_u32 s26, s26, s27')
    a(f's_add_u32 s26, s26, s{S_HD}')
    a(f'v_min_u32 v14, {55*128}, v12')
    a('v_add_u32 v14, s26, v14')
    a(f's_lshl_b32 s28, s{S_SLAB}, 14')
    a(f's_lshl_b32 s27, s{S_CT}, 11')
    a('s_add_u32 s28, s28, s27')
    a(f's_add_u32 s28, s28, s{S_GB}')
    a(f's_add_u32 s28, s28, {G_H}')
    a('v_add_u32 v17, s28, v12')
    a(f's_lshl_b32 s27, s{S_I}, 2')
    a(f's_add_u32 s27, s27, s{S_Q}')
    a('s_mul_i32 s27, s27, 384')
    a(f's_add_u32 s27, s27, s{S_GB}')
    a(f's_add_u32 s27, s27, {G_ST1 - 2048}')
    a('v_add_u32 v24, s27, v12')
    a('v_cmp_lt_u32 vcc, 15, v2')
    a('v_cndmask_b32 v17, v17, v24, vcc')
    for reg, k in ((15, 0), (24, 1), (16, 2)):
        a(f's_mul_i32 s26, s{S_SLAB}, 3')
        a(f's_add_u32 s26, s26, {k}')
        a('s_min_u32 s26, s26, 41')
        a('s_mul_hi_u32 s27, s26, 0x2aaaaaab')
        a('s_lshl_b32 s27, s27, 1')
        a('s_add_u32 s26, s26, s27')
        a('s_add_u32 s26, s26, 2')
        a('s_lshl_b32 s26, s26, 12')
        a(f's_mul_i32 s27, s{S_CT}, {7*32768}')
        a('s_add_u32 s26, s26, s27')
        a(f's_add_u32 s26, s26, {W3F}')
        a(f'v_lshl_add_u32 v{reg}, v4, 7, s26')
    a('v_cmp_lt_u32 vcc, 31, v2')
    a('v_cndmask_b32 v15, v15, v24, vcc')
    a(f's_mul_i32 s26, s{S_CT}, 229376')
    a(f's_mul_i32 s27, s{S_Q}, 28672')
    a('s_add_u32 s26, s26, s27')
    a(f's_lshl_b32 s27, s{S_RB}, 12')
    a('s_add_u32 s26, s26, s27')
    a(f's_add_u32 s26, s26, {W4F + 4096}')
    a('v_lshl_add_u32 v24, v4, 7, s26')
    a('v_cndmask_b32 v16, v16, v24, vcc')
    a('s_waitcnt lgkmcnt(0)')
    a(f'v_readfirstlane_b32 s{S_MODE}, v25')
    a('v_and_b32 v10, 23, v2')
    a('v_cmp_eq_u32 vcc, 0, v10')
    a('v_mov_b32 v10, 0x3f803f80')
    a('v_cndmask_b32 v20, 0, v10, vcc')
    a('v_mov_b32 v21, v20\nv_mov_b32 v22, v20\nv_mov_b32 v23, v20')
    a('v_add_u32 v24, s29, v3')
    a(f's_add_u32 s{S_A}, s{S_HD}, s29')
    a(f's_add_u32 s{S_A}, s{S_A}, 0x10000')
    a(f's_add_u32 s27, s{S_GB}, {G_FQ}')
    a('s_mov_b32 s30, -1\ns_mov_b32 s31, 0')
    a('s_barrier')
    a(f'ds_write_b128 v24, v[20:23] offset:{CONST}')
    poll('v1', 's27', 's[30:31]')
    T.stamp('h_kvflag', slot=3)
    def kv_issue(c):
        a(f's_add_u32 m0, s29, {KV + c*8192}')
        a(f's_add_u32 s30, s{S_A}, {c*4096}')
        a.vissue(f'buffer_load_dwordx4 v3, s[8:11], s30 offen sc1 {KVNT}lds', ('kv', c))
        a(f's_add_u32 m0, s29, {KV + c*8192 + 4096}')
        a(f's_add_u32 s30, s{S_A}, {c*4096 + 0x10000}')
        a.vissue(f'buffer_load_dwordx4 v3, s[8:11], s30 offen sc1 {KVNT}lds', ('kv', c))
    kv_issue(0); kv_issue(1)
    def prep_convert(k, record):
        unit_idx(k)
        if isinstance(k, int): a(f's_mov_b32 s32, {PREP + k*4096}')
        else:
            a(f's_lshl_b32 s32, {k}, 12')
            a(f's_add_u32 s32, s32, {PREP}')
        k1, k2, k3, dn = L('k1'), L('k2'), L('k3'), L('kd')
        F = 64
        a(f's_cmp_eq_u32 s26, 1\ns_cbranch_scc1 {k1}')
        a(f's_cmp_eq_u32 s26, 2\ns_cbranch_scc1 {k2}')
        a(f's_cmp_eq_u32 s26, 3\ns_cbranch_scc1 {k3}')
        for kind, lab in ((0, None), (1, k1)):
            if lab: a.label(lab)
            for nt in range(4): a(f'v_add_u32 v{60+nt}, s32, v{PA16+4*kind+nt}')
            for nt in range(4):
                for sec in range(2):
                    a(f'ds_read_b64_tr_b16 {vr(F+4*nt+2*sec,2)}, v{60+nt} offset:{sec*(1024 if kind==0 else 2048)}')
            a('s_add_u32 s35, s28, 2048')
            a(f's_branch {dn}')
        a.label(k2)
        for nt in range(2): a(f'v_add_u32 v{60+nt}, s32, v{PA32+nt}')
        for nt in range(2):
            for kk in range(2):
                for sec in range(2):
                    a(f'ds_read_b64_tr_b16 {vr(F+8*nt+4*kk+2*sec,2)}, v{60+nt} offset:{(8*kk+16*sec)*128}')
        a('s_add_u32 s35, s28, 32768')
        a('s_mul_i32 s33, s33, 7168')
        a('s_lshl_b32 s34, s34, 8')
        a('s_add_u32 s33, s33, s34')
        a(f's_add_u32 s33, s33, {C3P}')
        a('v_lshlrev_b32 v62, 2, v2')
        a('s_waitcnt lgkmcnt(0)')
        for i in range(4):
            for nt in range(2):
                c_ = '0' if i == 0 else vr(80+4*nt,4)
                a(f'v_mfma_f32_4x4x4_16b_bf16 {vr(80+4*nt,4)}, {vr(ONES,2)}, {vr(F+8*nt+2*i,2)}, {c_}')
        a('v_permlane32_swap_b32 v80, v84')
        a('v_add_f32 v80, v80, v84')
        a('buffer_store_dword v80, v62, s[8:11], s33 offen sc1')
        a(f's_branch {dn}')
        a.label(k3)
        for nt in range(2): a(f'v_add_u32 v{60+nt}, s32, v{PA32+nt}')
        for kk in range(2):
            for nt in range(2):
                for sec in range(2):
                    a(f'ds_read_b64_tr_b16 {vr(F+8*kk+4*nt+2*sec,2)}, v{60+nt} offset:{(16*kk+8*sec)*128}')
        a('s_add_u32 s35, s28, 2048')
        a.label(dn)
        a('s_waitcnt lgkmcnt(0)')
        iss = (lambda t: a.vissue(t, 'pp')) if record else a
        iss(f'buffer_store_dwordx4 {vr(F,4)}, v3, s[8:11], s28 offen sc1')
        iss(f'buffer_store_dwordx4 {vr(F+4,4)}, v3, s[8:11], s28 offen offset:1024 sc1')
        iss(f'buffer_store_dwordx4 {vr(F+8,4)}, v3, s[8:11], s35 offen sc1')
        iss(f'buffer_store_dwordx4 {vr(F+12,4)}, v3, s[8:11], s35 offen offset:1024 sc1')
        if 'rback' in opt:
            a('s_waitcnt vmcnt(0)')
            a('s_mov_b64 exec, 0xffff')
            a('buffer_load_dword v13, v12, s[8:11], s28 offen sc1')
            a('buffer_load_dword v13, v12, s[8:11], s35 offen sc1')
            a('s_mov_b64 exec, -1')

    HW2, HW1, HW3 = 24, 88, 92
    C3R = [116, 120, 124, 20]
    w3g = lambda g: [('w3', i) for i in range(8*g, 8*g+8)]
    flat = w3g(1) + [('c3', k) for k in range(4)] + [('wo', i) for i in range(16)] + w3g(2) + \
           [('w1', i) for i in range(15)] + [('r', HW1, W1F + 15*4096)] + w3g(3) + \
           [('r', HW2 + 4*i, W2F + i*4096) for i in range(16)] + w3g(0) + [('l3', t, f) for t in range(3) for f in range(2)]
    groups = [flat[12*i:12*i+12] for i in range(8)]
    strips = [(75, 8192), (74, WOF), (75, 2*8192), (74, W1F), (75, 3*8192), (74, W2F), (75, 0)]
    def job_setup():
        a(f's_lshl_b32 s31, s{S_CT}, 16')
        a('s_add_u32 s31, s31, s29')
        a(f's_mul_i32 s33, s{S_CT}, {7*32768}')
        a(f's_lshl_b32 s{S_B}, s{S_J}, 15')
        a(f's_add_u32 s{S_B}, s{S_B}, s33')
        a(f's_add_u32 s{S_B}, s{S_B}, {W3F}')
        a('s_add_u32 s33, s33, s29')
        a(f's_mul_i32 s32, s{S_CT}, 896')
        a(f's_mul_i32 s30, s{S_Q}, {4*7168}')
        a('s_add_u32 s32, s32, s30')
    def dma(lds, src):
        a(f's_add_u32 m0, s29, {lds}')
        a(f's_add_u32 s30, s31, {src}')
        a.vissue(f'buffer_load_dwordx4 v3, s[8:11], s30 offen {JF} lds', 'pf')
    def ldr(reg, sbase, off, imm=0):
        a(f's_add_u32 s30, s{sbase}, {off}')
        a.vissue(f'buffer_load_dwordx4 {vr(reg,4)}, v3, s[8:11], s30 offen offset:{imm} {JF}', 'pf')
    def job(j):
        kind = j[0]
        if kind == 'w3' and j[1] < NR3: ldr(W3+4*j[1], S_B, (j[1] >> 2)*4096, (j[1] & 3)*1024)
        elif kind == 'w3': ldr(W3+4*j[1], S_W4, ((j[1] >> 2) - 1)*4096, (j[1] & 3)*1024)
        elif kind == 'wo': dma(WA + j[1]*4096, WOF + j[1]*4096)
        elif kind == 'w1': dma(WB + j[1]*4096 if j[1] < 8 else LOW + (j[1]-8)*4096, W1F + j[1]*4096)
        elif kind == 'r': ldr(j[1], 31, j[2])
        elif kind == 'l3': ldr(HW3 + 8*j[1] + 4*j[2], 33, W3F + j[1]*32768 + j[2]*4096)
        elif kind == 'c3': ldr(C3R[j[1]], 32, C3P + j[1]*7168)
    def touch(vreg, lo=0xffffffff, hi=0xffffffff):
        a(f's_mov_b32 exec_lo, {hex(lo)}\ns_mov_b32 exec_hi, {hex(hi)}')
        a(f'buffer_load_dword v13, v{vreg}, s[8:11], 0 offen sc1')
        a('s_mov_b64 exec, -1')
    def wait_prog(p):
        lp = L('wp')
        a(f'v_mov_b32 v10, {PRG}')
        a('v_lshl_add_u32 v10, v9, 2, v10')
        dn = L('wd')
        a.label(lp)
        a('ds_read_b32 v11, v10')
        a('s_waitcnt lgkmcnt(0)')
        a(f'v_cmp_gt_u32 vcc, {p}, v11')
        a(f's_cbranch_vccz {dn}')
        a('s_sleep 12')
        a(f's_branch {lp}')
        a.label(dn)
    def code_warm():
        sk, pc = L('cw'), L('pc')
        a(f's_cmp_lg_u32 s{S_Q}, 2\ns_cbranch_scc1 {sk}')
        a('s_getpc_b64 s[26:27]')
        a.label(pc)
        a(f's_sub_u32 s26, s26, {pc}-{name}')
        a('s_subb_u32 s27, s27, 0')
        a(f's_lshl_b32 s30, s{S_I}, 11')
        a('v_lshl_add_u32 v10, v2, 7, s30')
        a(f'v_min_u32 v10, {name}_end-{name}, v10')
        a('s_mov_b64 exec, 0xffff')
        a('global_load_dword v13, v10, s[26:27] sc1')
        a('s_mov_b64 exec, -1')
        a.label(sk)
    def jobs(l):
        if 'nojobs' in opt: return
        for j in l: job(j)
        a('s_waitcnt vmcnt(8)'); a.vm = []
    a.vwait(('kv', 1), 'lgkmcnt(0)')
    a('s_barrier')
    if 'lowp2' in opt: a('s_setprio 0')
    def kvc(off):
        a(f'v_mov_b32 v10, {KVC}\nv_mov_b32 v11, 1')
        a('s_mov_b64 exec, 1')
        a(f'ds_add_u32 v10, v11 offset:{off}')
        a('s_mov_b64 exec, -1')
    KS = int(OP.get('ks', 8))
    for c in range(2, KS): kv_issue(c)
    a.vwait(('kv', KS - 1))
    kvc(0)
    if KS < 16: pls()
    for c in range(KS, 16): kv_issue(c)
    a.vwait_all()
    kvc(4)
    if KS == 16 and PE < 0: pls()
    tch = (lambda *x: None) if 'notouch' in opt else touch
    if 'lowp2' not in opt: a('s_setprio 2')
    a.vwait_all()
    prep_convert(f's{S_Q}', False)
    a(f's_mov_b32 s{S_RHO}, s28\ns_mov_b32 s{S_M2}, s35')
    sk = L('u4')
    a(f's_cmp_lg_u32 s{S_Q}, 3\ns_cbranch_scc1 {sk}')
    prep_convert(4, False)
    a.label(sk)
    a('s_waitcnt vmcnt(0)')
    a(f'v_mov_b32 v10, {PCN}\nv_mov_b32 v11, 1')
    a('s_mov_b64 exec, 1')
    a('ds_add_rtn_u32 v18, v10, v11')
    a('s_mov_b64 exec, -1')
    a('s_waitcnt lgkmcnt(0)')
    a('v_readfirstlane_b32 s26, v18')
    sk = L('pf')
    a(f's_cmp_lg_u32 s26, 3\ns_cbranch_scc1 {sk}')
    a('s_lshl_b32 s26, s2, 7')
    a(f's_add_u32 s26, s26, {F_PREP}')
    flag_sc1('s26')
    srd(16, P_OUT, 0x200000)
    a('v_lshlrev_b32 v10, 21, v2')
    a(f's_mov_b32 s26, {GB + G_FHX}')
    a('s_mov_b64 exec, 0xff')
    a('buffer_load_dword v13, v10, s[8:11], s26 offen')
    a('buffer_load_dword v13, off, s[16:19], 0')
    a('s_mov_b64 exec, -1')
    a.label(sk)
    if 'rb2' in opt:
        a('s_mov_b64 exec, 0xffff')
        for r in (S_RHO, S_M2, 28, 35): a(f'buffer_load_dword v13, v12, s[8:11], s{r} offen sc1')
        a('s_mov_b64 exec, -1')
    job_setup()
    if 'lowp' in opt: a('s_setprio 0')
    T.stamp('h_pub', slot=7)
    lead, join = L('ld'), L('lj')
    a(f's_add_u32 s27, s{S_GB}, {G_RDY}')
    if 'flat' not in opt:
        a(f's_cmp_eq_u32 s{S_I}, 0\ns_cbranch_scc1 {lead}')
        poll('v1', 's27', '1', sleep=2)
        a(f's_branch {join}')
    a.label(lead)
    a(f's_lshl_b32 s28, s{S_Q}, 13')
    a(f's_add_u32 s28, s28, {F_PREP}')
    poll('v12', 's28', None, sleep=int(OP.get('ps', 1)))
    a.label(join)
    a(f'v_mov_b32 v10, {PCN}\nv_mov_b32 v11, 1')
    a('s_mov_b64 exec, 1')
    a('ds_add_u32 v10, v11')
    a('s_mov_b64 exec, -1')
    lp = L('hp')
    a.label(lp)
    a('s_sleep 2')
    a('ds_read_b32 v11, v10')
    a('s_waitcnt lgkmcnt(0)')
    a('v_cmp_gt_u32 vcc, 8, v11')
    a(f's_cbranch_vccnz {lp}')
    sk = L('rd')
    a(f's_or_b32 s26, s{S_I}, s{S_Q}')
    a(f's_cmp_lg_u32 s26, 0\ns_cbranch_scc1 {sk}')
    flag_prep()
    st2(flag_lines('s27'))
    a.label(sk)
    a.vm = []
    T.stamp('h_prep', slot=5)
    G = [w3g(1) + w3g(2),
         [('w1', i) for i in range(8, 15)] + [('r', HW1, W1F + 15*4096)] + w3g(3),
         [('r', HW2 + 4*i, W2F + i*4096) for i in range(16)],
         w3g(0) + [('l3', t, f) for t in range(3) for f in range(2)] + [('c3', k) for k in range(4)]]
    DEPTH = int(OP.get('depth', 16))
    for k, j in enumerate(G[0] + G[1] + G[2] + G[3]):
        job(j)
        if k >= DEPTH and k % 2 == 0: a(f's_waitcnt vmcnt({DEPTH})')
    a.vm = []
    T.stamp('h_g', slot=8)
    tch(17, 0x7ffff, 0)
    QM = [(0xffff, 0), (0xffff0000, 0), (0, 0xffff), (0, 0xffff0000)]
    TD = int(OP.get('td', 1))
    def tq(reg, qs):
        for k in qs:
            tch(reg, *QM[k]); a(f's_waitcnt vmcnt({TD})')
    wait_prog(8)
    jobs([('wo', i) for i in range(16)])
    if 'w3w' in opt: tq(15, range(4))
    wait_prog(10)
    jobs([('w1', i) for i in range(4)])
    wait_prog(12)
    jobs([('w1', i) for i in range(4, 8)])
    sk = L('h2s')
    for k in range(4):
        a('ds_read_b32 v11, v10')
        a('s_waitcnt lgkmcnt(0)')
        a('v_cmp_gt_u32 vcc, 13, v11')
        a(f's_cbranch_vccz {sk}')
        if 'noh2t' not in opt: tq(14, [k])
    a.label(sk)
    code_warm()
    a('s_setprio 0')
    T.stamp('h_jobs', slot=6)
    a.vwait_all()
    a('v_add_u32 v12, s29, v3')
    a(f'v_add_u32 v13, {WB}, v12')
    a(f'v_add_u32 v14, {WA}, v12')
    a(f's_mul_i32 s26, s{S_Q}, 896')
    a('v_add_u32 v15, s26, v3')
    a('s_barrier')
    T.stamp('h_attn_end', slot=4)
    a(f'ds_write_b128 v13, {vr(HW1,4)} offset:{W1X - WB}')
    for i in range(NW2L): a(f'ds_write_b128 v13, {vr(HW2+4*i,4)} offset:{W2L - WB + i*4096}')
    for k in range(1, 4):
        for i in range(2): a(f'v_pk_add_f32 {vr(C3R[0]+2*i,2)}, {vr(C3R[0]+2*i,2)}, {vr(C3R[k]+2*i,2)}')
    a('s_mov_b32 exec_hi, 0xffffff')
    a(f'ds_write_b128 v15, {vr(C3R[0],4)} offset:{C3L}')
    a('s_mov_b32 exec_hi, -1')
    for i in range(4): a(f'v_mov_b32 v{20+i}, 0x3f803f80')
    a(f'v_mfma_f32_16x16x32_bf16 v[16:19], {vr(HW1,4)}, v[20:23], 0')
    a('s_waitcnt lgkmcnt(0)')
    for bt in range(3):
        for k in range(5):
            s_ = 5*bt + k
            a(f'ds_read_b128 {vr(HW2+4*k,4)}, v13 offset:{s_*4096}' if s_ < 8 else f'ds_read_b128 {vr(HW2+4*k,4)}, v12 offset:{LOW + (s_-8)*4096}')
        for k in range(5):
            a(f's_waitcnt lgkmcnt({4-k})')
            a(f'v_mfma_f32_16x16x32_bf16 v[16:19], {vr(HW2+4*k,4)}, v[20:23], v[16:19]')
    a(f's_lshl_b32 s26, s{S_Q}, 6')
    a(f's_add_u32 s26, s26, {CS1}')
    a('v_lshl_add_u32 v10, v7, 4, s26')
    a('ds_write_b128 v10, v[16:19]')
    sk = L('of')
    a(f's_cmp_lg_u32 s{S_Q}, 0\ns_cbranch_scc1 {sk}')
    a(f's_lshl_b32 s28, s{S_X}, 14')
    a(f's_lshl_b32 s27, s{S_RB}, 12')
    a('s_add_u32 s28, s28, s27')
    a(f's_add_u32 s28, s28, {F_O}')
    a('s_mov_b32 s30, -1\ns_mov_b32 s31, 0')
    a('v_lshlrev_b32 v20, 7, v2')
    poll('v20', 's28', 's[30:31]', sleep=int(OP.get('os', 1)))
    a.label(sk)
    a('s_waitcnt lgkmcnt(0)')
    a('s_barrier')
    sk = L('c3w')
    a(f's_cmp_lg_u32 s{S_Q}, 3\ns_cbranch_scc1 {sk}')
    for k in range(4): a(f'ds_read_b128 {vr(HW2+4*k,4)}, v3 offset:{C3L + 896*k}')
    a('s_waitcnt lgkmcnt(0)')
    for k in range(1, 4):
        for i in range(2): a(f'v_pk_add_f32 {vr(HW2+2*i,2)}, {vr(HW2+2*i,2)}, {vr(HW2+4*k+2*i,2)}')
    a(f'ds_write_b128 v3, {vr(HW2,4)} offset:{C3L}')
    a.label(sk)
    a('s_barrier')
    for i in range(NW2L, 16): a(f'ds_write_b128 v14, {vr(HW2+4*i,4)} offset:{i*4096}')
    a('s_waitcnt lgkmcnt(0)')
    a('s_barrier')
    for t in range(3):
        for f in range(2): a(f'ds_write_b128 v13, {vr(HW3+8*t+4*f,4)} offset:{t*8192 + f*4096}')
    p4_prologue()
    a(f's_lshl_b32 s74, s{S_SLAB}, 6')
    a(f's_add_u32 s74, s74, s{S_GB}')
    a(f's_add_u32 s74, s74, {G_FX1}')
    a(f's_lshl_b32 s{S_A}, s{S_SLAB}, 14')
    a(f's_lshl_b32 s75, s{S_Q}, 14')
    a(f's_add_u32 s{S_A}, s{S_A}, s{S_GB}')
    a(f's_add_u32 s{S_A}, s{S_A}, {G_X1}')
    a('s_waitcnt lgkmcnt(0)')
    a('s_barrier')
    poll('v1', 's74', '0xff')
    def x1_lines(kh):
        l = []
        for hf in range(2):
            l += [f's_add_u32 m0, s75, {XT + kh*8192 + hf*4096}', f's_add_u32 s30, s{S_A}, {kh*8192 + hf*4096}']
            l += [f'buffer_load_dwordx4 v3, s[8:11], s30 offen offset:{i*1024} sc1 lds' for i in range(4)]
        return l
    for l in x1_lines(0): a(l)
    HJOIN = L('hjoin')
    a(f's_branch {HJOIN}')

    a.label(CW1)
    a.vm = []
    sk = L('cp')
    a(f's_cmp_lg_u32 s{S_WAVE}, 1\ns_cbranch_scc1 {sk}')
    a('s_getpc_b64 s[26:27]')
    a.label(f'{name}_pc')
    a(f's_sub_u32 s26, s26, {name}_pc-{name}')
    a('s_subb_u32 s27, s27, 0')
    a(f's_lshl_b32 s28, s{S_I}, 11')
    a('v_lshl_add_u32 v10, v2, 7, s28')
    a(f'v_min_u32 v10, {name}_end-{name}, v10')
    a('s_mov_b64 exec, 0xffff')
    a('global_load_dword v255, v10, s[26:27]')
    a('s_mov_b64 exec, -1')
    a.label(sk)
    common_consts()
    ACC = 16; FR = [64, 80, 96, 228]; AX = 112; AW = 116
    a(f's_lshr_b32 s30, s{S_Q}, 1')
    a(f's_and_b32 s31, s{S_Q}, 1')
    a('s_lshl_b32 s27, s30, 5')
    a('v_add_u32 v10, s27, v4')
    a('v_lshlrev_b32 v10, 7, v10')
    a('v_bfe_u32 v11, v4, 1, 3')
    for ks in range(4):
        a(f'v_add_u32 v12, {2*ks}, v5')
        a('v_xor_b32 v12, v12, v11')
        a(f'v_lshl_add_u32 v{AX+ks}, v12, 4, v10')
    a('v_lshl_add_u32 v10, v5, 3, v8')
    a('v_lshlrev_b32 v10, 7, v10')
    a('v_lshl_add_u32 v10, v9, 3, v10')
    a('v_and_b32 v11, 1, v7')
    a('s_lshl_b32 s27, s31, 1')
    a('v_add_u32 v11, s27, v11')
    a('v_and_b32 v12, 2, v8')
    a('v_xor_b32 v11, v11, v12')
    a(f'v_lshl_add_u32 v{AW}, v11, 5, v10')
    a(f'v_add_u32 v{AW}, {WL}, v{AW}')
    a(f'v_xor_b32 v{AW+1}, 32, v{AW}')
    a(f'v_add_u32 v{AW+1}, 512, v{AW+1}')
    a(f'v_add_u32 v{AW+2}, {2*WSLOT}, v{AW}')
    a(f'v_add_u32 v{AW+3}, {2*WSLOT}, v{AW+1}')
    a('s_waitcnt lgkmcnt(0)')
    if 'xs' in opt.split(','):
        srd(12, P_X, 0x200000)
        a(f's_lshl_b32 s26, s{S_I}, 16')
        a(f's_lshl_b32 s27, s{S_Q}, 14')
        a('s_add_u32 s26, s26, s27')
        a('v_lshlrev_b32 v10, 7, v2')
        a('buffer_load_dword v252, v10, s[12:15], s26 offen')
        a('s_add_u32 s26, s26, 8192')
        a('buffer_load_dword v252, v10, s[12:15], s26 offen')
    srd(16, P_DBG, 256)
    srd(8, P_WS, WS_USED)
    EA = 120
    a('s_lshl_b32 s27, s31, 7')
    a(f's_add_u32 s27, s27, {CSUM}')
    a(f'v_lshl_add_u32 v{EA}, v5, 4, s27')
    a(f'v_lshl_add_u32 v{EA+1}, v4, 2, s27')
    a('s_lshl_b32 s27, s30, 7')
    a(f's_add_u32 s27, s27, {RST}')
    a(f'v_lshl_add_u32 v{EA+2}, v4, 2, s27')
    a(f'v_lshl_add_u32 v{EA+3}, v5, 4, s27')
    a('v_lshrrev_b32 v10, 4, v4')
    a(f'v_mul_u32_u24 v10, {HDS}, v10')
    a('v_lshl_add_u32 v10, v5, 8, v10')
    a(f'v_lshl_add_u32 v{EA+4}, v6, 4, v10')
    a(f's_lshl_b32 s26, s{S_I}, 1')
    a('s_add_u32 s26, s26, s30')
    a('s_lshl_b32 s26, s26, 10')
    a(f's_mul_i32 s27, s31, {2*HDS}')
    a('s_add_u32 s26, s26, s27')
    a(f's_add_u32 s{S_A}, s26, s{S_QKV}')
    a(f'v_mov_b32 v{EA+5}, {NONL}')
    def rd_list(n):
        c, ks = n >> 2, n & 3; b = FR[n % 4]
        slot = c % NSLOT
        l = [f'ds_read_b128 {vr(b,4)}, v{AX+ks} offset:{XL + c*8192}']
        for j in range(3):
            for sec in range(2):
                l.append(f'ds_read_b64_tr_b16 {vr(b+4+4*j+2*sec,2)}, v{AW+sec+(2 if slot == 2 else 0)} offset:{(slot&1)*WSLOT + j*8192 + ks*2048}')
        return l
    T.stamp('p1.c_pre')
    fixwait('fixb0', 12)
    a('s_barrier')
    T.stamp('c_b0'); T.stamp('p1.c_b0')
    for l in rd_list(0): a(l)
    for l in rd_list(1): a(l)
    CV = 128; RV = 160; SC = 192
    for n in range(32):
        c, ks = n >> 2, n & 3
        b = FR[n % 4]
        z = lambda r, k: '0' if n == 0 else vr(r, k)
        if n == 30: a('s_waitcnt lgkmcnt(0)')
        elif ks == 2 or n == 31:
            a('s_waitcnt lgkmcnt(0)')
            T.stamp(f'p1.c_w{c+1}')
            a('s_barrier')
            T.stamp(f'p1.c_b{c+1}')
        elif ks == 0: a('s_waitcnt lgkmcnt(7)')
        elif ks == 1: a('s_waitcnt lgkmcnt(14)')
        rl = rd_list(n + 2) if n + 2 < 32 else []
        if ks == 0: rl = rl + rd_list(n + 3)
        if ks == 1: rl = []
        if n == 31:
            rl = [f'ds_read_b128 v[12:15], v{EA+5}', f'ds_read_b32 v{SC}, v{EA+2}', f'ds_read_b32 v224, v{EA+2} offset:256', f'ds_read_b32 v{SC+2}, v{EA+1} offset:512'] + \
                 [f'ds_read_b128 {vr(CV+16*j+4*q,4)}, v{EA} offset:{256*j+32*q}' for j in range(2) for q in range(4)]
        if n == 31:
            rl += [f'ds_read_b128 {vr(RV+16*j+4*q,4)}, v{EA+3} offset:{256*j+32*q}' for j in range(2) for q in range(4)]
        k = (len(rl) + 2) // 3
        a(f'v_mfma_f32_32x32x16_bf16 {vr(ACC,16)}, {vr(b+4,4)}, {vr(b,4)}, {z(ACC,16)}')
        for l in rl[0:k]: a(l)
        a(f'v_mfma_f32_32x32x16_bf16 {vr(ACC+16,16)}, {vr(b+8,4)}, {vr(b,4)}, {z(ACC+16,16)}')
        for l in rl[k:2*k]: a(l)
        a(f'v_mfma_f32_32x32x16_bf16 {vr(ACC+32,16)}, {vr(b,4)}, {vr(b+12,4)}, {z(ACC+32,16)}')
        for l in rl[2*k:]: a(l)
    T.stamp('c_gemm')
    a('s_waitcnt lgkmcnt(8)')
    a(f'v_readfirstlane_b32 s{S_MODE}, v14')
    a(f'v_readfirstlane_b32 s{S_NON}, v12')
    a(f'v_readfirstlane_b32 s{S_NON+1}, v13')
    a(f'v_mul_f32 v{SC+4}, {H(QSCALE)}, v{SC}')
    a(f'v_mul_f32 v226, {H(QSCALE)}, v224')
    PK = 200
    lines = []
    for j in range(2):
        sc = SC + 4 if j == 0 else SC
        for p in range(8):
            lines.append(f'v_pk_mul_f32 {vr(CV+16*j+2*p,2)}, {vr(CV+16*j+2*p,2)}, {vr(sc,2)} op_sel_hi:[1,0]')
        for o in range(2):
            for p in range(4*o, 4*o+4):
                A_ = ACC+16*j+2*p
                lines.append(f'v_pk_fma_f32 {vr(A_,2)}, {vr(A_,2)}, {vr(226 if j == 0 else 224,2)}, {vr(CV+16*j+2*p,2)} op_sel_hi:[1,0,1]')
            for p in range(4*o, 4*o+4):
                A_ = ACC+16*j+2*p
                lines.append(f'v_cvt_pk_bf16_f32 v{PK+8*j+p}, v{A_}, v{A_+1}')
            lines.append(f's_add_u32 s26, s{S_A}, {j*0x10000 + o*HDS}')
            lines.append(f'buffer_store_dwordx4 {vr(PK+8*j+4*o,4)}, v3, s[8:11], s26 offen')
    lines.append('s_waitcnt lgkmcnt(0)')
    lines.append(f's_add_u32 s26, s{S_A}, 0x20000')
    for p in range(8):
        lines.append(f'v_pk_mul_f32 {vr(RV+2*p,2)}, {vr(RV+2*p,2)}, {vr(SC+2,2)} op_sel_hi:[1,0]')
    for o in range(2):
        for p in range(4*o, 4*o+4):
            A_ = ACC+32+2*p
            lines.append(f'v_pk_fma_f32 {vr(A_,2)}, {vr(A_,2)}, {vr(RV+16+2*p,2)}, {vr(RV+2*p,2)}')
        for p in range(4*o, 4*o+4):
            A_ = ACC+32+2*p
            lines.append(f'v_cvt_pk_bf16_f32 v{PK+16+p}, v{A_}, v{A_+1}')
        lines.append(f'buffer_store_dwordx4 {vr(PK+16+4*o,4)}, v{EA+4}, s[8:11], s26 offen offset:{512*o}')
    st2(lines)
    T.stamp('p1.c_st')

    Q, SA, SB, O, P, KB, VB, AV = 12, 20, 36, 52, 84, 92, 100, 116
    XR = 120
    a('v_lshlrev_b32 v10, 8, v5')
    a('v_lshl_add_u32 v10, v6, 4, v10')
    a('v_and_b32 v11, 11, v6')
    a('v_cmp_eq_u32 vcc, 0, v11')
    a(f'v_mov_b32 v11, {CONST + 16}')
    a(f'v_mov_b32 v{SA}, {CONST}')
    a(f'v_cndmask_b32 v11, v11, v{SA}, vcc')
    a(f'v_add_u32 v{SA}, 4, v6')
    a(f'v_and_b32 v{SA}, 8, v{SA}')
    a(f'v_lshl_add_u32 v11, v{SA}, 4, v11')
    a('v_cmp_gt_u32 vcc, 16, v4')
    AK, AVI, PCV = AV + 1, AV + 2, AV + 3
    a(f'v_add_u32 v{SA}, {KV + 4096}, v10')
    a(f'v_cndmask_b32 v{AV}, v11, v{SA}, vcc')
    a(f'v_mov_b32 v{SA}, 0x2000')
    a(f'v_cndmask_b32 v{AVI}, 0, v{SA}, vcc')
    a(f'v_add_u32 v{AK}, {KV}, v3')
    a(f'v_mov_b32 v{PCV}, 0')
    a(f's_lshl_b32 s27, s{S_Q}, 2')
    a(f's_add_u32 s27, s27, {PRG}')
    a('v_mov_b32 v129, s27')
    a(f's_lshl_b32 s28, s{S_CT}, 13')
    a(f's_lshl_b32 s27, s{S_Q}, 11')
    a('s_add_u32 s28, s28, s27')
    a(f's_add_u32 s{S_U}, s28, s{S_HD}')
    a(f's_mul_i32 s{S_B}, s{S_CT}, 7')
    a(f's_add_u32 s{S_B}, s{S_B}, s{S_Q}')
    a(f's_lshl_b32 s{S_B}, s{S_B}, 15')
    a(f's_add_u32 s{S_B}, s{S_B}, {W3F}')
    flag_prep()
    a(f's_lshl_b32 s26, s{S_I}, 3')
    a(f's_add_u32 s26, s26, s{S_GB}')
    a(f's_add_u32 s26, s26, {G_FQ}')
    a('s_waitcnt vmcnt(0) lgkmcnt(0)')
    a('s_barrier')
    sk = L('qf')
    a(f's_cmp_lg_u32 s{S_WAVE}, 0\ns_cbranch_scc1 {sk}')
    st2(flag_lines('s26'))
    a.label(sk)
    T.stamp('c_pub')
    srd(16, P_X, 0x200000)
    a(f's_lshl_b32 s33, s{S_X}, 4')
    a(f's_add_u32 s33, s33, s{S_SLAB}')
    a('s_lshl_b32 s33, s33, 14')
    a(f's_lshl_b32 s27, s{S_CT}, 7')
    a('s_add_u32 s33, s33, s27')
    a('v_lshlrev_b32 v128, 10, v6')
    a('v_lshl_add_u32 v128, v7, 3, v128')
    def rdK(t): a(f'ds_read_b128 {vr(KB+4*(t&1),4)}, v{AK} offset:{(t>>2)*8192 + (t&3)*1024}')
    def rdV(t, f): a(f'ds_read_b128 {vr(VB+8*(t&1)+4*f,4)}, v{AV} offset:{(t&3)*1024+f*512}')
    def mfS(n):
        S = SA if (n & 1) == 0 else SB
        if 'noqk' in opt and n > 1: return
        a(f'v_mfma_f32_32x32x16_bf16 {vr(S,16)}, {vr(KB+4*((n>>1)&1),4)}, {vr(Q+4*(n&1),4)}, 0')
    def mfO(n, f):
        Ou = O + 16*(n & 1)
        if 'nopv' in opt and n > 1: return
        if 'pv16' in opt:
            a(f'v_mfma_f32_16x16x32_bf16 {vr(Ou+8,4)}, {vr(VB+8*((n>>1)&1)+4*f,4)}, {vr(P+4*f,4)}, {"0" if n < 2 and f == 0 else vr(Ou+8,4)}')
            return
        c_ = '0' if (n < 2 and f == 0) else vr(Ou,16)
        a(f'v_mfma_f32_32x32x16_bf16 {vr(Ou,16)}, {vr(VB+8*((n>>1)&1)+4*f,4)}, {vr(P+4*f,4)}, {c_}')
    a(f's_lshl_b32 s26, s{S_CT}, 5')
    a(f's_lshl_b32 s27, s{S_Q}, 3')
    a('s_add_u32 s26, s26, s27')
    a(f's_add_u32 s26, s26, s{S_GB}')
    a(f's_add_u32 s26, s26, {G_FQ}')
    poll('v1', 's26', '1')
    a(f'buffer_load_dwordx4 {vr(Q,4)}, v3, s[8:11], s{S_U} offen sc1')
    a(f'buffer_load_dwordx4 {vr(Q+4,4)}, v3, s[8:11], s{S_U} offen offset:1024 sc1')
    a('s_waitcnt vmcnt(0)')
    fixwait('fixa0', 20)
    a('s_barrier')
    T.stamp('c_kv0'); T.stamp('ap.A0'); T.stamp('att.c0'); T.stamp('att.r0', True)
    rdK(0); rdK(1); rdV(0, 0); rdV(0, 1)
    a('s_waitcnt lgkmcnt(3)')
    mfS(0)
    def att_step(n, head, tail=False, head2=False):
        t = n >> 1; g = n if head else n + 16
        S = SA if (n & 1) == 0 else SB
        def ex2(i, extra=None):
            if extra: a(extra)
            a(f'v_exp_f32 v{S+i}, v{S+i}')
            a(f'v_exp_f32{"_e64" if extra else ""} v{S+i+1}, v{S+i+1}')
        cv = lambda j: a(f'v_cvt_pk_bf16_f32 v{P+j}, v{S+2*j}, v{S+2*j+1}')
        even = (n & 1) == 0
        loop = not head and not tail and not head2
        def cj():
            i = cjobs.pop(0)
            if i % 4 == 0: a(f's_add_u32 s30, s{S_W4}, {((i >> 2) - 1)*4096}' if i >= NR3 else f's_add_u32 s30, s35, {(i >> 2)*4096}')
            a(f'buffer_load_dwordx4 {vr(W3+4*i,4)}, v3, s[8:11], s30 offen offset:{(i&3)*1024} sc1')
        def xr(k): a(f'buffer_load_dwordx2 {vr(XR+2*k,2)}, v128, s[16:19], s33 offen offset:{32*k}')
        V = OP.get('dsv', 'b')
        if head and n == 0: a('s_waitcnt lgkmcnt(0)\ns_nop 0')
        if V == 'c' and not even: rdK(t + 2)
        mfS(g + 1)
        if V == 'a' and not even: rdK(t + 2)
        if (head or loop) and n == 11: a(f'ds_read_b32 v131, v130 offset:{0 if head else 4}')
        if tail and cjobs: cj()
        ex2(0, 's_waitcnt lgkmcnt(0)' if even else None)
        chk = (head or loop) and n == 12
        thr = '4' if head else 's36'
        ex2(2, f'v_cmp_gt_u32 vcc, {thr}, v131' if chk else None)
        cv(0)
        if chk:
            lp, ok = L('kw'), L('ko')
            a.cold2.append([f'{lp}:', f'ds_read_b32 v131, v130 offset:{0 if head else 4}', 's_waitcnt lgkmcnt(0)', f'v_cmp_gt_u32 vcc, {thr}, v131',
                            f's_cbranch_vccnz {lp}', f's_branch {ok}'])
            ex2(4, f's_cbranch_vccnz {lp}\n{ok}:')
        else:
            ex2(4, f'v_add_u32 v{AV}, v{AVI}, v{AV}' if n % 8 == 5 else (f'v_add_u32 v{PCV}, 1, v{PCV}' if n in (7, 15) and not tail else None))
        cv(1)
        if V == 'c' and even: rdV(t + 1, 0)
        if g > 0: mfO(g - 1, 1)
        if V in 'ab' and even: rdV(t + 1, 0)
        if V == 'b' and even: rdV(t + 1, 1); rdK(t + 2)
        if tail and cjobs and not even: cj()
        if n in (1, 9) and loop: a(f'ds_write_b32 v129, v{PCV}')
        ex2(6)
        cv(2); ex2(8); cv(3)
        if V == 'c' and even: rdV(t + 1, 1)
        if n == 15 and not tail: a(f'v_add_u32 v{AK}, 0x4000, v{AK}')
        ex2(10)
        mfO(g, 0)
        if V == 'a' and even: rdV(t + 1, 1)
        if tail and cjobs: cj()
        if tail and 10 <= n < 14: xr(n - 10)
        if n == 13 and loop: a(f's_add_u32 s34, s34, 1\ns_cmp_ge_u32 s34, {(KS-4)//2}')
        if n == 15 and loop: a('s_cselect_b32 s36, 4, 0\ns_cmp_lt_u32 s34, 6')
        cv(4)
        ex2(12); cv(5); ex2(14); cv(6); cv(7)
    a(f'v_mov_b32 v130, {KVC}')
    a(f's_sub_u32 s35, s{S_W4}, 4096')
    a(f's_cmp_eq_u32 s{S_Q}, 3')
    a(f's_cselect_b32 s35, s35, s{S_B}')
    a('.p2align 3')
    for n in range(16): att_step(n, True)
    a('s_mov_b32 s36, 0')
    a('s_mov_b32 s34, 0')
    T.stamp('ap.head')
    ALP = L('alp')
    a('.p2align 6')
    a.label(ALP)
    for n in range(16): att_step(n, False)
    a(f's_cbranch_scc1 {ALP}')
    T.stamp('ap.loop')
    lp = L('cpw')
    a(f'v_mov_b32 v130, {PCN}')
    a.label(lp)
    a('ds_read_b32 v131, v130')
    a('s_waitcnt lgkmcnt(0)')
    a('v_cmp_gt_u32 vcc, 8, v131')
    a(f's_cbranch_vccnz {lp}')
    cjobs = list(range(8, 32))
    a('.p2align 3')
    for n in range(16): att_step(n, False, True)
    a('s_waitcnt lgkmcnt(0)')
    mfO(127, 1)
    T.stamp('c_attn_end'); T.stamp('ap.end'); T.stamp('att.c1'); T.stamp('att.r1', True)
    a('s_barrier')
    if 'slowsafe' in opt:
        sk = L('ss')
        a(f's_cmp_lg_u32 s{S_MODE}, 0\ns_cbranch_scc1 {sk}')
        for i in range(6): a('s_sleep 127')
        a.label(sk)
    a(f's_xor_b32 s29, s{S_X}, {HGX}')
    a('s_lshl_b32 s29, s29, 2')
    a(f's_add_u32 s29, s29, s{S_RB}')
    a(f's_lshl_b32 s26, s{S_CT}, 21')
    a(f's_lshl_b32 s27, s{S_Q}, 16')
    a('s_add_u32 s26, s26, s27')
    a('s_lshl_b32 s27, s29, 9')
    a('s_add_u32 s26, s26, s27')
    a(f's_add_u32 s26, s26, {GB + G_O}')
    a('s_add_u32 s27, s26, 32768')
    a(f's_lshl_b32 s28, s{S_CT}, 14')
    a(f's_lshl_b32 s30, s{S_Q}, 12')
    a('s_add_u32 s28, s28, s30')
    a('s_lshl_b32 s30, s29, 7')
    a('s_add_u32 s28, s28, s30')
    a(f's_add_u32 s28, s28, {F_O}')
    a(f'v_lshrrev_b32 v{KB}, 4, v4')
    a(f'v_lshlrev_b32 v{KB}, 14, v{KB}')
    a(f'v_lshl_add_u32 v{KB}, v5, 8, v{KB}')
    a(f'v_lshl_add_u32 v{KB}, v6, 4, v{KB}')
    FB, FBR = L('fb'), L('fbr')
    for u in range(2):
        Ou = O + 16*u
        a(f'v_max3_f32 v{SA+u}, |v{Ou}|, |v{Ou+1}|, |v{Ou+2}|')
        a(f'v_max3_f32 v{SA+u}, |v{Ou+3}|, |v{Ou+4}|, v{SA+u}')
        a(f'v_max3_f32 v{SA+u}, |v{Ou+5}|, |v{Ou+6}|, v{SA+u}')
    a(f'v_max3_f32 v{SA}, |v{O+7}|, |v{O+23}|, v{SA}')
    a(f'v_max_f32 v{SA}, v{SA}, v{SA+1}')
    a(f'v_mul_f32 v{SA}, {H(2.0**-60)}, v{SA}')
    a(f'v_max3_f32 v{SA}, v{O+8}, v{O+24}, v{SA}')
    a(f'v_min_f32 v{SA+1}, v{O+8}, v{O+24}')
    a(f'v_cmp_nle_f32 vcc, v{SA}, v{SA+2}' if False else f'v_mov_b32 v{SA+2}, {H(2.0**60)}')
    a(f'v_cmp_nle_f32 vcc, v{SA}, v{SA+2}')
    a(f'v_cmp_u_f32 s[30:31], v{O+8}, v{O+24}')
    a(f'v_cmp_ngt_f32 s[32:33], v{SA+1}, v{SA+3}' if False else f'v_mov_b32 v{SA+3}, {H(2.0**-60)}')
    a(f'v_cmp_ngt_f32 s[32:33], v{SA+1}, v{SA+3}')
    a('s_or_b64 vcc, vcc, s[30:31]')
    a('s_or_b64 vcc, vcc, s[32:33]')
    if force_fallback: a('s_mov_b64 vcc, -1')
    if 'nofb' in opt: a('s_mov_b64 vcc, 0')
    a(f's_cbranch_vccnz {FB}')
    a.label(FBR)
    for u in range(2):
        Ou = O + 16*u
        a(f'v_rcp_f32 v{SA+2*u}, v{Ou+8}')
    for u in range(2):
        Ou = O + 16*u
        for p in range(4): a(f'v_pk_mul_f32 {vr(Ou+2*p,2)}, {vr(Ou+2*p,2)}, {vr(SA+2*u,2)} op_sel_hi:[1,0]')
        for j in range(4): a(f'v_cvt_pk_bf16_f32 v{P+4*u+j}, v{Ou+2*j}, v{Ou+2*j+1}')
    a(f'buffer_store_dwordx4 {vr(P,4)}, v{KB}, s[8:11], s26 offen sc1')
    a(f'buffer_store_dwordx4 {vr(P+4,4)}, v{KB}, s[8:11], s27 offen sc1')
    a('s_mov_b32 s39, s28')
    a('s_waitcnt vmcnt(2)')

    GC0 = 12; AWA, AWB = 14, 15; HB = 16; MU, R1 = 24, 25; TMP = 26
    ACC = 32; ACT = 48; WF = 128; NWS = 2; CV = 112; LEAD = int(OP.get('lead', 7)); LX = int(OP.get('lx', 4))
    S_TA, S_SA, S_FA = 33, 34, 35
    a(f'v_add_u32 v{AWA}, {WA}, v3')
    a(f'v_add_u32 v{AWB}, {WB}, v3')
    def wread(ph, s, nt):
        b = WF + 16*(s % NWS) + 4*nt
        if ph == 2 and s == 15: return f'ds_read_b128 {vr(b,4)}, v{AWB} offset:{W1X - WB + nt*1024}'
        if ph == 2 and s >= 8: return f'ds_read_b128 {vr(b,4)}, v3 offset:{LOW + (s-8)*4096 + nt*1024}'
        if ph == 3 and s < NW2L: return f'ds_read_b128 {vr(b,4)}, v{AWB} offset:{W2L - WB + s*4096 + nt*1024}'
        return f'ds_read_b128 {vr(b,4)}, v{AWB if ph == 2 else AWA} offset:{s*4096 + nt*1024}'
    def wpre(ph):
        for s in range(NWS):
            for nt in range(4): a(wread(ph, s, nt))
    def gemm64(ph, ld, fill=None, zero=False, bar=None):
        T.stamp(f'g.p{ph}_go')
        for s in range(LEAD): ld(s)
        fill = list(fill or [])
        nl = LEAD
        for s in range(16):
            b = WF + 16*(s % NWS)
            a.vwait(('a', s), f'lgkmcnt({4 if s < 15 else 0})')
            if s in (0, 8): T.stamp(f'g.p{ph}_s{s}')
            if s == bar: a('s_barrier')
            for nt in range(4):
                c_ = '0' if (s == 0 and zero) else vr(ACC+4*nt,4)
                a(f'v_mfma_f32_16x16x32_bf16 {vr(ACC+4*nt,4)}, {vr(b+4*nt,4)}, {vr(ACT+4*(s%12),4)}, {c_}')
                if s + NWS < 16: a(wread(ph, s + NWS, nt))
                if (nt == 1 or (nt == 3 and s < LX)) and nl < 16 and nl < s + 12: ld(nl); nl += 1
                if s >= 4 and fill: a(fill.pop(0))
        assert not fill
    def ld_plain(s):
        if s and s % 4 == 0: a('s_add_u32 s29, s29, 4096')
        a.vissue(f'buffer_load_dwordx4 {vr(ACT+4*(s%12),4)}, v3, s[8:11], s29 offen offset:{(s&3)*1024} sc1', ('a', s))
    def xsum_lines(r0, r1, t0, t1):
        l = []
        for sw in ('v_permlane16_swap_b32', 'v_permlane32_swap_b32'):
            l += [f'v_mov_b32 v{t0}, v{r0}', f'v_mov_b32 v{t1}, v{r1}', f'{sw} v{r0}, v{t0}', f'{sw} v{r1}, v{t1}',
                  f'v_add_f32 v{r0}, v{r0}, v{t0}', f'v_add_f32 v{r1}, v{r1}, v{t1}']
        return l
    def addrs(act, tile, stats, flag):
        a(f's_lshl_b32 s26, s{S_SLAB}, 14')
        a(f's_add_u32 s26, s26, s{S_GB}')
        if act is not None: a(f's_add_u32 s29, s26, {act}')
        a(f's_lshl_b32 s27, s{S_CT}, 11')
        a(f's_add_u32 s{S_TA}, s26, s27')
        a(f's_add_u32 s{S_TA}, s{S_TA}, {tile}')
        a(f's_lshl_b32 s27, s{S_CT}, 3')
        a(f's_add_u32 s27, s27, s{S_GB}')
        if stats is not None:
            a(f's_lshl_b32 s{S_SA}, s{S_SLAB}, 10')
            a(f's_add_u32 s{S_SA}, s{S_SA}, s27')
            a(f's_add_u32 s{S_SA}, s{S_SA}, {stats}')
        a(f's_lshl_b32 s{S_FA}, s{S_SLAB}, 6')
        a(f's_add_u32 s{S_FA}, s{S_FA}, s27')
        a(f's_add_u32 s{S_FA}, s{S_FA}, {flag}')
    def pack16(dst):
        for nt in range(4):
            a(f'v_cvt_pk_bf16_f32 v{dst+2*nt}, v{ACC+4*nt}, v{ACC+4*nt+1}')
            a(f'v_cvt_pk_bf16_f32 v{dst+2*nt+1}, v{ACC+4*nt+2}, v{ACC+4*nt+3}')
    def tile_st(src):
        return [f'buffer_store_dwordx4 {vr(src,4)}, v3, s[8:11], s{S_TA} offen', f'buffer_store_dwordx4 {vr(src+4,4)}, v3, s[8:11], s{S_TA} offen offset:1024']
    def stats_lines(t):
        l = [f'v_pk_add_f32 {vr(t,2)}, {vr(ACC,2)}, {vr(ACC+2,2)}', f'v_pk_mul_f32 {vr(t+2,2)}, {vr(ACC,2)}, {vr(ACC,2)}',
             f'v_pk_fma_f32 {vr(t+2,2)}, {vr(ACC+2,2)}, {vr(ACC+2,2)}, {vr(t+2,2)}']
        for p in range(2, 8):
            l += [f'v_pk_add_f32 {vr(t,2)}, {vr(t,2)}, {vr(ACC+2*p,2)}', f'v_pk_fma_f32 {vr(t+2,2)}, {vr(ACC+2*p,2)}, {vr(ACC+2*p,2)}, {vr(t+2,2)}']
        l += [f'v_add_f32 v{t}, v{t}, v{t+1}', f'v_add_f32 v{t+1}, v{t+2}, v{t+3}']
        l += xsum_lines(t, t+1, t+2, t+3)
        l += ['s_mov_b64 exec, 0xffff', f'buffer_store_dwordx2 {vr(t,2)}, v{TMP+5}, s[8:11], s{S_SA} offen']
        return l
    def gelu_pk(regs, tmp):
        n = len(regs)
        for i, r in enumerate(regs): a(f'v_pk_mul_f32 {vr(tmp+2*i,2)}, {vr(r,2)}, {vr(r,2)}')
        for i, r in enumerate(regs): a(f'v_pk_fma_f32 {vr(tmp+2*i,2)}, {vr(tmp+2*i,2)}, {sr(S_C1,2)}, {vr(GC0,2)}')
        for i, r in enumerate(regs): a(f'v_pk_mul_f32 {vr(tmp+2*i,2)}, {vr(tmp+2*i,2)}, {vr(r,2)}')
        for i in range(2*n): a(f'v_exp_f32 v{tmp+i}, v{tmp+i}')
        for i, r in enumerate(regs): a(f'v_pk_add_f32 {vr(tmp+2*i,2)}, {vr(tmp+2*i,2)}, {sr(S_ONE,2)}')
        for i in range(2*n): a(f'v_rcp_f32 v{tmp+i}, v{tmp+i}')
        for i, r in enumerate(regs): a(f'v_pk_mul_f32 {vr(r,2)}, {vr(r,2)}, {vr(tmp+2*i,2)}')

    SH, PF3, STV, CSA_ = 96, 100, 101, 102
    S_AB, S_P2, S_SL, S_M3 = 36, 37, 38, 40
    wpre(1)
    for nt in range(4):
        for p in range(2):
            a(f'v_lshlrev_b32 v{ACC+4*nt+2*p}, 16, v{XR+2*nt+p}')
            a(f'v_and_b32 v{ACC+4*nt+2*p+1}, 0xffff0000, v{XR+2*nt+p}')
    addrs(G_O, G_H, G_ST1, G_FH)
    a(f's_mov_b32 s{S_AB}, s26')
    a(f'v_lshlrev_b32 v{TMP+5}, 6, v6')
    a(f'v_lshl_add_u32 v{STV}, v7, 4, v{TMP+5}')
    a(f'v_lshlrev_b32 v{CSA_}, 4, v7')
    a(f'v_mov_b32 v{GC0}, {H(GELU_C0)}\nv_mov_b32 v{GC0+1}, {H(GELU_C0)}')
    a(f's_lshl_b32 s{S_P2}, s{S_SLAB}, 6')
    a(f's_add_u32 s{S_P2}, s{S_P2}, s{S_GB}')
    a(f's_add_u32 s{S_P2}, s{S_P2}, {G_FH}')
    a(f's_lshl_b32 s{S_SL}, s{S_SLAB}, 10')
    a(f's_add_u32 s{S_SL}, s{S_SL}, s{S_GB}')
    a(f's_add_u32 s{S_SL}, s{S_SL}, {G_ST1}')
    NV = 104
    def fl(soff): return ['s_mov_b64 exec, 1', f'buffer_store_dwordx2 v[{NV}:{NV+1}], off, s[8:11], {soff}', 's_mov_b64 exec, -1']
    a(f'v_mov_b32 v{NV}, s{S_NON}\nv_mov_b32 v{NV+1}, s{S_NON+1}')
    a('s_waitcnt vmcnt(0)')
    for l in fl('s39'): a(l + (' sc1' if l.startswith('buffer') else ''))
    T.stamp('c_pub0'); T.stamp('ap.A16')
    a(f's_lshl_b32 s27, s{S_X}, 4')
    a(f's_add_u32 s27, s27, s{S_SLAB}')
    a(f's_bfe_u32 s28, s{S_CT}, 0x10001')
    a('s_cmp_eq_u32 s28, 1')
    a('s_cselect_b32 s28, 0, 15')
    a(f's_cmp_eq_u32 s{S_SLAB}, s28')
    a(f's_cselect_b32 s{S_U+1}, 1, 0')
    a('s_add_u32 s28, s27, 1')
    a('s_and_b32 s28, s28, 126')
    a('s_cmp_eq_u32 s28, 0')
    a(f's_cselect_b32 s{S_U+1}, 0, s{S_U+1}')
    a(f's_cmp_eq_u32 s{S_U+1}, 1')
    a(f's_cselect_b32 s{S_M2}, 0, s{S_MODE}')
    a(f's_cmp_eq_u32 s{S_SLAB}, 0')
    a(f's_mov_b32 s{S_U+2}, {0x200000 + G_FHX}')
    a(f's_cselect_b32 s{S_U+2}, {(G_FHX + 1024 - 0x200000) & 0xffffffff}, s{S_U+2}')
    a(f's_add_u32 s{S_U+2}, s{S_U+2}, s{S_GB}')
    a(f's_lshl_b32 s28, s{S_CT}, 7')
    a(f's_add_u32 s{S_U+2}, s{S_U+2}, s28')
    a(f's_mov_b32 s{S_M3}, 0xccff33')
    a('s_cmp_eq_u32 s27, 0')
    a(f's_cselect_b32 s{S_M3}, 0xccff00, s{S_M3}')
    a('s_cmp_eq_u32 s27, 127')
    a(f's_cselect_b32 s{S_M3}, 0x00ff33, s{S_M3}')
    a(f's_mov_b32 s{S_M3+1}, 0')
    a('s_lshl_b32 s26, s27, 4')
    a(f's_lshl_b32 s28, s{S_SLAB}, 6')
    a(f's_add_u32 s28, s28, {G_FHH - 64}')
    a(f'v_add_u32 v{PF3}, s28, v1')
    a('v_lshrrev_b32 v10, 3, v2')
    a(f's_sub_u32 s27, s{S_SLAB}, 1')
    a('v_add_u32 v10, s27, v10')
    a('v_cmp_lt_u32 vcc, 15, v10')
    a('v_and_b32 v10, 7, v2')
    a('v_lshl_add_u32 v10, v7, 3, v10')
    a('v_lshlrev_b32 v10, 7, v10')
    a(f'v_add_u32 v10, {G_FHX}, v10')
    a(f'v_cndmask_b32 v{PF3}, v{PF3}, v10, vcc')
    for gi, d in enumerate((-1, 1, -2, 2)):
        a('v_add_u32 v10, s26, v6')
        a(f'v_add_u32 v10, {d}, v10')
        a('v_bfe_u32 v11, v10, 4, 4')
        a('v_lshlrev_b32 v11, 14, v11')
        a(f'v_lshrrev_b32 v{TMP}, 8, v10')
        a(f'v_lshl_add_u32 v11, v{TMP}, 21, v11')
        a(f'v_and_b32 v{TMP}, 15, v10')
        a(f'v_lshl_add_u32 v11, v{TMP}, 4, v11')
        a('v_lshl_add_u32 v11, v7, 8, v11')
        a('v_cmp_gt_u32 vcc, 0x800, v10')
        a(f'v_mov_b32 v{TMP}, 0x70000000')
        a(f'v_cndmask_b32 v{SH+gi}, v{TMP}, v11, vcc')
    fixwait('fixa17', 45)
    a('s_barrier')
    a.vm = ['fl']
    T.stamp('p1_poll'); T.stamp('ap.A17')
    gemm64(1, ld_plain)
    T.stamp('p1_gemm'); T.stamp('g.p1_gemm')
    pack16(HB)
    pre2 = [wread(2, s_, nt) for s_ in range(NWS) for nt in range(4)] + [f'ds_read_b128 {vr(CV+4*nt,4)}, v{CSA_} offset:{CS1 + 64*nt}' for nt in range(4)]
    st2(tile_st(HB) + stats_lines(ACT) + ['s_mov_b64 exec, -1', 's_barrier'] + pre2 + ['s_waitcnt vmcnt(0)'] + fl(f's{S_FA}'))
    T.stamp('pub1'); T.stamp('g.pub1')
    a(f's_add_u32 s29, s{S_AB}, {G_H}')
    a(f's_add_u32 s{S_TA}, s{S_TA}, {(G_HH - G_H) & 0xffffffff}')
    a(f's_add_u32 s{S_FA}, s{S_FA}, {G_FHH - G_FH}')
    poll('v1', f's{S_P2}', '0xff')
    T.stamp('p2_poll')
    a.vissue(f'buffer_load_dwordx4 {vr(TMP,4)}, v{STV}, s[8:11], s{S_SL} offen sc1', 'st')
    a('s_waitcnt lgkmcnt(0)')
    fill = [f'v_add_f32 v{TMP}, v{TMP}, v{TMP+2}', f'v_add_f32 v{TMP+1}, v{TMP+1}, v{TMP+3}'] + xsum_lines(TMP, TMP+1, TMP+2, TMP+3) + [
        f'v_mul_f32 v{MU}, {H(-1/512)}, v{TMP}', f'v_mul_f32 v{TMP+1}, {H(1/512)}, v{TMP+1}',
        f'v_fma_f32 v{TMP+1}, -v{MU}, v{MU}, v{TMP+1}', f'v_max_f32 v{TMP+1}, 0, v{TMP+1}',
        f'v_add_f32 v{TMP+2}, {H(1e-5)}, v{TMP+1}', f'v_rsq_f32 v{TMP}, v{TMP+2}', f'v_mul_f32 v{TMP+2}, v{TMP}, v{TMP}',
        f'v_fmaak_f32 v{TMP+2}, v{TMP+2}, v{TMP+1}, {H(1e-5)}', f'v_rsq_f32 v{TMP+2}, v{TMP+2}', f'v_mul_f32 v{TMP+2}, v{TMP+2}, v{TMP}',
        f'v_mul_f32 v{TMP+3}, v{TMP+2}, v{MU}', f'v_mul_f32 v{MU}, v{MU}, v{TMP}'] + [f'v_mul_f32 v{CV+i}, v{TMP+3}, v{CV+i}' for i in range(16)]
    gemm64(2, ld_plain, fill, zero=True)
    T.stamp('p2_gemm'); T.stamp('g.p2_gemm')
    for p in range(8): a(f'v_pk_fma_f32 {vr(ACC+2*p,2)}, {vr(ACC+2*p,2)}, {vr(TMP+2,2)}, {vr(CV+2*p,2)} op_sel_hi:[1,0,1]')
    gelu_pk([ACC+2*p for p in range(8)], ACT)
    pack16(ACT+16)
    st2(tile_st(ACT+16), S_M2)
    a('s_barrier')
    wpre(3)
    for nt in range(4):
        for p in range(2):
            a(f'v_lshlrev_b32 v{ACC+4*nt+2*p}, 16, v{HB+2*nt+p}')
            a(f'v_and_b32 v{ACC+4*nt+2*p+1}, 0xffff0000, v{HB+2*nt+p}')
    for p in range(8): a(f'v_pk_fma_f32 {vr(ACC+2*p,2)}, {vr(ACC+2*p,2)}, {vr(TMP,2)}, {vr(MU,2)} op_sel_hi:[1,0,0]')
    a('s_waitcnt vmcnt(0)')
    st2(fl(f's{S_FA}'))
    sk = L('hx')
    a(f's_cmp_eq_u32 s{S_U+1}, 0\ns_cbranch_scc1 {sk}')
    for l in fl(f's{S_U+2}'): a(l + (' sc1' if l.startswith('buffer') else ''))
    a.label(sk)
    T.stamp('pub2'); T.stamp('g.pub2')
    a(f's_add_u32 s{S_TA}, s{S_TA}, {G_X1 - G_HH}')
    a(f's_add_u32 s{S_SA}, s{S_SA}, {G_ST2 - G_ST1}')
    a(f's_add_u32 s{S_FA}, s{S_FA}, {G_FX1 - G_FHH}')
    poll(f'v{PF3}', f's{S_GB}', f's[{S_M3}:{S_M3+1}]')
    T.stamp('p3_poll')
    def ld_shift(s):
        if s % 4 == 0: a(f's_mov_b32 s29, {GB + G_HH + (s>>2)*4096}')
        a.vissue(f'buffer_load_dwordx4 {vr(ACT+4*(s%12),4)}, v{SH+(s>>2)}, s[8:11], s29 offen offset:{(s&3)*1024} sc1', ('a', s))
    gemm64(3, ld_shift)
    T.stamp('p3_gemm'); T.stamp('g.p3_gemm')
    pack16(ACT+16)
    st2(tile_st(ACT+16) + stats_lines(ACT) + ['s_barrier', 's_waitcnt vmcnt(0)'] + fl(f's{S_FA}'))
    a(f's_lshl_b32 s26, s{S_Q}, 13')
    a(f'v_add_u32 v{AWB}, s26, v{AWB}')
    for i in range(8): a(f'ds_read_b128 {vr(W3+4*i,4)}, v{AWB} offset:{i*1024}')
    for nt in range(4):
        for p in range(2):
            a(f'v_lshlrev_b32 v{ACT+4*nt+2*p}, 16, v{HB+2*nt+p}')
            a(f'v_and_b32 v{ACT+4*nt+2*p+1}, 0xffff0000, v{HB+2*nt+p}')
    for p in range(8): a(f'v_pk_add_f32 {vr(ACT+2*p,2)}, {vr(ACT+2*p,2)}, {vr(ACC+2*p,2)}')
    a(f's_add_u32 s26, s26, {W3L}')
    a(f's_cmp_eq_u32 s{S_Q}, 3')
    a(f's_cselect_b32 s26, {RES3}, s26')
    a('v_xor_b32 v10, v6, v7')
    a('v_lshlrev_b32 v10, 4, v10')
    a('v_lshl_add_u32 v10, v6, 8, v10')
    a('v_add_u32 v10, s26, v10')
    for nt in range(4):
        a(f'v_xor_b32 v{TMP+nt}, {64*nt}, v10')
        a(f'ds_write_b128 v{TMP+nt}, {vr(ACT+4*nt,4)}')
    a('s_waitcnt lgkmcnt(0)')
    T.stamp('pub3'); T.stamp('g.pub3')
    p4_prologue()

    a.label(HJOIN)
    a.vm = []
    A4 = 24; C3 = 56; XF = 72; T4 = 88; PKO = 120
    flag_prep()
    a('s_waitcnt vmcnt(0)')
    a('s_barrier')
    T.stamp('p4_go'); T.stamp('g.p4go'); T.stamp('p4.go')
    h4, j4 = L('help'), L('join')
    a(f's_cmp_eq_u32 s{S_WAVE}, 3')
    a(f's_cbranch_scc1 {h4}')
    WS_ = [128+4*k for k in range(20)] + [96+4*k for k in range(6)] + [128+4*k for k in range(4)] + [96, 100]
    def rdX(i):
        a(f'ds_read_b128 {vr(XF+4*(i&3),4)}, v14 offset:{(i&1)*32768 + (i>>1)*512}')
    def ldW4(f):
        a(f's_add_u32 s30, s{S_W4}, {(f >> 2)*4096}')
        a.vissue(f'buffer_load_dwordx4 {vr(W4+4*f,4)}, v3, s[8:11], s30 offen offset:{(f&3)*1024} sc1', 'w4')
    def ldW3(f):
        a(f's_add_u32 s30, s{S_B}, {(f >> 2)*4096}')
        a.vissue(f'buffer_load_dwordx4 {vr(WS_[f],4)}, v3, s[8:11], s30 offen offset:{(f&3)*1024} {WF_}', ('w', f))
    def epi_scalar(mt, dst):
        b = T4 + 4*mt; A = A4 + 16*mt; t = T4 + 8
        l = []
        for g in range(4):
            R = [A+4*g+i for i in range(4)]; Tt = [t+4*(g&1)+i for i in range(4)]
            l += [f'v_fmac_f32 v{r}, v{b}, v{C3+4*g+i}' for i, r in enumerate(R)]
            l += [f'v_mul_f32 v{x}, v{r}, v{r}' for x, r in zip(Tt, R)]
            l += [f'v_fma_f32 v{x}, v{x}, v{b+2}, v{b+1}' for x in Tt]
            l += [f'v_mul_f32 v{x}, v{x}, v{r}' for x, r in zip(Tt, R)]
            l += [f'v_exp_f32 v{x}, v{x}' for x in Tt]
            l += [f'v_fma_f32 v{x}, v{x}, v{b+3}, v{b+3}' for x in Tt]
            l += [f'v_rcp_f32 v{x}, v{x}' for x in Tt]
            l += [f'v_mul_f32 v{r}, v{r}, v{x}' for x, r in zip(Tt, R)]
            l += [f'v_cvt_pk_bf16_f32 v{dst+2*g}, v{R[0]}, v{R[1]}', f'v_cvt_pk_bf16_f32 v{dst+2*g+1}, v{R[2]}, v{R[3]}']
        return l
    def only(kind, lines):
        sk = L('on')
        a(f's_cmp_lt_u32 s{S_WAVE}, 4')
        a(f's_cbranch_scc{1 if kind == "B" else 0} {sk}')
        for l in lines: a(l)
        a.label(sk)
    def flag_issue(sbase, tag, mask):
        a(f's_mov_b64 exec, {mask}')
        a.vissue(f'buffer_load_dwordx2 v[16:17], v1, s[8:11], {sbase} offen sc1', tag)
        a('s_mov_b64 exec, -1')
    def flag_check(sbase, tag, mask):
        a.vwait(tag)
        bk_ = L('bk')
        a(f's_mov_b64 exec, {mask}')
        a(f'v_cmp_ne_u64 vcc, {sr(S_NON,2)}, v[16:17]')
        a('s_mov_b64 exec, -1')
        a(f's_cbranch_vccz {bk_}')
        keep = list(a.vm)
        poll('v1', sbase, mask)
        a.vm = keep
        a.label(bk_)
    for i in range(3): rdX(i)
    a('s_setprio 2')
    if 'stag' in opt: only('B', ['s_setprio 1', 's_nop 15'] + x1_lines(1) + ['s_waitcnt vmcnt(0)', 's_barrier'])
    else: only('B', ['s_setprio 1'] + x1_lines(1))
    for i in range(64):
        ks, mt = i >> 1, i & 1
        if i == 28 and 'stag' in opt: only('A', ['s_barrier'])
        elif i == 28:
            a.vwait(('w', 20))
            a('s_barrier')
        if i == 60:
            a(f'ds_read_b128 {vr(T4,4)}, v16 offset:{ST4}')
            a(f'ds_read_b128 {vr(T4+4,4)}, v16 offset:{ST4+512}')
        if i == 2: T.stamp('p4.first')
        if i == 32: T.stamp('p4.half')
        if i + 3 < 64: rdX(i + 3)
        lg = f'lgkmcnt({min(3, 63 - i) + (2 if i in (60, 61, 62) else 0)})'
        if mt == 0 and ks >= 20: a.vwait(('w', ks), lg)
        else: a(f's_waitcnt {lg}')
        c_ = '0' if ks == 0 else vr(A4+16*mt,16)
        a(f'v_mfma_f32_32x32x16_bf16 {vr(A4+16*mt,16)}, {vr(WS_[ks],4)}, {vr(XF+4*(i&3),4)}, {c_}')
        W0 = int(OP.get('w0', 4))
        if 'allp' in opt:
            if mt == 1 and W0 <= ks < W0 + 10: ldW3(20 + ks - W0)
            if mt == 1 and W0 + 10 <= ks < W0 + 26: ldW4(ks - W0 - 10)
            if mt == 0 and ks in (21, 22): ldW3(9 + ks)
        else:
            if mt == 1 and W0 <= ks < W0 + 10: ldW3(20 + ks - W0)
            if mt == 0 and 14 <= ks < 20: ldW4(ks - 14)
            if mt == 1 and ks in (20, 21): ldW3(10 + ks)
    a('s_setprio 3')
    T.stamp('p4_gemm'); T.stamp('p4.pass1')
    def epi_packed(mt, dst):
        b = T4 + 4*mt; A = A4 + 16*mt; t = 128
        l = [f'v_mov_b32 v96, v{b+1}', f'v_mov_b32 v98, v{b+3}']
        l += [f'v_pk_fma_f32 {vr(A+2*p,2)}, {vr(C3+2*p,2)}, {vr(b,2)}, {vr(A+2*p,2)} op_sel_hi:[1,0,1]' for p in range(8)]
        l += [f'v_pk_mul_f32 {vr(t+2*p,2)}, {vr(A+2*p,2)}, {vr(A+2*p,2)}' for p in range(8)]
        l += [f'v_pk_fma_f32 {vr(t+2*p,2)}, {vr(t+2*p,2)}, {vr(b+2,2)}, v[96:97] op_sel_hi:[1,0,0]' for p in range(8)]
        l += [f'v_pk_mul_f32 {vr(t+2*p,2)}, {vr(t+2*p,2)}, {vr(A+2*p,2)}' for p in range(8)]
        l += [f'v_exp_f32 v{t+k}, v{t+k}' for k in range(16)]
        l += [f'v_pk_fma_f32 {vr(t+2*p,2)}, {vr(t+2*p,2)}, v[98:99], v[98:99] op_sel_hi:[1,0,0]' for p in range(8)]
        l += [f'v_rcp_f32 v{t+k}, v{t+k}' for k in range(16)]
        l += [f'v_pk_mul_f32 {vr(A+2*p,2)}, {vr(A+2*p,2)}, {vr(t+2*p,2)}' for p in range(8)]
        l += [f'v_cvt_pk_bf16_f32 v{dst+p}, v{A+2*p}, v{A+2*p+1}' for p in range(8)]
        return l
    a('s_nop 9')
    stl = lambda dst, sb: [f'buffer_store_dwordx4 {vr(dst,4)}, v3, s[8:11], {sb} offen', f'buffer_store_dwordx4 {vr(dst+4,4)}, v3, s[8:11], {sb} offen offset:1024']
    def with_w4(lines):
        if 'allp' in opt: return lines
        out = []; step = len(lines) // 11; f = 6
        for k, l in enumerate(lines):
            out.append(l)
            if k % step == step - 1 and f < 16:
                out += [f's_add_u32 s30, s{S_W4}, {(f >> 2)*4096}', f'buffer_load_dwordx4 {vr(W4+4*f,4)}, v3, s[8:11], s30 offen offset:{(f&3)*1024} sc1']
                f += 1
        assert f == 16
        return out
    only('A', with_w4(epi_scalar(0, PKO)))
    only('B', with_w4(epi_packed(0, PKO)))
    st2(stl(PKO, 's26'))
    T.stamp('p4.epi0')
    a('s_setprio 2')
    ep = epi_packed(1, 104); es = epi_scalar(1, 104)
    if 'stag' in opt:
        only('A', es[:68]); only('B', ep[:58])
    else:
        for l in ep[:58]: a(l)
    st2(['s_waitcnt vmcnt(0)'] + flag_lines('s35'))
    if 'stag' in opt:
        only('A', es[68:]); only('B', ep[58:])
    else:
        for l in ep[58:]: a(l)
    T.stamp('p4.epi1')
    st2(stl(104, 's27'))
    flag_issue('s32', 'fA', '0x7f')
    st2(['s_waitcnt vmcnt(0)'] + flag_lines('s29'))
    a('s_setprio 0')
    a(f's_branch {j4}')
    a.label(h4)
    for k in range(4): a(f'buffer_load_dwordx4 {vr(24+4*k,4)}, v3, s[8:11], s28 offen offset:{1024*k} sc1')
    a('v_lshrrev_b32 v40, 2, v2')
    a('v_lshl_add_u32 v40, v9, 4, v40')
    a('v_lshlrev_b32 v40, 4, v40')
    a('v_cmp_eq_u32 s[74:75], 1, v9')
    a(f'v_cmp_eq_u32 s[{S_A}:{S_B}], 2, v9')
    a('v_cmp_eq_u32 vcc, 3, v9')
    a('s_waitcnt vmcnt(0) lgkmcnt(0)')
    for k in range(4): a(f'v_pk_add_f32 {vr(24+4*k,2)}, {vr(24+4*k,2)}, {vr(26+4*k,2)}')
    for perm in ('[1,0,3,2]', '[2,3,0,1]'):
        for k in range(4):
            for e in range(2): a(f'v_add_f32_dpp v{24+4*k+e}, v{24+4*k+e}, v{24+4*k+e} quad_perm:{perm} row_mask:0xf bank_mask:0xf')
    for k, m in ((1, 's[74:75]'), (2, f's[{S_A}:{S_B}]'), (3, 'vcc')):
        a(f'v_cndmask_b32 v24, v24, v{24+4*k}, {m}')
        a(f'v_cndmask_b32 v25, v25, v{25+4*k}, {m}')
    a(f'v_mul_f32 v24, {H(-1/512)}, v24')
    a(f'v_mul_f32 v25, {H(1/512)}, v25')
    a('v_fma_f32 v25, -v24, v24, v25')
    a('v_max_f32 v25, 0, v25')
    a(f'v_add_f32 v28, {H(1e-5)}, v25')
    a('v_rsq_f32 v29, v28')
    a('v_sqrt_f32 v27, v28')
    a(f'v_mul_f32 v25, {H(GELU_C0)}, v29')
    a('v_mul_f32 v26, v29, v29')
    a('v_mul_f32 v26, v26, v29')
    a(f'v_mul_f32 v26, {H(GELU_C1)}, v26')
    a(f'ds_write_b128 v40, v[24:27] offset:{ST4}')
    a('s_waitcnt lgkmcnt(0)')
    a('s_barrier')
    for f in range(4): ldW4(f)
    if 't3' in opt:
        a(f's_mul_i32 s30, s{S_CT}, 14336')
        a('s_add_u32 s30, s30, s33')
        a('v_lshlrev_b32 v40, 7, v2')
        a('s_mov_b32 exec_hi, 0xffffff')
        for k in range(4):
            a('buffer_load_dword v41, v40, s[8:11], s30 offen sc1')
            a(f's_add_u32 s30, s30, {7168 if k != 1 else 114688 - 7168}')
            a('s_waitcnt vmcnt(0)')
        a('s_mov_b32 exec_hi, -1')
    if 'wb1' in opt:
        sk = L('wb')
        a(f's_cmp_lg_u32 s{S_I}, 5\ns_cbranch_scc1 {sk}')
        a('buffer_wbl2 sc1')
        a.label(sk)
    poll('v1', 's32', '0x7f', sleep=3)
    a(f'v_mov_b32 v16, s{S_NON}\nv_mov_b32 v17, s{S_NON+1}')
    a.label(j4)
    a.vm = []
    T.stamp('pub4'); T.stamp('p4.pub')

    RS_ = 120
    HAS = [56, 60, 64, 68, 128, 132, 136, 140, 72, 76, 80, 84]
    ACC5 = lambda nt, mt: (24 if mt == 0 else 88) + 16*nt
    order = [(mt, ks) for mt in range(2) for ks in range(14)]
    def ldA(i):
        mt, ks = order[i]
        a(f's_add_u32 s30, s31, {mt*114688 + (ks//4)*4096}')
        a.vissue(f'buffer_load_dwordx4 {vr(HAS[i % 12],4)}, v3, s[8:11], s30 offen offset:{(ks%4)*1024} {HF_}', ('h', i))
    flag_check('s32', 'none', '0x7f')
    a('s_add_u32 s32, s32, 2048')
    T.stamp('p5_poll'); T.stamp('p4.p5poll')
    for i in range(6): ldA(i)
    a(f'ds_read_b128 {vr(RS_,4)}, v20')
    a(f'ds_read_b128 {vr(RS_+4,4)}, v21')
    def wr_list(mt):
        l = []
        for nt in range(2):
            for q in range(4):
                oct_ = 4*nt + q
                l.append([f'v_xor_b32 v{18+(q&1)}, {oct_*32 + mt*65536}, v13',
                          f'ds_write_b128 v{18+(q&1)}, {vr(ACC5(nt,mt)+4*q,4)} offset:{RED + oct_*1024}'])
        return l
    wl = wr_list(0)
    nxt = 6
    RD = 144; SUM = RS_
    L5 = int(OP.get('l5', 5))
    for i, (mt, ks) in enumerate(order):
        a.vwait(('h', i), 'lgkmcnt(0)' if i in (0,) else '')
        if i == 14: a('s_barrier')
        if i in (0, 7, 14, 21): T.stamp(f'p4.p5_{i}')
        for nt in range(2):
            A = ACC5(nt, mt)
            c_ = '0' if ks == 0 else vr(A,16)
            a(f'v_mfma_f32_32x32x16_bf16 {vr(A,16)}, {vr(W4+8*ks+4*nt,4)}, {vr(HAS[i % 12],4)}, {c_}')
        if i == 3: flag_issue('s32', 'fB', '0x7f')
        if i == 6: flag_check('s32', 'fB', '0x7f')
        lim = 14 if i < 6 else 28
        for _ in range(2):
            if nxt < lim and nxt <= i + L5:
                ldA(nxt); nxt += 1
        if i >= 15 and wl:
            for l in wl.pop(0): a(l)
    assert nxt == 28 and not wl
    if 'wb2' in opt:
        sk = L('wb')
        a(f's_lshl_b32 s30, s{S_I}, 3')
        a(f's_or_b32 s30, s30, s{S_WAVE}')
        a(f's_cmp_lg_u32 s30, 40\ns_cbranch_scc1 {sk}')
        a('buffer_wbl2 sc1')
        a.label(sk)
    T.stamp('p5_gemm'); T.stamp('p4.p5gemm')
    for g in wr_list(1):
        for l in g: a(l)
    a('s_waitcnt lgkmcnt(0)')
    a('s_barrier')
    T.stamp('p4.E1')
    for mt in range(2):
        for src in range(8):
            a(f'ds_read_b128 {vr(RD+32*mt+4*src,4)}, v{22+mt} offset:{RED + src*8192}')
    for mt in range(2):
        for src in range(8):
            if src % 2 == 0: a(f's_waitcnt lgkmcnt({14-8*mt-src})')
            for p in range(2): a(f'v_pk_add_f32 {vr(SUM+4*mt+2*p,2)}, {vr(SUM+4*mt+2*p,2)}, {vr(RD+32*mt+4*src+2*p,2)}')
        for p in range(2): a(f'v_cvt_pk_bf16_f32 v{24+2*mt+p}, v{SUM+4*mt+2*p}, v{SUM+4*mt+2*p+1}')
        a(f'buffer_store_dwordx2 {vr(24+2*mt,2)}, v12, s[16:19], s{72+mt} offen {OP.get("of", "")}')
    if diag: a('s_waitcnt vmcnt(0)')
    fixwait('fixend', 70)
    T.stamp('end'); T.stamp('end_rt', True)
    T.flush(P_WS, 0, S_WAVE, TS)
    if 'dbgout' in opt:
        sk = L('do')
        a(f's_lshl_b32 s26, s{S_WAVE}, 8')
        a('s_or_b32 s26, s26, s2')
        a(f's_cmp_lg_u32 s26, 77\ns_cbranch_scc1 {sk}')
        srd(16, P_DBG, 256)
        a('s_mov_b64 exec, 1')
        for k, nm in enumerate(['c_b0', 'c_gemm', 'c_pub', 'c_kv0', 'c_attn_end', 'p1_poll', 'pub1', 'pub2', 'pub3', 'p4_go', 'pub4', 'p5_poll', 'p5_gemm', 'end_rt']):
            a(f's_sub_u32 s26, s{76+T.names.index(nm)}, s76')
            a('v_mov_b32 v1, s26')
            a(f'buffer_store_dword v1, off, s[16:19], 0 offset:{8+4*k}')
        a.label(sk)
    a('s_endpgm')

    for lines in a.cold2:
        for l in lines: a(l)
    for (lab, lines, back) in a.cold:
        a.label(lab)
        a('s_nop 7')
        for l in lines: a(l)
        a('s_nop 7')
        a(f's_branch {back}')
    NM = 128
    a.label(FB)
    a('s_nop 15')
    a(f's_add_u32 s30, s{S_HD}, 0x10000')
    a(f's_add_u32 s31, s{S_HD}, 0x20000')
    a(f'v_mov_b32 v{NM}, 0xff800000\nv_mov_b32 v{NM+16}, 0xff800000')
    a('s_mov_b32 s32, 0')
    l1 = L('fb1')
    a.label(l1)
    a('s_add_u32 s33, s30, s32')
    a(f'buffer_load_dwordx4 {vr(KB+4,4)}, v3, s[8:11], s33 offen sc1')
    a('s_waitcnt vmcnt(0)')
    for u, S in ((0, SA), (1, SB)):
        a(f'v_mfma_f32_32x32x16_bf16 {vr(S,16)}, {vr(KB+4,4)}, {vr(Q+4*u,4)}, 0')
    for u, S in ((0, SA), (1, SB)):
        for i in range(8): a(f'v_max3_f32 v{NM+16*u}, v{S+2*i}, v{S+2*i+1}, v{NM+16*u}')
    a('s_add_u32 s32, s32, 1024')
    a('s_cmp_lt_u32 s32, 0x10000')
    a(f's_cbranch_scc1 {l1}')
    for u in range(2):
        m = NM + 16*u
        a(f'v_mov_b32 v{m+1}, v{m}')
        a(f'v_permlane32_swap_b32 v{m}, v{m+1}')
        a(f'v_max_f32 v{m}, v{m}, v{m+1}')
        a(f'v_sub_f32 v{m}, 0, v{m}')
        for i in range(1, 16): a(f'v_mov_b32 v{m+i}, v{m}')
    for i in range(32): a(f'v_mov_b32 v{O+i}, 0')
    a('v_and_b32 v10, 27, v4')
    a('v_cmp_eq_u32 vcc, 16, v10')
    a('v_mov_b32 v10, 0x3f803f80')
    for i in range(8): a(f'v_cndmask_b32 v{VB+i}, 0, v10, vcc')
    a('v_lshlrev_b32 v10, 8, v5')
    a('v_lshl_add_u32 v10, v6, 4, v10')
    a('s_mov_b32 s32, 0')
    a('s_mov_b32 s34, 0xffff\ns_mov_b32 s35, 0xffff')
    l2 = L('fb2')
    a.label(l2)
    a('s_add_u32 s33, s30, s32')
    a(f'buffer_load_dwordx4 {vr(KB+4,4)}, v3, s[8:11], s33 offen sc1')
    a('s_add_u32 s33, s31, s32')
    a('s_mov_b64 exec, s[34:35]')
    a(f'buffer_load_dwordx4 {vr(VB,4)}, v10, s[8:11], s33 offen sc1')
    a(f'buffer_load_dwordx4 {vr(VB+4,4)}, v10, s[8:11], s33 offen offset:512 sc1')
    a('s_mov_b64 exec, -1')
    a('s_waitcnt vmcnt(0)')
    for u, S in ((0, SA), (1, SB)):
        a(f'v_mfma_f32_32x32x16_bf16 {vr(S,16)}, {vr(KB+4,4)}, {vr(Q+4*u,4)}, {vr(NM+16*u,16)}')
    for u, S in ((0, SA), (1, SB)):
        for i in range(16): a(f'v_exp_f32 v{S+i}, v{S+i}')
        for j in range(8): a(f'v_cvt_pk_bf16_f32 v{P+j}, v{S+2*j}, v{S+2*j+1}')
        for f in range(2):
            a(f'v_mfma_f32_32x32x16_bf16 {vr(O+16*u,16)}, {vr(VB+4*f,4)}, {vr(P+4*f,4)}, {vr(O+16*u,16)}')
        a('s_nop 15')
    a('s_add_u32 s32, s32, 1024')
    a('s_cmp_lt_u32 s32, 0x10000')
    a(f's_cbranch_scc1 {l2}')
    a('s_nop 15')
    a(f's_branch {FBR}')
    a.label(END)
    a('s_endpgm')
    return a, LDS_SIZE
```
